```python
import torch

def _softmax(x, axis=-1):
    return torch.softmax(x, dim=axis)

def _gelu(x):
    return torch.nn.functional.gelu(x, approximate='tanh')

def _silu(x):
    return torch.nn.functional.silu(x)

def _sigmoid(x):
    return torch.sigmoid(x)

def _layernorm(x, axis=-1, eps=1e-05):
    m = x.mean(dim=axis, keepdim=True)
    v = x.var(dim=axis, keepdim=True, unbiased=False)
    return (x - m) / torch.sqrt(v + eps)

def _scatter_add(tgt, idx, src, axis=0):
    return tgt.clone().index_add_(axis, idx, src)

def _segment_sum(src, seg, n):
    out = torch.zeros((n,) + src.shape[1:], dtype=src.dtype)
    return out.index_add_(0, seg, src)

def _pad(x, pw):
    flat = tuple((v for pair in reversed(pw) for v in pair))
    return torch.nn.functional.pad(x, flat)
kernel_name = 'recurrent_scan__ssm_conv_s4d__mixer_gmlp__prompt'

def setup_inputs():

    _w = lambda a: (lambda t: t.to(torch.bfloat16) if t.is_floating_point() else t)(torch.as_tensor(a))

    def _A_setup():
        Bsz, L, D, N = (1, 2048, 576, 128)
        return {'u': _w((lambda *s: torch.randn(*s, dtype=torch.bfloat16) * 0.05)(Bsz, L, D)), 'log_A_real': _w((lambda *s: torch.randn(*s, dtype=torch.bfloat16) * 6.4)(D, N) * 0.5), 'A_imag': _w((lambda *s: torch.randn(*s, dtype=torch.bfloat16) * 0.05)(D, N) * 3.14), 'C_real': _w((lambda *s: torch.randn(*s, dtype=torch.bfloat16) * 0.05)(D, N) / N ** 0.5), 'C_imag': _w((lambda *s: torch.randn(*s, dtype=torch.bfloat16) * 0.05)(D, N) / N ** 0.5), 'log_dt': _w((lambda *s: torch.randn(*s, dtype=torch.bfloat16) * 0.05)(D) * 0.5 - 4.0), 'D_skip': _w((lambda *s: torch.randn(*s, dtype=torch.bfloat16) * 0.05)(D))}
    _A_in = _A_setup()

    def _B_setup():
        B, S, D, F = (1, 2048, 576, 4608)
        Fh = F // 2
        return {'x': _w((lambda *s: torch.randn(*s, dtype=torch.bfloat16) * 0.05)(B, S, D)), 'w_in': _w((lambda *s: torch.randn(*s, dtype=torch.bfloat16) * 0.4)(D, 2 * Fh)), 'w_sp': _w(0.01 * (lambda *s: torch.randn(*s, dtype=torch.bfloat16) * 0.4)(S, S)), 'b_sp': _w(1.0 + 0.01 * (lambda *s: torch.randn(*s, dtype=torch.bfloat16) * 0.05)(S)), 'w_out': _w((lambda *s: torch.randn(*s, dtype=torch.bfloat16) * 0.05)(Fh, D))}
    _B_in = _B_setup()
    return {'A_u': _A_in['u'], 'A_log_A_real': _A_in['log_A_real'], 'A_A_imag': _A_in['A_imag'], 'A_C_real': _A_in['C_real'], 'A_C_imag': _A_in['C_imag'], 'A_log_dt': _A_in['log_dt'], 'A_D_skip': _A_in['D_skip'], 'B_x': _B_in['x'], 'B_w_in': _B_in['w_in'], 'B_w_sp': _B_in['w_sp'], 'B_b_sp': _B_in['b_sp'], 'B_w_out': _B_in['w_out']}

def reference(A_u, A_log_A_real, A_A_imag, A_C_real, A_C_imag, A_log_dt, A_D_skip, B_x, B_w_in, B_w_sp, B_b_sp, B_w_out):

    def _A_ref(u, log_A_real, A_imag, C_real, C_imag, log_dt, D_skip):
        L = u.shape[1]
        dt = torch.exp(log_dt)
        A = -torch.exp(log_A_real) + 1j * A_imag
        C = (C_real + 1j * C_imag) * dt[:, None]
        pos = (lambda x, dt: x.to(dt))(torch.arange(L), log_dt.dtype)
        P = torch.exp((A * dt[:, None])[:, :, None] * pos[None, None, :])
        K = 2.0 * torch.einsum('dn,dnl->dl', C, P).real
        L2 = 2 * L
        u_t = (lambda x, *d: x.permute(*d))(u, 0, 2, 1)
        Kf = (lambda x, *a, **k: torch.fft.rfft(x.float(), *a, **k))(K, L2)
        Uf = (lambda x, *a, **k: torch.fft.rfft(x.float(), *a, **k))(u_t, L2)
        y = (lambda x, *a, **k: torch.fft.irfft(x, *a, **k).to(torch.bfloat16))(Uf * Kf[None, :, :], L2)[:, :, :L]
        y = (lambda x, *d: x.permute(*d))(y, 0, 2, 1)
        return y + u * D_skip[None, None, :]

    def _B_ref(x, w_in, w_sp, b_sp, w_out):
        B, S, D = x.shape
        F = w_in.shape[-1]
        Fh = F // 2
        z = _gelu(torch.einsum('bsd,df->bsf', x, w_in))
        z1 = z[..., :Fh].clone()
        z2 = _layernorm(z[..., Fh:], axis=-1)
        g = torch.einsum('ts,bsf->btf', w_sp, z2) + b_sp[None, :, None]
        return torch.einsum('bsf,fd->bsd', z1 * g, w_out)
    x = A_u
    xn = _layernorm(x, axis=-1)
    s = _A_ref(xn, A_log_A_real, A_A_imag, A_C_real, A_C_imag, A_log_dt, A_D_skip)
    g = _silu(_B_ref(xn, B_w_in, B_w_sp, B_b_sp, B_w_out))
    return x + s * g
```

```python
class Asm:
    def __init__(self):
        self.lines = []
        self.uid = 0
    def __call__(self, s):
        for l in s.strip("\n").split("\n"):
            self.lines.append("    " + l.strip() if not l.strip().endswith(":") else l.strip())
    def label(self, name):
        self.lines.append(name + ":")
    def newlabel(self, p="L"):
        self.uid += 1
        return f"{p}_{self.uid}"
    def comment(self, s):
        self.lines.append("    ; " + s)
    def text(self):
        return "\n".join(self.lines) + "\n"

def vr(b, n=1, p="v"):
    return f"{p}{b}" if n == 1 else f"{p}[{b}:{b+n-1}]"
def ar(b, n=1): return vr(b, n, "a")
def sr(b, n=1): return vr(b, n, "s")

def srd(A, s, base_lo, base_hi, size):
    A(f"s_mov_b32 s{s}, s{base_lo}")
    A(f"s_and_b32 s{s+1}, s{base_hi}, 0xffff")
    A(f"s_mov_b32 s{s+2}, {size}")
    A(f"s_mov_b32 s{s+3}, 0x00020000")

def srd_off(A, s, base_lo, base_hi, off, size):
    A(f"s_add_u32 s{s}, s{base_lo}, {off}")
    A(f"s_addc_u32 s{s+1}, s{base_hi}, 0")
    A(f"s_and_b32 s{s+1}, s{s+1}, 0xffff")
    A(f"s_mov_b32 s{s+2}, {size}")
    A(f"s_mov_b32 s{s+3}, 0x00020000")

def kernel_header(name):
    return f".globl {name}\n.p2align 8\n.type {name},@function\n{name}:\n"

def kernel_desc(name, vgpr, agpr, sgpr=102):
    acc = (vgpr + 3) // 4 * 4
    nfv = acc + agpr if agpr else vgpr
    return f""".p2align 6
.amdhsa_kernel {name}
  .amdhsa_next_free_vgpr {nfv}
  .amdhsa_next_free_sgpr {sgpr}
  .amdhsa_accum_offset {acc}
  .amdhsa_group_segment_fixed_size 0
  .amdhsa_kernarg_size 120
  .amdhsa_user_sgpr_count 2
  .amdhsa_user_sgpr_kernarg_segment_ptr 1
  .amdhsa_system_sgpr_workgroup_id_x 1
.end_amdhsa_kernel
"""

HEADER = """; Kernarg layout for this problem (120 bytes, ptrs only, base s[0:1]):
"""

WS_XN    = 0x0000000
WS_XNT   = 0x0400000
WS_Z1    = 0x0800000
WS_Z2N   = 0x1200000
WS_H     = 0x1C00000
WS_K     = 0x2600000
WS_S     = 0x2C00000
WS_STAT  = 0x2E00000
WS_WSP   = 0x3400000
WS_STAMP = 0x3000000
```

```python
from asmlib import *
from kgen import KR_PITCH, KR1
from l0 import bf16_round
OC = [0, 1, 4, 5, 8, 8, 11, 12]
KBUF = 41216; UBUF = 8192

def gen_conv_body(A, name, nch, wgexpr_setup):
    LK = [0, KBUF]; LU = [2*KBUF, 2*KBUF + UBUF]; LS = 2*KBUF + 2*UBUF
    srd_off(A, 4, 32, 33, WS_K, 576 * KR_PITCH)
    srd_off(A, 8, 32, 33, WS_XNT, 576 * 4096)
    srd_off(A, 12, 32, 33, WS_S, 576 * 4096)
    srd(A, 16, 30, 31, 1152)
    wgexpr_setup(A)
    vKd = 2
    vUd = [3, 4]
    vA = 5; vB = 6; vA0 = 7; vB0 = 8
    A(f"v_lshlrev_b32 v{vKd}, 4, v15")
    for j in range(2):
        A(f"""
        s_lshl_b32 s44, s36, 7
        s_add_u32 s44, s44, {64*j}
        v_add_u32 v16, s44, v15
        v_mul_u32_u24 v17, 6554, v16
        v_lshrrev_b32 v17, 16, v17
        v_mul_u32_u24 v18, 10, v17
        v_sub_u32 v18, v16, v18
        v_subrev_u32 v17, 15, v17
        v_lshlrev_b32 v19, 7, v17
        v_lshl_add_u32 v19, v18, 4, v19
        v_cmp_gt_u32 vcc, 32, v17
        v_cmp_gt_u32 s[52:53], 8, v18
        s_and_b64 vcc, vcc, s[52:53]
        v_mov_b32 v20, 0x80000000
        s_nop 1
        v_cndmask_b32 v{vUd[j]}, v20, v19, vcc
        """)
    A(f"""
    v_and_b32 v16, 15, v15
    v_sub_u32 v17, 0, v16
    v_and_b32 v17, 7, v17                ; c
    v_mul_u32_u24 v18, 320, v17
    v_lshrrev_b32 v19, 1, v17
    v_lshlrev_b32 v19, 2, v19            ; 4*(c>>1)
    v_and_b32 v20, 1, v17
    v_add_u32 v19, v19, v20              ; 0,1,4,5,8,9,12,13
    v_cmp_le_u32 vcc, 5, v17
    s_nop 1
    v_cndmask_b32 v20, 0, 1, vcc
    v_sub_u32 v19, v19, v20              ; 0,1,4,5,8,8,11,12
    v_add_u32 v18, v18, v19
    v_lshrrev_b32 v19, 4, v15
    v_add_u32 v18, v18, v19              ; + kg
    v_add_u32 v19, 7, v16
    v_lshrrev_b32 v19, 3, v19            ; ceil(b/8)
    v_sub_u32 v18, v18, v19
    v_lshlrev_b32 v18, 4, v18
    v_add_u32 v{vA0}, 32, v18
    v_mul_u32_u24 v18, 160, v16
    v_lshrrev_b32 v19, 4, v15
    v_lshlrev_b32 v19, 4, v19
    v_add_u32 v{vB0}, v18, v19
    """)
    def dma(chs, sK, sU):
        A(f"s_mul_i32 s44, {chs}, {KR_PITCH}")
        A("s_lshl_b32 s45, s36, 2\ns_add_u32 s44, s44, s45")
        for cc in range(2):
            A(f"s_lshl_b32 s45, s36, 1\ns_add_u32 s45, s45, {cc}")
            A("s_mul_i32 s46, s45, 320")
            A(f"s_lshl_b32 s48, s36, 2\ns_add_u32 s48, s48, {cc}\ns_cmp_ge_u32 s45, 5\ns_subb_u32 s48, s48, 0")
            A("s_add_u32 s46, s46, s48\ns_lshl_b32 s46, s46, 4")
            A(f"s_add_u32 s46, s46, {sK}")
            A(f"s_add_u32 s48, s44, {cc*KR1}")
            for it in range(5):
                A(f"s_add_u32 m0, s46, {it*1024}\ns_add_u32 s49, s48, {it*1024}")
                A(f"buffer_load_dwordx4 v{vKd}, s[4:7], s49 offen lds")
        A(f"s_lshl_b32 s44, {chs}, 12")
        for j in range(2):
            A(f"s_lshl_b32 s45, s36, 11\ns_add_u32 s45, s45, {sU}\ns_add_u32 m0, s45, {j*1024}\ns_nop 0")
            A(f"buffer_load_dwordx4 v{vUd[j]}, s[8:11], s44 offen lds")
    A("""
    s_cmp_eq_u32 s36, 0
    s_cselect_b32 s50, 0, 24
    s_cselect_b32 s51, 6, 2
    s_cselect_b32 s54, 0, 2
    s_cmp_ge_u32 s36, 2
    s_cselect_b32 s51, 0, s51
    s_cselect_b32 s54, 3, s54
    s_cmp_eq_u32 s36, 2
    s_cselect_b32 s50, 40, s50
    s_cmp_eq_u32 s36, 3
    s_cselect_b32 s50, 52, s50
    """)
    FR = [24, 32, 40, 48]; BR = [56, 64, 72, 80]; ACC = 96; vBz = 9
    A(f"s_mov_b32 s60, {LK[0]}\ns_mov_b32 s61, {LU[0]}\ns_mov_b32 s62, {LK[1]}\ns_mov_b32 s63, {LU[1]}")
    dma("s47", "s60", "s61")
    A("buffer_store_dword v15, v15, s[12:15], 0 offen offset:4095" if False else "")
    A("s_mov_b32 s55, 0")
    chl = A.newlabel(name + "_ch")
    A("s_waitcnt vmcnt(0)")
    A.label(chl)
    A("s_barrier")
    nx = A.newlabel(name + "_nx")
    A(f"s_add_u32 s58, s55, 1\ns_cmp_lt_u32 s58, {nch}\ns_cbranch_scc0 {nx}")
    A("s_add_u32 s59, s47, 1")
    dma("s59", "s62", "s63")
    A.label(nx)
    A("s_lshl_b32 s44, s47, 1\nv_mov_b32 v1, s44\nbuffer_load_ushort v10, v1, s[16:19], 0 offen")
    A(f"""
    s_lshl_b32 s44, s50, 6
    s_add_u32 s44, s44, s60
    v_add_u32 v{vA}, s44, v{vA0}
    s_lshr_b32 s44, s50, 1
    s_mul_i32 s44, s44, 160
    s_add_u32 s44, s44, s61
    v_add_u32 v{vB}, s44, v{vB0}
    v_subrev_u32 v{vBz}, 2560, v{vB}
    """)
    def rdA(pair, t):
        return [f"ds_read_b128 {vr(FR[pair],4)}, v{vA} offset:{96+64*t}", f"ds_read_b128 {vr(FR[pair]+4,4)}, v{vA} offset:{64+64*t}"]
    def rdB(slot, t, tile):
        off = (t >> 1) * 160 + 64 * (t & 1)
        return f"ds_read_b128 {vr(BR[slot] + (0 if tile == 1 else 4),4)}, v{vB if tile == 1 else vBz} offset:{off}"
    for x in rdA(3, -1): A(x)
    for t in range(2):
        for x in rdA(t, t): A(x)
        A(rdB(t, t, 1))
    for r in range(32): A(f"v_mov_b32 v{ACC+r}, 0")
    A("s_waitcnt lgkmcnt(0)")
    def body(double):
        for t in range(4):
            A(f"s_waitcnt lgkmcnt({4 if double else 3})")
            cur = FR[t]; prev = FR[(t-1) % 4]
            fr = [cur, cur+4, prev, prev+4]
            rd = rdA((t+2) % 4, t+2) + [rdB((t+2) % 4, t+2, 1)] + ([rdB((t+2) % 4, t+2, 0)] if double else [])
            mf = []
            for i in ([1, 0] if double else [1]):
                for h in range(4):
                    c = vr(ACC + (h*2+i)*4, 4)
                    mf.append(f"v_mfma_f32_16x16x32_bf16 {c}, {vr(fr[h],4)}, {vr(BR[t] + (0 if i == 1 else 4),4)}, {c}")
            for j, m in enumerate(mf):
                A(m)
                if j < len(rd): A(rd[j])
        A(f"v_add_u32 v{vA}, 256, v{vA}\nv_add_u32 v{vB}, 320, v{vB}\nv_add_u32 v{vBz}, 320, v{vBz}")
    l1 = A.newlabel(name + "_s"); l1e = A.newlabel(name + "_se"); l2 = A.newlabel(name + "_d"); l2e = A.newlabel(name + "_de")
    A(f"s_mov_b32 s64, s51\ns_cmp_eq_u32 s64, 0\ns_cbranch_scc1 {l1e}")
    A.label(l1)
    body(False)
    A(f"s_sub_u32 s64, s64, 1\ns_cmp_lg_u32 s64, 0\ns_cbranch_scc1 {l1}")
    A.label(l1e)
    A(f"s_mov_b32 s64, s54\ns_cmp_eq_u32 s64, 0\ns_cbranch_scc1 {l2e}")
    for t in range(2): A(rdB(t, t, 0))
    A("s_waitcnt lgkmcnt(0)")
    A.label(l2)
    body(True)
    A(f"s_sub_u32 s64, s64, 1\ns_cmp_lg_u32 s64, 0\ns_cbranch_scc1 {l2}")
    A.label(l2e)
    A("s_waitcnt lgkmcnt(0)\ns_nop 7")
    A(f"v_lshlrev_b32 v1, 4, v15\ns_lshl_b32 s44, s36, 13\ns_add_u32 s44, s44, {LS}\nv_add_u32 v11, s44, v1")
    for h in range(4):
        for i in range(2):
            A(f"ds_write_b128 v11, {vr(ACC+(h*2+i)*4,4)} offset:{(h*2+i)*1024}")
    A("s_waitcnt lgkmcnt(0)\ns_barrier")
    A(f"s_lshl_b32 s44, s36, 11\ns_add_u32 s44, s44, {LS}\nv_add_u32 v11, s44, v1")
    for ww in range(4):
        for i in range(2):
            A(f"ds_read_b128 {vr(24+(ww*2+i)*4,4)}, v11 offset:{ww*8192 + i*1024}")
    A(f"""
    v_and_b32 v12, 15, v15
    v_mul_u32_u24 v12, 160, v12
    v_lshrrev_b32 v13, 4, v15
    v_lshlrev_b32 v13, 3, v13
    v_add_u32 v12, v12, v13
    s_lshl_b32 s44, s36, 5
    s_add_u32 s44, s44, s61
    v_add_u32 v12, s44, v12
    """)
    for i in range(2):
        A(f"ds_read_b64 {vr(56+2*i,2)}, v12 offset:{(15+16*i)*160}")
    A("s_waitcnt vmcnt(0) lgkmcnt(0)" if False else "s_waitcnt lgkmcnt(0)")
    for i in range(2):
        for ww in range(1, 4):
            A(f"v_pk_add_f32 {vr(24+i*4,2)}, {vr(24+i*4,2)}, {vr(24+(ww*2+i)*4,2)}")
            A(f"v_pk_add_f32 {vr(24+i*4+2,2)}, {vr(24+i*4+2,2)}, {vr(24+(ww*2+i)*4+2,2)}")
    A("s_waitcnt vmcnt(0)")
    A("v_lshlrev_b32 v10, 16, v10")
    for i in range(2):
        y = 24 + i*4
        A(f"v_cvt_pk_bf16_f32 v60, v{y}, v{y+1}\nv_cvt_pk_bf16_f32 v61, v{y+2}, v{y+3}")
        A(f"v_lshlrev_b32 v{y}, 16, v60\nv_and_b32 v{y+1}, 0xffff0000, v60\nv_lshlrev_b32 v{y+2}, 16, v61\nv_and_b32 v{y+3}, 0xffff0000, v61")
        u = 56 + 2*i
        A(f"v_lshlrev_b32 v64, 16, v{u}\nv_and_b32 v65, 0xffff0000, v{u}\nv_lshlrev_b32 v66, 16, v{u+1}\nv_and_b32 v67, 0xffff0000, v{u+1}")
        for r in range(4): A(f"v_mul_f32 v{64+r}, v{64+r}, v10")
        A(f"v_cvt_pk_bf16_f32 v60, v64, v65\nv_cvt_pk_bf16_f32 v61, v66, v67")
        A(f"v_lshlrev_b32 v64, 16, v60\nv_and_b32 v65, 0xffff0000, v60\nv_lshlrev_b32 v66, 16, v61\nv_and_b32 v67, 0xffff0000, v61")
        for r in range(4): A(f"v_add_f32 v{y+r}, v{y+r}, v{64+r}")
        A(f"v_cvt_pk_bf16_f32 v{68+2*i}, v{y}, v{y+1}\nv_cvt_pk_bf16_f32 v{69+2*i}, v{y+2}, v{y+3}")
    A(f"""
    v_and_b32 v12, 15, v15
    v_lshlrev_b32 v12, 7, v12
    v_add_u32 v12, v12, v13
    s_lshl_b32 s44, s47, 12
    s_lshl_b32 s45, s36, 5
    s_add_u32 s44, s44, s45
    """)
    for i in range(2):
        A(f"buffer_store_dwordx2 {vr(68+2*i,2)}, v12, s[12:15], s44 offen offset:{i*2048}")
    A("s_mov_b32 s44, s60\ns_mov_b32 s60, s62\ns_mov_b32 s62, s44\ns_mov_b32 s44, s61\ns_mov_b32 s61, s63\ns_mov_b32 s63, s44")
    A(f"s_add_u32 s47, s47, 1\ns_add_u32 s55, s55, 1\ns_cmp_lt_u32 s55, {nch}\ns_cbranch_scc1 {chl}")
    return LS + 32768

def gen_conv(name, nch=4):
    A = Asm()
    nwg = 576 // nch
    A(f"""
    s_cmp_ge_u32 s2, {nwg}
    s_cbranch_scc1 {name}_end
    s_load_dwordx2 s[30:31], s[0:1], 48
    s_load_dwordx2 s[32:33], s[0:1], 112
    v_lshrrev_b32 v1, 6, v0
    v_and_b32 v15, 63, v0
    s_nop 0
    v_readfirstlane_b32 s36, v1
    s_waitcnt lgkmcnt(0)
    """)
    lds = gen_conv_body(A, name, nch, lambda A: A(f"s_mul_i32 s47, s2, {nch}"))
    A.label(f"{name}_end")
    A("s_endpgm")
    return A.text(), kernel_desc(name, 128, 0), lds, nwg
```

```python
from asmlib import *
import math

class VM:
    def __init__(self): self.ops = []
    def issue(self, tag): self.ops.append(tag)
    def wait(self, tags):
        if not isinstance(tags, (list, tuple, set)): tags = [tags]
        last = max(i for i, t in enumerate(self.ops) if t in tags)
        return len(self.ops) - 1 - last

GC0 = -2.0 * math.log2(math.e) * math.sqrt(2.0 / math.pi)
GC1 = GC0 * 0.044715
import struct
def f2u(x): return struct.unpack("<I", struct.pack("<f", x))[0]

def gelu_ops(pairs, tmp, vC0, vC1, vOne):
    ops = []
    n = len(tmp)
    for g in range(0, len(pairs), n):
        grp = pairs[g:g+n]
        seq = [[] for _ in grp]
        for j, c in enumerate(grp):
            t = tmp[j]
            seq[j] = [
                f"v_pk_mul_f32 {vr(t,2)}, {vr(c,2)}, {vr(c,2)}",
                f"v_pk_fma_f32 {vr(t,2)}, {vr(t,2)}, {vr(vC1,2)}, {vr(vC0,2)}",
                f"v_pk_mul_f32 {vr(t,2)}, {vr(t,2)}, {vr(c,2)}",
                f"v_exp_f32 v{t}, v{t}",
                f"v_exp_f32 v{t+1}, v{t+1}",
                f"v_pk_add_f32 {vr(t,2)}, {vr(t,2)}, {vr(vOne,2)}",
                f"v_rcp_f32 v{t}, v{t}",
                f"v_rcp_f32 v{t+1}, v{t+1}",
                f"v_pk_mul_f32 {vr(c,2)}, {vr(c,2)}, {vr(t,2)}",
            ]
        for k in range(9):
            for j in range(len(grp)):
                ops.append(seq[j][k])
    return ops


def gen_g1(name, stamps=False):
    A = Asm(); vm = VM()
    nst = [0]
    def stamp():
        if stamps:
            A(f"s_memtime s[{70+2*nst[0]}:{71+2*nst[0]}]"); nst[0] += 1
    R = 7; SLOT = 20480
    NST = 18
    PR = 0; QA = [144, 180]
    ACCA = 16; ACCB = 88
    vQd = [2, 3, 4, 5, 6]; vE0 = 7; vO0 = 8; vE = 9; vO = 10; vL = 15; vP0 = 11; vP1 = 12
    vC0 = 160; vC1 = 162; vOne = 164; TMP = [166, 168, 170]
    S1 = 172; S2 = 180
    W = 188
    A(f"""
    s_cmp_ge_u32 s2, 256
    s_cbranch_scc1 {name}_end
    s_load_dwordx2 s[28:29], s[0:1], 64
    s_load_dwordx2 s[30:31], s[0:1], 104
    s_load_dwordx2 s[32:33], s[0:1], 112
    """)
    stamp()
    A(f"""
    s_and_b32 s44, s2, 7
    s_lshr_b32 s45, s2, 3
    s_and_b32 s34, s44, 1
    s_lshl_b32 s34, s34, 3
    s_and_b32 s46, s45, 7
    s_add_u32 s34, s34, s46
    s_lshr_b32 s35, s44, 1
    s_lshl_b32 s35, s35, 2
    s_lshr_b32 s46, s45, 3
    s_add_u32 s35, s35, s46
    v_lshrrev_b32 v1, 6, v0
    v_and_b32 v{vL}, 63, v0
    s_nop 0
    v_readfirstlane_b32 s36, v1
    """)
    for j in range(5):
        d = vQd[j]
        A(f"""
        s_lshl_b32 s44, s36, 6
        s_add_u32 s44, s44, {256*j}
        v_add_u32 v16, s44, v{vL}
        v_mul_u32_u24 v17, 1821, v16
        v_lshrrev_b32 v17, 16, v17
        v_mul_u32_u24 v18, 36, v17
        v_sub_u32 v18, v16, v18
        v_lshrrev_b32 v19, 1, v18
        v_bfe_u32 v20, v17, 3, 1
        v_xor_b32 v19, v19, v20
        v_cmp_le_u32 vcc, 9, v19
        s_nop 1
        v_cndmask_b32 v20, 0, 1, vcc
        v_mul_u32_u24 v21, 9, v20
        v_sub_u32 v19, v19, v21
        v_lshlrev_b32 v20, 5, v20
        v_add_u32 v17, v17, v20
        v_mul_u32_u24 v17, 9216, v17
        v_lshlrev_b32 v19, 5, v19
        v_and_b32 v18, 1, v18
        v_lshlrev_b32 v18, 4, v18
        v_add3_u32 v{d}, v17, v19, v18
        """)
        if j == 4:
            A(f"v_mov_b32 v17, 0x80000000\nv_cmp_gt_u32 vcc, 1152, v16\ns_nop 1\nv_cndmask_b32 v{d}, v17, v{d}, vcc")
    A(f"""
    v_lshrrev_b32 v16, 4, v{vL}
    v_bfe_u32 v17, v{vL}, 2, 2
    v_lshlrev_b32 v18, 3, v16
    v_add_u32 v18, v18, v17
    v_mul_u32_u24 v18, 576, v18
    v_and_b32 v19, 3, v{vL}
    v_lshlrev_b32 v19, 3, v19
    v_add_u32 v18, v18, v19
    v_and_b32 v16, 1, v16
    v_lshlrev_b32 v16, 5, v16
    v_add_u32 v{vE0}, v18, v16
    v_sub_u32 v{vO0}, v18, v16
    v_lshlrev_b32 v1, 4, v{vL}
    s_lshl_b32 s44, s34, 3
    s_lshl_b32 s45, s36, 1
    s_add_u32 s44, s44, s45
    s_mul_i32 s44, s44, 18432
    v_add_u32 v{vP0}, s44, v1
    v_add_u32 v{vP1}, 18432, v{vP0}
    s_waitcnt lgkmcnt(0)
    """)
    srd(A, 4, 28, 29, 576 * 9216)
    srd_off(A, 8, 32, 33, WS_XN, 128 * 18 * 1024)
    A("s_lshl_b32 s44, s34, 4\ns_add_u32 s44, s44, s35\ns_mul_i32 s44, s44, 36864")
    A(f"s_add_u32 s44, s44, {WS_Z1}")
    srd_off(A, 12, 32, 33, "s44", 36864)
    srd_off(A, 16, 32, 33, WS_Z2N, 16 * 589824)
    srd_off(A, 20, 32, 33, WS_STAT, 16 * 16 * 1024)
    srd(A, 24, 30, 31, 256)
    A("s_mul_i32 s38, s35, 288\ns_add_u32 s37, s38, 4608")
    A("s_lshl_b32 s39, s36, 10")
    for i in range(5): A(f"s_mov_b32 s{64+i}, {4096*i}")
    def G(st):
        ops = []
        slot = st % R
        base = "s37" if st < 9 else "s38"
        koff = (st % 9) * 64 * 9216
        for j in range(5):
            pre = f"s_add_u32 s40, {base}, {koff}\n"
            pre += f"s_add_u32 m0, s39, {slot*SLOT + j*4096}\ns_nop 0\n"
            ops.append((pre + f"buffer_load_dwordx4 v{vQd[j]}, s[4:7], s40 offen lds", f"G{st}"))
        return ops
    def Pl(ks):
        return [(f"buffer_load_dwordx4 {ar(PR+(ks*2+i)*4,4)}, v{[vP0,vP1][i]}, s[8:11], s{64+ks//4} offen offset:{(ks%4)*1024}", f"P{ks}") for i in range(2)]
    def issue(op):
        A(op[0]); vm.issue(op[1])
    for st in range(6):
        for op in G(st): issue(op)
        for ks in (2*st, 2*st+1):
            for op in Pl(ks): issue(op)
        if st == 0: A("s_barrier")
    A(f"v_mov_b32 v{vC0}, {hex(f2u(GC0))}\nv_mov_b32 v{vC0+1}, {hex(f2u(GC0))}\nv_mov_b32 v{vC1}, {hex(f2u(GC1))}\nv_mov_b32 v{vC1+1}, {hex(f2u(GC1))}")
    A(f"v_mov_b32 v{vOne}, 1.0\nv_mov_b32 v{vOne+1}, 1.0")
    for r in range(144): A(f"v_mov_b32 v{ACCA+r}, 0")
    for r in range(16): A(f"v_mov_b32 v{S1+r}, 0")
    A(f"v_mov_b32 v{vE}, v{vE0}\nv_mov_b32 v{vO}, v{vO0}")
    A(f"s_waitcnt vmcnt({vm.wait(['G0','P0','P1'])})")
    A("s_barrier")
    stamp()
    def qreads(buf, ksl):
        out = []
        for jn in range(9):
            X = ksl * 9 + jn
            b = vE if X % 2 == 0 else vO
            for hf in range(2):
                out.append(f"ds_read_b64_tr_b16 {ar(QA[buf]+jn*4+hf*2,2)}, v{b} offset:{X*32 + hf*2304}")
        return out
    def mfmas(buf, ksg, phaseB):
        out = []
        for jn in range(9):
            for i in range(2):
                q = ar(QA[buf]+jn*4, 4); p = ar(PR+(ksg*2+i)*4, 4)
                if not phaseB:
                    c = vr(ACCA+(i*9+jn)*4, 4); out.append(f"v_mfma_f32_16x16x32_bf16 {c}, {p}, {q}, {c}")
                else:
                    c = vr(ACCB+(i*9+jn)*4, 4); out.append(f"v_mfma_f32_16x16x32_bf16 {c}, {q}, {p}, {c}")
        return out
    for x in qreads(0, 0): A(x)
    pairsA = [ACCA + (i*9+jn)*4 + 2*h for i in range(2) for jn in range(9) for h in range(2)]
    eq = []
    for g in range(0, 36, 3):
        grp = pairsA[g:g+3]
        eq += gelu_ops(grp, TMP, vC0, vC1, vOne)
        for c in grp:
            idx = (c - ACCA) // 4; i = idx // 9; h = ((c - ACCA) % 4) // 2
            s1 = S1 + i*4 + 2*h; s2 = S2 + i*4 + 2*h
            eq.append(f"v_pk_add_f32 {vr(s1,2)}, {vr(s1,2)}, {vr(c,2)}")
            eq.append(f"v_pk_fma_f32 {vr(s2,2)}, {vr(c,2)}, {vr(c,2)}, {vr(s2,2)}")
    for n in (8, 4, 2, 1):
        for r in range(16):
            eq.append(f"v_add_f32_dpp v{S1+r}, v{S1+r}, v{S1+r} row_ror:{n} row_mask:0xf bank_mask:0xf")
    for i in range(2):
        for r in range(4):
            eq.append(f"v_mov_b32 v{W+i*8+2*r}, v{S1+i*4+r}")
            eq.append(f"v_mov_b32 v{W+i*8+2*r+1}, v{S2+i*4+r}")
    for st in range(NST):
        phaseB = st >= 9
        if st == 9: stamp()
        for ksl in range(2):
            ksg = (st % 9) * 2 + ksl
            buf = ksl
            A("s_waitcnt lgkmcnt(0)")
            if ksl == 0:
                rd = qreads(1, 1)
            else:
                if st + 1 < NST:
                    nslot = (st + 1) % R
                    A(f"v_add_u32 v{vE}, {nslot*SLOT}, v{vE0}\nv_add_u32 v{vO}, {nslot*SLOT}, v{vO0}")
                    rd = qreads(0, 0)
                else: rd = []
            gl = []
            if ksl == 1 and st + R - 1 < NST: gl += G(st + R - 1)
            if ksl == 0:
                for ks in (12 + 2*st, 13 + 2*st):
                    if st < 3: gl += Pl(ks)
            mf = mfmas(buf, ksg, phaseB)
            for j in range(18):
                A(mf[j])
                if j < len(rd): A(rd[j])
                if gl and j % 3 == 1: issue(gl.pop(0))
                if phaseB and eq and len(eq) > 0:
                    k = 2 if (j % 2 == 0) else 1
                    for _ in range(k):
                        if eq: A(eq.pop(0))
            for op in gl: issue(op)
            if ksl == 0 and st + 1 < NST:
                tags = [f"G{st+1}"]
                if st + 1 < 9: tags += [f"P{2*(st+1)}", f"P{2*(st+1)+1}"]
                A(f"s_waitcnt vmcnt({vm.wait(tags)})")
                A("s_barrier")
    for o in eq: A(o)
    eq = []
    stamp()
    A(f"""
    s_lshl_b32 s44, s34, 4
    s_add_u32 s44, s44, s35
    s_lshl_b32 s44, s44, 10
    s_lshl_b32 s45, s36, 8
    s_add_u32 s44, s44, s45
    v_lshrrev_b32 v1, 4, v{vL}
    v_lshlrev_b32 v1, 5, v1
    v_and_b32 v13, 15, v{vL}
    v_cmp_eq_u32 vcc, 0, v13
    s_and_saveexec_b64 s[52:53], vcc
    """)
    for i in range(2):
        for hh in range(2):
            A(f"buffer_store_dwordx4 {vr(W+i*8+hh*4,4)}, v1, s[20:23], s44 offen offset:{i*128+hh*16} sc0 sc1")
    A("s_mov_b64 exec, s[52:53]")
    A("s_nop 7")
    pairsB = [ACCB + (i*9+jn)*4 + 2*h for i in range(2) for jn in range(9) for h in range(2)]
    ops = gelu_ops(pairsB, TMP, vC0, vC1, vOne)
    cut = 27 * 5
    for o in ops[:cut]: A(o)
    A("s_waitcnt vmcnt(0)")
    A("s_barrier")
    lab = A.newlabel(name + "_sig")
    A(f"s_cmp_eq_u32 s36, 0\ns_cbranch_scc0 {lab}")
    A(f"s_lshl_b32 s44, s34, 2\nv_mov_b32 v1, s44\nv_mov_b32 v13, 1\ns_mov_b64 s[52:53], exec\ns_mov_b64 exec, 1")
    A("buffer_atomic_add v13, v1, s[24:27], 0 offen sc1")
    A("s_mov_b64 exec, s[52:53]")
    A.label(lab)
    for o in ops[cut:]: A(o)
    A(f"v_lshlrev_b32 v1, 4, v{vL}\ns_mul_i32 s44, s36, 9216")
    ZB = 192
    for dw, c in enumerate(pairsB):
        A(f"v_cvt_pk_bf16_f32 v{ZB+dw}, v{c}, v{c+1}")
    for q in range(9):
        A(f"s_add_u32 s45, s44, {q*1024}")
        A(f"buffer_store_dwordx4 {vr(ZB+q*4,4)}, v1, s[12:15], s45 offen")
    stamp()
    poll = A.newlabel(name + "_poll")
    A(f"s_lshl_b32 s44, s34, 2\nv_mov_b32 v1, s44")
    A.label(poll)
    A("buffer_load_dword v13, v1, s[24:27], 0 offen sc1")
    A("s_waitcnt vmcnt(0)")
    A("v_readfirstlane_b32 s45, v13")
    A(f"s_cmp_ge_u32 s45, 16\ns_cbranch_scc1 {poll}_ok\ns_sleep 2\ns_branch {poll}")
    A.label(poll + "_ok")
    stamp()
    A(f"""
    v_and_b32 v1, 31, v{vL}
    v_lshlrev_b32 v1, 3, v1
    v_lshrrev_b32 v13, 5, v{vL}
    v_lshlrev_b32 v13, 13, v13
    v_add_u32 v1, v1, v13
    s_lshl_b32 s44, s34, 14
    s_lshl_b32 s45, s36, 8
    s_add_u32 s44, s44, s45
    """)
    for j in range(8):
        A(f"s_add_u32 s45, s44, {j*1024}")
        A(f"buffer_load_dwordx2 {vr(W+2*j,2)}, v1, s[20:23], s45 offen sc0 sc1")
    A("s_waitcnt vmcnt(0)")
    for j in range(1, 8):
        A(f"v_pk_add_f32 {vr(W,2)}, {vr(W,2)}, {vr(W+2*j,2)}")
    A(f"v_mov_b32 v{W+2}, v{W}\nv_mov_b32 v{W+3}, v{W+1}\ns_nop 1")
    A(f"v_permlane32_swap_b32 v{W+2}, v{W}\nv_permlane32_swap_b32 v{W+3}, v{W+1}")
    A(f"v_pk_add_f32 {vr(W,2)}, {vr(W,2)}, {vr(W+2,2)}")
    A(f"v_mul_f32 v{W}, {hex(f2u(1.0/2304))}, v{W}")
    A(f"v_mul_f32 v{W+1}, {hex(f2u(1.0/2304))}, v{W+1}")
    A(f"v_fma_f32 v{W+1}, -v{W}, v{W}, v{W+1}")
    A(f"v_max_f32 v{W+1}, 0, v{W+1}")
    from l0 import bf16_round
    bf16_round(A, W+1)
    A(f"v_add_f32 v{W+1}, 0x3727c5ac, v{W+1}")
    bf16_round(A, W+1)
    A(f"v_sqrt_f32 v{W+1}, v{W+1}\ns_nop 0")
    bf16_round(A, W+1)
    A(f"v_rcp_f32 v{W+1}, v{W+1}")
    bf16_round(A, W)
    LB = R * SLOT
    A(f"""
    v_and_b32 v1, 31, v{vL}
    v_lshlrev_b32 v1, 3, v1
    s_lshl_b32 s45, s36, 8
    s_add_u32 s45, s45, {LB}
    v_add_u32 v1, s45, v1
    ds_write_b64 v1, {vr(W,2)}
    v_lshrrev_b32 v13, 4, v{vL}
    v_lshlrev_b32 v13, 5, v13
    v_add_u32 v13, s45, v13
    s_waitcnt lgkmcnt(0)
    """)
    for i in range(2):
        A(f"ds_read_b128 {vr(W+4+i*8,4)}, v13 offset:{i*128}")
        A(f"ds_read_b128 {vr(W+8+i*8,4)}, v13 offset:{i*128+16}")
    A("s_waitcnt lgkmcnt(0)")
    stamp()
    A(f"""
    s_mul_i32 s44, s35, 64
    s_lshl_b32 s45, s34, 2
    s_add_u32 s44, s44, s45
    s_add_u32 s44, s44, s36
    s_mul_i32 s44, s44, 9216
    v_lshrrev_b32 v1, 4, v{vL}
    v_and_b32 v13, 1, v1
    v_lshlrev_b32 v13, 1, v13
    v_lshrrev_b32 v1, 1, v1
    v_or_b32 v1, v1, v13
    v_lshlrev_b32 v1, 4, v1
    v_and_b32 v13, 15, v{vL}
    v_add_u32 v1, v1, v13
    v_lshlrev_b32 v1, 4, v1
    """)
    OB = 212
    for jn in range(9):
        o = OB + (jn % 2) * 4
        for i in range(2):
            c = ACCA + (i*9+jn)*4
            for r in range(4):
                m = W+4+i*8+2*r
                A(f"v_sub_f32 v{c+r}, v{c+r}, v{m}")
                A(f"v_mul_f32 v{c+r}, v{c+r}, v{m+1}")
            A(f"v_cvt_pk_bf16_f32 v{o+2*i}, v{c}, v{c+1}")
            A(f"v_cvt_pk_bf16_f32 v{o+2*i+1}, v{c+2}, v{c+3}")
        A("s_nop 1")
        A(f"v_permlane16_swap_b32 v{o}, v{o+2}")
        A(f"v_permlane16_swap_b32 v{o+1}, v{o+3}")
        A(f"s_add_u32 s45, s44, {jn*1024}")
        A(f"buffer_store_dwordx4 {vr(o,4)}, v1, s[16:19], s45 offen")
    if stamps:
        stamp()
        A("s_waitcnt vmcnt(0)")
        stamp()
        A("s_waitcnt lgkmcnt(0)")
        srd_off(A, 24, 32, 33, WS_STAMP, 1 << 20)
        for i in range(nst[0]): A(f"v_mov_b32 v{200+i}, s{70+2*i}")
        A("s_lshl_b32 s44, s2, 2\ns_add_u32 s44, s44, s36\ns_lshl_b32 s44, s44, 6\nv_mov_b32 v1, s44")
        A("v_cmp_eq_u32 vcc, 0, v15\ns_and_saveexec_b64 s[52:53], vcc")
        for i in range(0, nst[0], 4):
            A(f"buffer_store_dwordx4 v[{200+i}:{203+i}], v1, s[24:27], 0 offen offset:{i*4}")
        A("s_mov_b64 exec, s[52:53]")
    A.label(f"{name}_end")
    A("s_endpgm")
    return A.text(), kernel_desc(name, 228, 216), R * SLOT + 1024
```

```python
from asmlib import *

def gen_g2(name, stamps=False, noadv=False, noP=False, noQ=False, nomfma=False):
    A = Asm()
    SLOT = 36864
    ACC = 128; PR = 0
    QV = [16, 52]
    Z1V = 88
    vP = [2, 3]; vQd = [4, 5, 6]; vQr = [8, 9, 10, 11]; vB = [12, 13]; vL = 15
    A(f"""
    s_cmp_ge_u32 s2, 256
    s_cbranch_scc1 {name}_end
    s_load_dwordx2 s[30:31], s[0:1], 80
    s_load_dwordx2 s[32:33], s[0:1], 112
    """)
    if stamps: A("s_memtime s[60:61]")
    A(f"""
    s_and_b32 s44, s2, 7
    s_lshr_b32 s45, s2, 3
    s_and_b32 s34, s44, 1
    s_lshl_b32 s34, s34, 3
    s_and_b32 s46, s45, 7
    s_add_u32 s34, s34, s46
    s_lshr_b32 s35, s44, 1
    s_lshl_b32 s35, s35, 2
    s_lshr_b32 s46, s45, 3
    s_add_u32 s35, s35, s46
    v_lshrrev_b32 v1, 6, v0
    v_and_b32 v{vL}, 63, v0
    s_nop 0
    v_readfirstlane_b32 s36, v1
    s_waitcnt lgkmcnt(0)
    """)
    srd_off(A, 4, 32, 33, WS_WSP, 2048 * 4096)
    A("s_mul_i32 s44, s35, 589824")
    A(f"s_add_u32 s44, s44, {WS_Z2N}")
    srd_off(A, 8, 32, 33, "s44", 589824)
    A("s_lshl_b32 s44, s34, 4")
    A("s_add_u32 s44, s44, s35")
    A("s_mul_i32 s44, s44, 36864")
    A(f"s_add_u32 s44, s44, {WS_Z1}")
    srd_off(A, 12, 32, 33, "s44", 36864)
    srd_off(A, 16, 32, 33, WS_H, 128 * 72 * 1024)
    srd(A, 20, 30, 31, 4096)
    A(f"""
    s_lshl_b32 s44, s34, 7
    s_lshl_b32 s45, s36, 5
    s_add_u32 s44, s44, s45
    v_and_b32 v1, 15, v{vL}
    v_add_u32 v1, s44, v1
    v_lshlrev_b32 v{vB[0]}, 1, v1
    v_add_u32 v{vB[1]}, 32, v{vB[0]}
    v_lshlrev_b32 v1, 4, v{vL}
    s_lshl_b32 s46, s44, 12
    v_add_u32 v{vP[0]}, s46, v1
    v_add_u32 v{vP[1]}, 0x10000, v{vP[0]}
    s_mul_i32 s45, s36, 9216
    v_add_u32 v{vQd[0]}, s45, v1
    v_add_u32 v{vQd[1]}, 0x1000, v{vQd[0]}
    v_add_u32 v{vQd[2]}, 0x2000, v{vQd[0]}
    v_mov_b32 v{vQr[0]}, v1
    v_add_u32 v{vQr[1]}, {SLOT}, v1
    v_add_u32 v{vQr[2]}, {2*SLOT}, v1
    v_add_u32 v{vQr[3]}, {3*SLOT}, v1
    s_mov_b32 s40, s45
    s_add_u32 s41, s45, {SLOT}
    s_add_u32 s42, s45, {2*SLOT}
    s_add_u32 s43, s45, {3*SLOT}
    s_mov_b32 s38, 0
    s_mov_b32 s39, 0
    """)
    def G(slot):
        ops = []
        dma = []
        for j in range(9):
            g = j // 4
            pre = f"s_add_u32 m0, s{40+slot}, {g*4096}\ns_nop 0\n" if j % 4 == 0 else ""
            dma.append(pre + f"buffer_load_dwordx4 v{vQd[g]}, s[8:11], s38 offen offset:{(j%4)*1024} lds")
        pl = []
        for ks in range(4):
            for i in range(2):
                pl.append(f"buffer_load_dwordx4 {ar(PR + slot*32 + ks*8 + i*4, 4)}, v{vP[i]}, s[4:7], s39 offen offset:{ks*1024}")
        for j in range(9):
            ops.append(dma[j])
            if j < 8: ops.append(pl[j])
        if noP: ops = [o if "lds" in o else "s_nop 0" for o in ops]
        if noQ: ops = [o if "lds" not in o else "s_nop 0" for o in ops]
        if not noadv: ops[-1] += f"\ns_add_u32 s38, s38, {SLOT}\ns_add_u32 s39, s39, 4096"
        return ops
    for s in range(2):
        for op in G(s): A(op)
    for op in G(2)[0:9]: A(op)
    for r in range(72): A(f"v_mov_b32 v{ACC+r}, 0")
    A("s_waitcnt vmcnt(26)")
    A("s_barrier")
    def qreads(buf, slot, ks):
        return [f"ds_read_b128 {vr(QV[buf]+jn*4,4)}, v{vQr[slot]} offset:{(ks*9+jn)*1024}" for jn in range(9)]
    def mfmas(buf, slot, ks):
        out = []
        for jn in range(9):
            for i in range(2):
                c = vr(ACC + (i*9+jn)*4, 4)
                out.append(f"v_mfma_f32_16x16x32_bf16 {c}, {vr(QV[buf]+jn*4,4)}, {ar(PR+slot*32+ks*8+i*4,4)}, {c}")
        return out
    for x in qreads(0, 0, 0): A(x)
    if stamps: A("s_memtime s[62:63]")
    A("s_mov_b32 s37, 0")
    A.label(f"{name}_loop")
    for u in range(4):
        g = G((u + 3) & 3)
        gprev = G((u + 2) & 3)
        for ks in range(4):
            A("s_waitcnt lgkmcnt(0)")
            if ks < 3: rd = qreads((ks + 1) & 1, u, ks + 1)
            else:      rd = qreads(0, (u + 1) & 3, 0)
            if ks == 0:   gl = gprev[9:13]
            elif ks == 1: gl = gprev[13:17]
            elif ks == 2: gl = g[0:5]
            else:         gl = g[5:9]
            mf = mfmas(ks & 1, u, ks)
            for j in range(18):
                if not nomfma: A(mf[j])
                if j < 9: A(rd[j])
                elif (j - 9) % 2 == 0 and (j - 9) // 2 < len(gl): A(gl[(j - 9) // 2])
            if ks == 1:
                A("s_waitcnt vmcnt(17)")
                A("s_barrier")
                if u == 1:
                    skip = A.newlabel(name + "_sk")
                    A(f"s_cmp_eq_u32 s37, 3\ns_cbranch_scc0 {skip}")
                    for v in vP + vQd: A(f"v_mov_b32 v{v}, 0x80000000")
                    A(f"v_lshlrev_b32 v1, 4, v{vL}")
                    A(f"s_mul_i32 s44, s36, 9216")
                    A(f"v_add_u32 v1, s44, v1")
                    for q in range(9):
                        A(f"v_add_u32 v7, {q*1024}, v1")
                        A(f"buffer_load_dwordx4 {vr(Z1V+q*4,4)}, v7, s[12:15], 0 offen")
                    for i in range(2):
                        A(f"buffer_load_ushort v{124+i}, v{vB[i]}, s[20:23], 0 offen")
                    A.label(skip)
    A(f"s_add_u32 s37, s37, 1\ns_cmp_lt_u32 s37, 4\ns_cbranch_scc1 {name}_loop")
    if stamps: A("s_memtime s[64:65]")
    A("s_waitcnt vmcnt(0)")
    A("s_nop 7")
    A("v_lshlrev_b32 v200, 16, v124\nv_lshlrev_b32 v201, 16, v124\nv_lshlrev_b32 v202, 16, v125\nv_lshlrev_b32 v203, 16, v125")
    A(f"""
    s_lshl_b32 s44, s34, 3
    s_lshl_b32 s45, s36, 1
    s_add_u32 s44, s44, s45
    s_mul_i32 s44, s44, 72
    s_lshr_b32 s45, s35, 1
    s_mul_i32 s45, s45, 9
    s_add_u32 s44, s44, s45
    s_and_b32 s46, s35, 1
    s_mul_i32 s47, s46, 5
    s_add_u32 s47, s47, s44
    s_lshl_b32 s47, s47, 10
    s_add_u32 s48, s44, 4
    s_lshl_b32 s48, s48, 10
    s_lshl_b32 s51, s46, 3
    s_add_u32 s48, s48, s51
    s_add_u32 s49, s47, 73728
    s_add_u32 s50, s48, 73728
    v_lshlrev_b32 v1, 4, v{vL}
    """)
    T = 204
    for i in range(2):
        for jn in range(9):
            c = ACC + (i*9+jn)*4
            z = Z1V + (i*9+jn)*2
            t = T + ((i*9+jn) & 1) * 4
            A(f"v_lshlrev_b32 v{t}, 16, v{z}")
            A(f"v_and_b32 v{t+1}, 0xffff0000, v{z}")
            A(f"v_lshlrev_b32 v{t+2}, 16, v{z+1}")
            A(f"v_and_b32 v{t+3}, 0xffff0000, v{z+1}")
            A(f"v_pk_add_f32 {vr(c,2)}, {vr(c,2)}, {vr(200+2*i,2)}")
            A(f"v_pk_add_f32 {vr(c+2,2)}, {vr(c+2,2)}, {vr(200+2*i,2)}")
            A(f"v_pk_mul_f32 {vr(c,2)}, {vr(c,2)}, {vr(t,2)}")
            A(f"v_pk_mul_f32 {vr(c+2,2)}, {vr(c+2,2)}, {vr(t+2,2)}")
            A(f"v_cvt_pk_bf16_f32 v{z}, v{c}, v{c+1}")
            A(f"v_cvt_pk_bf16_f32 v{z+1}, v{c+2}, v{c+3}")
    odd = A.newlabel(name + "_odd"); done = A.newlabel(name + "_sd")
    A(f"s_cmp_eq_u32 s46, 1\ns_cbranch_scc1 {odd}")
    for i in range(2):
        for p in range(4):
            A(f"buffer_store_dwordx4 {vr(Z1V+(i*9+2*p)*2,4)}, v1, s[16:19], s{47 if i==0 else 49} offen offset:{p*1024}")
        A(f"buffer_store_dwordx2 {vr(Z1V+(i*9+8)*2,2)}, v1, s[16:19], s{48 if i==0 else 50} offen")
    A(f"s_branch {done}")
    A.label(odd)
    for i in range(2):
        for p in range(4):
            A(f"buffer_store_dwordx4 {vr(Z1V+(i*9+1+2*p)*2,4)}, v1, s[16:19], s{47 if i==0 else 49} offen offset:{p*1024}")
        A(f"buffer_store_dwordx2 {vr(Z1V+(i*9)*2,2)}, v1, s[16:19], s{48 if i==0 else 50} offen")
    A.label(done)
    if stamps:
        A("s_waitcnt vmcnt(0)")
        A("s_memtime s[66:67]")
        A("s_waitcnt lgkmcnt(0)")
        srd_off(A, 24, 32, 33, WS_STAMP, 1 << 20)
        A("v_mov_b32 v210, s60\nv_mov_b32 v211, s62\nv_mov_b32 v212, s64\nv_mov_b32 v213, s66")
        A("s_lshl_b32 s44, s2, 2\ns_add_u32 s44, s44, s36\ns_lshl_b32 s44, s44, 4\nv_mov_b32 v1, s44")
        A("v_cmp_eq_u32 vcc, 0, v15\ns_and_saveexec_b64 s[52:53], vcc")
        A("buffer_store_dwordx4 v[210:213], v1, s[24:27], 0 offen")
        A("s_mov_b64 exec, s[52:53]")
    A.label(f"{name}_end")
    A("s_endpgm")
    return A.text(), kernel_desc(name, 214, 128)
```

```python
from asmlib import *
from g1 import f2u
import math

def gen_g3(name, stamps=False):
    A = Asm()
    R = 6; SLOT = 24576
    ACC = 16
    QA = [96, 120]
    PR = 0
    vQd = [2, 3, 4, 5, 6, 7]; vE0 = 8; vO0 = 9; vP = 10; vL = 15
    vE = [40, 41, 42, 43, 44, 45]; vO = [46, 47, 48, 49, 50, 51]
    A(f"""
    s_cmp_ge_u32 s2, 192
    s_cbranch_scc1 {name}_end
    s_load_dwordx2 s[28:29], s[0:1], 88
    s_load_dwordx2 s[30:31], s[0:1], 0
    s_load_dwordx2 s[32:33], s[0:1], 112
    s_load_dwordx2 s[54:55], s[0:1], 96
    """)
    if stamps: A("s_memtime s[60:61]")
    A(f"""
    s_and_b32 s44, s2, 7
    s_lshr_b32 s45, s2, 3
    s_lshl_b32 s34, s44, 2
    s_and_b32 s46, s45, 3
    s_add_u32 s34, s34, s46          ; tb
    s_lshr_b32 s35, s45, 2           ; db
    v_lshrrev_b32 v1, 6, v0
    v_and_b32 v{vL}, 63, v0
    s_nop 0
    v_readfirstlane_b32 s36, v1
    """)
    for j in range(6):
        d = vQd[j]
        A(f"""
        s_lshl_b32 s44, s36, 6
        s_add_u32 s44, s44, {256*j}
        v_add_u32 v16, s44, v{vL}
        v_mul_u32_u24 v17, 5462, v16
        v_lshrrev_b32 v17, 16, v17
        v_mul_u32_u24 v18, 12, v17
        v_sub_u32 v18, v16, v18             ; pos2
        v_lshrrev_b32 v19, 1, v18
        v_bfe_u32 v20, v17, 2, 1
        v_xor_b32 v19, v19, v20             ; jd
        v_mul_u32_u24 v17, 1152, v17
        v_lshlrev_b32 v19, 5, v19
        v_and_b32 v18, 1, v18
        v_lshlrev_b32 v18, 4, v18
        v_add3_u32 v{d}, v17, v19, v18
        """)
    A(f"""
    v_lshrrev_b32 v16, 2, v{vL}          ; 4kg + r
    v_mul_u32_u24 v18, 192, v16
    v_and_b32 v19, 3, v{vL}
    v_lshlrev_b32 v19, 3, v19
    v_add_u32 v18, v18, v19
    v_bfe_u32 v16, v{vL}, 4, 1
    v_lshlrev_b32 v16, 5, v16
    v_add_u32 v{vE0}, v18, v16
    v_sub_u32 v{vO0}, v18, v16
    """)
    for s in range(R):
        A(f"v_add_u32 v{vE[s]}, {s*SLOT}, v{vE0}\nv_add_u32 v{vO[s]}, {s*SLOT}, v{vO0}")
    A(f"""
    v_lshlrev_b32 v1, 4, v{vL}
    s_lshl_b32 s44, s34, 2
    s_add_u32 s44, s44, s36          ; ttile
    s_mov_b32 s56, s44
    s_mul_i32 s44, s44, 73728
    v_add_u32 v{vP}, s44, v1
    s_waitcnt lgkmcnt(0)
    """)
    srd(A, 4, 28, 29, 2304 * 1152)
    srd_off(A, 8, 32, 33, WS_H, 128 * 72 * 1024)
    srd(A, 12, 30, 31, 2048 * 1152)
    srd_off(A, 16, 32, 33, WS_S, 576 * 4096)
    srd(A, 20, 54, 55, 2048 * 1152)
    A("s_mul_i32 s38, s35, 192")
    A("s_mov_b32 s39, 0")
    A("s_lshl_b32 s40, s36, 10")
    def G(slot):
        ops = []
        dm = []
        for j in range(6):
            dm.append(f"s_add_u32 m0, s40, {slot*SLOT + j*4096}\ns_nop 0\nbuffer_load_dwordx4 v{vQd[j]}, s[4:7], s38 offen lds")
        pl = [f"buffer_load_dwordx4 {ar(PR+slot*16+ks*4,4)}, v{vP}, s[8:11], s39 offen offset:{ks*1024}" for ks in range(4)]
        ops = [dm[0], pl[0], dm[1], pl[1], dm[2], pl[2], dm[3], pl[3], dm[4], dm[5]]
        ops[-1] += f"\ns_add_u32 s38, s38, {128*1152}\ns_add_u32 s39, s39, 4096"
        return ops
    for s in range(R - 1):
        for op in G(s): A(op)
        if s == 0: A("s_barrier")
    for r in range(24): A(f"v_mov_b32 v{ACC+r}, 0")
    A(f"s_waitcnt vmcnt({10*(R-2)})")
    A("s_barrier")
    def qreads(buf, slot, ks):
        out = []
        for jd in range(6):
            b = vE[slot] if jd % 2 == 0 else vO[slot]
            for hf in range(2):
                out.append(f"ds_read_b64_tr_b16 {ar(QA[buf]+jd*4+hf*2,2)}, v{b} offset:{ks*6144 + hf*3072 + jd*32}")
        return out
    def mfmas(buf, slot, ks):
        return [f"v_mfma_f32_16x16x32_bf16 {vr(ACC+jd*4,4)}, {ar(QA[buf]+jd*4,4)}, {ar(PR+slot*16+ks*4,4)}, {vr(ACC+jd*4,4)}" for jd in range(6)]
    for x in qreads(0, 0, 0): A(x)
    if stamps: A("s_memtime s[62:63]")
    A("s_mov_b32 s37, 0")
    A.label(f"{name}_loop")
    for u in range(R):
        g = G((u + R - 1) % R)
        for ks in range(4):
            A("s_waitcnt lgkmcnt(0)")
            rd = qreads((ks + 1) & 1, u, ks + 1) if ks < 3 else qreads(0, (u + 1) % R, 0)
            gl = g[0:5] if ks == 2 else (g[5:10] if ks == 3 else [])
            mf = mfmas(ks & 1, u, ks)
            for j in range(6):
                A(mf[j]); A(rd[2*j]); A(rd[2*j+1])
                if j < len(gl): A(gl[j])
            if ks == 1:
                A(f"s_waitcnt vmcnt({10*(R-3)})")
                A("s_barrier")
                if u == 1:
                    skip = A.newlabel(name + "_sk")
                    A(f"s_cmp_eq_u32 s37, 2\ns_cbranch_scc0 {skip}")
                    for v in vQd + [vP]: A(f"v_mov_b32 v{v}, 0x80000000")
                    A(f"""
                    v_and_b32 v1, 15, v{vL}
                    s_lshl_b32 s44, s56, 4
                    v_add_u32 v1, s44, v1
                    v_mul_u32_u24 v1, 1152, v1
                    v_lshrrev_b32 v11, 4, v{vL}
                    v_lshlrev_b32 v11, 3, v11
                    v_add_u32 v1, v1, v11
                    s_mul_i32 s44, s35, 192
                    v_add_u32 v1, s44, v1
                    v_lshrrev_b32 v11, 4, v{vL}
                    v_lshlrev_b32 v11, 14, v11          ; 4kg * 4096
                    v_and_b32 v12, 15, v{vL}
                    v_lshlrev_b32 v12, 1, v12
                    v_add_u32 v11, v11, v12
                    s_mul_i32 s44, s35, {96*4096}
                    s_lshl_b32 s45, s56, 5
                    s_add_u32 s44, s44, s45
                    """)
                    for jd in range(6):
                        A(f"buffer_load_dwordx2 {vr(52+2*jd,2)}, v1, s[12:15], 0 offen offset:{jd*32}")
                    for jd in range(6):
                        for r in range(4):
                            A(f"s_add_u32 s45, s44, {(16*jd + r)*4096}")
                            A(f"buffer_load_ushort v{120+4*jd+r}, v11, s[16:19], s45 offen")
                    A.label(skip)
    A(f"s_add_u32 s37, s37, 1\ns_cmp_lt_u32 s37, 3\ns_cbranch_scc1 {name}_loop")
    if stamps: A("s_memtime s[64:65]")
    A("s_waitcnt vmcnt(0)")
    A("s_nop 7")
    NL2E = -math.log2(math.e)
    A(f"v_mov_b32 v76, {hex(f2u(NL2E))}\nv_mov_b32 v77, {hex(f2u(NL2E))}\nv_mov_b32 v78, 1.0\nv_mov_b32 v79, 1.0")
    for jd in range(6):
        c = ACC + jd*4
        t = 80 + (jd % 2) * 8
        A(f"v_pk_mul_f32 {vr(t,2)}, {vr(c,2)}, v[76:77]")
        A(f"v_pk_mul_f32 {vr(t+2,2)}, {vr(c+2,2)}, v[76:77]")
        for r in range(4): A(f"v_exp_f32 v{t+r}, v{t+r}")
        A(f"v_pk_add_f32 {vr(t,2)}, {vr(t,2)}, v[78:79]")
        A(f"v_pk_add_f32 {vr(t+2,2)}, {vr(t+2,2)}, v[78:79]")
        for r in range(4): A(f"v_rcp_f32 v{t+r}, v{t+r}")
        for r in range(4): A(f"v_lshlrev_b32 v{t+4+r}, 16, v{120+4*jd+r}")
        A(f"v_pk_mul_f32 {vr(c,2)}, {vr(c,2)}, {vr(t,2)}")
        A(f"v_pk_mul_f32 {vr(c+2,2)}, {vr(c+2,2)}, {vr(t+2,2)}")
        A(f"v_lshlrev_b32 v{t}, 16, v{52+2*jd}\nv_and_b32 v{t+1}, 0xffff0000, v{52+2*jd}")
        A(f"v_lshlrev_b32 v{t+2}, 16, v{53+2*jd}\nv_and_b32 v{t+3}, 0xffff0000, v{53+2*jd}")
        A(f"v_pk_fma_f32 {vr(c,2)}, {vr(c,2)}, {vr(t+4,2)}, {vr(t,2)}")
        A(f"v_pk_fma_f32 {vr(c+2,2)}, {vr(c+2,2)}, {vr(t+6,2)}, {vr(t+2,2)}")
        o = 96 + (jd // 2) * 4 + (jd % 2) * 2
        A(f"v_cvt_pk_bf16_f32 v{o}, v{c}, v{c+1}")
        A(f"v_cvt_pk_bf16_f32 v{o+1}, v{c+2}, v{c+3}")
    A(f"""
    v_and_b32 v1, 15, v{vL}
    s_lshl_b32 s44, s56, 4
    v_add_u32 v1, s44, v1
    v_mul_u32_u24 v1, 1152, v1
    v_bfe_u32 v11, v{vL}, 4, 1
    v_lshlrev_b32 v11, 5, v11
    v_add_u32 v1, v1, v11
    v_lshrrev_b32 v11, 5, v{vL}
    v_lshlrev_b32 v11, 4, v11
    v_add_u32 v1, v1, v11
    s_mul_i32 s44, s35, 192
    v_add_u32 v1, s44, v1
    """)
    for p in range(3):
        o = 96 + p*4
        A(f"v_permlane16_swap_b32 v{o}, v{o+2}")
        A(f"v_permlane16_swap_b32 v{o+1}, v{o+3}")
    A("s_nop 0")
    for p in range(3):
        A(f"buffer_store_dwordx4 {vr(96+p*4,4)}, v1, s[20:23], 0 offen offset:{p*64}")
    if stamps:
        A("s_waitcnt vmcnt(0)")
        A("s_memtime s[66:67]")
        A("s_waitcnt lgkmcnt(0)")
        srd_off(A, 24, 32, 33, WS_STAMP, 1 << 20)
        A("v_mov_b32 v110, s60\nv_mov_b32 v111, s62\nv_mov_b32 v112, s64\nv_mov_b32 v113, s66")
        A("s_lshl_b32 s44, s2, 2\ns_add_u32 s44, s44, s36\ns_lshl_b32 s44, s44, 6\nv_mov_b32 v1, s44")
        A("v_cmp_eq_u32 vcc, 0, v15\ns_and_saveexec_b64 s[52:53], vcc")
        A("buffer_store_dwordx4 v[110:113], v1, s[24:27], 0 offen")
        A("s_mov_b64 exec, s[52:53]")
    A.label(f"{name}_end")
    A("s_endpgm")
    return A.text(), kernel_desc(name, 144, 144), R * SLOT
```

```python
from asmlib import *
from g1 import f2u
from l0 import bf16_round
import math
LOG2E = math.log2(math.e)
KR_PITCH = 10752; KR1 = 5376

def csq_ops(e, t):
    return [f"v_pk_mul_f32 {vr(t,2)}, {vr(e,2)}, {vr(e,2)} op_sel:[1,1] op_sel_hi:[0,1]",
            f"v_pk_fma_f32 {vr(e,2)}, {vr(e,2)}, {vr(e,2)}, {vr(t,2)} op_sel:[0,0,0] op_sel_hi:[0,1,1] neg_lo:[0,0,1]"]
def cmul_ops(x, c, g, t):
    return [f"v_pk_mul_f32 {vr(t,2)}, {vr(c,2)}, {vr(g,2)} op_sel:[1,1] op_sel_hi:[1,0]",
            f"v_pk_fma_f32 {vr(x,2)}, {vr(c,2)}, {vr(g,2)}, {vr(t,2)} op_sel:[0,0,0] op_sel_hi:[0,1,1] neg_lo:[0,0,1]"]

def gen_kgen(A, name):
    A("s_load_dwordx2 s[56:57], s[0:1], 8\ns_load_dwordx2 s[58:59], s[0:1], 16\ns_load_dwordx2 s[60:61], s[0:1], 24\ns_load_dwordx2 s[62:63], s[0:1], 32\ns_load_dwordx2 s[64:65], s[0:1], 40")
    A("s_sub_u32 s47, s2, 256\ns_lshl_b32 s47, s47, 2\ns_add_u32 s47, s47, s36")
    A("s_waitcnt lgkmcnt(0)")
    srd(A, 4, 56, 57, 576*256); srd(A, 8, 58, 59, 576*256); srd(A, 12, 60, 61, 576*256); srd(A, 16, 62, 63, 576*256)
    srd(A, 20, 64, 65, 1152)
    srd_off(A, 24, 32, 33, WS_K, 576 * KR_PITCH)
    P = [16, 24]; F = 32; E = 48; C = 56; X = 64; T = 72; Bq = 84; Aq = 100
    vLo = 2; vDt = 3; vOff = 4
    A(f"""
    s_lshl_b32 s44, s47, 1
    v_mov_b32 v1, s44
    buffer_load_ushort v{vDt}, v1, s[20:23], 0 offen
    v_lshrrev_b32 v{vOff}, 4, v15
    v_lshlrev_b32 v{vOff}, 3, v{vOff}
    s_lshl_b32 s44, s47, 8
    v_add_u32 v{vOff}, s44, v{vOff}
    v_and_b32 v1, 15, v15
    v_cvt_f32_u32 v{vLo}, v1
    """)
    def ploads(dst):
        for a in range(4):
            A(f"buffer_load_dwordx2 {vr(dst+2*a,2)}, v{vOff}, s[{4+4*a}:{7+4*a}], s48 offen")
    A("s_mov_b32 s48, 0")
    ploads(P[0])
    for r in range(16): A(f"v_mov_b32 v{F+r}, 0")
    A("s_waitcnt vmcnt(0)")
    A(f"v_lshlrev_b32 v{vDt}, 16, v{vDt}")
    A(f"v_mul_f32 v{vDt}, {hex(f2u(LOG2E))}, v{vDt}")
    A(f"v_exp_f32 v{vDt}, v{vDt}\ns_nop 0")
    bf16_round(A, vDt)
    A(f"v_add_f32 v5, v{vDt}, v{vDt}")
    A(f"v_mul_f32 v6, {hex(f2u(-LOG2E))}, v{vDt}")
    A(f"v_mul_f32 v7, {hex(f2u(1/(2*math.pi)))}, v{vDt}")
    A("s_mov_b32 s49, 0")
    loop = A.newlabel(name + "_kl")
    A.label(loop)
    A("s_add_u32 s48, s48, 32")
    ploads(P[1])
    p = P[0]
    for c in range(4):
        for dst, a in ((X+2*c, 0), (X+2*c+1, 1), (C+2*c, 2), (C+2*c+1, 3)):
            s = p + 2*a + c//2
            if c % 2 == 0: A(f"v_lshlrev_b32 v{dst}, 16, v{s}")
            else: A(f"v_and_b32 v{dst}, 0xffff0000, v{s}")
    def each(fmt):
        for c in range(4): A(fmt(c))
    each(lambda c: f"v_mul_f32 v{X+2*c}, {hex(f2u(LOG2E))}, v{X+2*c}")
    each(lambda c: f"v_exp_f32 v{X+2*c}, v{X+2*c}")
    each(lambda c: f"v_mul_f32 v{X+2*c+1}, v{X+2*c+1}, v7")
    each(lambda c: f"v_cvt_pk_bf16_f32 v{X+2*c}, v{X+2*c}, v{X+2*c}")
    each(lambda c: f"v_and_b32 v{X+2*c}, 0xffff0000, v{X+2*c}")
    each(lambda c: f"v_mul_f32 v{C+2*c}, v{C+2*c}, v5")
    each(lambda c: f"v_mul_f32 v{C+2*c+1}, v{C+2*c+1}, v5")
    each(lambda c: f"v_mul_f32 v{X+2*c}, v{X+2*c}, v6")
    each(lambda c: f"v_mul_f32 v{X+2*c}, v{X+2*c}, v{vLo}")
    each(lambda c: f"v_mul_f32 v{X+2*c+1}, v{X+2*c+1}, v{vLo}")
    each(lambda c: f"v_exp_f32 v{X+2*c}, v{X+2*c}")
    each(lambda c: f"v_fract_f32 v{X+2*c+1}, v{X+2*c+1}")
    each(lambda c: f"v_cos_f32 v{E+2*c}, v{X+2*c+1}")
    each(lambda c: f"v_sin_f32 v{E+2*c+1}, v{X+2*c+1}")
    each(lambda c: f"v_mul_f32 v{E+2*c}, v{E+2*c}, v{X+2*c}")
    each(lambda c: f"v_mul_f32 v{E+2*c+1}, v{E+2*c+1}, v{X+2*c}")
    def emit2(opsl):
        for k in range(2):
            for c in range(4): A(opsl[c][k])
    def square_all(): emit2([csq_ops(E+2*c, T+2*c) for c in range(4)])
    for i in range(4):
        each(lambda c: f"v_cvt_pk_bf16_f32 v{Bq+4*i+c}, v{E+2*c}, -v{E+2*c+1}")
        square_all()
    for i in range(4):
        if i == 3:
            for c in range(4):
                A(f"v_mov_b32_dpp v{X+2*c}, v{E+2*c} row_newbcast:1 row_mask:0xf bank_mask:0xf")
                A(f"v_mov_b32_dpp v{X+2*c+1}, v{E+2*c+1} row_newbcast:1 row_mask:0xf bank_mask:0xf")
            emit2([cmul_ops(C+2*c, C+2*c, X+2*c, T+2*c) for c in range(4)])
        emit2([cmul_ops(X+2*c, C+2*c, E+2*c, T+2*c) for c in range(4)])
        each(lambda c: f"v_cvt_pk_bf16_f32 v{Aq+4*i+c}, v{X+2*c}, v{X+2*c+1}")
        if i < 3: square_all()
    A("s_nop 1")
    for i in range(4):
        A(f"v_mfma_f32_16x16x32_bf16 {vr(F+4*i,4)}, {vr(Aq+4*i,4)}, {vr(Bq+4*i,4)}, {vr(F+4*i,4)}")
    A("s_waitcnt vmcnt(0)")
    for r in range(8): A(f"v_mov_b32 v{P[0]+r}, v{P[1]+r}")
    A(f"s_add_u32 s49, s49, 1\ns_cmp_lt_u32 s49, 8\ns_cbranch_scc1 {loop}")
    LW = 5120
    A(f"s_mul_i32 s44, s36, {LW}")
    A(f"""
    v_lshlrev_b32 v1, 3, v15
    v_add_u32 v1, s44, v1
    v_mov_b32 v8, 0
    v_mov_b32 v9, 0
    ds_write_b64 v1, v[8:9] offset:4352
    """)
    A("s_nop 4")
    A(f"""
    v_lshrrev_b32 v1, 4, v15
    v_lshlrev_b32 v1, 6, v1
    v_and_b32 v8, 15, v15
    v_add_u32 v1, v1, v8                 ; q0
    """)
    for r in range(16): A(f"v_cvt_pk_bf16_f32 v{F+r}, v{F+r}, v{F+r}")
    for i in (3, 2, 1, 0):
        h = 1 << i
        A(f"v_lshlrev_b32 v8, {i+1}, v1")
        A(f"v_sub_u32 v8, {(128+2048)*2}, v8")
        A(f"v_add_u32 v8, s44, v8")
        for r in range(4):
            dq = (16*r + (16 if i == 3 else 0)) << (i+1)
            A(f"v_subrev_u32 v9, {dq + h}, v8")
            if i == 0: rowmask = (0xffffffff, 0xffffffff)
            elif i == 3 and r == 3: rowmask = (0xffff0000, 0xffffffff)
            else: rowmask = (0, 0xffffffff)
            for o in range(-(h//2), h//2 + 1):
                m = rowmask
                if i > 0 and abs(o) == h//2: m = (m[0] & 0x55555555, m[1] & 0x55555555)
                A(f"s_mov_b32 exec_lo, {hex(m[0])}\ns_mov_b32 exec_hi, {hex(m[1])}")
                A(f"ds_write_b16 v9, v{F+4*i+r} offset:{h + 2*o}")
            A("s_mov_b64 exec, -1")
    A("s_waitcnt lgkmcnt(0)")
    A(f"""
    v_lshlrev_b32 v1, 4, v15
    v_add_u32 v8, s44, v1
    s_mul_i32 s45, s47, {KR_PITCH}
    """)
    for it in range(5):
        if it == 4: A("s_mov_b32 exec_lo, 0x1ffff\ns_mov_b32 exec_hi, 0")
        b = 16 + (it % 2) * 12
        A(f"ds_read_b128 {vr(b,4)}, v8 offset:{256 + it*1024}")
        A(f"ds_read_b32 v{b+4}, v8 offset:{256 + it*1024 + 16}")
        A("s_waitcnt lgkmcnt(0)")
        for k in range(4): A(f"v_alignbit_b32 v{b+6+k}, v{b+k+1}, v{b+k}, 16")
        A(f"s_add_u32 s46, s45, {it*1024}")
        A(f"buffer_store_dwordx4 {vr(b,4)}, v1, s[24:27], s46 offen")
        A(f"s_add_u32 s46, s46, {KR1}")
        A(f"buffer_store_dwordx4 {vr(b+6,4)}, v1, s[24:27], s46 offen")
    A("s_endpgm")
```

```python
from asmlib import *

def bf16_round(A, v, tmp=None):
    A(f"v_cvt_pk_bf16_f32 v{v}, v{v}, v{v}")
    A(f"v_and_b32 v{v}, 0xffff0000, v{v}")

def dpp_sum16(A, v):
    for n in (8, 4, 2, 1):
        A("s_nop 1")
        A(f"v_add_f32_dpp v{v}, v{v}, v{v} row_ror:{n} row_mask:0xf bank_mask:0xf")

def gen_ln(A, name):
    PITCH = 1168
    srd(A, 4, 28, 29, 2048 * 1152)
    srd_off(A, 8, 32, 33, WS_XN, 128 * 18 * 1024)
    srd_off(A, 12, 32, 33, WS_XNT, 576 * 4096)
    A(f"""
    s_lshl_b32 s44, s2, 4
    s_lshl_b32 s45, s36, 2
    s_add_u32 s44, s44, s45
    v_lshrrev_b32 v1, 4, v15
    v_add_u32 v2, s44, v1
    v_mul_u32_u24 v2, 1152, v2
    v_and_b32 v3, 15, v15
    v_lshlrev_b32 v4, 4, v3
    v_add_u32 v2, v2, v4
    """)
    for j in range(4):
        A(f"buffer_load_dwordx4 {vr(16+4*j,4)}, v2, s[4:7], 0 offen offset:{j*256}")
    A("s_mov_b32 s50, 0x00ff00ff\ns_mov_b32 s51, 0x00ff00ff")
    A("v_mov_b32 v32, 0\nv_mov_b32 v33, 0\nv_mov_b32 v34, 0\nv_mov_b32 v35, 0")
    A("s_mov_b64 exec, s[50:51]")
    A(f"buffer_load_dwordx4 v[32:35], v2, s[4:7], 0 offen offset:1024")
    A("s_mov_b64 exec, -1")
    A(f"""
    v_add_u32 v5, s45, v1
    v_mul_u32_u24 v5, {PITCH}, v5
    v_add_u32 v5, v5, v4
    s_waitcnt vmcnt(0)
    """)
    for q in range(20):
        A(f"v_lshlrev_b32 v{40+2*q}, 16, v{16+q}")
        A(f"v_and_b32 v{41+2*q}, 0xffff0000, v{16+q}")
    A("v_add_f32 v6, v40, v41")
    for q in range(2, 40): A(f"v_add_f32 v6, v6, v{40+q}")
    dpp_sum16(A, 6)
    A("v_mul_f32 v6, 0x3ae38e39, v6")
    A("v_mov_b32 v7, 0")
    for q in range(32):
        A(f"v_sub_f32 v8, v{40+q}, v6")
        A(f"v_fmac_f32 v7, v8, v8")
    A("s_mov_b64 exec, s[50:51]")
    for q in range(32, 40):
        A(f"v_sub_f32 v8, v{40+q}, v6")
        A(f"v_fmac_f32 v7, v8, v8")
    A("s_mov_b64 exec, -1")
    dpp_sum16(A, 7)
    A("v_mul_f32 v7, 0x3ae38e39, v7")
    bf16_round(A, 7)
    A("v_add_f32 v7, 0x3727c5ac, v7")
    bf16_round(A, 7)
    A("v_sqrt_f32 v7, v7")
    A("s_nop 0")
    bf16_round(A, 7)
    A("v_rcp_f32 v7, v7")
    bf16_round(A, 6)
    for q in range(20):
        a, b = 40+2*q, 41+2*q
        A(f"v_sub_f32 v{a}, v{a}, v6")
        A(f"v_sub_f32 v{b}, v{b}, v6")
        A(f"v_cvt_pk_bf16_f32 v8, v{a}, v{b}")
        A(f"v_lshlrev_b32 v{a}, 16, v8")
        A(f"v_and_b32 v{b}, 0xffff0000, v8")
        A(f"v_mul_f32 v{a}, v{a}, v7")
        A(f"v_mul_f32 v{b}, v{b}, v7")
        A(f"v_cvt_pk_bf16_f32 v{16+q}, v{a}, v{b}")
    for j in range(4):
        A(f"ds_write_b128 v5, {vr(16+4*j,4)} offset:{j*256}")
    A("s_mov_b64 exec, s[50:51]")
    A(f"ds_write_b128 v5, v[32:35] offset:1024")
    A("s_mov_b64 exec, -1")
    A("s_waitcnt lgkmcnt(0)\ns_barrier")
    A(f"""
    v_and_b32 v1, 15, v15
    v_mul_u32_u24 v1, {PITCH}, v1
    v_lshrrev_b32 v2, 4, v15
    v_lshlrev_b32 v2, 4, v2
    v_add_u32 v1, v1, v2
    s_lshl_b32 s45, s36, 6
    v_add_u32 v1, s45, v1
    v_lshlrev_b32 v3, 4, v15              ; lane*16
    s_mul_i32 s44, s2, 18
    s_add_u32 s44, s44, s36
    s_lshl_b32 s44, s44, 10               ; (stile*18 + w)*1024
    """)
    for j in range(4):
        A(f"ds_read_b128 {vr(16+4*j,4)}, v1 offset:{j*256}")
    lab = A.newlabel(name + "_ln")
    A(f"s_cmp_lt_u32 s36, 2\ns_cbranch_scc0 {lab}")
    A(f"ds_read_b128 v[32:35], v1 offset:1024")
    A("s_waitcnt lgkmcnt(0)")
    A("s_add_u32 s45, s44, 16384")
    A(f"buffer_store_dwordx4 v[32:35], v3, s[8:11], s45 offen")
    A.label(lab)
    A("s_waitcnt lgkmcnt(0)")
    for j in range(4):
        A(f"s_add_u32 s45, s44, {j*4096}")
        A(f"buffer_store_dwordx4 {vr(16+4*j,4)}, v3, s[8:11], s45 offen")
    A(f"""
    v_lshrrev_b32 v1, 2, v15              ; 4g + r = (l>>2) (since g=l>>4, r=(l>>2)&3)
    v_mul_u32_u24 v1, {PITCH}, v1
    v_and_b32 v2, 3, v15
    v_lshlrev_b32 v2, 3, v2
    v_add_u32 v1, v1, v2
    s_mul_i32 s45, s36, 288
    v_add_u32 v1, s45, v1                 ; + w*9*32 bytes
    v_and_b32 v2, 15, v15
    v_lshlrev_b32 v2, 12, v2              ; channel*4096
    v_lshrrev_b32 v3, 4, v15
    v_lshlrev_b32 v3, 3, v3               ; g*8
    v_add_u32 v2, v2, v3
    s_lshl_b32 s44, s2, 5                 ; t0*2
    s_mul_i32 s45, s36, {9*16*4096}
    s_add_u32 s44, s44, s45
    """)
    for j in range(9):
        A(f"ds_read_b64_tr_b16 {vr(40+2*j,2)}, v1 offset:{j*32}")
    A("s_waitcnt lgkmcnt(0)")
    for j in range(9):
        A(f"s_add_u32 s45, s44, {j*16*4096}")
        A(f"buffer_store_dwordx2 {vr(40+2*j,2)}, v2, s[12:15], s45 offen")

def gen_wsp(A, name):
    srd(A, 4, 30, 31, 2048 * 4096)
    srd_off(A, 8, 32, 33, WS_WSP, 2048 * 4096)
    A(f"""
    v_lshrrev_b32 v1, 2, v15
    s_lshl_b32 s44, s47, 4
    v_add_u32 v1, s44, v1
    v_lshlrev_b32 v1, 12, v1
    v_and_b32 v2, 3, v15
    v_lshlrev_b32 v2, 4, v2
    v_add_u32 v1, v1, v2
    s_lshl_b32 s45, s36, 10
    s_lshl_b32 s46, s36, 14
    """)
    for j in range(16):
        A(f"s_add_u32 s48, s45, {j*64}\ns_add_u32 m0, s46, {j*1024}\ns_nop 0\nbuffer_load_dwordx4 v1, s[4:7], s48 offen lds")
    A(f"""
    v_and_b32 v2, 15, v15
    v_lshlrev_b32 v2, 2, v2
    v_lshrrev_b32 v3, 4, v15
    v_add_u32 v2, v2, v3
    v_lshlrev_b32 v2, 4, v2
    v_add_u32 v2, s46, v2
    v_lshlrev_b32 v3, 4, v15
    s_lshl_b32 s44, s47, 16
    s_lshl_b32 s45, s36, 14
    s_add_u32 s44, s44, s45               ; (T*64 + 16w)*1024
    s_waitcnt vmcnt(0)
    """)
    for j in range(16):
        A(f"ds_read_b128 {vr(16+4*j,4)}, v2 offset:{j*1024}")
    for j in range(16):
        A(f"s_waitcnt lgkmcnt({15-j})")
        A(f"s_add_u32 s45, s44, {j*1024}")
        A(f"buffer_store_dwordx4 {vr(16+4*j,4)}, v3, s[8:11], s45 offen")

def gen_l0(name, kgen=None):
    A = Asm()
    nwg = 256 + (144 if kgen else 0)
    A(f"""
    s_cmp_ge_u32 s2, {nwg}
    s_cbranch_scc1 {name}_end
    s_load_dwordx2 s[28:29], s[0:1], 0
    s_load_dwordx2 s[30:31], s[0:1], 72
    s_load_dwordx2 s[32:33], s[0:1], 112
    v_lshrrev_b32 v1, 6, v0
    v_and_b32 v15, 63, v0
    s_nop 0
    v_readfirstlane_b32 s36, v1
    s_waitcnt lgkmcnt(0)
    s_cmp_ge_u32 s2, 128
    s_cbranch_scc1 {name}_r1
    """)
    gen_ln(A, name)
    A("s_endpgm")
    A.label(f"{name}_r1")
    if kgen:
        A(f"s_cmp_ge_u32 s2, 256\ns_cbranch_scc1 {name}_r2")
    A("s_sub_u32 s47, s2, 128")
    gen_wsp(A, name)
    A("s_endpgm")
    if kgen:
        A.label(f"{name}_r2")
        kgen(A, name)
    A.label(f"{name}_end")
    A("s_endpgm")
    return A.text(), kernel_desc(name, 128, 0), nwg
```

```python
import sys
from asmlib import *
from l0 import gen_l0
from g1 import gen_g1
from g2 import gen_g2
from g3 import gen_g3
from kgen import gen_kgen
from conv import gen_conv
def build(path, parts, stamps=False):
    launches = ""; text = ""; descs = ""
    for p in parts:
        if p == "l0":
            body, desc, nwg = gen_l0("l0_kernel", gen_kgen); launches += f"; @launch kernel=l0_kernel grid=({nwg},1,1) block=(256,1,1) lds=65536\n"; nm = "l0_kernel"
        elif p == "g1":
            body, desc, lds = gen_g1("g1_kernel", stamps); launches += f"; @launch kernel=g1_kernel grid=(256,1,1) block=(256,1,1) lds={lds}\n"; nm = "g1_kernel"
        elif p == "g2":
            body, desc = gen_g2("g2_kernel", stamps); launches += f"; @launch kernel=g2_kernel grid=(256,1,1) block=(256,1,1) lds=147456\n"; nm = "g2_kernel"
        elif p == "g3":
            body, desc, lds = gen_g3("g3_kernel", stamps); launches += f"; @launch kernel=g3_kernel grid=(192,1,1) block=(256,1,1) lds={lds}\n"; nm = "g3_kernel"
        elif p == "conv":
            body, desc, lds, nwg = gen_conv("cv_kernel"); launches += f"; @launch kernel=cv_kernel grid=({nwg},1,1) block=(256,1,1) lds={lds}\n"; nm = "cv_kernel"
        text += kernel_header(nm) + body
        descs += desc
    s = HEADER + launches + '.amdgcn_target "amdgcn-amd-amdhsa--gfx950"\n.text\n' + text + '.section .rodata,"a"\n' + descs
    open(path, "w").write(s)
if __name__ == "__main__":
    args = sys.argv[1:]
    stamps = "stamps" in args
    parts = [a for a in args[1:] if a != "stamps"]
    build(args[0], parts, stamps)
```

```python
class Asm:
    def __init__(self):
        self.lines = []
        self.uid = 0
    def __call__(self, s):
        for l in s.strip("\n").split("\n"):
            self.lines.append("    " + l.strip() if not l.strip().endswith(":") else l.strip())
    def label(self, name):
        self.lines.append(name + ":")
    def newlabel(self, p="L"):
        self.uid += 1
        return f"{p}_{self.uid}"
    def comment(self, s):
        self.lines.append("    ; " + s)
    def text(self):
        return "\n".join(self.lines) + "\n"

def vr(b, n=1, p="v"):
    return f"{p}{b}" if n == 1 else f"{p}[{b}:{b+n-1}]"
def ar(b, n=1): return vr(b, n, "a")
def sr(b, n=1): return vr(b, n, "s")

def srd(A, s, base_lo, base_hi, size):
    A(f"s_mov_b32 s{s}, s{base_lo}")
    A(f"s_and_b32 s{s+1}, s{base_hi}, 0xffff")
    A(f"s_mov_b32 s{s+2}, {size}")
    A(f"s_mov_b32 s{s+3}, 0x00020000")

def srd_off(A, s, base_lo, base_hi, off, size):
    A(f"s_add_u32 s{s}, s{base_lo}, {off}")
    A(f"s_addc_u32 s{s+1}, s{base_hi}, 0")
    A(f"s_and_b32 s{s+1}, s{s+1}, 0xffff")
    A(f"s_mov_b32 s{s+2}, {size}")
    A(f"s_mov_b32 s{s+3}, 0x00020000")

def kernel_header(name):
    return f".globl {name}\n.p2align 8\n.type {name},@function\n{name}:\n"

def kernel_desc(name, vgpr, agpr, sgpr=102):
    acc = (vgpr + 3) // 4 * 4
    nfv = acc + agpr if agpr else vgpr
    return f""".p2align 6
.amdhsa_kernel {name}
  .amdhsa_next_free_vgpr {nfv}
  .amdhsa_next_free_sgpr {sgpr}
  .amdhsa_accum_offset {acc}
  .amdhsa_group_segment_fixed_size 0
  .amdhsa_kernarg_size 120
  .amdhsa_user_sgpr_count 2
  .amdhsa_user_sgpr_kernarg_segment_ptr 1
  .amdhsa_system_sgpr_workgroup_id_x 1
.end_amdhsa_kernel
"""

HEADER = """; Kernarg layout for this problem (120 bytes, ptrs only, base s[0:1]):
"""

WS_XN    = 0x0000000
WS_XNT   = 0x0400000
WS_Z1    = 0x0800000
WS_Z2N   = 0x1200000
WS_H     = 0x1C00000
WS_K     = 0x2600000
WS_S     = 0x2C00000
WS_STAT  = 0x2E00000
WS_WSP   = 0x3400000
WS_WIT   = 0x3C00000
WS_WOT   = 0x4200000
WS_FLAG  = 0x2F00000
WS_STAMP = 0x3000000

class Stamper:
    def __init__(self, A, kidx, on):
        self.A = A; self.k = kidx; self.on = on; self.n = 0
    def start(self):
        if self.on:
            self.A("s_memrealtime s[96:97]"); self.stamp()
    def stamp(self):
        if self.on:
            assert self.n < 12
            self.A(f"s_memtime s[{70+2*self.n}:{71+2*self.n}]"); self.n += 1
    def finish(self, ws_lo=32, wave="s36", lane="v15", vbase=200, wg="s2"):
        if not self.on: return
        A = self.A
        A("s_waitcnt vmcnt(0)")
        self.stamp()
        A("s_memrealtime s[98:99]")
        A("s_waitcnt lgkmcnt(0)")
        srd_off(A, 24, ws_lo, ws_lo + 1, WS_STAMP + self.k * 0x20000 + (0x200000 if self.k == 0 else 0), 0x80000)
        A(f"v_mov_b32 v{vbase}, s96\nv_mov_b32 v{vbase+1}, s98\nv_mov_b32 v{vbase+2}, {self.n}\nv_mov_b32 v{vbase+3}, 0")
        for i in range(12): A(f"v_mov_b32 v{vbase+4+i}, s{70+2*i}" if i < self.n else f"v_mov_b32 v{vbase+4+i}, 0")
        A(f"s_lshl_b32 s44, {wg}, 2\ns_add_u32 s44, s44, {wave}\ns_lshl_b32 s44, s44, 6\nv_mov_b32 v1, s44")
        A(f"v_cmp_eq_u32 vcc, 0, {lane}\ns_and_saveexec_b64 s[52:53], vcc")
        for i in range(4):
            A(f"buffer_store_dwordx4 v[{vbase+4*i}:{vbase+4*i+3}], v1, s[24:27], 0 offen offset:{i*16}")
        A("s_mov_b64 exec, s[52:53]")
```

```python
from asmlib import *
from kgen import KR_PITCH, KR1
from l0 import bf16_round
OC = [0, 1, 4, 5, 8, 8, 11, 12]
KBUF = 41216; UBUF = 8192

def gen_conv_body(A, name, nch, wgexpr_setup, stamp=lambda: None):
    LK = [0, KBUF]; LU = [2*KBUF, 2*KBUF + UBUF]; LS = 2*KBUF + 2*UBUF
    srd_off(A, 4, 32, 33, WS_K, 576 * KR_PITCH)
    srd_off(A, 8, 32, 33, WS_XNT, 576 * 4096)
    srd_off(A, 12, 32, 33, WS_S, 576 * 4096)
    srd(A, 16, 30, 31, 1152)
    wgexpr_setup(A)
    vKd = 2
    vUd = [3, 4]
    vA = 5; vB = 6; vA0 = 7; vB0 = 8
    A(f"v_lshlrev_b32 v{vKd}, 4, v15")
    for j in range(2):
        A(f"""
        s_lshl_b32 s44, s36, 7
        s_add_u32 s44, s44, {64*j}
        v_add_u32 v16, s44, v15
        v_mul_u32_u24 v17, 6554, v16
        v_lshrrev_b32 v17, 16, v17
        v_mul_u32_u24 v18, 10, v17
        v_sub_u32 v18, v16, v18
        v_subrev_u32 v17, 15, v17
        v_lshlrev_b32 v19, 7, v17
        v_lshl_add_u32 v19, v18, 4, v19
        v_cmp_gt_u32 vcc, 32, v17
        v_cmp_gt_u32 s[52:53], 8, v18
        s_and_b64 vcc, vcc, s[52:53]
        v_mov_b32 v20, 0x80000000
        s_nop 1
        v_cndmask_b32 v{vUd[j]}, v20, v19, vcc
        """)
    A(f"""
    v_and_b32 v16, 15, v15
    v_sub_u32 v17, 0, v16
    v_and_b32 v17, 7, v17                ; c
    v_mul_u32_u24 v18, 320, v17
    v_lshrrev_b32 v19, 1, v17
    v_lshlrev_b32 v19, 2, v19            ; 4*(c>>1)
    v_and_b32 v20, 1, v17
    v_add_u32 v19, v19, v20              ; 0,1,4,5,8,9,12,13
    v_cmp_le_u32 vcc, 5, v17
    s_nop 1
    v_cndmask_b32 v20, 0, 1, vcc
    v_sub_u32 v19, v19, v20              ; 0,1,4,5,8,8,11,12
    v_add_u32 v18, v18, v19
    v_lshrrev_b32 v19, 4, v15
    v_add_u32 v18, v18, v19              ; + kg
    v_add_u32 v19, 7, v16
    v_lshrrev_b32 v19, 3, v19            ; ceil(b/8)
    v_sub_u32 v18, v18, v19
    v_lshlrev_b32 v18, 4, v18
    v_add_u32 v{vA0}, 32, v18
    v_mul_u32_u24 v18, 160, v16
    v_lshrrev_b32 v19, 4, v15
    v_lshlrev_b32 v19, 4, v19
    v_add_u32 v{vB0}, v18, v19
    """)
    def dma(chs, sK, sU):
        A(f"s_mul_i32 s44, {chs}, {KR_PITCH}")
        A("s_lshl_b32 s45, s36, 2\ns_add_u32 s44, s44, s45")
        for cc in range(2):
            A(f"s_lshl_b32 s45, s36, 1\ns_add_u32 s45, s45, {cc}")
            A("s_mul_i32 s46, s45, 320")
            A(f"s_lshl_b32 s48, s36, 2\ns_add_u32 s48, s48, {cc}\ns_cmp_ge_u32 s45, 5\ns_subb_u32 s48, s48, 0")
            A("s_add_u32 s46, s46, s48\ns_lshl_b32 s46, s46, 4")
            A(f"s_add_u32 s46, s46, {sK}")
            A(f"s_add_u32 s48, s44, {cc*KR1}")
            for it in range(5):
                A(f"s_add_u32 m0, s46, {it*1024}\ns_add_u32 s49, s48, {it*1024}")
                A(f"buffer_load_dwordx4 v{vKd}, s[4:7], s49 offen lds")
        A(f"s_lshl_b32 s44, {chs}, 12")
        for j in range(2):
            A(f"s_lshl_b32 s45, s36, 11\ns_add_u32 s45, s45, {sU}\ns_add_u32 m0, s45, {j*1024}\ns_nop 0")
            A(f"buffer_load_dwordx4 v{vUd[j]}, s[8:11], s44 offen lds")
    A("""
    s_cmp_eq_u32 s36, 0
    s_cselect_b32 s50, 0, 24
    s_cselect_b32 s51, 6, 2
    s_cselect_b32 s54, 0, 2
    s_cmp_ge_u32 s36, 2
    s_cselect_b32 s51, 0, s51
    s_cselect_b32 s54, 3, s54
    s_cmp_eq_u32 s36, 2
    s_cselect_b32 s50, 40, s50
    s_cmp_eq_u32 s36, 3
    s_cselect_b32 s50, 52, s50
    """)
    FR = [24, 32, 40, 48]; BR = [56, 64, 72, 80]; ACC = 96; vBz = 9
    A(f"s_mov_b32 s60, {LK[0]}\ns_mov_b32 s61, {LU[0]}\ns_mov_b32 s62, {LK[1]}\ns_mov_b32 s63, {LU[1]}")
    dma("s47", "s60", "s61")
    A("buffer_store_dword v15, v15, s[12:15], 0 offen offset:4095" if False else "")
    A("s_mov_b32 s55, 0")
    chl = A.newlabel(name + "_ch")
    stamp()
    A("s_waitcnt vmcnt(0)")
    stamp()
    A.label(chl)
    A("s_barrier")
    nx = A.newlabel(name + "_nx")
    A(f"s_add_u32 s58, s55, 1\ns_cmp_lt_u32 s58, {nch}\ns_cbranch_scc0 {nx}")
    A("s_add_u32 s59, s47, 1")
    dma("s59", "s62", "s63")
    A.label(nx)
    A("s_lshl_b32 s44, s47, 1\nv_mov_b32 v1, s44\nbuffer_load_ushort v10, v1, s[16:19], 0 offen")
    A(f"""
    s_lshl_b32 s44, s50, 6
    s_add_u32 s44, s44, s60
    v_add_u32 v{vA}, s44, v{vA0}
    s_lshr_b32 s44, s50, 1
    s_mul_i32 s44, s44, 160
    s_add_u32 s44, s44, s61
    v_add_u32 v{vB}, s44, v{vB0}
    v_subrev_u32 v{vBz}, 2560, v{vB}
    """)
    def rdA(pair, t):
        return [f"ds_read_b128 {vr(FR[pair],4)}, v{vA} offset:{96+64*t}", f"ds_read_b128 {vr(FR[pair]+4,4)}, v{vA} offset:{64+64*t}"]
    def rdB(slot, t, tile):
        off = (t >> 1) * 160 + 64 * (t & 1)
        return f"ds_read_b128 {vr(BR[slot] + (0 if tile == 1 else 4),4)}, v{vB if tile == 1 else vBz} offset:{off}"
    for x in rdA(3, -1): A(x)
    for t in range(2):
        for x in rdA(t, t): A(x)
        A(rdB(t, t, 1))
    for r in range(32): A(f"v_mov_b32 v{ACC+r}, 0")
    A("s_waitcnt lgkmcnt(0)")
    stamp()
    def body(double):
        for t in range(4):
            A(f"s_waitcnt lgkmcnt({4 if double else 3})")
            cur = FR[t]; prev = FR[(t-1) % 4]
            fr = [cur, cur+4, prev, prev+4]
            rd = rdA((t+2) % 4, t+2) + [rdB((t+2) % 4, t+2, 1)] + ([rdB((t+2) % 4, t+2, 0)] if double else [])
            mf = []
            for i in ([1, 0] if double else [1]):
                for h in range(4):
                    c = vr(ACC + (h*2+i)*4, 4)
                    mf.append(f"v_mfma_f32_16x16x32_bf16 {c}, {vr(fr[h],4)}, {vr(BR[t] + (0 if i == 1 else 4),4)}, {c}")
            for j, m in enumerate(mf):
                A(m)
                if j < len(rd): A(rd[j])
        A(f"v_add_u32 v{vA}, 256, v{vA}\nv_add_u32 v{vB}, 320, v{vB}\nv_add_u32 v{vBz}, 320, v{vBz}")
    l1 = A.newlabel(name + "_s"); l1e = A.newlabel(name + "_se"); l2 = A.newlabel(name + "_d"); l2e = A.newlabel(name + "_de")
    A(f"s_mov_b32 s64, s51\ns_cmp_eq_u32 s64, 0\ns_cbranch_scc1 {l1e}")
    A.label(l1)
    body(False)
    A(f"s_sub_u32 s64, s64, 1\ns_cmp_lg_u32 s64, 0\ns_cbranch_scc1 {l1}")
    A.label(l1e)
    A(f"s_mov_b32 s64, s54\ns_cmp_eq_u32 s64, 0\ns_cbranch_scc1 {l2e}")
    for t in range(2): A(rdB(t, t, 0))
    A("s_waitcnt lgkmcnt(0)")
    A.label(l2)
    body(True)
    A(f"s_sub_u32 s64, s64, 1\ns_cmp_lg_u32 s64, 0\ns_cbranch_scc1 {l2}")
    A.label(l2e)
    stamp()
    A("s_waitcnt lgkmcnt(0)\ns_nop 7")
    A(f"v_lshlrev_b32 v1, 4, v15\ns_lshl_b32 s44, s36, 13\ns_add_u32 s44, s44, {LS}\nv_add_u32 v11, s44, v1")
    for h in range(4):
        for i in range(2):
            A(f"ds_write_b128 v11, {vr(ACC+(h*2+i)*4,4)} offset:{(h*2+i)*1024}")
    A("s_waitcnt lgkmcnt(0)\ns_barrier")
    stamp()
    A(f"s_lshl_b32 s44, s36, 11\ns_add_u32 s44, s44, {LS}\nv_add_u32 v11, s44, v1")
    for ww in range(4):
        for i in range(2):
            A(f"ds_read_b128 {vr(24+(ww*2+i)*4,4)}, v11 offset:{ww*8192 + i*1024}")
    A(f"""
    v_and_b32 v12, 15, v15
    v_mul_u32_u24 v12, 160, v12
    v_lshrrev_b32 v13, 4, v15
    v_lshlrev_b32 v13, 3, v13
    v_add_u32 v12, v12, v13
    s_lshl_b32 s44, s36, 5
    s_add_u32 s44, s44, s61
    v_add_u32 v12, s44, v12
    """)
    for i in range(2):
        A(f"ds_read_b64 {vr(56+2*i,2)}, v12 offset:{(15+16*i)*160}")
    A("s_waitcnt vmcnt(0) lgkmcnt(0)" if False else "s_waitcnt lgkmcnt(0)")
    for i in range(2):
        for ww in range(1, 4):
            A(f"v_pk_add_f32 {vr(24+i*4,2)}, {vr(24+i*4,2)}, {vr(24+(ww*2+i)*4,2)}")
            A(f"v_pk_add_f32 {vr(24+i*4+2,2)}, {vr(24+i*4+2,2)}, {vr(24+(ww*2+i)*4+2,2)}")
    A("s_waitcnt vmcnt(0)")
    A("v_lshlrev_b32 v10, 16, v10")
    for i in range(2):
        y = 24 + i*4
        A(f"v_cvt_pk_bf16_f32 v60, v{y}, v{y+1}\nv_cvt_pk_bf16_f32 v61, v{y+2}, v{y+3}")
        A(f"v_lshlrev_b32 v{y}, 16, v60\nv_and_b32 v{y+1}, 0xffff0000, v60\nv_lshlrev_b32 v{y+2}, 16, v61\nv_and_b32 v{y+3}, 0xffff0000, v61")
        u = 56 + 2*i
        A(f"v_lshlrev_b32 v64, 16, v{u}\nv_and_b32 v65, 0xffff0000, v{u}\nv_lshlrev_b32 v66, 16, v{u+1}\nv_and_b32 v67, 0xffff0000, v{u+1}")
        for r in range(4): A(f"v_mul_f32 v{64+r}, v{64+r}, v10")
        A(f"v_cvt_pk_bf16_f32 v60, v64, v65\nv_cvt_pk_bf16_f32 v61, v66, v67")
        A(f"v_lshlrev_b32 v64, 16, v60\nv_and_b32 v65, 0xffff0000, v60\nv_lshlrev_b32 v66, 16, v61\nv_and_b32 v67, 0xffff0000, v61")
        for r in range(4): A(f"v_add_f32 v{y+r}, v{y+r}, v{64+r}")
        A(f"v_cvt_pk_bf16_f32 v{68+2*i}, v{y}, v{y+1}\nv_cvt_pk_bf16_f32 v{69+2*i}, v{y+2}, v{y+3}")
    A(f"""
    v_and_b32 v12, 15, v15
    v_lshlrev_b32 v12, 7, v12
    v_add_u32 v12, v12, v13
    s_lshl_b32 s44, s47, 12
    s_lshl_b32 s45, s36, 5
    s_add_u32 s44, s44, s45
    """)
    for i in range(2):
        A(f"buffer_store_dwordx2 {vr(68+2*i,2)}, v12, s[12:15], s44 offen offset:{i*2048}")
    stamp()
    A("s_mov_b32 s44, s60\ns_mov_b32 s60, s62\ns_mov_b32 s62, s44\ns_mov_b32 s44, s61\ns_mov_b32 s61, s63\ns_mov_b32 s63, s44")
    A(f"s_add_u32 s47, s47, 1\ns_add_u32 s55, s55, 1\ns_cmp_lt_u32 s55, {nch}\ns_cbranch_scc1 {chl}")
    return LS + 32768

def gen_conv(name, nch=4, stamps=False):
    A = Asm(); ST = Stamper(A, 3, stamps)
    nwg = 576 // nch
    A(f"""
    s_cmp_ge_u32 s2, {nwg}
    s_cbranch_scc1 {name}_end
    s_load_dwordx2 s[30:31], s[0:1], 48
    s_load_dwordx2 s[32:33], s[0:1], 112
    """)
    ST.start()
    A(f"""
    v_lshrrev_b32 v1, 6, v0
    v_and_b32 v15, 63, v0
    s_nop 0
    v_readfirstlane_b32 s36, v1
    s_waitcnt lgkmcnt(0)
    """)
    lds = gen_conv_body(A, name, nch, lambda A: A(f"s_mul_i32 s47, s2, {nch}"), ST.stamp)
    ST.finish(vbase=100)
    A.label(f"{name}_end")
    A("s_endpgm")
    return A.text(), kernel_desc(name, 128, 0), lds, nwg
```

```python
from asmlib import *
from kgen import KR_PITCH, KR1
KBUF = 41216; UBUF = 8192

class Conv1:
    def __init__(self, A, name, LK, LU):
        self.A = A; self.name = name; self.LK = LK; self.LU = LU
    def prefetch(self, chs):
        A = self.A; LK = self.LK; LU = self.LU
        srd_off(A, 4, 32, 33, WS_K, 576 * KR_PITCH)
        srd_off(A, 8, 32, 33, WS_XNT, 576 * 4096)
        vKd = 252
        A(f"v_lshlrev_b32 v{vKd}, 4, v15")
        A(f"s_mul_i32 s44, {chs}, {KR_PITCH}")
        A("s_lshl_b32 s45, s36, 2\ns_add_u32 s44, s44, s45")
        for cc in range(2):
            A(f"s_lshl_b32 s45, s36, 1\ns_add_u32 s45, s45, {cc}")
            A("s_mul_i32 s46, s45, 320")
            A(f"s_lshl_b32 s48, s36, 2\ns_add_u32 s48, s48, {cc}\ns_cmp_ge_u32 s45, 5\ns_subb_u32 s48, s48, 0")
            A(f"s_add_u32 s46, s46, s48\ns_lshl_b32 s46, s46, 4")
            A(f"s_add_u32 s48, s44, {cc*KR1}")
            for it in range(5):
                A(f"s_add_u32 m0, s46, {LK + it*1024}\ns_add_u32 s49, s48, {it*1024}")
                A(f"buffer_load_dwordx4 v{vKd}, s[4:7], s49 offen lds")
        A(f"s_lshl_b32 s46, {chs}, 12")
        for j in range(2):
            A(f"""
            s_lshl_b32 s44, s36, 7
            s_add_u32 s44, s44, {64*j}
            v_add_u32 v252, s44, v15
            v_mul_u32_u24 v253, 6554, v252
            v_lshrrev_b32 v253, 16, v253
            v_mul_u32_u24 v250, 10, v253
            v_sub_u32 v250, v252, v250
            v_subrev_u32 v253, 15, v253
            v_cmp_gt_u32 vcc, 32, v253
            v_cmp_gt_u32 s[52:53], 8, v250
            v_lshlrev_b32 v253, 7, v253
            v_lshl_add_u32 v253, v250, 4, v253
            s_and_b64 vcc, vcc, s[52:53]
            v_mov_b32 v250, 0x80000000
            s_nop 1
            v_cndmask_b32 v253, v250, v253, vcc
            s_lshl_b32 s45, s36, 11
            s_add_u32 m0, s45, {LU + j*1024}
            s_nop 0
            buffer_load_dwordx4 v253, s[8:11], s46 offen lds
            """)
        srd(A, 12, 88, 89, 1152)
        A(f"s_lshl_b32 s44, {chs}, 1\nv_mov_b32 v252, s44\nbuffer_load_ushort a168, v252, s[12:15], 0 offen")
    def run(self, second, pair_s, mid_hook=None, saA=164, done_hook=None):
        A = self.A; name = self.name; LK = self.LK; LU = self.LU; LS = LK
        vA = 5; vB = 6; vA0 = 7; vB0 = 8; vBz = 9
        A(f"""
        v_and_b32 v16, 15, v15
        v_sub_u32 v17, 0, v16
        v_and_b32 v17, 7, v17
        v_mul_u32_u24 v18, 320, v17
        v_lshrrev_b32 v19, 1, v17
        v_lshlrev_b32 v19, 2, v19
        v_and_b32 v20, 1, v17
        v_add_u32 v19, v19, v20
        v_cmp_le_u32 vcc, 5, v17
        v_add_u32 v18, v18, v19
        s_nop 0
        v_cndmask_b32 v20, 0, 1, vcc
        v_sub_u32 v18, v18, v20
        v_lshrrev_b32 v19, 4, v15
        v_add_u32 v18, v18, v19
        v_add_u32 v19, 7, v16
        v_lshrrev_b32 v19, 3, v19
        v_sub_u32 v18, v18, v19
        v_lshlrev_b32 v18, 4, v18
        v_add_u32 v{vA0}, {32 + LK}, v18
        v_mul_u32_u24 v18, 160, v16
        v_lshrrev_b32 v19, 4, v15
        v_lshlrev_b32 v19, 4, v19
        v_add_u32 v{vB0}, v18, v19
        s_cmp_eq_u32 s36, 0
        s_cselect_b32 s50, 0, 24
        s_cselect_b32 s51, 6, 2
        s_cselect_b32 s54, 0, 2
        s_cmp_ge_u32 s36, 2
        s_cselect_b32 s51, 0, s51
        s_cselect_b32 s54, 3, s54
        s_cmp_eq_u32 s36, 2
        s_cselect_b32 s50, 40, s50
        s_cmp_eq_u32 s36, 3
        s_cselect_b32 s50, 52, s50
        s_lshl_b32 s44, s50, 6
        v_add_u32 v{vA}, s44, v{vA0}
        s_lshr_b32 s44, s50, 1
        s_mul_i32 s44, s44, 160
        s_add_u32 s44, s44, {LU}
        v_add_u32 v{vB}, s44, v{vB0}
        v_subrev_u32 v{vBz}, 2560, v{vB}
        """)
        FR = [24, 32, 40, 48]; BR = [56, 64, 72, 80]; ACC = 96
        for r in range(32): A(f"v_mov_b32 v{ACC+r}, 0")
        return FR, BR, ACC, vA, vB, vBz
    def compute(self, second, pair_s, wait_n, mid_hook=None, saA=164, pre_hook=None):
        A = self.A; name = self.name; LK = self.LK; LU = self.LU; LS = LK
        FR, BR, ACC, vA, vB, vBz = self.run(second, pair_s)
        A(f"s_waitcnt vmcnt({wait_n})\ns_barrier")
        if pre_hook:
            pre_hook(); mid_hook = None
        def rdA(pair, t): return [f"ds_read_b128 {vr(FR[pair],4)}, v{vA} offset:{96+64*t}", f"ds_read_b128 {vr(FR[pair]+4,4)}, v{vA} offset:{64+64*t}"]
        def rdB(slot, t, tile):
            off = (t >> 1) * 160 + 64 * (t & 1)
            return f"ds_read_b128 {vr(BR[slot] + (0 if tile == 1 else 4),4)}, v{vB if tile == 1 else vBz} offset:{off}"
        for x in rdA(3, -1): A(x)
        for t in range(2):
            for x in rdA(t, t): A(x)
            A(rdB(t, t, 1))
        l0 = A.newlabel(name + "_p0")
        A(f"s_cmp_eq_u32 s51, 0\ns_cbranch_scc0 {l0}")
        for t in range(2): A(rdB(t, t, 0))
        A.label(l0)
        A("s_waitcnt lgkmcnt(0)")
        def body(double):
            for t in range(4):
                A(f"s_waitcnt lgkmcnt({4 if double else 3})")
                cur = FR[t]; prev = FR[(t-1) % 4]
                fr = [cur, cur+4, prev, prev+4]
                rd = rdA((t+2) % 4, t+2) + [rdB((t+2) % 4, t+2, 1)] + ([rdB((t+2) % 4, t+2, 0)] if double else [])
                mf = []
                for i in ([1, 0] if double else [1]):
                    for h in range(4):
                        c = vr(ACC + (h*2+i)*4, 4)
                        mf.append(f"v_mfma_f32_16x16x32_bf16 {c}, {vr(fr[h],4)}, {vr(BR[t] + (0 if i == 1 else 4),4)}, {c}")
                for j, m in enumerate(mf):
                    A(m)
                    if j < len(rd): A(rd[j])
            A(f"v_add_u32 v{vA}, 256, v{vA}\nv_add_u32 v{vB}, 320, v{vB}\nv_add_u32 v{vBz}, 320, v{vBz}")
        l1 = A.newlabel(name + "_s"); l1e = A.newlabel(name + "_se"); l2 = A.newlabel(name + "_d"); l2e = A.newlabel(name + "_de"); l2s = A.newlabel(name + "_ds")
        A(f"s_mov_b32 s55, s51\ns_cmp_eq_u32 s55, 0\ns_cbranch_scc1 {l2s}")
        A.label(l1)
        body(False)
        A(f"s_sub_u32 s55, s55, 1\ns_cmp_lg_u32 s55, 0\ns_cbranch_scc1 {l1}")
        A(f"s_cmp_eq_u32 s54, 0\ns_cbranch_scc1 {l2e}")
        for t in range(2): A(rdB(t, t, 0))
        A("s_waitcnt lgkmcnt(0)")
        A.label(l2s)
        A("s_mov_b32 s55, s54")
        A.label(l2)
        body(True)
        A(f"s_sub_u32 s55, s55, 1\ns_cmp_lg_u32 s55, 0\ns_cbranch_scc1 {l2}")
        A.label(l2e)
        A("s_waitcnt vmcnt(0) lgkmcnt(0)\ns_nop 7\ns_barrier")
        if mid_hook: mid_hook()
        A(f"v_lshlrev_b32 v1, 4, v15\ns_lshl_b32 s44, s36, 13\ns_add_u32 s44, s44, {LS}\nv_add_u32 v11, s44, v1")
        for h in range(4):
            for i in range(2):
                A(f"ds_write_b128 v11, {vr(ACC+(h*2+i)*4,4)} offset:{(h*2+i)*1024}")
        A(f"""
        v_and_b32 v12, 15, v15
        v_mul_u32_u24 v12, 160, v12
        v_lshrrev_b32 v13, 4, v15
        v_lshlrev_b32 v13, 3, v13
        v_add_u32 v12, v12, v13
        s_lshl_b32 s44, s36, 5
        s_add_u32 s44, s44, {LU}
        v_add_u32 v12, s44, v12
        """)
        for i in range(2):
            A(f"ds_read_b64 {vr(56+2*i,2)}, v12 offset:{(15+16*i)*160}")
        A("s_waitcnt lgkmcnt(0)\ns_barrier")
        A(f"s_lshl_b32 s44, s36, 11\ns_add_u32 s44, s44, {LS}\nv_add_u32 v11, s44, v1")
        for ww in range(4):
            for i in range(2):
                A(f"ds_read_b128 {vr(24+(ww*2+i)*4,4)}, v11 offset:{ww*8192 + i*1024}")
        A("v_accvgpr_read_b32 v14, a168\ns_nop 0\nv_lshlrev_b32 v14, 16, v14")
        for i in range(2):
            u = 56 + 2*i; t = 64 + 4*i
            A(f"v_lshlrev_b32 v{t}, 16, v{u}\nv_and_b32 v{t+1}, 0xffff0000, v{u}\nv_lshlrev_b32 v{t+2}, 16, v{u+1}\nv_and_b32 v{t+3}, 0xffff0000, v{u+1}")
            for r in range(4): A(f"v_mul_f32 v{t+r}, v{t+r}, v14")
            A(f"v_cvt_pk_bf16_f32 v60, v{t}, v{t+1}\nv_cvt_pk_bf16_f32 v61, v{t+2}, v{t+3}")
            A(f"v_lshlrev_b32 v{t}, 16, v60\nv_and_b32 v{t+1}, 0xffff0000, v60\nv_lshlrev_b32 v{t+2}, 16, v61\nv_and_b32 v{t+3}, 0xffff0000, v61")
        A("s_waitcnt lgkmcnt(0)")
        for i in range(2):
            for ww in range(1, 4):
                A(f"v_pk_add_f32 {vr(24+i*4,2)}, {vr(24+i*4,2)}, {vr(24+(ww*2+i)*4,2)}")
                A(f"v_pk_add_f32 {vr(24+i*4+2,2)}, {vr(24+i*4+2,2)}, {vr(24+(ww*2+i)*4+2,2)}")
        for i in range(2):
            y = 24 + i*4; t = 64 + 4*i
            A(f"v_cvt_pk_bf16_f32 v60, v{y}, v{y+1}\nv_cvt_pk_bf16_f32 v61, v{y+2}, v{y+3}")
            A(f"v_lshlrev_b32 v{y}, 16, v60\nv_and_b32 v{y+1}, 0xffff0000, v60\nv_lshlrev_b32 v{y+2}, 16, v61\nv_and_b32 v{y+3}, 0xffff0000, v61")
            for r in range(4): A(f"v_add_f32 v{y+r}, v{y+r}, v{t+r}")
            A(f"v_cvt_pk_bf16_f32 v60, v{y}, v{y+1}\nv_cvt_pk_bf16_f32 v61, v{y+2}, v{y+3}")
            if not second:
                A(f"v_accvgpr_write_b32 a{saA+2*i}, v60\nv_accvgpr_write_b32 a{saA+2*i+1}, v61")
            else:
                A(f"v_accvgpr_read_b32 v62, a{saA+2*i}\nv_accvgpr_read_b32 v63, a{saA+2*i+1}")
                o = 72 + 4*i
                A(f"s_mov_b32 s44, 0x05040100\ns_mov_b32 s45, 0x07060302")
                A(f"v_perm_b32 v{o}, v60, v62, s44\nv_perm_b32 v{o+1}, v60, v62, s45")
                A(f"v_perm_b32 v{o+2}, v61, v63, s44\nv_perm_b32 v{o+3}, v61, v63, s45")
        if second:
            srd_off(A, 12, 32, 33, WS_S, 288 * 8192)
            A(f"""
            v_and_b32 v12, 15, v15
            v_lshlrev_b32 v12, 8, v12
            v_lshrrev_b32 v13, 4, v15
            v_lshlrev_b32 v13, 4, v13
            v_add_u32 v12, v12, v13
            s_lshl_b32 s44, {pair_s}, 13
            s_lshl_b32 s45, s36, 6
            s_add_u32 s44, s44, s45
            s_add_u32 s45, s44, 4096
            """)
            A(f"buffer_store_dwordx4 v[72:75], v12, s[12:15], s44 offen sc1")
            A(f"buffer_store_dwordx4 v[76:79], v12, s[12:15], s45 offen sc1")
```

```python
from asmlib import *

class Core:
    def __init__(self, A, name, nP, nQ, KS, S, R, ACC, QB, QBp, PR, vP, vQd, vQr, sP, sQ, s_q, s_p, s_lds, s_it, p_ks_stride,
                 orient="QP", lds_base=0, slot_pitch=None, q_stage_stride=None, qreads_fn=None, reads_per_gap=None, nwaves=4):
        self.__dict__.update(locals()); del self.self
        self.nd = (S * nQ + 3) // 4
        self.SLOT = slot_pitch or self.nd * 4 * 1024
        self.NS = KS // S
        self.gsize = self.nd + S * nP
    def reg(self, kind, b, n): return vr(b, n, kind)
    def G(self, slot):
        c = self
        dm = []
        for j in range(c.nd):
            dm.append(f"s_add_u32 m0, {c.s_lds}, {c.lds_base + slot*c.SLOT + j*4096}\ns_nop 0\n"
                      f"buffer_load_dwordx4 v{c.vQd[j]}, s[{c.sQ}:{c.sQ+3}], {c.s_q} offen lds")
        pl = []
        for ks in range(c.S):
            for i in range(c.nP):
                pl.append(f"buffer_load_dwordx4 {ar(c.PR + ((slot*c.S + ks)*c.nP + i)*4, 4)}, v{c.vP[i]}, s[{c.sP}:{c.sP+3}], {c.s_p} offen offset:{ks*c.p_ks_stride}{getattr(c, 'p_flags', '')}")
        ops = []
        a, b = list(dm), list(pl)
        while a or b:
            if a: ops.append(a.pop(0))
            if b: ops.append(b.pop(0))
        ops[-1] += f"\ns_add_u32 {c.s_q}, {c.s_q}, {c.q_stage_stride or c.S*c.nQ*1024}\ns_add_u32 {c.s_p}, {c.s_p}, {c.S*c.p_ks_stride}"
        return ops
    def qreads(self, buf, slot, ks):
        c = self
        if c.qreads_fn: return c.qreads_fn(buf, slot, ks)
        return [f"ds_read_b128 {vr(c.QB[buf]+j*4, 4, c.QBp)}, v{c.vQr[slot]} offset:{(ks*c.nQ+j)*1024}" for j in range(c.nQ)]
    def mfmas(self, buf, slot, ks):
        c = self; out = []
        for j in range(c.nQ):
            for i in range(c.nP):
                acc = vr(c.ACC + (i*c.nQ+j)*4, 4)
                q = vr(c.QB[buf]+j*4, 4, c.QBp); p = ar(c.PR + ((slot*c.S+ks)*c.nP+i)*4, 4)
                a, b = (q, p) if c.orient == "QP" else (p, q)
                out.append(f"v_mfma_f32_16x16x32_bf16 {acc}, {a}, {b}, {acc}")
        return out
    def setup_addr(self, vlane16, s_wave, vtmp):
        A = self.A; c = self
        A(f"s_lshl_b32 {c.s_lds}, {s_wave}, 10")
        for j in range(c.nd):
            A(f"v_add_u32 v{c.vQd[j]}, {c.s_lds}, v{vlane16}")
            if j: A(f"v_add_u32 v{c.vQd[j]}, {j*4096}, v{c.vQd[j]}")
            if (4*j + 3) >= c.S * c.nQ:
                nvalid = c.S*c.nQ - 4*j
                A(f"s_cmp_lt_u32 {s_wave}, {nvalid}\ns_cselect_b32 s45, 0, 0x80000000\nv_or_b32 v{c.vQd[j]}, s45, v{c.vQd[j]}")
        for s in range(c.R):
            A(f"v_add_u32 v{c.vQr[s]}, {c.lds_base + s*c.SLOT}, v{vlane16}")
    def prologue(self, npre, extra=None):
        A = self.A; c = self
        for op in c.G(0): A(op)
        A("s_barrier")
        for s in range(1, c.R - 2):
            for op in c.G(s): A(op)
        h = c.gsize // 2
        for op in c.G(c.R - 2)[:h]: A(op)
        if extra: extra()
        for r in range(c.nP*c.nQ*4): A(f"v_mov_b32 v{c.ACC+r}, 0")
        A(f"s_waitcnt vmcnt({(c.R-3)*c.gsize + h})")
        A("s_barrier")
        for x in c.qreads(0, 0, 0): A(x)
    def kstep(self, mf, rd, gl, fill=None, nfill=0):
        A = self.A
        n = len(mf)
        half = max(1, n // 2)
        rper = -(-len(rd) // half) if rd else 0
        rd = list(rd); gl = list(gl)
        gpos = [half + (k * (n - half)) // max(1, len(gl)) for k in range(len(gl))] if n - half > 0 else []
        for j in range(n):
            A(mf[j])
            if j < half:
                for _ in range(rper):
                    if rd: A(rd.pop(0))
            while gl and gpos and gpos[0] <= j:
                gpos.pop(0); A(gl.pop(0))
            if fill:
                for _ in range(nfill):
                    if fill: A(fill.pop(0))
        for x in rd: A(x)
        for x in gl: A(x)
    def loop(self, looped, tail_hook=None, stage_hook=None, fill=None, nfill=0):
        A = self.A; c = self
        h = c.gsize // 2
        nb = c.R if looped else c.NS
        if looped:
            assert c.NS % c.R == 0
            A(f"s_mov_b32 {c.s_it}, 0")
            A.label(f"{c.name}_loop")
        bpos = (c.S - 1) // 2 if c.S > 2 else 0
        for u in range(nb):
            slot = u % c.R
            gi = u + c.R - 1; gpi = u + c.R - 2
            g = c.G(gi % c.R) if (looped or gi < c.NS) else []
            gp = c.G(gpi % c.R) if (looped or gpi < c.NS) else []
            gp2 = gp[h:]; g1 = g[:h]
            nA = bpos + 1; nB = c.S - nA
            for ks in range(c.S):
                gk = u * c.S + ks
                A("s_waitcnt lgkmcnt(0)")
                last = (not looped) and u == nb - 1 and ks == c.S - 1
                if last: rd = []
                elif ks < c.S - 1: rd = c.qreads((gk + 1) & 1, slot, ks + 1)
                else: rd = c.qreads((gk + 1) & 1, (u + 1) % c.R, 0)
                if ks <= bpos:
                    k0 = (len(gp2) * ks) // nA; k1 = (len(gp2) * (ks + 1)) // nA; gl = gp2[k0:k1]
                else:
                    kk = ks - nA; k0 = (len(g1) * kk) // nB; k1 = (len(g1) * (kk + 1)) // nB; gl = g1[k0:k1]
                c.kstep(c.mfmas(gk & 1, slot, ks), rd, gl, fill, nfill)
                if ks == bpos and (looped or u + 1 < c.NS):
                    if looped: n = (c.R - 3) * c.gsize
                    else: n = max(0, min(u + c.R - 2, c.NS - 1) - (u + 1)) * c.gsize
                    n += c.extra_vm(u) if hasattr(c, "extra_vm") else 0
                    A(f"s_waitcnt vmcnt({min(n, 63)})")
                    A("s_barrier")
                    if looped and tail_hook is not None:
                        if u == 1:
                            skip = A.newlabel(c.name + "_sk")
                            A(f"s_cmp_eq_u32 {c.s_it}, {c.NS//c.R - 1}\ns_cbranch_scc0 {skip}")
                            for v in list(c.vQd) + list(c.vP): A(f"v_mov_b32 v{v}, 0x80000000")
                            tail_hook(A)
                            A.label(skip)
                    if stage_hook: stage_hook(u)
        if looped:
            A(f"s_add_u32 {c.s_it}, {c.s_it}, 1\ns_cmp_lt_u32 {c.s_it}, {c.NS//c.R}\ns_cbranch_scc1 {c.name}_loop")
```

```python
from asmlib import *
from core import Core
from g1 import gen_g1, f2u
import l3
from conv1 import Conv1
import math

C2, C3, C4, C5 = 0, 16, 32, 48

class F:
    def __init__(self, A, stamps):
        self.A = A; self.stamps = stamps; self.n = 0
    def stamp(self):
        if not self.stamps: return
        A = self.A; i = self.n; self.n += 1
        assert i < 30
        A("s_memtime s[100:101]\ns_waitcnt lgkmcnt(0)\nv_mov_b32 v254, s100\ns_mov_b64 exec, 1")
        A(f"buffer_store_dword v254, v255, s[96:99], 0 offen offset:{8 + 4*i}\ns_mov_b64 exec, -1")
    def rt(self, slot):
        if not self.stamps: return
        A = self.A
        A("s_memrealtime s[100:101]\ns_waitcnt lgkmcnt(0)\nv_mov_b32 v254, s100\ns_mov_b64 exec, 1")
        A(f"buffer_store_dword v254, v255, s[96:99], 0 offen offset:{4*slot}\ns_mov_b64 exec, -1")
    def ptrs_g1(self):
        self.A("s_mov_b32 s28, s78\ns_mov_b32 s29, s79\ns_mov_b32 s54, s80\ns_mov_b32 s55, s81")

FLAG_BYTES = 4 * 16 * 64 * 128
def flag_off(kind, group_s, slot_s):
    return f"s_add_u32 s44, {group_s}, {kind*16}\ns_lshl_b32 s44, s44, 6\ns_add_u32 s44, s44, {slot_s}\ns_lshl_b32 s44, s44, 7"

def signal(A, name, idx_exprs, sync=True):
    if sync: A("s_waitcnt vmcnt(0)\ns_barrier")
    lab = A.newlabel(name + "_sg")
    A(f"s_cmp_eq_u32 s36, 0\ns_cbranch_scc0 {lab}")
    srd_off(A, 24, 32, 33, WS_FLAG, FLAG_BYTES)
    A("v_mov_b32 v251, 1\ns_mov_b64 exec, 1")
    for e in idx_exprs:
        A(e); A("v_mov_b32 v250, s44\nbuffer_store_dword v251, v250, s[24:27], 0 offen sc1")
    A("s_mov_b64 exec, -1")
    A.label(lab)

def wait_flags(A, name, kind, group_s, nslots, barrier=True):
    lab = A.newlabel(name + "_wf")
    A(f"s_cmp_eq_u32 s36, 0\ns_cbranch_scc0 {lab}")
    srd_off(A, 24, 32, 33, WS_FLAG, FLAG_BYTES)
    A(flag_off(kind, group_s, 0))
    A(f"v_lshlrev_b32 v250, 7, v15\nv_add_u32 v250, s44, v250")
    A(f"s_mov_b32 s46, {hex(((1 << nslots) - 1) & 0xffffffff)}\ns_mov_b32 s47, {hex(((1 << nslots) - 1) >> 32)}")
    poll = A.newlabel(name + "_pl")
    A.label(poll)
    A("buffer_load_dword v251, v250, s[24:27], 0 offen sc1\ns_waitcnt vmcnt(0)")
    A("v_cmp_eq_u32 s[48:49], 1, v251\ns_and_b64 s[48:49], s[48:49], s[46:47]")
    A(f"s_cmp_eq_u64 s[48:49], s[46:47]\ns_cbranch_scc1 {lab}\ns_sleep 2\ns_branch {poll}")
    A.label(lab)
    if barrier: A("s_barrier")

def gen_g2f(Fo, name, post_loop=None):
    A = Fo.A; stamp = Fo.stamp
    SLOT = 36864
    ACC = 128; PR = 0; QV = [16, 52]; Z1V = 88; Z1A = 128
    vP = [2, 3]; vQd = [4, 5, 6]; vQr = [8, 9, 10, 11]; vB = [12, 13]; vL = 15
    srd_off(A, 4, 32, 33, WS_WSP, 2048 * 4096)
    A("s_mul_i32 s44, s35, 589824")
    A(f"s_add_u32 s44, s44, {WS_Z2N}")
    srd_off(A, 8, 32, 33, "s44", 589824)
    srd_off(A, 16, 32, 33, WS_H, 128 * 72 * 1024)
    srd(A, 20, 82, 83, 4096)
    wait_flags(A, name, 1, "s34", 16)
    A(f"""
    s_lshl_b32 s44, s34, 7
    s_lshl_b32 s45, s36, 5
    s_add_u32 s44, s44, s45
    v_and_b32 v1, 15, v{vL}
    v_add_u32 v1, s44, v1
    v_lshlrev_b32 v{vB[0]}, 1, v1
    v_add_u32 v{vB[1]}, 32, v{vB[0]}
    v_lshlrev_b32 v1, 4, v{vL}
    s_lshl_b32 s46, s44, 12
    v_add_u32 v{vP[0]}, s46, v1
    v_add_u32 v{vP[1]}, 0x10000, v{vP[0]}
    s_mul_i32 s45, s36, 9216
    v_add_u32 v{vQd[0]}, s45, v1
    v_add_u32 v{vQd[1]}, 0x1000, v{vQd[0]}
    v_add_u32 v{vQd[2]}, 0x2000, v{vQd[0]}
    v_mov_b32 v{vQr[0]}, v1
    v_add_u32 v{vQr[1]}, {SLOT}, v1
    v_add_u32 v{vQr[2]}, {2*SLOT}, v1
    v_add_u32 v{vQr[3]}, {3*SLOT}, v1
    s_mov_b32 s40, s45
    s_add_u32 s41, s45, {SLOT}
    s_add_u32 s42, s45, {2*SLOT}
    s_add_u32 s43, s45, {3*SLOT}
    """)
    def dm(slot, j):
        g = j // 4
        pre = f"s_add_u32 m0, s{40+slot}, {g*4096}\ns_nop 0\n" if j % 4 == 0 else ""
        return pre + f"buffer_load_dwordx4 v{vQd[g]}, s[8:11], s38 offen offset:{(j%4)*1024} sc1 lds"
    def pl(slot, n):
        ks, i = n // 2, n % 2
        return f"buffer_load_dwordx4 {ar(PR + slot*32 + ks*8 + i*4, 4)}, v{vP[i]}, s[4:7], s39 offen offset:{ks*1024} sc1"
    def G(slot):
        ops = []
        for j in range(9):
            ops.append(dm(slot, j))
            if j < 8: ops.append(pl(slot, j))
        ops[-1] += f"\ns_add_u32 s38, s38, {SLOT}\ns_add_u32 s39, s39, 4096"
        return ops
    for s in range(3):
        A(f"s_mov_b32 s39, {s*4096}")
        for n in range(8 if s < 2 else 4): A(pl(s, n))
    for i in range(2):
        A(f"buffer_load_ushort v{124+i}, v{vB[i]}, s[20:23], 0 offen")
    for r in range(72): A(f"v_mov_b32 v{ACC+r}, 0")
    stamp()
    wait_flags(A, name, 0, "s35", 16)
    stamp()
    for s in range(3):
        A(f"s_mov_b32 s38, {s*SLOT}")
        for j in range(9 if s < 2 else 5): A(dm(s, j))
        if s == 0: A("s_barrier")
    A(f"s_mov_b32 s38, {2*SLOT}\ns_mov_b32 s39, {2*4096}")
    A("s_waitcnt vmcnt(5)")
    A("s_barrier")
    def qreads(buf, slot, ks):
        return [f"ds_read_b128 {vr(QV[buf]+jn*4,4)}, v{vQr[slot]} offset:{(ks*9+jn)*1024}" for jn in range(9)]
    def mfmas(buf, slot, ks):
        out = []
        for jn in range(9):
            for i in range(2):
                c = vr(ACC + (i*9+jn)*4, 4)
                out.append(f"v_mfma_f32_16x16x32_bf16 {c}, {vr(QV[buf]+jn*4,4)}, {ar(PR+slot*32+ks*8+i*4,4)}, {c}")
        return out
    for x in qreads(0, 0, 0): A(x)
    stamp()
    A("s_mov_b32 s37, 0")
    A.label(f"{name}_loop")
    for u in range(4):
        g = G((u + 3) & 3); gprev = G((u + 2) & 3)
        for ks in range(4):
            A("s_waitcnt lgkmcnt(0)")
            rd = qreads((ks + 1) & 1, u, ks + 1) if ks < 3 else qreads(0, (u + 1) & 3, 0)
            gl = [gprev[9:13], gprev[13:17], g[0:5], g[5:9]][ks]
            mf = mfmas(ks & 1, u, ks)
            for j in range(18):
                A(mf[j])
                if j < 9: A(rd[j])
                elif (j - 9) % 2 == 0 and (j - 9) // 2 < len(gl): A(gl[(j - 9) // 2])
            if ks == 1:
                A("s_waitcnt vmcnt(17)")
                A("s_barrier")
                if u == 1:
                    skip = A.newlabel(name + "_sk")
                    A(f"s_cmp_eq_u32 s37, 3\ns_cbranch_scc0 {skip}")
                    for v in vP + vQd: A(f"v_mov_b32 v{v}, 0x80000000")
                    A.label(skip)
    A(f"s_add_u32 s37, s37, 1\ns_cmp_lt_u32 s37, 4\ns_cbranch_scc1 {name}_loop")
    stamp()
    A("s_waitcnt vmcnt(0)\ns_barrier")
    if post_loop: post_loop()
    for r in range(36): A(f"v_accvgpr_read_b32 v{Z1V+r}, a{Z1A+r}")
    A("v_lshlrev_b32 v200, 16, v124\nv_lshlrev_b32 v201, 16, v124\nv_lshlrev_b32 v202, 16, v125\nv_lshlrev_b32 v203, 16, v125")
    A(f"""
    s_lshl_b32 s44, s34, 3
    s_lshl_b32 s45, s36, 1
    s_add_u32 s44, s44, s45
    s_mul_i32 s44, s44, 72
    s_lshr_b32 s45, s35, 1
    s_mul_i32 s45, s45, 9
    s_add_u32 s44, s44, s45
    s_and_b32 s46, s35, 1
    s_mul_i32 s47, s46, 5
    s_add_u32 s47, s47, s44
    s_lshl_b32 s47, s47, 10
    s_add_u32 s48, s44, 4
    s_lshl_b32 s48, s48, 10
    s_lshl_b32 s51, s46, 3
    s_add_u32 s48, s48, s51
    s_add_u32 s49, s47, 73728
    s_add_u32 s50, s48, 73728
    v_lshlrev_b32 v1, 4, v{vL}
    """)
    T = 204
    for i in range(2):
        for jn in range(9):
            c = ACC + (i*9+jn)*4; z = Z1V + (i*9+jn)*2; t = T + ((i*9+jn) & 1) * 4
            A(f"v_lshlrev_b32 v{t}, 16, v{z}")
            A(f"v_and_b32 v{t+1}, 0xffff0000, v{z}")
            A(f"v_lshlrev_b32 v{t+2}, 16, v{z+1}")
            A(f"v_and_b32 v{t+3}, 0xffff0000, v{z+1}")
            A(f"v_pk_add_f32 {vr(c,2)}, {vr(c,2)}, {vr(200+2*i,2)}")
            A(f"v_pk_add_f32 {vr(c+2,2)}, {vr(c+2,2)}, {vr(200+2*i,2)}")
            A(f"v_pk_mul_f32 {vr(c,2)}, {vr(c,2)}, {vr(t,2)}")
            A(f"v_pk_mul_f32 {vr(c+2,2)}, {vr(c+2,2)}, {vr(t+2,2)}")
            A(f"v_cvt_pk_bf16_f32 v{z}, v{c}, v{c+1}")
            A(f"v_cvt_pk_bf16_f32 v{z+1}, v{c+2}, v{c+3}")
    odd = A.newlabel(name + "_odd"); done = A.newlabel(name + "_sd")
    A(f"""
    v_bfe_u32 v2, v{vL}, 4, 1
    v_mul_u32_u24 v2, 73728, v2
    v_lshrrev_b32 v3, 5, v{vL}
    v_lshlrev_b32 v3, 8, v3
    v_add_u32 v2, v2, v3
    v_and_b32 v3, 15, v{vL}
    v_lshlrev_b32 v3, 4, v3
    v_add_u32 v2, v2, v3
    s_add_u32 s48, s44, 4
    s_lshl_b32 s48, s48, 10
    s_lshl_b32 s51, s46, 9
    s_add_u32 s48, s48, s51
    """)
    def single(jn):
        a0 = Z1V + jn*2; a1 = Z1V + (9+jn)*2
        A(f"v_mov_b32 v4, v{a0}\nv_mov_b32 v5, v{a0+1}\nv_mov_b32 v6, v{a1}\nv_mov_b32 v7, v{a1+1}\ns_nop 1")
        A("v_permlane16_swap_b32 v4, v6\nv_permlane16_swap_b32 v5, v7\ns_nop 0")
        A("buffer_store_dwordx4 v[4:7], v2, s[16:19], s48 offen sc1")
    A(f"s_cmp_eq_u32 s46, 1\ns_cbranch_scc1 {odd}")
    for i in range(2):
        for p in range(4):
            A(f"buffer_store_dwordx4 {vr(Z1V+(i*9+2*p)*2,4)}, v1, s[16:19], s{47 if i==0 else 49} offen offset:{p*1024} sc1")
    single(8)
    A(f"s_branch {done}")
    A.label(odd)
    for i in range(2):
        for p in range(4):
            A(f"buffer_store_dwordx4 {vr(Z1V+(i*9+1+2*p)*2,4)}, v1, s[16:19], s{47 if i==0 else 49} offen offset:{p*1024} sc1")
    single(0)
    A.label(done)

def gen_g3f(Fo, name):
    A = Fo.A; stamp = Fo.stamp
    R = 6; S = 4
    ACC = 16; QB = [96, 120]; PR = 0
    vQd = [2, 3, 4, 5, 6, 7]; vP = [8]; vL = 15; vQr = [9, 10, 11, 12, 13, 14]
    A(f"""
    s_and_b32 s44, s2, 7
    s_lshr_b32 s45, s2, 3
    s_lshl_b32 s34, s44, 2
    s_and_b32 s46, s45, 3
    s_add_u32 s34, s34, s46
    s_lshr_b32 s35, s45, 2
    v_lshlrev_b32 v1, 4, v{vL}
    s_lshl_b32 s44, s34, 2
    s_add_u32 s58, s44, s36
    s_mul_i32 s44, s58, 73728
    v_add_u32 v{vP[0]}, s44, v1
    """)
    A(f"s_mul_i32 s44, s35, {72*6*1024}\ns_add_u32 s44, s44, {WS_WOT}")
    srd_off(A, 4, 32, 33, "s44", 72*6*1024)
    srd_off(A, 8, 32, 33, WS_H, 128 * 72 * 1024)
    c = Core(A, name + "_g", 1, 6, 72, S, R, ACC, QB, "a", PR, vP, vQd, vQr, 8, 4, "s38", "s39", "s40", "s37", 1024, orient="QP")
    c.p_flags = " sc1"
    c.setup_addr(1, "s36", 12)
    h = c.gsize // 2
    A("s_barrier")
    def split(slot):
        ops = c.G(slot);
        return ops
    pre = []; post = []
    for s in range(R - 1):
        ops = c.G(s)
        ops = ops if s < R - 2 else ops[:h]
        q = [o for o in ops if " lds" in o]; p = [o for o in ops if " lds" not in o]
        strip = lambda o: o.split("\ns_add_u32 s38, s38")[0]
        pre.append(f"s_mov_b32 s38, {s*S*6*1024}"); pre += [strip(o) for o in q]
        post.append(f"s_mov_b32 s39, {s*S*1024}"); post += [strip(o) for o in p]
    for o in pre: A(o)
    Fo.pre_g3()
    srd(A, 12, 76, 77, 2048 * 1152)
    srd_off(A, 16, 32, 33, WS_S, 288 * 8192)
    srd(A, 20, 84, 85, 2048 * 1152)
    for r in range(24): A(f"v_mov_b32 v{ACC+r}, 0")
    stamp()
    A("s_lshr_b32 s59, s34, 1")
    wait_flags(A, name, 2, "s59", 16)
    stamp()
    for o in post: A(o)
    A(f"s_mov_b32 s38, {(R-2)*S*6*1024}\ns_mov_b32 s39, {(R-2)*S*1024}")
    A("s_waitcnt vmcnt(0)\ns_barrier")
    for x in c.qreads(0, 0, 0): A(x)
    stamp()
    def tail(A):
        A(f"""
        v_and_b32 v1, 15, v{vL}
        s_lshl_b32 s44, s58, 4
        v_add_u32 v1, s44, v1
        v_mul_u32_u24 v1, 1152, v1
        v_lshrrev_b32 v40, 4, v{vL}
        v_lshlrev_b32 v40, 3, v40
        v_add_u32 v1, v1, v40
        s_mul_i32 s44, s35, 192
        v_add_u32 v1, s44, v1
        """)
        for jd in range(6):
            A(f"buffer_load_dwordx2 {vr(52+2*jd,2)}, v1, s[12:15], 0 offen offset:{jd*32}")
    c.loop(True, tail_hook=tail)
    stamp()
    wait_flags(A, name, 3, "s35", 48)
    A(f"""
    v_lshrrev_b32 v12, 4, v{vL}
    v_lshlrev_b32 v12, 14, v12
    v_and_b32 v13, 15, v{vL}
    v_lshlrev_b32 v13, 2, v13
    v_add_u32 v12, v12, v13
    s_mul_i32 s44, s35, {48*8192}
    s_lshl_b32 s45, s58, 6
    s_add_u32 s44, s44, s45
    """)
    for jd in range(6):
        for e in range(2):
            A(f"s_add_u32 s45, s44, {(8*jd + e)*8192}")
            A(f"buffer_load_dword v{64+2*jd+e}, v12, s[16:19], s45 offen sc1")
    NL2E = -math.log2(math.e)
    A(f"v_mov_b32 v76, {hex(f2u(NL2E))}\nv_mov_b32 v77, {hex(f2u(NL2E))}\nv_mov_b32 v78, 1.0\nv_mov_b32 v79, 1.0")
    for jd in range(6):
        cc = ACC + jd*4; t = 80 + (jd % 2) * 4
        A(f"v_pk_mul_f32 {vr(t,2)}, {vr(cc,2)}, v[76:77]")
        A(f"v_pk_mul_f32 {vr(t+2,2)}, {vr(cc+2,2)}, v[76:77]")
        for r in range(4): A(f"v_exp_f32 v{t+r}, v{t+r}")
        A(f"v_pk_add_f32 {vr(t,2)}, {vr(t,2)}, v[78:79]")
        A(f"v_pk_add_f32 {vr(t+2,2)}, {vr(t+2,2)}, v[78:79]")
        for r in range(4): A(f"v_rcp_f32 v{t+r}, v{t+r}")
        A("s_nop 0")
        A(f"v_pk_mul_f32 {vr(cc,2)}, {vr(cc,2)}, {vr(t,2)}")
        A(f"v_pk_mul_f32 {vr(cc+2,2)}, {vr(cc+2,2)}, {vr(t+2,2)}")
    A("s_waitcnt vmcnt(0)")
    for jd in range(6):
        cc = ACC + jd*4; t = 88 + (jd % 2) * 8
        A(f"v_lshlrev_b32 v{t+4}, 16, v{64+2*jd}\nv_and_b32 v{t+5}, 0xffff0000, v{64+2*jd}")
        A(f"v_lshlrev_b32 v{t+6}, 16, v{65+2*jd}\nv_and_b32 v{t+7}, 0xffff0000, v{65+2*jd}")
        A(f"v_lshlrev_b32 v{t}, 16, v{52+2*jd}\nv_and_b32 v{t+1}, 0xffff0000, v{52+2*jd}")
        A(f"v_lshlrev_b32 v{t+2}, 16, v{53+2*jd}\nv_and_b32 v{t+3}, 0xffff0000, v{53+2*jd}")
        A(f"v_pk_fma_f32 {vr(cc,2)}, {vr(cc,2)}, {vr(t+4,2)}, {vr(t,2)}")
        A(f"v_pk_fma_f32 {vr(cc+2,2)}, {vr(cc+2,2)}, {vr(t+6,2)}, {vr(t+2,2)}")
        o = 104 + (jd // 2) * 4 + (jd % 2) * 2
        A(f"v_cvt_pk_bf16_f32 v{o}, v{cc}, v{cc+1}")
        A(f"v_cvt_pk_bf16_f32 v{o+1}, v{cc+2}, v{cc+3}")
    A(f"""
    v_and_b32 v1, 15, v{vL}
    s_lshl_b32 s44, s58, 4
    v_add_u32 v1, s44, v1
    v_mul_u32_u24 v1, 1152, v1
    v_bfe_u32 v12, v{vL}, 4, 1
    v_lshlrev_b32 v12, 5, v12
    v_add_u32 v1, v1, v12
    v_lshrrev_b32 v12, 5, v{vL}
    v_lshlrev_b32 v12, 4, v12
    v_add_u32 v1, v1, v12
    s_mul_i32 s44, s35, 192
    v_add_u32 v1, s44, v1
    """)
    for p in range(3):
        o = 104 + p*4
        A(f"v_permlane16_swap_b32 v{o}, v{o+2}")
        A(f"v_permlane16_swap_b32 v{o+1}, v{o+3}")
    A("s_nop 0")
    for p in range(3):
        A(f"buffer_store_dwordx4 {vr(104+p*4,4)}, v1, s[20:23], 0 offen offset:{p*64}")

def gen_fused(name, stamps=False):
    A = Asm(); Fo = F(A, stamps)
    A(f"""
    s_cmp_ge_u32 s2, 256
    s_cbranch_scc1 {name}_end
    s_load_dwordx2 s[76:77], s[0:1], 0
    s_load_dwordx2 s[88:89], s[0:1], 48
    s_load_dwordx2 s[78:79], s[0:1], 64
    s_load_dwordx4 s[80:83], s[0:1], 72
    s_load_dwordx4 s[84:87], s[0:1], 96
    s_load_dwordx2 s[32:33], s[0:1], 112
    s_and_b32 s44, s2, 7
    s_lshr_b32 s45, s2, 3
    s_and_b32 s34, s44, 1
    s_lshl_b32 s34, s34, 3
    s_and_b32 s46, s45, 7
    s_add_u32 s34, s34, s46
    s_lshr_b32 s35, s44, 1
    s_lshl_b32 s35, s35, 2
    s_lshr_b32 s46, s45, 3
    s_add_u32 s35, s35, s46
    v_lshrrev_b32 v1, 6, v0
    v_and_b32 v15, 63, v0
    s_nop 0
    v_readfirstlane_b32 s36, v1
    """)
    if stamps:
        A("s_waitcnt lgkmcnt(0)")
        srd_off(A, 96, 32, 33, WS_STAMP + 0x100000, 0x40000)
        A("s_lshl_b32 s44, s2, 2\ns_add_u32 s44, s44, s36\ns_lshl_b32 s44, s44, 7\nv_mov_b32 v255, s44")
        Fo.rt(0); Fo.stamp()
    cvA = Conv1(A, name + "_ca", 81920, 123136)
    A("s_lshl_b32 s70, s2, 1\ns_add_u32 s71, s70, 1\ns_mov_b32 s72, s2")
    Fo.after_loop = lambda: cvA.prefetch("s70")
    Fo.sig_wsp = lambda: signal(A, name, ["s_lshr_b32 s45, s2, 4\ns_and_b32 s46, s2, 15\n" + flag_off(1, "s45", "s46")], sync=False)
    gen_g1(name + "_g1", stamps, Fo)
    sigA = lambda: signal(A, name, [flag_off(0, "s35", "s34")], sync=False)
    cvA.compute(False, "s72", 63, mid_hook=sigA)
    Fo.stamp()
    cvB = Conv1(A, name + "_cb", 0, 41216)
    gen_g2f(Fo, name + "_g2", post_loop=lambda: cvB.prefetch("s71"))
    Fo.stamp()
    sigB = lambda: signal(A, name, [flag_off(2, "s34", "s35")], sync=False)
    cvB.compute(True, "s72", 9, mid_hook=sigB)
    sigS = lambda: signal(A, name, ["s_mul_i32 s45, s72, 1366\ns_lshr_b32 s45, s45, 16\ns_mul_i32 s46, s45, 48\ns_sub_u32 s46, s72, s46\n" + flag_off(3, "s45", "s46")])
    Fo.stamp()
    xtra = A.newlabel(name + "_x"); fin = A.newlabel(name + "_fin")
    A(f"s_lshr_b32 s44, s2, 3\ns_cmp_ge_u32 s44, 24\ns_cbranch_scc1 {xtra}")
    Fo.pre_g3 = sigS
    gen_g3f(Fo, name + "_g3")
    A(f"s_branch {fin}")
    A.label(xtra)
    sigS()
    A(f"s_sub_u32 s44, s2, 192\ns_cmp_ge_u32 s44, 32\ns_cbranch_scc1 {fin}")
    A("s_add_u32 s72, s2, 64\ns_lshl_b32 s70, s72, 1\ns_add_u32 s71, s70, 1")
    cvC = Conv1(A, name + "_cc", 0, 41216)
    cvC.prefetch("s70"); cvC.compute(False, "s72", 0)
    A("s_barrier")
    cvD = Conv1(A, name + "_cd", 0, 41216)
    cvD.prefetch("s71"); cvD.compute(True, "s72", 0)
    sigS()
    A.label(fin)
    if stamps:
        A("s_waitcnt vmcnt(0)")
        Fo.n = 28; Fo.stamp(); Fo.rt(1)
    A.label(f"{name}_end")
    A("s_endpgm")
    return A.text(), kernel_desc(name, 256, 256), 147456
```

```python
from asmlib import *
import math

class VM:
    def __init__(self): self.ops = []
    def issue(self, tag): self.ops.append(tag)
    def wait(self, tags):
        if not isinstance(tags, (list, tuple, set)): tags = [tags]
        last = max(i for i, t in enumerate(self.ops) if t in tags)
        return len(self.ops) - 1 - last

GC0 = -2.0 * math.log2(math.e) * math.sqrt(2.0 / math.pi)
GC1 = GC0 * 0.044715
import struct
def f2u(x): return struct.unpack("<I", struct.pack("<f", x))[0]

def gelu_ops(pairs, tmp, vC0, vC1, vOne):
    ops = []
    n = len(tmp)
    for g in range(0, len(pairs), n):
        grp = pairs[g:g+n]
        seq = [[] for _ in grp]
        for j, c in enumerate(grp):
            t = tmp[j]
            seq[j] = [
                f"v_pk_mul_f32 {vr(t,2)}, {vr(c,2)}, {vr(c,2)}",
                f"v_pk_fma_f32 {vr(t,2)}, {vr(t,2)}, {vr(vC1,2)}, {vr(vC0,2)}",
                f"v_pk_mul_f32 {vr(t,2)}, {vr(t,2)}, {vr(c,2)}",
                f"v_exp_f32 v{t}, v{t}",
                f"v_exp_f32 v{t+1}, v{t+1}",
                f"v_pk_add_f32 {vr(t,2)}, {vr(t,2)}, {vr(vOne,2)}",
                f"v_rcp_f32 v{t}, v{t}",
                f"v_rcp_f32 v{t+1}, v{t+1}",
                f"v_pk_mul_f32 {vr(c,2)}, {vr(c,2)}, {vr(t,2)}",
            ]
        for k in range(9):
            for j in range(len(grp)):
                ops.append(seq[j][k])
    return ops


def gen_g1(name, stamps=False, F=None):
    vm = VM()
    if F is None:
        A = Asm(); ST = Stamper(A, 1, stamps); stamp = ST.stamp
    else:
        A = F.A; stamp = F.stamp
    SC = ' sc1' if F else ''
    R = 7; SLOT = 20480
    NST = 18
    PR = 0; QA = [144, 180]
    ACCA = 16; ACCB = 88
    vQd = [2, 3, 4, 5, 6]; vE0 = 7; vO0 = 8; vE = 9; vO = 10; vL = 15; vP0 = 11; vP1 = 12
    vC0 = 160; vC1 = 162; vOne = 164; TMP = [166, 168, 170]
    S1 = 172; S2 = 180
    W = 188
    if F is None:
        A(f"""
        s_cmp_ge_u32 s2, 256
        s_cbranch_scc1 {name}_end
        s_load_dwordx2 s[28:29], s[0:1], 64
        s_load_dwordx2 s[54:55], s[0:1], 72
        s_load_dwordx2 s[32:33], s[0:1], 112
        """)
        ST.start()
        A(f"""
        s_and_b32 s44, s2, 7
        s_lshr_b32 s45, s2, 3
        s_and_b32 s34, s44, 1
        s_lshl_b32 s34, s34, 3
        s_and_b32 s46, s45, 7
        s_add_u32 s34, s34, s46
        s_lshr_b32 s35, s44, 1
        s_lshl_b32 s35, s35, 2
        s_lshr_b32 s46, s45, 3
        s_add_u32 s35, s35, s46
        v_lshrrev_b32 v1, 6, v0
        v_and_b32 v{vL}, 63, v0
        s_nop 0
        v_readfirstlane_b32 s36, v1
        """)

    for j in range(5):
        d = vQd[j]
        A(f"""
        s_lshl_b32 s44, s36, 6
        s_add_u32 s44, s44, {256*j}
        v_add_u32 v16, s44, v{vL}
        v_mul_u32_u24 v17, 1821, v16
        v_lshrrev_b32 v17, 16, v17
        v_mul_u32_u24 v18, 36, v17
        v_sub_u32 v18, v16, v18
        v_lshrrev_b32 v19, 1, v18
        v_bfe_u32 v20, v17, 3, 1
        v_xor_b32 v19, v19, v20
        v_cmp_le_u32 vcc, 9, v19
        s_nop 1
        v_cndmask_b32 v20, 0, 1, vcc
        v_mul_u32_u24 v21, 9, v20
        v_sub_u32 v19, v19, v21
        v_lshlrev_b32 v20, 5, v20
        v_add_u32 v17, v17, v20
        v_mul_u32_u24 v17, 9216, v17
        v_lshlrev_b32 v19, 5, v19
        v_and_b32 v18, 1, v18
        v_lshlrev_b32 v18, 4, v18
        v_add3_u32 v{d}, v17, v19, v18
        """)
        if j == 4:
            A(f"v_mov_b32 v17, 0x80000000\nv_cmp_gt_u32 vcc, 1152, v16\ns_nop 1\nv_cndmask_b32 v{d}, v17, v{d}, vcc")
    A(f"""
    v_lshrrev_b32 v16, 4, v{vL}
    v_bfe_u32 v17, v{vL}, 2, 2
    v_lshlrev_b32 v18, 3, v16
    v_add_u32 v18, v18, v17
    v_mul_u32_u24 v18, 576, v18
    v_and_b32 v19, 3, v{vL}
    v_lshlrev_b32 v19, 3, v19
    v_add_u32 v18, v18, v19
    v_and_b32 v16, 1, v16
    v_lshlrev_b32 v16, 5, v16
    v_add_u32 v{vE0}, v18, v16
    v_sub_u32 v{vO0}, v18, v16
    v_lshlrev_b32 v1, 4, v{vL}
    s_lshl_b32 s44, s34, 3
    s_lshl_b32 s45, s36, 1
    s_add_u32 s44, s44, s45
    s_mul_i32 s44, s44, 18432
    v_add_u32 v{vP0}, s44, v1
    v_add_u32 v{vP1}, 18432, v{vP0}
    s_waitcnt lgkmcnt(0)
    """)
    if F: F.ptrs_g1()
    srd(A, 4, 28, 29, 576 * 9216)
    srd_off(A, 8, 32, 33, WS_XN, 128 * 18 * 1024)
    A("s_lshl_b32 s44, s34, 4\ns_add_u32 s44, s44, s35\ns_mul_i32 s44, s44, 36864")
    A(f"s_add_u32 s44, s44, {WS_Z1}")
    srd_off(A, 12, 32, 33, "s44", 36864)
    srd_off(A, 16, 32, 33, WS_Z2N, 16 * 589824)
    srd_off(A, 20, 32, 33, WS_STAT, 16 * 16 * 1024)
    A("s_mul_i32 s38, s35, 288\ns_add_u32 s37, s38, 4608")
    A("s_lshl_b32 s39, s36, 10")
    for i in range(5): A(f"s_mov_b32 s{64+i}, {4096*i}")
    def G(st):
        ops = []
        slot = st % R
        base = "s37" if st < 9 else "s38"
        koff = (st % 9) * 64 * 9216
        for j in range(5):
            pre = f"s_add_u32 s40, {base}, {koff}\n"
            pre += f"s_add_u32 m0, s39, {slot*SLOT + j*4096}\ns_nop 0\n"
            ops.append((pre + f"buffer_load_dwordx4 v{vQd[j]}, s[4:7], s40 offen lds", f"G{st}"))
        return ops
    def Pl(ks):
        return [(f"buffer_load_dwordx4 {ar(PR+(ks*2+i)*4,4)}, v{[vP0,vP1][i]}, s[8:11], s{64+ks//4} offen offset:{(ks%4)*1024}", f"P{ks}") for i in range(2)]
    def issue(op):
        A(op[0]); vm.issue(op[1])
    srd_off(A, 56, 54, 55, 0, 2048 * 4096)
    srd_off(A, 60, 32, 33, WS_WSP, 2048 * 4096)
    vW = 13; vWs = 14
    A(f"""
    s_lshr_b32 s44, s2, 1
    s_lshl_b32 s45, s44, 4
    v_and_b32 v16, 15, v{vL}
    v_add_u32 v16, s45, v16
    v_lshlrev_b32 v16, 12, v16
    v_lshrrev_b32 v17, 4, v{vL}
    v_lshlrev_b32 v17, 4, v17
    v_add_u32 v{vW}, v16, v17
    s_and_b32 s45, s2, 1
    s_lshl_b32 s45, s45, 2
    s_add_u32 s45, s45, s36
    s_lshl_b32 s46, s45, 9
    v_add_u32 v{vW}, s46, v{vW}
    s_lshl_b32 s44, s44, 16
    s_lshl_b32 s45, s45, 13
    s_add_u32 s41, s44, s45
    s_add_u32 s42, s41, 4096
    v_lshlrev_b32 v{vWs}, 4, v{vL}
    """)
    WR = 216
    wl = [(f"buffer_load_dwordx4 {ar(WR+4*j,4)}, v{vW}, s[56:59], 0 offen offset:{j*64}", "WL") for j in range(8)]
    wsx = [(f"buffer_store_dwordx4 {ar(WR+4*j,4)}, v{vWs}, s[60:63], {'s41' if j < 4 else 's42'} offen offset:{(j%4)*1024}{SC}", "WS") for j in range(8)]
    for op in G(0): issue(op)
    for ks in (0, 1):
        for op in Pl(ks): issue(op)
    A("s_barrier")
    for st in (1, 2):
        for op in G(st): issue(op)
        for ks in (2*st, 2*st+1):
            for op in Pl(ks): issue(op)
    A(f"v_mov_b32 v{vC0}, {hex(f2u(GC0))}\nv_mov_b32 v{vC0+1}, {hex(f2u(GC0))}\nv_mov_b32 v{vC1}, {hex(f2u(GC1))}\nv_mov_b32 v{vC1+1}, {hex(f2u(GC1))}")
    A(f"v_mov_b32 v{vOne}, 1.0\nv_mov_b32 v{vOne+1}, 1.0")
    for r in range(72): A(f"v_mov_b32 v{ACCA+r}, 0")
    A(f"v_mov_b32 v{vE}, v{vE0}\nv_mov_b32 v{vO}, v{vO0}")
    A(f"s_waitcnt vmcnt({vm.wait(['G0','P0','P1'])})")
    A("s_barrier")
    stamp()
    def qreads(buf, ksl):
        out = []
        for jn in range(9):
            X = ksl * 9 + jn
            b = vE if X % 2 == 0 else vO
            for hf in range(2):
                out.append(f"ds_read_b64_tr_b16 {ar(QA[buf]+jn*4+hf*2,2)}, v{b} offset:{X*32 + hf*2304}")
        return out
    def mfmas(buf, ksg, phaseB):
        out = []
        for jn in range(9):
            for i in range(2):
                q = ar(QA[buf]+jn*4, 4); p = ar(PR+(ksg*2+i)*4, 4)
                if not phaseB:
                    c = vr(ACCA+(i*9+jn)*4, 4); out.append(f"v_mfma_f32_16x16x32_bf16 {c}, {p}, {q}, {c}")
                else:
                    c = vr(ACCB+(i*9+jn)*4, 4); out.append(f"v_mfma_f32_16x16x32_bf16 {c}, {q}, {p}, {c}")
        return out
    for x in qreads(0, 0): A(x)
    fa = [f"v_mov_b32 v{ACCB+r}, 0" for r in range(72)] + [f"v_mov_b32 v{S1+r}, 0" for r in range(16)]
    pairsA = [ACCA + (i*9+jn)*4 + 2*h for i in range(2) for jn in range(9) for h in range(2)]
    eq = []
    for g in range(0, 36, 6):
        grp = pairsA[g:g+6]
        eq += gelu_ops(grp, [166, 168, 170, 228, 230, 232], vC0, vC1, vOne)
        for c in grp:
            idx = (c - ACCA) // 4; i = idx // 9; h = ((c - ACCA) % 4) // 2
            s1 = S1 + i*4 + 2*h; s2 = S2 + i*4 + 2*h
            eq.append(f"v_pk_add_f32 {vr(s1,2)}, {vr(s1,2)}, {vr(c,2)}")
            eq.append(f"v_pk_fma_f32 {vr(s2,2)}, {vr(c,2)}, {vr(c,2)}, {vr(s2,2)}")
    for n in (8, 4, 2, 1):
        for r in range(16):
            eq.append(f"v_add_f32_dpp v{S1+r}, v{S1+r}, v{S1+r} row_ror:{n} row_mask:0xf bank_mask:0xf")
    for i in range(2):
        for r in range(4):
            eq.append(f"v_mov_b32 v{W+i*8+2*r}, v{S1+i*4+r}")
            eq.append(f"v_max_f32 v{W+i*8+2*r+1}, 0, v{S2+i*4+r}")
    pend = []
    for st in range(3, NST):
        e = (0, 0) if st < R else (st - R + 1, 1)
        for op in G(st): pend.append((e, op))
        if st < 9:
            for ks in (2*st, 2*st+1):
                for op in Pl(ks): pend.append((e, op))
    published = [False]
    def publish():
        A(f"""
        s_lshl_b32 s44, s34, 4
        s_add_u32 s44, s44, s35
        s_lshl_b32 s44, s44, 10
        s_lshl_b32 s45, s36, 8
        s_add_u32 s44, s44, s45
        v_lshrrev_b32 v1, 4, v{vL}
        v_lshlrev_b32 v1, 5, v1
        v_and_b32 v16, 15, v{vL}
        """.replace("v16", f"v{TMP[0]}"))
        A(f"v_cmp_eq_u32 vcc, 0, v{TMP[0]}\ns_and_saveexec_b64 s[52:53], vcc")
        for i in range(2):
            for hh in range(2):
                A(f"buffer_store_dwordx4 {vr(W+i*8+hh*4,4)}, v1, s[20:23], s44 offen offset:{i*128+hh*16} sc1"); vm.issue("ST")
        A("s_mov_b64 exec, s[52:53]")
    ws_q = list(wsx); wl_q = list(wl)
    for st in range(NST):
        phaseB = st >= 9
        if st == 9:
            stamp()
            A("s_nop 7")
            for o in eq: A(o)
            eq.clear()
            publish(); published[0] = True
            stamp()
        for ksl in range(2):
            ksg = (st % 9) * 2 + ksl
            buf = ksl
            A("s_waitcnt lgkmcnt(0)")
            if ksl == 0:
                rd = qreads(1, 1)
            elif st + 1 < NST:
                nslot = (st + 1) % R
                A(f"v_add_u32 v{vE}, {nslot*SLOT}, v{vE0}\nv_add_u32 v{vO}, {nslot*SLOT}, v{vO0}")
                rd = qreads(0, 0)
            else: rd = []
            NV = 5 if st < 6 else 3
            gl = []
            while pend and len(gl) < NV and pend[0][0] <= (st, ksl):
                gl.append(pend.pop(0)[1])
            if 8 <= st <= 11 and wl_q: gl.append(wl_q.pop(0))
            if 14 <= st and ws_q: gl += [ws_q.pop(0)]
            if st == 14 and ksl == 0: A(f"s_waitcnt vmcnt({min(63, vm.wait('WL'))})")
            mf = mfmas(buf, ksg, phaseB)
            gpos = [int((k + 0.5) * 18 / max(1, len(gl))) for k in range(len(gl))]
            for j in range(18):
                A(mf[j])
                if j < 9:
                    for _ in range(2):
                        if rd: A(rd.pop(0))
                while gl and gpos[0] <= j:
                    gpos.pop(0); issue(gl.pop(0))
                if not phaseB and fa and j >= 9:
                    for _ in range(2):
                        if fa: A(fa.pop(0))
                if phaseB and eq:
                    k = 3 if j >= 9 else 1
                    for _ in range(k):
                        if eq: A(eq.pop(0))
            if ksl == 0 and st + 1 < NST:
                tags = [f"G{st+1}"]
                if st + 1 < 9: tags += [f"P{2*(st+1)}", f"P{2*(st+1)+1}"]
                A(f"s_waitcnt vmcnt({min(63, vm.wait(tags))})")
                A("s_barrier")
    assert not pend and not eq and not fa and not ws_q and published[0], (len(pend), len(eq), len(fa), len(ws_q))
    stamp()
    if F: F.after_loop()
    A("s_nop 7")
    pairsB = [ACCB + (i*9+jn)*4 + 2*h for i in range(2) for jn in range(9) for h in range(2)]
    A(f"v_lshlrev_b32 v1, 4, v{vL}\ns_mul_i32 s44, s36, 9216")
    ZB = 192
    T6 = [166, 168, 170, 228, 230, 232]
    done = 0
    for g in range(0, 36, 6):
        grp = pairsB[g:g+6]
        for o in gelu_ops(grp, T6, vC0, vC1, vOne): A(o)
        for k, c in enumerate(grp):
            A(f"v_cvt_pk_bf16_f32 v{ZB+g+k}, v{c}, v{c+1}")
        if F:
            for k in range(6): A(f"v_accvgpr_write_b32 a{128+g+k}, v{ZB+g+k}")
        while (not F) and (done + 1) * 4 <= g + 6:
            A(f"s_add_u32 s45, s44, {done*1024}")
            A(f"buffer_store_dwordx4 {vr(ZB+done*4,4)}, v1, s[12:15], s45 offen")
            done += 1
    stamp()
    A(f"""
    v_and_b32 v1, 31, v{vL}
    v_lshlrev_b32 v1, 3, v1
    v_lshrrev_b32 v13, 5, v{vL}
    v_lshlrev_b32 v13, 13, v13
    v_add_u32 v1, v1, v13
    s_lshl_b32 s44, s34, 14
    s_lshl_b32 s45, s36, 8
    s_add_u32 s44, s44, s45
    """)
    poll = A.newlabel(name + "_poll")
    W2 = 234
    A.label(poll)
    for j in range(8):
        A(f"s_add_u32 s45, s44, {j*1024}")
        A(f"buffer_load_dwordx2 {vr(W2+2*j,2)}, v1, s[20:23], s45 offen sc1")
    A("s_waitcnt vmcnt(0)")
    A(f"v_or_b32 v13, v{W2+1}, v{W2+3}")
    for j in range(2, 8): A(f"v_or_b32 v13, v13, v{W2+2*j+1}")
    A("v_cmp_gt_i32 s[52:53], 0, v13")
    A(f"s_cmp_eq_u64 s[52:53], 0\ns_cbranch_scc1 {poll}_ok\ns_sleep 4\ns_branch {poll}")
    A.label(poll + "_ok")
    stamp()
    if F:
        A("s_barrier")
        F.sig_wsp()
    Wm = W2
    for j in range(1, 8):
        A(f"v_pk_add_f32 {vr(Wm,2)}, {vr(Wm,2)}, {vr(Wm+2*j,2)}")
    A(f"v_mov_b32 v{Wm+2}, v{Wm}\nv_mov_b32 v{Wm+3}, v{Wm+1}\ns_nop 1")
    A(f"v_permlane32_swap_b32 v{Wm+2}, v{Wm}\nv_permlane32_swap_b32 v{Wm+3}, v{Wm+1}")
    A(f"v_pk_add_f32 {vr(Wm,2)}, {vr(Wm,2)}, {vr(Wm+2,2)}")
    A(f"v_mul_f32 v{Wm}, {hex(f2u(1.0/2304))}, v{Wm}")
    A(f"v_mul_f32 v{Wm+1}, {hex(f2u(1.0/2304))}, v{Wm+1}")
    A(f"v_fma_f32 v{Wm+1}, -v{Wm}, v{Wm}, v{Wm+1}")
    A(f"v_max_f32 v{Wm+1}, 0, v{Wm+1}")
    from l0 import bf16_round
    bf16_round(A, Wm+1)
    A(f"v_add_f32 v{Wm+1}, 0x3727c5ac, v{Wm+1}")
    bf16_round(A, Wm+1)
    A(f"v_sqrt_f32 v{Wm+1}, v{Wm+1}\ns_nop 0")
    bf16_round(A, Wm+1)
    A(f"v_rcp_f32 v{Wm+1}, v{Wm+1}")
    bf16_round(A, Wm)
    A(f"v_mul_f32 v{Wm}, v{Wm}, v{Wm+1}")
    LB = R * SLOT
    A(f"""
    v_and_b32 v1, 31, v{vL}
    v_lshlrev_b32 v1, 3, v1
    s_lshl_b32 s45, s36, 8
    s_add_u32 s45, s45, {LB}
    v_add_u32 v1, s45, v1
    ds_write_b64 v1, {vr(Wm,2)}
    v_lshrrev_b32 v13, 4, v{vL}
    v_lshlrev_b32 v13, 5, v13
    v_add_u32 v13, s45, v13
    s_waitcnt lgkmcnt(0)
    """)
    MS = 172
    for i in range(2):
        A(f"ds_read_b128 {vr(MS+i*8,4)}, v13 offset:{i*128}")
        A(f"ds_read_b128 {vr(MS+4+i*8,4)}, v13 offset:{i*128+16}")
    A(f"""
    s_mul_i32 s44, s35, 64
    s_lshl_b32 s45, s34, 2
    s_add_u32 s44, s44, s45
    s_add_u32 s44, s44, s36
    s_mul_i32 s44, s44, 9216
    v_lshrrev_b32 v1, 4, v{vL}
    v_and_b32 v13, 1, v1
    v_lshlrev_b32 v13, 1, v13
    v_lshrrev_b32 v1, 1, v1
    v_or_b32 v1, v1, v13
    v_lshlrev_b32 v1, 4, v1
    v_and_b32 v13, 15, v{vL}
    v_add_u32 v1, v1, v13
    v_lshlrev_b32 v1, 4, v1
    s_waitcnt lgkmcnt(0)
    """)
    stamp()
    OB = 192
    for jn in range(9):
        o = OB + jn * 4
        for i in range(2):
            c = ACCA + (i*9+jn)*4
            for r in range(4):
                m = MS+i*8+2*r
                A(f"v_fma_f32 v{c+r}, v{c+r}, v{m+1}, -v{m}")
            A(f"v_cvt_pk_bf16_f32 v{o+2*i}, v{c}, v{c+1}")
            A(f"v_cvt_pk_bf16_f32 v{o+2*i+1}, v{c+2}, v{c+3}")
        if jn > 0:
            po = OB + (jn-1)*4
            A(f"v_permlane16_swap_b32 v{po}, v{po+2}")
            A(f"v_permlane16_swap_b32 v{po+1}, v{po+3}")
            A(f"s_add_u32 s45, s44, {(jn-1)*1024}")
            A(f"buffer_store_dwordx4 {vr(po,4)}, v1, s[16:19], s45 offen{SC}")
    po = OB + 8*4
    A("s_nop 1")
    A(f"v_permlane16_swap_b32 v{po}, v{po+2}")
    A(f"v_permlane16_swap_b32 v{po+1}, v{po+3}")
    A(f"s_add_u32 s45, s44, {8*1024}")
    A(f"buffer_store_dwordx4 {vr(po,4)}, v1, s[16:19], s45 offen{SC}")
    stamp()
    if F: return
    ST.finish(vbase=200)
    A.label(f"{name}_end")
    A("s_endpgm")
    return A.text(), kernel_desc(name, 252, 248), R * SLOT + 1024
```

```python
from asmlib import *
from core import Core
from g1 import f2u, GC0, GC1, gelu_ops
from l0 import bf16_round

def gen_g1b(name, stamps=False):
    A = Asm(); ST = Stamper(A, 1, stamps); stamp = ST.stamp
    R = 4; SLOT = 20480
    ACC = 16
    QA = [64, 100]
    PR = 0
    vQd = [2, 3, 4, 5, 6]; vP = [7, 8]; vL = 15
    vE = [88, 89, 90, 91]; vO = [92, 93, 94, 95]
    vC0 = 96; vC1 = 98; vOne = 100; TMP = [102, 104, 106, 108, 110, 112]
    A(f"""
    s_cmp_ge_u32 s2, 512
    s_cbranch_scc1 {name}_end
    s_load_dwordx4 s[28:31], s[0:1], 64
    s_load_dwordx2 s[32:33], s[0:1], 112
    """)
    ST.start()
    A(f"""
    s_and_b32 s43, s2, 255
    s_lshr_b32 s40, s2, 8            ; type: 0 = z2, 1 = z1
    s_and_b32 s44, s43, 7
    s_lshr_b32 s45, s43, 3
    s_and_b32 s34, s44, 1
    s_lshl_b32 s34, s34, 3
    s_and_b32 s46, s45, 7
    s_add_u32 s34, s34, s46          ; rb
    s_lshr_b32 s35, s44, 1
    s_lshl_b32 s35, s35, 2
    s_lshr_b32 s46, s45, 3
    s_add_u32 s35, s35, s46          ; cb
    v_lshrrev_b32 v1, 6, v0
    v_and_b32 v{vL}, 63, v0
    s_nop 0
    v_readfirstlane_b32 s36, v1
    """)
    lab = A.newlabel(name + "_pr")
    A(f"s_cmp_eq_u32 s40, 0\ns_cbranch_scc0 {lab}\ns_setprio 2")
    A.label(lab)
    for j in range(5):
        d = vQd[j]
        A(f"""
        s_lshl_b32 s44, s36, 6
        s_add_u32 s44, s44, {256*j}
        v_add_u32 v16, s44, v{vL}
        v_mul_u32_u24 v17, 1821, v16
        v_lshrrev_b32 v17, 16, v17
        v_mul_u32_u24 v18, 36, v17
        v_sub_u32 v18, v16, v18
        v_lshrrev_b32 v19, 1, v18
        v_bfe_u32 v20, v17, 3, 1
        v_xor_b32 v19, v19, v20
        v_cmp_le_u32 vcc, 9, v19
        v_mul_u32_u24 v22, 9216, v17
        s_nop 0
        v_cndmask_b32 v20, 0, 1, vcc
        v_mul_u32_u24 v21, 9, v20
        v_sub_u32 v19, v19, v21
        v_mul_u32_u24 v20, {32*9216}, v20
        v_add_u32 v17, v22, v20
        v_lshlrev_b32 v19, 5, v19
        v_and_b32 v18, 1, v18
        v_lshlrev_b32 v18, 4, v18
        v_add3_u32 v{d}, v17, v19, v18
        """)
        if j == 4:
            A(f"v_mov_b32 v17, 0x80000000\nv_cmp_gt_u32 vcc, 1152, v16\ns_nop 1\nv_cndmask_b32 v{d}, v17, v{d}, vcc")
    A(f"""
    v_lshrrev_b32 v16, 4, v{vL}
    v_bfe_u32 v17, v{vL}, 2, 2
    v_lshlrev_b32 v18, 3, v16
    v_add_u32 v18, v18, v17
    v_mul_u32_u24 v18, 576, v18
    v_and_b32 v19, 3, v{vL}
    v_lshlrev_b32 v19, 3, v19
    v_add_u32 v18, v18, v19
    v_and_b32 v16, 1, v16
    v_lshlrev_b32 v16, 5, v16
    v_add_u32 v{vE[0]}, v18, v16
    v_sub_u32 v{vO[0]}, v18, v16
    v_lshlrev_b32 v1, 4, v{vL}
    s_lshl_b32 s44, s34, 3
    s_lshl_b32 s45, s36, 1
    s_add_u32 s44, s44, s45
    s_mul_i32 s44, s44, 18432
    v_add_u32 v{vP[0]}, s44, v1
    v_add_u32 v{vP[1]}, 18432, v{vP[0]}
    s_lshl_b32 s39, s36, 10
    """)
    for s in range(1, R):
        A(f"v_add_u32 v{vE[s]}, {s*SLOT}, v{vE[0]}\nv_add_u32 v{vO[s]}, {s*SLOT}, v{vO[0]}")
    A("s_waitcnt lgkmcnt(0)")
    srd(A, 4, 28, 29, 576 * 9216)
    srd_off(A, 8, 32, 33, WS_XN, 128 * 18 * 1024)
    A("s_mul_i32 s37, s35, 288\ns_xor_b32 s44, s40, 1\ns_mul_i32 s44, s44, 4608\ns_add_u32 s37, s37, s44\ns_mov_b32 s38, 0")
    def qreads(buf, slot, ksl):
        out = []
        for jn in range(9):
            X = ksl * 9 + jn
            b = vE[slot] if X % 2 == 0 else vO[slot]
            for hf in range(2):
                out.append(f"ds_read_b64_tr_b16 {ar(QA[buf]+jn*4+hf*2,2)}, v{b} offset:{X*32 + hf*2304}")
        return out
    z1lab = A.newlabel(name + "_z1"); endlab = A.newlabel(name + "_fin")
    A(f"s_cmp_eq_u32 s40, 1\ns_cbranch_scc1 {z1lab}")
    def mk(orient, nm):
        return Core(A, nm, 2, 9, 18, 2, R, ACC, QA, "a", PR, vP, vQd, None, 8, 4, "s37", "s38", "s39", "s41", 1024,
                    orient=orient, slot_pitch=SLOT, q_stage_stride=64*9216, qreads_fn=qreads)
    def consts():
        A(f"v_mov_b32 v{vC0}, {hex(f2u(GC0))}\nv_mov_b32 v{vC0+1}, {hex(f2u(GC0))}\nv_mov_b32 v{vC1}, {hex(f2u(GC1))}\nv_mov_b32 v{vC1+1}, {hex(f2u(GC1))}")
        A(f"v_mov_b32 v{vOne}, 1.0\nv_mov_b32 v{vOne+1}, 1.0")
    pairs = [ACC + (i*9+jn)*4 + 2*h for i in range(2) for jn in range(9) for h in range(2)]
    c = mk("PQ", name + "_a")
    c.prologue(0, extra=consts)
    stamp()
    c.loop(False)
    stamp()
    srd_off(A, 16, 32, 33, WS_Z2N, 16 * 589824)
    srd_off(A, 20, 32, 33, WS_STAT, 16 * 16 * 1024)
    S1 = 2; S2 = 88
    for r in range(8): A(f"v_mov_b32 v{S1+r}, 0\nv_mov_b32 v{S2+r}, 0")
    A("s_nop 4")
    for g in range(0, 36, 6):
        grp = pairs[g:g+6]
        for o in gelu_ops(grp, TMP, vC0, vC1, vOne): A(o)
        for cc in grp:
            idx = (cc - ACC) // 4; i = idx // 9; h = ((cc - ACC) % 4) // 2
            s1 = S1 + i*4 + 2*h; s2 = S2 + i*4 + 2*h
            A(f"v_pk_add_f32 {vr(s1,2)}, {vr(s1,2)}, {vr(cc,2)}")
            A(f"v_pk_fma_f32 {vr(s2,2)}, {vr(cc,2)}, {vr(cc,2)}, {vr(s2,2)}")
    regs = [S1+r for r in range(8)] + [S2+r for r in range(8)]
    for n in (8, 4, 2, 1):
        for r in regs: A(f"v_add_f32_dpp v{r}, v{r}, v{r} row_ror:{n} row_mask:0xf bank_mask:0xf")
    W = 96
    for i in range(2):
        for r in range(4):
            A(f"v_mov_b32 v{W+i*8+2*r}, v{S1+i*4+r}")
            A(f"v_max_f32 v{W+i*8+2*r+1}, 0, v{S2+i*4+r}")
    A(f"""
    s_lshl_b32 s44, s34, 4
    s_add_u32 s44, s44, s35
    s_lshl_b32 s44, s44, 10
    s_lshl_b32 s45, s36, 8
    s_add_u32 s44, s44, s45
    v_lshrrev_b32 v1, 4, v{vL}
    v_lshlrev_b32 v1, 5, v1
    v_and_b32 v2, 15, v{vL}
    v_cmp_eq_u32 vcc, 0, v2
    s_and_saveexec_b64 s[52:53], vcc
    """)
    for i in range(2):
        for hh in range(2):
            A(f"buffer_store_dwordx4 {vr(W+i*8+hh*4,4)}, v1, s[20:23], s44 offen offset:{i*128+hh*16} sc1")
    A("s_mov_b64 exec, s[52:53]")
    stamp()
    A(f"""
    v_and_b32 v1, 31, v{vL}
    v_lshlrev_b32 v1, 3, v1
    v_lshrrev_b32 v2, 5, v{vL}
    v_lshlrev_b32 v2, 13, v2
    v_add_u32 v1, v1, v2
    s_lshl_b32 s44, s34, 14
    s_lshl_b32 s45, s36, 8
    s_add_u32 s44, s44, s45
    """)
    poll = A.newlabel(name + "_poll")
    W2 = 88
    A("s_waitcnt vmcnt(0)")
    A.label(poll)
    for j in range(8):
        A(f"s_add_u32 s45, s44, {j*1024}")
        A(f"buffer_load_dwordx2 {vr(W2+2*j,2)}, v1, s[20:23], s45 offen sc1")
    A("s_waitcnt vmcnt(0)")
    A(f"v_or_b32 v2, v{W2+1}, v{W2+3}")
    for j in range(2, 8): A(f"v_or_b32 v2, v2, v{W2+2*j+1}")
    A("v_cmp_gt_i32 s[52:53], 0, v2")
    A(f"s_cmp_eq_u64 s[52:53], 0\ns_cbranch_scc1 {poll}_ok\ns_sleep 8\ns_branch {poll}")
    A.label(poll + "_ok")
    stamp()
    Wm = W2
    for j in range(1, 8): A(f"v_pk_add_f32 {vr(Wm,2)}, {vr(Wm,2)}, {vr(Wm+2*j,2)}")
    A(f"v_mov_b32 v{Wm+2}, v{Wm}\nv_mov_b32 v{Wm+3}, v{Wm+1}\ns_nop 1")
    A(f"v_permlane32_swap_b32 v{Wm+2}, v{Wm}\nv_permlane32_swap_b32 v{Wm+3}, v{Wm+1}")
    A(f"v_pk_add_f32 {vr(Wm,2)}, {vr(Wm,2)}, {vr(Wm+2,2)}")
    A(f"v_mul_f32 v{Wm}, {hex(f2u(1.0/2304))}, v{Wm}")
    A(f"v_mul_f32 v{Wm+1}, {hex(f2u(1.0/2304))}, v{Wm+1}")
    A(f"v_fma_f32 v{Wm+1}, -v{Wm}, v{Wm}, v{Wm+1}")
    A(f"v_max_f32 v{Wm+1}, 0, v{Wm+1}")
    bf16_round(A, Wm+1)
    A(f"v_add_f32 v{Wm+1}, 0x3727c5ac, v{Wm+1}")
    bf16_round(A, Wm+1)
    A(f"v_sqrt_f32 v{Wm+1}, v{Wm+1}\ns_nop 0")
    bf16_round(A, Wm+1)
    A(f"v_rcp_f32 v{Wm+1}, v{Wm+1}")
    bf16_round(A, Wm)
    A(f"v_mul_f32 v{Wm}, v{Wm}, v{Wm+1}")
    A("s_barrier")
    A(f"""
    v_and_b32 v1, 31, v{vL}
    v_lshlrev_b32 v1, 3, v1
    s_lshl_b32 s45, s36, 8
    v_add_u32 v1, s45, v1
    ds_write_b64 v1, {vr(Wm,2)}
    v_lshrrev_b32 v2, 4, v{vL}
    v_lshlrev_b32 v2, 5, v2
    v_add_u32 v2, s45, v2
    s_waitcnt lgkmcnt(0)
    """)
    MS = 92
    for i in range(2):
        A(f"ds_read_b128 {vr(MS+i*8,4)}, v2 offset:{i*128}")
        A(f"ds_read_b128 {vr(MS+4+i*8,4)}, v2 offset:{i*128+16}")
    A(f"""
    s_mul_i32 s44, s35, 64
    s_lshl_b32 s45, s34, 2
    s_add_u32 s44, s44, s45
    s_add_u32 s44, s44, s36
    s_mul_i32 s44, s44, 9216
    v_lshrrev_b32 v1, 4, v{vL}
    v_and_b32 v2, 1, v1
    v_lshlrev_b32 v2, 1, v2
    v_lshrrev_b32 v1, 1, v1
    v_or_b32 v1, v1, v2
    v_lshlrev_b32 v1, 4, v1
    v_and_b32 v2, 15, v{vL}
    v_add_u32 v1, v1, v2
    v_lshlrev_b32 v1, 4, v1
    s_waitcnt lgkmcnt(0)
    """)
    OBS = [108, 112]
    def fin(jn):
        o = OBS[jn % 2]
        A(f"v_permlane16_swap_b32 v{o}, v{o+2}")
        A(f"v_permlane16_swap_b32 v{o+1}, v{o+3}")
        A(f"s_add_u32 s45, s44, {jn*1024}")
        A(f"buffer_store_dwordx4 {vr(o,4)}, v1, s[16:19], s45 offen")
    for jn in range(9):
        o = OBS[jn % 2]
        tmp = []
        for i in range(2):
            cc = ACC + (i*9+jn)*4
            for r in range(4):
                m = MS+i*8+2*r
                A(f"v_fma_f32 v{cc+r}, v{cc+r}, v{m+1}, -v{m}")
        if jn > 0: fin(jn - 1)
        for i in range(2):
            cc = ACC + (i*9+jn)*4
            A(f"v_cvt_pk_bf16_f32 v{o+2*i}, v{cc}, v{cc+1}")
            A(f"v_cvt_pk_bf16_f32 v{o+2*i+1}, v{cc+2}, v{cc+3}")
    A("s_nop 1")
    fin(8)
    stamp()
    A(f"s_branch {endlab}")
    A.label(z1lab)
    srd(A, 56, 30, 31, 2048 * 4096)
    srd_off(A, 60, 32, 33, WS_WSP, 2048 * 4096)
    A(f"""
    s_lshr_b32 s44, s43, 1
    s_lshl_b32 s45, s44, 4
    v_and_b32 v96, 15, v{vL}
    v_add_u32 v96, s45, v96
    v_lshlrev_b32 v96, 12, v96
    v_lshrrev_b32 v97, 4, v{vL}
    v_lshlrev_b32 v97, 4, v97
    v_add_u32 v96, v96, v97
    s_and_b32 s45, s43, 1
    s_lshl_b32 s45, s45, 2
    s_add_u32 s45, s45, s36
    s_lshl_b32 s46, s45, 9
    v_add_u32 v96, s46, v96
    s_lshl_b32 s44, s44, 16
    s_lshl_b32 s45, s45, 13
    s_add_u32 s47, s44, s45
    s_add_u32 s48, s47, 4096
    v_lshlrev_b32 v97, 4, v{vL}
    """)
    for j in range(8): A(f"buffer_load_dwordx4 {vr(16+4*j,4)}, v96, s[56:59], 0 offen offset:{j*64}")
    for j in range(8):
        A(f"s_waitcnt vmcnt({7-j if j == 0 else 7})")
        A(f"buffer_store_dwordx4 {vr(16+4*j,4)}, v97, s[60:63], {'s47' if j < 4 else 's48'} offen offset:{(j%4)*1024}")
    A("s_waitcnt vmcnt(0)")
    c = mk("QP", name + "_b")
    c.prologue(0, extra=consts)
    stamp()
    c.loop(False)
    stamp()
    A("s_lshl_b32 s44, s34, 4\ns_add_u32 s44, s44, s35\ns_mul_i32 s44, s44, 36864")
    A(f"s_add_u32 s44, s44, {WS_Z1}")
    srd_off(A, 12, 32, 33, "s44", 36864)
    A(f"v_lshlrev_b32 v1, 4, v{vL}\ns_mul_i32 s44, s36, 9216\ns_nop 4")
    ZB = [88, 92, 2, 6]
    dwreg = lambda dw: ZB[(dw // 4) % 4] + dw % 4
    done = 0
    for g in range(0, 36, 6):
        grp = pairs[g:g+6]
        for o in gelu_ops(grp, TMP, vC0, vC1, vOne): A(o)
        for k, cc in enumerate(grp):
            A(f"v_cvt_pk_bf16_f32 v{dwreg(g+k)}, v{cc}, v{cc+1}")
        while (done + 1) * 4 <= g + 6:
            A(f"s_add_u32 s45, s44, {done*1024}")
            A(f"buffer_store_dwordx4 {vr(ZB[done % 4],4)}, v1, s[12:15], s45 offen")
            done += 1
    stamp();
    ST.n = max(ST.n, 9)
    A.label(endlab)
    ST.finish(vbase=96)
    A.label(f"{name}_end")
    A("s_endpgm")
    return A.text(), kernel_desc(name, 116, 136), R * SLOT
```

```python
from asmlib import *

def gen_g2(name, stamps=False, noadv=False, noP=False, noQ=False, nomfma=False):
    A = Asm(); ST = Stamper(A, 2, stamps)
    SLOT = 36864
    ACC = 128; PR = 0
    QV = [16, 52]
    Z1V = 88
    vP = [2, 3]; vQd = [4, 5, 6]; vQr = [8, 9, 10, 11]; vB = [12, 13]; vL = 15
    A(f"""
    s_cmp_ge_u32 s2, 256
    s_cbranch_scc1 {name}_end
    s_load_dwordx2 s[30:31], s[0:1], 80
    s_load_dwordx2 s[32:33], s[0:1], 112
    """)
    ST.start()
    A(f"""
    s_and_b32 s44, s2, 7
    s_lshr_b32 s45, s2, 3
    s_and_b32 s34, s44, 1
    s_lshl_b32 s34, s34, 3
    s_and_b32 s46, s45, 7
    s_add_u32 s34, s34, s46
    s_lshr_b32 s35, s44, 1
    s_lshl_b32 s35, s35, 2
    s_lshr_b32 s46, s45, 3
    s_add_u32 s35, s35, s46
    v_lshrrev_b32 v1, 6, v0
    v_and_b32 v{vL}, 63, v0
    s_nop 0
    v_readfirstlane_b32 s36, v1
    s_waitcnt lgkmcnt(0)
    """)
    srd_off(A, 4, 32, 33, WS_WSP, 2048 * 4096)
    A("s_mul_i32 s44, s35, 589824")
    A(f"s_add_u32 s44, s44, {WS_Z2N}")
    srd_off(A, 8, 32, 33, "s44", 589824)
    A("s_lshl_b32 s44, s34, 4")
    A("s_add_u32 s44, s44, s35")
    A("s_mul_i32 s44, s44, 36864")
    A(f"s_add_u32 s44, s44, {WS_Z1}")
    srd_off(A, 12, 32, 33, "s44", 36864)
    srd_off(A, 16, 32, 33, WS_H, 128 * 72 * 1024)
    srd(A, 20, 30, 31, 4096)
    A(f"""
    s_lshl_b32 s44, s34, 7
    s_lshl_b32 s45, s36, 5
    s_add_u32 s44, s44, s45
    v_and_b32 v1, 15, v{vL}
    v_add_u32 v1, s44, v1
    v_lshlrev_b32 v{vB[0]}, 1, v1
    v_add_u32 v{vB[1]}, 32, v{vB[0]}
    v_lshlrev_b32 v1, 4, v{vL}
    s_lshl_b32 s46, s44, 12
    v_add_u32 v{vP[0]}, s46, v1
    v_add_u32 v{vP[1]}, 0x10000, v{vP[0]}
    s_mul_i32 s45, s36, 9216
    v_add_u32 v{vQd[0]}, s45, v1
    v_add_u32 v{vQd[1]}, 0x1000, v{vQd[0]}
    v_add_u32 v{vQd[2]}, 0x2000, v{vQd[0]}
    v_mov_b32 v{vQr[0]}, v1
    v_add_u32 v{vQr[1]}, {SLOT}, v1
    v_add_u32 v{vQr[2]}, {2*SLOT}, v1
    v_add_u32 v{vQr[3]}, {3*SLOT}, v1
    s_mov_b32 s40, s45
    s_add_u32 s41, s45, {SLOT}
    s_add_u32 s42, s45, {2*SLOT}
    s_add_u32 s43, s45, {3*SLOT}
    s_mov_b32 s38, 0
    s_mov_b32 s39, 0
    """)
    def G(slot):
        ops = []
        dma = []
        for j in range(9):
            g = j // 4
            pre = f"s_add_u32 m0, s{40+slot}, {g*4096}\ns_nop 0\n" if j % 4 == 0 else ""
            dma.append(pre + f"buffer_load_dwordx4 v{vQd[g]}, s[8:11], s38 offen offset:{(j%4)*1024} lds")
        pl = []
        for ks in range(4):
            for i in range(2):
                pl.append(f"buffer_load_dwordx4 {ar(PR + slot*32 + ks*8 + i*4, 4)}, v{vP[i]}, s[4:7], s39 offen offset:{ks*1024}")
        for j in range(9):
            ops.append(dma[j])
            if j < 8: ops.append(pl[j])
        if noP: ops = [o if "lds" in o else "s_nop 0" for o in ops]
        if noQ: ops = [o if "lds" not in o else "s_nop 0" for o in ops]
        if not noadv: ops[-1] += f"\ns_add_u32 s38, s38, {SLOT}\ns_add_u32 s39, s39, 4096"
        return ops
    for s in range(2):
        for op in G(s): A(op)
    for op in G(2)[0:9]: A(op)
    for r in range(72): A(f"v_mov_b32 v{ACC+r}, 0")
    A("s_waitcnt vmcnt(26)")
    A("s_barrier")
    def qreads(buf, slot, ks):
        return [f"ds_read_b128 {vr(QV[buf]+jn*4,4)}, v{vQr[slot]} offset:{(ks*9+jn)*1024}" for jn in range(9)]
    def mfmas(buf, slot, ks):
        out = []
        for jn in range(9):
            for i in range(2):
                c = vr(ACC + (i*9+jn)*4, 4)
                out.append(f"v_mfma_f32_16x16x32_bf16 {c}, {vr(QV[buf]+jn*4,4)}, {ar(PR+slot*32+ks*8+i*4,4)}, {c}")
        return out
    for x in qreads(0, 0, 0): A(x)
    ST.stamp()
    A("s_mov_b32 s37, 0")
    A.label(f"{name}_loop")
    for u in range(4):
        g = G((u + 3) & 3)
        gprev = G((u + 2) & 3)
        for ks in range(4):
            A("s_waitcnt lgkmcnt(0)")
            if ks < 3: rd = qreads((ks + 1) & 1, u, ks + 1)
            else:      rd = qreads(0, (u + 1) & 3, 0)
            if ks == 0:   gl = gprev[9:13]
            elif ks == 1: gl = gprev[13:17]
            elif ks == 2: gl = g[0:5]
            else:         gl = g[5:9]
            mf = mfmas(ks & 1, u, ks)
            for j in range(18):
                if not nomfma: A(mf[j])
                if j < 9: A(rd[j])
                elif (j - 9) % 2 == 0 and (j - 9) // 2 < len(gl): A(gl[(j - 9) // 2])
            if ks == 1:
                A("s_waitcnt vmcnt(17)")
                A("s_barrier")
                if u == 1:
                    skip = A.newlabel(name + "_sk")
                    A(f"s_cmp_eq_u32 s37, 3\ns_cbranch_scc0 {skip}")
                    for v in vP + vQd: A(f"v_mov_b32 v{v}, 0x80000000")
                    A(f"v_lshlrev_b32 v1, 4, v{vL}")
                    A(f"s_mul_i32 s44, s36, 9216")
                    A(f"v_add_u32 v1, s44, v1")
                    for q in range(9):
                        A(f"v_add_u32 v7, {q*1024}, v1")
                        A(f"buffer_load_dwordx4 {vr(Z1V+q*4,4)}, v7, s[12:15], 0 offen")
                    for i in range(2):
                        A(f"buffer_load_ushort v{124+i}, v{vB[i]}, s[20:23], 0 offen")
                    A.label(skip)
    A(f"s_add_u32 s37, s37, 1\ns_cmp_lt_u32 s37, 4\ns_cbranch_scc1 {name}_loop")
    ST.stamp()
    A("s_waitcnt vmcnt(0)")
    A("s_nop 7")
    A("v_lshlrev_b32 v200, 16, v124\nv_lshlrev_b32 v201, 16, v124\nv_lshlrev_b32 v202, 16, v125\nv_lshlrev_b32 v203, 16, v125")
    A(f"""
    s_lshl_b32 s44, s34, 3
    s_lshl_b32 s45, s36, 1
    s_add_u32 s44, s44, s45
    s_mul_i32 s44, s44, 72
    s_lshr_b32 s45, s35, 1
    s_mul_i32 s45, s45, 9
    s_add_u32 s44, s44, s45
    s_and_b32 s46, s35, 1
    s_mul_i32 s47, s46, 5
    s_add_u32 s47, s47, s44
    s_lshl_b32 s47, s47, 10
    s_add_u32 s48, s44, 4
    s_lshl_b32 s48, s48, 10
    s_lshl_b32 s51, s46, 3
    s_add_u32 s48, s48, s51
    s_add_u32 s49, s47, 73728
    s_add_u32 s50, s48, 73728
    v_lshlrev_b32 v1, 4, v{vL}
    """)
    T = 204
    for i in range(2):
        for jn in range(9):
            c = ACC + (i*9+jn)*4
            z = Z1V + (i*9+jn)*2
            t = T + ((i*9+jn) & 1) * 4
            A(f"v_lshlrev_b32 v{t}, 16, v{z}")
            A(f"v_and_b32 v{t+1}, 0xffff0000, v{z}")
            A(f"v_lshlrev_b32 v{t+2}, 16, v{z+1}")
            A(f"v_and_b32 v{t+3}, 0xffff0000, v{z+1}")
            A(f"v_pk_add_f32 {vr(c,2)}, {vr(c,2)}, {vr(200+2*i,2)}")
            A(f"v_pk_add_f32 {vr(c+2,2)}, {vr(c+2,2)}, {vr(200+2*i,2)}")
            A(f"v_pk_mul_f32 {vr(c,2)}, {vr(c,2)}, {vr(t,2)}")
            A(f"v_pk_mul_f32 {vr(c+2,2)}, {vr(c+2,2)}, {vr(t+2,2)}")
            A(f"v_cvt_pk_bf16_f32 v{z}, v{c}, v{c+1}")
            A(f"v_cvt_pk_bf16_f32 v{z+1}, v{c+2}, v{c+3}")
    odd = A.newlabel(name + "_odd"); done = A.newlabel(name + "_sd")
    A(f"s_cmp_eq_u32 s46, 1\ns_cbranch_scc1 {odd}")
    for i in range(2):
        for p in range(4):
            A(f"buffer_store_dwordx4 {vr(Z1V+(i*9+2*p)*2,4)}, v1, s[16:19], s{47 if i==0 else 49} offen offset:{p*1024}")
        A(f"buffer_store_dwordx2 {vr(Z1V+(i*9+8)*2,2)}, v1, s[16:19], s{48 if i==0 else 50} offen")
    A(f"s_branch {done}")
    A.label(odd)
    for i in range(2):
        for p in range(4):
            A(f"buffer_store_dwordx4 {vr(Z1V+(i*9+1+2*p)*2,4)}, v1, s[16:19], s{47 if i==0 else 49} offen offset:{p*1024}")
        A(f"buffer_store_dwordx2 {vr(Z1V+(i*9)*2,2)}, v1, s[16:19], s{48 if i==0 else 50} offen")
    A.label(done)
    ST.stamp()
    ST.finish(vbase=208)
    A.label(f"{name}_end")
    A("s_endpgm")
    return A.text(), kernel_desc(name, 224, 128)
```

```python
from asmlib import *
from g1 import f2u
import math

def gen_g3(name, stamps=False):
    A = Asm(); ST = Stamper(A, 4, stamps)
    R = 6; SLOT = 24576
    ACC = 16
    QA = [96, 120, 144]
    PR = 0
    vQd = [2, 3, 4, 5, 6, 7]; vE0 = 8; vO0 = 9; vP = 10; vL = 15
    vE = [40, 41, 42, 43, 44, 45]; vO = [46, 47, 48, 49, 50, 51]
    A(f"""
    s_cmp_ge_u32 s2, 192
    s_cbranch_scc1 {name}_end
    s_load_dwordx2 s[28:29], s[0:1], 88
    s_load_dwordx2 s[30:31], s[0:1], 0
    s_load_dwordx2 s[32:33], s[0:1], 112
    s_load_dwordx2 s[54:55], s[0:1], 96
    """)
    ST.start()
    A(f"""
    s_and_b32 s44, s2, 7
    s_lshr_b32 s45, s2, 3
    s_lshl_b32 s34, s44, 2
    s_and_b32 s46, s45, 3
    s_add_u32 s34, s34, s46          ; tb
    s_lshr_b32 s35, s45, 2           ; db
    v_lshrrev_b32 v1, 6, v0
    v_and_b32 v{vL}, 63, v0
    s_nop 0
    v_readfirstlane_b32 s36, v1
    """)
    for j in range(6):
        d = vQd[j]
        A(f"""
        s_lshl_b32 s44, s36, 6
        s_add_u32 s44, s44, {256*j}
        v_add_u32 v16, s44, v{vL}
        v_mul_u32_u24 v17, 5462, v16
        v_lshrrev_b32 v17, 16, v17
        v_mul_u32_u24 v18, 12, v17
        v_sub_u32 v18, v16, v18             ; pos2
        v_lshrrev_b32 v19, 1, v18
        v_bfe_u32 v20, v17, 2, 1
        v_xor_b32 v19, v19, v20             ; jd
        v_mul_u32_u24 v17, 1152, v17
        v_lshlrev_b32 v19, 5, v19
        v_and_b32 v18, 1, v18
        v_lshlrev_b32 v18, 4, v18
        v_add3_u32 v{d}, v17, v19, v18
        """)
    A(f"""
    v_lshrrev_b32 v16, 2, v{vL}          ; 4kg + r
    v_mul_u32_u24 v18, 192, v16
    v_and_b32 v19, 3, v{vL}
    v_lshlrev_b32 v19, 3, v19
    v_add_u32 v18, v18, v19
    v_bfe_u32 v16, v{vL}, 4, 1
    v_lshlrev_b32 v16, 5, v16
    v_add_u32 v{vE0}, v18, v16
    v_sub_u32 v{vO0}, v18, v16
    """)
    for s in range(R):
        A(f"v_add_u32 v{vE[s]}, {s*SLOT}, v{vE0}\nv_add_u32 v{vO[s]}, {s*SLOT}, v{vO0}")
    A(f"""
    v_lshlrev_b32 v1, 4, v{vL}
    s_lshl_b32 s44, s34, 2
    s_add_u32 s44, s44, s36          ; ttile
    s_mov_b32 s56, s44
    s_mul_i32 s44, s44, 73728
    v_add_u32 v{vP}, s44, v1
    s_waitcnt lgkmcnt(0)
    """)
    srd(A, 4, 28, 29, 2304 * 1152)
    srd_off(A, 8, 32, 33, WS_H, 128 * 72 * 1024)
    srd(A, 12, 30, 31, 2048 * 1152)
    srd_off(A, 16, 32, 33, WS_S, 576 * 4096)
    srd(A, 20, 54, 55, 2048 * 1152)
    A("s_mul_i32 s38, s35, 192")
    A("s_mov_b32 s39, 0")
    A("s_lshl_b32 s40, s36, 10")
    def G(slot):
        ops = []
        dm = []
        for j in range(6):
            dm.append(f"s_add_u32 m0, s40, {slot*SLOT + j*4096}\ns_nop 0\nbuffer_load_dwordx4 v{vQd[j]}, s[4:7], s38 offen lds")
        pl = [f"buffer_load_dwordx4 {ar(PR+slot*16+ks*4,4)}, v{vP}, s[8:11], s39 offen offset:{ks*1024}" for ks in range(4)]
        ops = [dm[0], pl[0], dm[1], pl[1], dm[2], pl[2], dm[3], pl[3], dm[4], dm[5]]
        ops[-1] += f"\ns_add_u32 s38, s38, {128*1152}\ns_add_u32 s39, s39, 4096"
        return ops
    for op in G(0): A(op)
    A("s_barrier")
    for s in range(1, R - 2):
        for op in G(s): A(op)
    for op in G(R - 2)[0:5]: A(op)
    for r in range(24): A(f"v_mov_b32 v{ACC+r}, 0")
    A(f"s_waitcnt vmcnt({10*(R-3)+5})")
    A("s_barrier")
    def qreads(buf, slot, ks):
        out = []
        for jd in range(6):
            b = vE[slot] if jd % 2 == 0 else vO[slot]
            for hf in range(2):
                out.append(f"ds_read_b64_tr_b16 {ar(QA[buf]+jd*4+hf*2,2)}, v{b} offset:{ks*6144 + hf*3072 + jd*32}")
        return out
    def mfmas(buf, slot, ks):
        return [f"v_mfma_f32_16x16x32_bf16 {vr(ACC+jd*4,4)}, {ar(QA[buf]+jd*4,4)}, {ar(PR+slot*16+ks*4,4)}, {vr(ACC+jd*4,4)}" for jd in range(6)]
    for x in qreads(0, 0, 0): A(x)
    for x in qreads(1, 0, 1): A(x)
    ST.stamp()
    A("s_mov_b32 s37, 0")
    A.label(f"{name}_loop")
    for u in range(R):
        g = G((u + R - 1) % R)
        gp = G((u + R - 2) % R)
        for ks in range(4):
            gk = 4*u + ks
            if stamps and ks == 0: A("s_memtime s[92:93]")
            A("s_waitcnt lgkmcnt(12)")
            if stamps and ks == 0:
                A("s_waitcnt lgkmcnt(0)")
                A(f"s_mul_i32 s94, s37, 6\ns_add_u32 s94, s94, {u}\ns_lshl_b64 s[94:95], 1, s94\ns_mov_b64 exec, s[94:95]\nv_mov_b32 v119, s92\ns_mov_b64 exec, -1")
            k2 = ks + 2
            rd = qreads((gk + 2) % 3, u, k2) if k2 < 4 else qreads((gk + 2) % 3, (u + 1) % R, k2 - 4)
            gl = [gp[5:8], gp[8:10], g[0:3], g[3:5]][ks]
            mf = mfmas(gk % 3, u, ks)
            for j in range(6):
                A(mf[j]); A(rd[2*j]); A(rd[2*j+1])
                if j % 2 == 0 and j // 2 < len(gl): A(gl[j // 2])
            if ks == 1:
                A(f"s_waitcnt vmcnt({10*(R-3)})")
                A("s_barrier")
                if u == 1:
                    skip = A.newlabel(name + "_sk")
                    A(f"s_cmp_eq_u32 s37, 2\ns_cbranch_scc0 {skip}")
                    for v in vQd + [vP]: A(f"v_mov_b32 v{v}, 0x80000000")
                    A(f"""
                    v_and_b32 v1, 15, v{vL}
                    s_lshl_b32 s44, s56, 4
                    v_add_u32 v1, s44, v1
                    v_mul_u32_u24 v1, 1152, v1
                    v_lshrrev_b32 v11, 4, v{vL}
                    v_lshlrev_b32 v11, 3, v11
                    v_add_u32 v1, v1, v11
                    s_mul_i32 s44, s35, 192
                    v_add_u32 v1, s44, v1
                    v_lshrrev_b32 v11, 4, v{vL}
                    v_lshlrev_b32 v11, 14, v11
                    v_and_b32 v12, 15, v{vL}
                    v_lshlrev_b32 v12, 1, v12
                    v_add_u32 v11, v11, v12
                    s_mul_i32 s44, s35, {96*4096}
                    s_lshl_b32 s45, s56, 5
                    s_add_u32 s44, s44, s45
                    """)
                    for jd in range(6):
                        A(f"buffer_load_dwordx2 {vr(52+2*jd,2)}, v1, s[12:15], 0 offen offset:{jd*32}")
                    for jd in range(6):
                        for r in range(4):
                            A(f"s_add_u32 s45, s44, {(16*jd + r)*4096}")
                            A(f"buffer_load_ushort v{120+4*jd+r}, v11, s[16:19], s45 offen")
                    A.label(skip)
    A(f"s_add_u32 s37, s37, 1\ns_cmp_lt_u32 s37, 3\ns_cbranch_scc1 {name}_loop")
    ST.stamp()
    A("s_waitcnt vmcnt(0)")
    A("s_nop 7")
    NL2E = -math.log2(math.e)
    A(f"v_mov_b32 v76, {hex(f2u(NL2E))}\nv_mov_b32 v77, {hex(f2u(NL2E))}\nv_mov_b32 v78, 1.0\nv_mov_b32 v79, 1.0")
    for jd in range(6):
        c = ACC + jd*4
        t = 80 + (jd % 2) * 8
        A(f"v_pk_mul_f32 {vr(t,2)}, {vr(c,2)}, v[76:77]")
        A(f"v_pk_mul_f32 {vr(t+2,2)}, {vr(c+2,2)}, v[76:77]")
        for r in range(4): A(f"v_exp_f32 v{t+r}, v{t+r}")
        A(f"v_pk_add_f32 {vr(t,2)}, {vr(t,2)}, v[78:79]")
        A(f"v_pk_add_f32 {vr(t+2,2)}, {vr(t+2,2)}, v[78:79]")
        for r in range(4): A(f"v_rcp_f32 v{t+r}, v{t+r}")
        for r in range(4): A(f"v_lshlrev_b32 v{t+4+r}, 16, v{120+4*jd+r}")
        A(f"v_pk_mul_f32 {vr(c,2)}, {vr(c,2)}, {vr(t,2)}")
        A(f"v_pk_mul_f32 {vr(c+2,2)}, {vr(c+2,2)}, {vr(t+2,2)}")
        A(f"v_lshlrev_b32 v{t}, 16, v{52+2*jd}\nv_and_b32 v{t+1}, 0xffff0000, v{52+2*jd}")
        A(f"v_lshlrev_b32 v{t+2}, 16, v{53+2*jd}\nv_and_b32 v{t+3}, 0xffff0000, v{53+2*jd}")
        A(f"v_pk_fma_f32 {vr(c,2)}, {vr(c,2)}, {vr(t+4,2)}, {vr(t,2)}")
        A(f"v_pk_fma_f32 {vr(c+2,2)}, {vr(c+2,2)}, {vr(t+6,2)}, {vr(t+2,2)}")
        o = 96 + (jd // 2) * 4 + (jd % 2) * 2
        A(f"v_cvt_pk_bf16_f32 v{o}, v{c}, v{c+1}")
        A(f"v_cvt_pk_bf16_f32 v{o+1}, v{c+2}, v{c+3}")
    A(f"""
    v_and_b32 v1, 15, v{vL}
    s_lshl_b32 s44, s56, 4
    v_add_u32 v1, s44, v1
    v_mul_u32_u24 v1, 1152, v1
    v_bfe_u32 v11, v{vL}, 4, 1
    v_lshlrev_b32 v11, 5, v11
    v_add_u32 v1, v1, v11
    v_lshrrev_b32 v11, 5, v{vL}
    v_lshlrev_b32 v11, 4, v11
    v_add_u32 v1, v1, v11
    s_mul_i32 s44, s35, 192
    v_add_u32 v1, s44, v1
    """)
    for p in range(3):
        o = 96 + p*4
        A(f"v_permlane16_swap_b32 v{o}, v{o+2}")
        A(f"v_permlane16_swap_b32 v{o+1}, v{o+3}")
    A("s_nop 0")
    for p in range(3):
        A(f"buffer_store_dwordx4 {vr(96+p*4,4)}, v1, s[20:23], 0 offen offset:{p*64}")
    ST.stamp()
    if stamps:
        srd_off(A, 24, 32, 33, WS_STAMP + 0x100000, 0x100000)
        A("s_lshl_b32 s44, s2, 2\ns_add_u32 s44, s44, s36\ns_lshl_b32 s44, s44, 8\nv_lshlrev_b32 v1, 2, v15\nv_add_u32 v1, s44, v1")
        A("buffer_store_dword v119, v1, s[24:27], 0 offen")
    ST.finish(vbase=100)
    A.label(f"{name}_end")
    A("s_endpgm")
    return A.text(), kernel_desc(name, 144, 168), R * SLOT
```

```python
from asmlib import *
from g1 import f2u
from l0 import bf16_round
import math
LOG2E = math.log2(math.e)
KR_PITCH = 10752; KR1 = 5376

def csq_ops(e, t):
    return [f"v_pk_mul_f32 {vr(t,2)}, {vr(e,2)}, {vr(e,2)} op_sel:[1,1] op_sel_hi:[0,1]",
            f"v_pk_fma_f32 {vr(e,2)}, {vr(e,2)}, {vr(e,2)}, {vr(t,2)} op_sel:[0,0,0] op_sel_hi:[0,1,1] neg_lo:[0,0,1]"]
def cmul_ops(x, c, g, t):
    return [f"v_pk_mul_f32 {vr(t,2)}, {vr(c,2)}, {vr(g,2)} op_sel:[1,1] op_sel_hi:[1,0]",
            f"v_pk_fma_f32 {vr(x,2)}, {vr(c,2)}, {vr(g,2)}, {vr(t,2)} op_sel:[0,0,0] op_sel_hi:[0,1,1] neg_lo:[0,0,1]"]

def gen_kgen(A, name, chs="s47"):
    srd(A, 4, 56, 57, 576*256); srd(A, 8, 58, 59, 576*256); srd(A, 12, 60, 61, 576*256); srd(A, 16, 62, 63, 576*256)
    srd(A, 20, 64, 65, 1152)
    srd_off(A, 24, 32, 33, WS_K, 576 * KR_PITCH)
    PB = 16; F = 48; E = 64; C = 72; X = 80; T = 88; Bq = 96; Aq = 112
    vLo = 2; vDt = 3; vOff = 4
    CH = 13312
    LR = 8192
    A(f"s_mul_i32 s39, s38, {CH}")
    A(f"""
    s_lshl_b32 s44, {chs}, 1
    v_mov_b32 v1, s44
    buffer_load_ushort v{vDt}, v1, s[20:23], 0 offen
    v_lshrrev_b32 v{vOff}, 4, v15
    v_lshlrev_b32 v{vOff}, 3, v{vOff}
    s_lshl_b32 s44, {chs}, 8
    s_lshl_b32 s45, s37, 7
    s_add_u32 s44, s44, s45
    v_add_u32 v{vOff}, s44, v{vOff}
    v_and_b32 v1, 15, v15
    v_cvt_f32_u32 v{vLo}, v1
    """)
    for ks in range(4):
        for a in range(4):
            A(f"buffer_load_dwordx2 {vr(PB+8*ks+2*a,2)}, v{vOff}, s[{4+4*a}:{7+4*a}], 0 offen offset:{32*ks}")
    for r in range(16): A(f"v_mov_b32 v{F+r}, 0")
    A(f"v_lshlrev_b32 v1, 3, v15\nv_add_u32 v1, s39, v1\nv_mov_b32 v8, 0\nv_mov_b32 v9, 0\nds_write_b64 v1, v[8:9] offset:{LR+4352}")
    A("s_waitcnt vmcnt(0)")
    A(f"v_lshlrev_b32 v{vDt}, 16, v{vDt}")
    A(f"v_mul_f32 v{vDt}, {hex(f2u(LOG2E))}, v{vDt}")
    A(f"v_exp_f32 v{vDt}, v{vDt}\ns_nop 0")
    bf16_round(A, vDt)
    A(f"v_add_f32 v5, v{vDt}, v{vDt}")
    A(f"v_mul_f32 v6, {hex(f2u(-LOG2E))}, v{vDt}")
    A(f"v_mul_f32 v7, {hex(f2u(1/(2*math.pi)))}, v{vDt}")
    for ksi in range(4):
        p = PB + 8*ksi
        for c in range(4):
            for dst, a in ((X+2*c, 0), (X+2*c+1, 1), (C+2*c, 2), (C+2*c+1, 3)):
                s = p + 2*a + c//2
                if c % 2 == 0: A(f"v_lshlrev_b32 v{dst}, 16, v{s}")
                else: A(f"v_and_b32 v{dst}, 0xffff0000, v{s}")
        def each(fmt):
            for c in range(4): A(fmt(c))
        each(lambda c: f"v_mul_f32 v{X+2*c}, {hex(f2u(LOG2E))}, v{X+2*c}")
        each(lambda c: f"v_exp_f32 v{X+2*c}, v{X+2*c}")
        each(lambda c: f"v_mul_f32 v{X+2*c+1}, v{X+2*c+1}, v7")
        each(lambda c: f"v_cvt_pk_bf16_f32 v{X+2*c}, v{X+2*c}, v{X+2*c}")
        each(lambda c: f"v_and_b32 v{X+2*c}, 0xffff0000, v{X+2*c}")
        each(lambda c: f"v_mul_f32 v{C+2*c}, v{C+2*c}, v5")
        each(lambda c: f"v_mul_f32 v{C+2*c+1}, v{C+2*c+1}, v5")
        each(lambda c: f"v_mul_f32 v{X+2*c}, v{X+2*c}, v6")
        each(lambda c: f"v_mul_f32 v{X+2*c}, v{X+2*c}, v{vLo}")
        each(lambda c: f"v_mul_f32 v{X+2*c+1}, v{X+2*c+1}, v{vLo}")
        each(lambda c: f"v_exp_f32 v{X+2*c}, v{X+2*c}")
        each(lambda c: f"v_fract_f32 v{X+2*c+1}, v{X+2*c+1}")
        each(lambda c: f"v_cos_f32 v{E+2*c}, v{X+2*c+1}")
        each(lambda c: f"v_sin_f32 v{E+2*c+1}, v{X+2*c+1}")
        each(lambda c: f"v_mul_f32 v{E+2*c}, v{E+2*c}, v{X+2*c}")
        each(lambda c: f"v_mul_f32 v{E+2*c+1}, v{E+2*c+1}, v{X+2*c}")
        def emit2(opsl):
            for k in range(2):
                for c in range(4): A(opsl[c][k])
        def square_all(): emit2([csq_ops(E+2*c, T+2*c) for c in range(4)])
        for i in range(4):
            each(lambda c: f"v_cvt_pk_bf16_f32 v{Bq+4*i+c}, v{E+2*c}, -v{E+2*c+1}")
            square_all()
        for i in range(4):
            if i == 3:
                for c in range(4):
                    A(f"v_mov_b32_dpp v{X+2*c}, v{E+2*c} row_newbcast:1 row_mask:0xf bank_mask:0xf")
                    A(f"v_mov_b32_dpp v{X+2*c+1}, v{E+2*c+1} row_newbcast:1 row_mask:0xf bank_mask:0xf")
                emit2([cmul_ops(C+2*c, C+2*c, X+2*c, T+2*c) for c in range(4)])
            emit2([cmul_ops(X+2*c, C+2*c, E+2*c, T+2*c) for c in range(4)])
            aq = Aq + 4*(i % 2)
            each(lambda c: f"v_cvt_pk_bf16_f32 v{aq+c}, v{X+2*c}, v{X+2*c+1}")
            if i < 3: square_all()
            else: A("s_nop 1")
            A(f"v_mfma_f32_16x16x32_bf16 {vr(F+4*i,4)}, {vr(aq,4)}, {vr(Bq+4*i,4)}, {vr(F+4*i,4)}")
    A("s_nop 7")
    A(f"v_lshlrev_b32 v1, 4, v15\ns_lshl_b32 s44, s37, 12\ns_add_u32 s44, s44, s39\nv_add_u32 v8, s44, v1")
    for i in range(4): A(f"ds_write_b128 v8, {vr(F+4*i,4)} offset:{i*1024}")
    A("s_waitcnt lgkmcnt(0)\ns_barrier")
    A(f"s_xor_b32 s44, s37, 1\ns_lshl_b32 s44, s44, 12\ns_add_u32 s44, s44, s39\nv_add_u32 v8, s44, v1")
    for i in range(4): A(f"ds_read_b128 {vr(96+4*i,4)}, v8 offset:{i*1024}")
    A(f"""
    v_lshrrev_b32 v1, 4, v15
    v_lshlrev_b32 v1, 6, v1
    v_and_b32 v8, 15, v15
    v_add_u32 v1, v1, v8
    s_waitcnt lgkmcnt(0)
    """)
    for i in range(8): A(f"v_pk_add_f32 {vr(F+2*i,2)}, {vr(F+2*i,2)}, {vr(96+2*i,2)}")
    for r in range(16): A(f"v_cvt_pk_bf16_f32 v{F+r}, v{F+r}, v{F+r}")
    done = A.newlabel(name + "_kd")
    lab1 = A.newlabel(name + "_ks")
    A(f"s_cmp_eq_u32 s37, 1\ns_cbranch_scc1 {lab1}")
    def seg(i):
        h = 1 << i
        A(f"v_lshlrev_b32 v8, {i+1}, v1")
        A(f"v_sub_u32 v8, {LR + (128+2048)*2}, v8")
        A("v_add_u32 v8, s39, v8")
        for r in range(4):
            dq = (16*r + (16 if i == 3 else 0)) << (i+1)
            A(f"v_subrev_u32 v9, {dq + h}, v8")
            if i == 0: rowmask = 0xffffffffffffffff
            elif i == 3 and r == 3: rowmask = 0xffffffffffff0000
            else: rowmask = 0xffffffff00000000
            for o in range(-(h//2), h//2 + 1):
                m = rowmask
                if i > 0 and abs(o) == h//2: m &= 0x5555555555555555
                if i > 0 and 4*o > h:
                    if i < 3 and r == 0: m &= ~(1 << 32)
                    if i == 3 and r == 3: m &= ~(1 << 16)
                A(f"s_mov_b32 exec_lo, {hex(m & 0xffffffff)}\ns_mov_b32 exec_hi, {hex(m >> 32)}")
                A(f"ds_write_b16 v9, v{F+4*i+r} offset:{h + 2*o}")
            A("s_mov_b64 exec, -1")
    seg(3); seg(0)
    A(f"s_branch {done}")
    A.label(lab1)
    seg(2); seg(1)
    A.label(done)
    A("s_waitcnt lgkmcnt(0)\ns_barrier")
    A(f"""
    v_lshlrev_b32 v1, 4, v15
    s_lshl_b32 s44, s37, 11
    v_add_u32 v1, s44, v1
    v_add_u32 v2, s39, v1
    s_mul_i32 s45, {chs}, {KR_PITCH}
    """)
    def rb(b, off):
        A(f"ds_read_b128 {vr(b,4)}, v2 offset:{LR + 256 + off}")
        A(f"ds_read_b32 v{b+4}, v2 offset:{LR + 256 + off + 16}")
    def st(b, off):
        for k in range(4): A(f"v_alignbit_b32 v{b+6+k}, v{b+k+1}, v{b+k}, 16")
        A(f"s_add_u32 s46, s45, {off}")
        A(f"buffer_store_dwordx4 {vr(b,4)}, v1, s[24:27], s46 offen")
        A(f"s_add_u32 s46, s46, {KR1}")
        A(f"buffer_store_dwordx4 {vr(b+6,4)}, v1, s[24:27], s46 offen")
    rb(16, 0); rb(28, 1024)
    A("s_waitcnt lgkmcnt(0)")
    st(16, 0); st(28, 1024)
    lab = A.newlabel(name + "_k5")
    A(f"s_cmp_eq_u32 s37, 0\ns_cbranch_scc0 {lab}")
    A("s_mov_b32 exec_lo, 0x1ffff\ns_mov_b32 exec_hi, 0")
    rb(40, 4096)
    A("s_waitcnt lgkmcnt(0)")
    st(40, 4096)
    A("s_mov_b64 exec, -1")
    A.label(lab)
```

```python
from asmlib import *

def bf16_round(A, v, tmp=None):
    A(f"v_cvt_pk_bf16_f32 v{v}, v{v}, v{v}")
    A(f"v_and_b32 v{v}, 0xffff0000, v{v}")

def dpp_sum16(A, v):
    for n in (8, 4, 2, 1):
        A("s_nop 1")
        A(f"v_add_f32_dpp v{v}, v{v}, v{v} row_ror:{n} row_mask:0xf bank_mask:0xf")

def gen_ln(A, name, stamp=lambda: None):
    PITCH = 1168
    stamp()
    srd(A, 4, 28, 29, 2048 * 1152)
    srd_off(A, 8, 32, 33, WS_XN, 128 * 18 * 1024)
    srd_off(A, 12, 32, 33, WS_XNT, 576 * 4096)
    A(f"""
    s_lshl_b32 s44, s66, 4
    s_lshl_b32 s45, s36, 2
    s_add_u32 s44, s44, s45
    v_lshrrev_b32 v1, 4, v15
    v_add_u32 v2, s44, v1
    v_mul_u32_u24 v2, 1152, v2
    v_and_b32 v3, 15, v15
    v_lshlrev_b32 v4, 4, v3
    v_add_u32 v2, v2, v4
    """)
    for j in range(4):
        A(f"buffer_load_dwordx4 {vr(16+4*j,4)}, v2, s[4:7], 0 offen offset:{j*256}")
    A("s_mov_b32 s50, 0x00ff00ff\ns_mov_b32 s51, 0x00ff00ff")
    A("v_mov_b32 v32, 0\nv_mov_b32 v33, 0\nv_mov_b32 v34, 0\nv_mov_b32 v35, 0")
    A("s_mov_b64 exec, s[50:51]")
    A(f"buffer_load_dwordx4 v[32:35], v2, s[4:7], 0 offen offset:1024")
    A("s_mov_b64 exec, -1")
    A(f"""
    v_add_u32 v5, s45, v1
    v_mul_u32_u24 v5, {PITCH}, v5
    v_add_u32 v5, v5, v4
    s_waitcnt vmcnt(0)
    """)
    stamp()
    for q in range(20):
        A(f"v_lshlrev_b32 v{40+2*q}, 16, v{16+q}")
        A(f"v_and_b32 v{41+2*q}, 0xffff0000, v{16+q}")
    A("v_add_f32 v6, v40, v41")
    for q in range(2, 40): A(f"v_add_f32 v6, v6, v{40+q}")
    dpp_sum16(A, 6)
    A("v_mul_f32 v6, 0x3ae38e39, v6")
    A("v_mov_b32 v7, 0")
    for q in range(32):
        A(f"v_sub_f32 v8, v{40+q}, v6")
        A(f"v_fmac_f32 v7, v8, v8")
    A("s_mov_b64 exec, s[50:51]")
    for q in range(32, 40):
        A(f"v_sub_f32 v8, v{40+q}, v6")
        A(f"v_fmac_f32 v7, v8, v8")
    A("s_mov_b64 exec, -1")
    dpp_sum16(A, 7)
    A("v_mul_f32 v7, 0x3ae38e39, v7")
    bf16_round(A, 7)
    A("v_add_f32 v7, 0x3727c5ac, v7")
    bf16_round(A, 7)
    A("v_sqrt_f32 v7, v7")
    A("s_nop 0")
    bf16_round(A, 7)
    A("v_rcp_f32 v7, v7")
    bf16_round(A, 6)
    for q in range(20):
        a, b = 40+2*q, 41+2*q
        A(f"v_sub_f32 v{a}, v{a}, v6")
        A(f"v_sub_f32 v{b}, v{b}, v6")
        A(f"v_cvt_pk_bf16_f32 v8, v{a}, v{b}")
        A(f"v_lshlrev_b32 v{a}, 16, v8")
        A(f"v_and_b32 v{b}, 0xffff0000, v8")
        A(f"v_mul_f32 v{a}, v{a}, v7")
        A(f"v_mul_f32 v{b}, v{b}, v7")
        A(f"v_cvt_pk_bf16_f32 v{16+q}, v{a}, v{b}")
    for j in range(4):
        A(f"ds_write_b128 v5, {vr(16+4*j,4)} offset:{j*256}")
    A("s_mov_b64 exec, s[50:51]")
    A(f"ds_write_b128 v5, v[32:35] offset:1024")
    A("s_mov_b64 exec, -1")
    A("s_waitcnt lgkmcnt(0)\ns_barrier")
    stamp()
    A(f"""
    v_and_b32 v1, 15, v15
    v_mul_u32_u24 v1, {PITCH}, v1
    v_lshrrev_b32 v2, 4, v15
    v_lshlrev_b32 v2, 4, v2
    v_add_u32 v1, v1, v2
    s_lshl_b32 s45, s36, 6
    v_add_u32 v1, s45, v1
    v_lshlrev_b32 v3, 4, v15              ; lane*16
    s_mul_i32 s44, s66, 18
    s_add_u32 s44, s44, s36
    s_lshl_b32 s44, s44, 10               ; (stile*18 + w)*1024
    """)
    for j in range(4):
        A(f"ds_read_b128 {vr(16+4*j,4)}, v1 offset:{j*256}")
    lab = A.newlabel(name + "_ln")
    A(f"s_cmp_lt_u32 s36, 2\ns_cbranch_scc0 {lab}")
    A(f"ds_read_b128 v[32:35], v1 offset:1024")
    A("s_waitcnt lgkmcnt(0)")
    A("s_add_u32 s45, s44, 16384")
    A(f"buffer_store_dwordx4 v[32:35], v3, s[8:11], s45 offen")
    A.label(lab)
    A("s_waitcnt lgkmcnt(0)")
    for j in range(4):
        A(f"s_add_u32 s45, s44, {j*4096}")
        A(f"buffer_store_dwordx4 {vr(16+4*j,4)}, v3, s[8:11], s45 offen")
    A(f"""
    v_lshrrev_b32 v1, 2, v15              ; 4g + r = (l>>2) (since g=l>>4, r=(l>>2)&3)
    v_mul_u32_u24 v1, {PITCH}, v1
    v_and_b32 v2, 3, v15
    v_lshlrev_b32 v2, 3, v2
    v_add_u32 v1, v1, v2
    s_mul_i32 s45, s36, 288
    v_add_u32 v1, s45, v1                 ; + w*9*32 bytes
    v_and_b32 v2, 15, v15
    v_lshlrev_b32 v2, 12, v2              ; channel*4096
    v_lshrrev_b32 v3, 4, v15
    v_lshlrev_b32 v3, 3, v3               ; g*8
    v_add_u32 v2, v2, v3
    s_lshl_b32 s44, s66, 5                 ; t0*2
    s_mul_i32 s45, s36, {9*16*4096}
    s_add_u32 s44, s44, s45
    """)
    for j in range(9):
        A(f"ds_read_b64_tr_b16 {vr(40+2*j,2)}, v1 offset:{j*32}")
    A("s_waitcnt lgkmcnt(0)")
    for j in range(9):
        A(f"s_add_u32 s45, s44, {j*16*4096}")
        A(f"buffer_store_dwordx2 {vr(40+2*j,2)}, v2, s[12:15], s45 offen")

    srd_off(A, 16, 32, 33, WS_STAT, 16 * 16 * 1024)
    lab = A.newlabel(name + "_rs")
    A(f"s_cmp_eq_u32 s36, 0\ns_cbranch_scc0 {lab}")
    A(f"""
    v_lshrrev_b32 v1, 2, v15
    v_lshlrev_b32 v1, 10, v1
    v_and_b32 v2, 3, v15
    v_lshlrev_b32 v2, 5, v2
    v_add_u32 v1, v1, v2
    s_lshr_b32 s44, s66, 3
    s_lshl_b32 s44, s44, 14
    s_and_b32 s45, s66, 7
    s_lshl_b32 s45, s45, 7
    s_add_u32 s44, s44, s45
    v_mov_b32 v16, -1
    v_mov_b32 v17, -1
    v_mov_b32 v18, -1
    v_mov_b32 v19, -1
    buffer_store_dwordx4 v[16:19], v1, s[16:19], s44 offen
    buffer_store_dwordx4 v[16:19], v1, s[16:19], s44 offen offset:16
    """)
    A.label(lab)
    srd_off(A, 16, 32, 33, WS_FLAG, 4 * 16 * 64 * 128)
    lab2 = A.newlabel(name + "_fz")
    A(f"s_cmp_eq_u32 s36, 1\ns_cbranch_scc0 {lab2}")
    A("s_lshl_b32 s44, s66, 12\nv_lshlrev_b32 v1, 7, v15\nv_mov_b32 v16, 0\ns_mov_b32 exec_hi, 0")
    A("buffer_store_dword v16, v1, s[16:19], s44 offen")
    A("s_mov_b64 exec, -1")
    A.label(lab2)

def gen_wsp(A, name):
    srd(A, 4, 30, 31, 2048 * 4096)
    srd_off(A, 8, 32, 33, WS_WSP, 2048 * 4096)
    A(f"""
    v_lshrrev_b32 v1, 2, v15
    s_lshr_b32 s48, s47, 1
    s_lshl_b32 s44, s48, 4
    v_add_u32 v1, s44, v1
    v_lshlrev_b32 v1, 12, v1
    v_and_b32 v2, 3, v15
    v_lshlrev_b32 v2, 4, v2
    v_add_u32 v1, v1, v2
    s_and_b32 s49, s47, 1
    s_lshl_b32 s49, s49, 2
    s_add_u32 s49, s49, s36
    s_lshl_b32 s45, s49, 9
    s_lshl_b32 s46, s36, 13
    """)
    for j in range(8):
        A(f"s_add_u32 s50, s45, {j*64}\ns_add_u32 m0, s46, {j*1024}\ns_nop 0\nbuffer_load_dwordx4 v1, s[4:7], s50 offen lds")
    A(f"""
    v_and_b32 v2, 15, v15
    v_lshlrev_b32 v2, 2, v2
    v_lshrrev_b32 v3, 4, v15
    v_add_u32 v2, v2, v3
    v_lshlrev_b32 v2, 4, v2
    v_add_u32 v2, s46, v2
    v_lshlrev_b32 v3, 4, v15
    s_lshl_b32 s44, s48, 16
    s_lshl_b32 s45, s49, 13
    s_add_u32 s44, s44, s45
    s_add_u32 s45, s44, 4096
    s_waitcnt vmcnt(0)
    """)
    for j in range(8):
        A(f"ds_read_b128 {vr(16+4*j,4)}, v2 offset:{j*1024}")
    for j in range(8):
        A(f"s_waitcnt lgkmcnt({7-j})")
        A(f"buffer_store_dwordx4 {vr(16+4*j,4)}, v3, s[8:11], {'s44' if j < 4 else 's45'} offen offset:{(j%4)*1024}")

def gen_wtile(A, name, which):
    pitch = 9216 if which == 'in' else 1152
    srd(A, 4, 30, 31, 576 * 9216 if which == 'in' else 2304 * 1152)
    srd_off(A, 8, 32, 33, WS_WIT if which == 'in' else WS_WOT, 576 * 9216 if which == 'in' else 2304 * 1152)
    if which == 'in':
        A(f"s_lshr_b32 s48, s47, 3\ns_and_b32 s49, s47, 7\ns_mul_i32 s44, s48, {32*pitch}\ns_mul_i32 s45, s49, 1152\ns_add_u32 s44, s44, s45")
    else:
        A(f"s_mov_b32 s48, s47\ns_mul_i32 s44, s48, {32*pitch}")
    A(f"s_mul_i32 s45, s36, {8*pitch}\ns_add_u32 s44, s44, s45\ns_mul_i32 s46, s36, 9216")
    for j in range(9):
        A(f"""
        v_add_u32 v1, {64*j}, v15
        v_mul_u32_u24 v2, 911, v1
        v_lshrrev_b32 v2, 16, v2
        v_mul_u32_u24 v3, 72, v2
        v_sub_u32 v3, v1, v3
        v_mul_u32_u24 v2, {pitch}, v2
        v_lshl_add_u32 v{16+j}, v3, 4, v2
        """)
    for j in range(9):
        A(f"s_add_u32 m0, s46, {j*1024}\ns_nop 0\nbuffer_load_dwordx4 v{16+j}, s[4:7], s44 offen lds")
    def lane_addr(natural):
        if natural:
            A("v_lshrrev_b32 v1, 4, v15\nv_lshlrev_b32 v1, 3, v1\nv_bfe_u32 v2, v15, 2, 2\nv_add_u32 v1, v1, v2")
        else:
            A("v_lshrrev_b32 v1, 2, v15")
        A(f"""
        v_mul_u32_u24 v1, 1152, v1
        v_and_b32 v2, 3, v15
        v_lshlrev_b32 v2, 3, v2
        v_add_u32 v1, v1, v2
        s_mul_i32 s45, s36, 288
        v_add_u32 v1, s45, v1
        """)
    def reads(hfo):
        for j in range(9):
            for hf in range(2):
                A(f"ds_read_b64_tr_b16 {vr(32+4*j+2*hf,2)}, v1 offset:{j*32 + hf*hfo}")
    A("v_lshlrev_b32 v3, 4, v15\ns_waitcnt vmcnt(0)\ns_barrier")
    if which == 'in':
        lane_addr(True); reads(4*1152)
    else:
        nat = A.newlabel(name + "_nat"); dn = A.newlabel(name + "_nd")
        A(f"s_mul_i32 s50, s48, 57\ns_lshr_b32 s50, s50, 9\ns_mul_i32 s50, s50, 9\ns_sub_u32 s50, s48, s50\ns_cmp_eq_u32 s50, 4\ns_cbranch_scc1 {nat}")
        lane_addr(False); reads(16*1152)
        A(f"s_branch {dn}")
        A.label(nat)
        lane_addr(True); reads(4*1152)
        A.label(dn)
    if which == 'in':
        A("s_lshl_b32 s44, s49, 2\ns_add_u32 s44, s44, s36\ns_mul_i32 s44, s44, 18\ns_add_u32 s44, s44, s48\ns_mul_i32 s44, s44, 9216")
    A("s_waitcnt lgkmcnt(0)")
    for j in range(9):
        if which == 'in':
            A(f"s_add_u32 s45, s44, {j*1024}")
        else:
            A(f"s_mul_i32 s45, s36, 9\ns_add_u32 s45, s45, {j}\ns_mul_i32 s50, s45, 43\ns_lshr_b32 s50, s50, 8\ns_mul_i32 s51, s50, 6\ns_sub_u32 s45, s45, s51")
            A("s_mul_i32 s50, s50, 72\ns_add_u32 s50, s50, s48\ns_mul_i32 s50, s50, 6\ns_add_u32 s45, s45, s50\ns_lshl_b32 s45, s45, 10")
        A(f"buffer_store_dwordx4 {vr(32+4*j,4)}, v3, s[8:11], s45 offen")

def gen_l0(name, kgen=None, stamps=False):
    A = Asm()
    def mk():
        st = Stamper(A, 0, stamps); st.n = 1; return st
    nwg = 552
    A(f"""
    s_cmp_ge_u32 s2, {nwg}
    s_cbranch_scc1 {name}_end
    s_load_dwordx4 s[28:31], s[0:1], 0
    s_load_dwordx8 s[56:63], s[0:1], 8
    s_load_dwordx2 s[64:65], s[0:1], 40
    s_load_dwordx4 s[88:91], s[0:1], 64
    s_load_dwordx2 s[92:93], s[0:1], 88
    s_load_dwordx2 s[32:33], s[0:1], 112
    """)
    if stamps: A("s_memrealtime s[96:97]\ns_memtime s[70:71]")
    A(f"""
    v_lshrrev_b32 v1, 6, v0
    v_and_b32 v15, 63, v0
    s_nop 0
    v_readfirstlane_b32 s36, v1
    s_waitcnt lgkmcnt(0)
    s_cmp_ge_u32 s2, 128
    s_cbranch_scc1 {name}_r1
    """)
    A("s_and_b32 s44, s2, 7\ns_lshl_b32 s44, s44, 4\ns_lshr_b32 s45, s2, 3\ns_add_u32 s66, s44, s45")
    st = mk()
    gen_ln(A, name, st.stamp)
    st.stamp()
    st.finish(vbase=100)
    A("s_endpgm")
    A.label(f"{name}_r1")
    A(f"s_cmp_ge_u32 s2, 416\ns_cbranch_scc1 {name}_r2")
    A("s_sub_u32 s47, s2, 128\ns_lshl_b32 s47, s47, 1\ns_lshr_b32 s38, s36, 1\ns_and_b32 s37, s36, 1\ns_add_u32 s47, s47, s38")
    kgen(A, name)
    mk().finish(vbase=100)
    A("s_endpgm")
    A.label(f"{name}_r2")
    A(f"s_cmp_ge_u32 s2, 488\ns_cbranch_scc1 {name}_r3")
    A("s_sub_u32 s47, s2, 416\ns_mov_b32 s30, s92\ns_mov_b32 s31, s93")
    gen_wtile(A, name, 'out')
    mk().finish(vbase=100)
    A("s_endpgm")
    A.label(f"{name}_r3")
    srd(A, 4, 88, 89, 576*9216)
    A("s_sub_u32 s44, s2, 488\ns_lshl_b32 s44, s44, 2\ns_add_u32 s44, s44, s36\ns_mul_i32 s44, s44, 20736\nv_lshlrev_b32 v1, 4, v15")
    for j in range(21):
        A(f"s_add_u32 s46, s44, {j*1024}\nbuffer_load_dwordx4 v[16:19], v1, s[4:7], s46 offen")
    A("s_waitcnt vmcnt(0)")
    mk().finish(vbase=100)
    A.label(f"{name}_end")
    A("s_endpgm")
    return A.text(), kernel_desc(name, 120, 0), nwg
```

```python
from asmlib import *
from core import Core
from g1 import f2u
from kgen import KR_PITCH, KR1
import math
KBUF = 41216; UBUF = 8192
NCONV = 288
PRIO = False
NOCONV = False
CNT_BASE = 0

def gen_conv2(A, name, stamp):
    LK = 0; LU = [KBUF, KBUF + UBUF]; LS = 0
    if NOCONV:
        srd(A, 20, 54, 55, 256)
        lab = A.newlabel(name + "_sg")
        A(f"s_cmp_eq_u32 s36, 0\ns_cbranch_scc0 {lab}")
        A("s_mul_i32 s44, s47, 1366\ns_lshr_b32 s44, s44, 16\ns_lshl_b32 s44, s44, 2\nv_mov_b32 v1, s44\nv_mov_b32 v2, 1\ns_mov_b64 exec, 1")
        A("buffer_atomic_add v2, v1, s[20:23], 0 offen sc1")
        A("s_mov_b64 exec, -1")
        A.label(lab)
        stamp(); stamp()
        return
    srd_off(A, 4, 32, 33, WS_K, 576 * KR_PITCH)
    srd_off(A, 8, 32, 33, WS_XNT, 576 * 4096)
    srd_off(A, 12, 32, 33, WS_S, 288 * 8192)
    srd(A, 16, 30, 31, 1152)
    srd(A, 20, 54, 55, 256)
    vKd = 2; vUd = [3, 4]; vA = 5; vB = 6; vA0 = 7; vB0 = 8; vBz = 9
    A(f"v_lshlrev_b32 v{vKd}, 4, v15")
    A("s_lshl_b32 s50, s47, 1")
    def kdma(chs):
        A(f"s_mul_i32 s44, {chs}, {KR_PITCH}")
        A("s_lshl_b32 s45, s36, 2\ns_add_u32 s44, s44, s45")
        for cc in range(2):
            A(f"s_lshl_b32 s45, s36, 1\ns_add_u32 s45, s45, {cc}")
            A("s_mul_i32 s46, s45, 320")
            A(f"s_lshl_b32 s48, s36, 2\ns_add_u32 s48, s48, {cc}\ns_cmp_ge_u32 s45, 5\ns_subb_u32 s48, s48, 0")
            A(f"s_add_u32 s46, s46, s48\ns_lshl_b32 s46, s46, 4")
            A(f"s_add_u32 s48, s44, {cc*KR1}")
            for it in range(5):
                A(f"s_add_u32 m0, s46, {LK + it*1024}\ns_add_u32 s49, s48, {it*1024}")
                A(f"buffer_load_dwordx4 v{vKd}, s[4:7], s49 offen lds")
    kdma("s50")
    for j in range(2):
        A(f"""
        s_lshl_b32 s44, s36, 7
        s_add_u32 s44, s44, {64*j}
        v_add_u32 v16, s44, v15
        v_mul_u32_u24 v17, 6554, v16
        v_lshrrev_b32 v17, 16, v17
        v_mul_u32_u24 v18, 10, v17
        v_sub_u32 v18, v16, v18
        v_subrev_u32 v17, 15, v17
        v_lshlrev_b32 v19, 7, v17
        v_lshl_add_u32 v19, v18, 4, v19
        v_cmp_gt_u32 vcc, 32, v17
        v_cmp_gt_u32 s[52:53], 8, v18
        s_and_b64 vcc, vcc, s[52:53]
        v_mov_b32 v20, 0x80000000
        s_nop 1
        v_cndmask_b32 v{vUd[j]}, v20, v19, vcc
        """)
    for ch in range(2):
        A(f"s_add_u32 s44, s50, {ch}\ns_lshl_b32 s44, s44, 12")
        for j in range(2):
            A(f"s_lshl_b32 s45, s36, 11\ns_add_u32 m0, s45, {LU[ch] + j*1024}\ns_nop 0")
            A(f"buffer_load_dwordx4 v{vUd[j]}, s[8:11], s44 offen lds")
    A("s_lshl_b32 s44, s50, 1\nv_mov_b32 v1, s44\nbuffer_load_dword v10, v1, s[16:19], 0 offen")
    A(f"""
    v_and_b32 v16, 15, v15
    v_sub_u32 v17, 0, v16
    v_and_b32 v17, 7, v17
    v_mul_u32_u24 v18, 320, v17
    v_lshrrev_b32 v19, 1, v17
    v_lshlrev_b32 v19, 2, v19
    v_and_b32 v20, 1, v17
    v_add_u32 v19, v19, v20
    v_cmp_le_u32 vcc, 5, v17
    v_add_u32 v18, v18, v19
    s_nop 0
    v_cndmask_b32 v20, 0, 1, vcc
    v_sub_u32 v18, v18, v20
    v_lshrrev_b32 v19, 4, v15
    v_add_u32 v18, v18, v19
    v_add_u32 v19, 7, v16
    v_lshrrev_b32 v19, 3, v19
    v_sub_u32 v18, v18, v19
    v_lshlrev_b32 v18, 4, v18
    v_add_u32 v{vA0}, {32 + LK}, v18
    v_mul_u32_u24 v18, 160, v16
    v_lshrrev_b32 v19, 4, v15
    v_lshlrev_b32 v19, 4, v19
    v_add_u32 v{vB0}, v18, v19
    """)
    FR = [24, 32, 40, 48]; BR = [56, 64, 72, 80]; ACC = 96; SA = 88
    def rdA(pair, t): return [f"ds_read_b128 {vr(FR[pair],4)}, v{vA} offset:{96+64*t}", f"ds_read_b128 {vr(FR[pair]+4,4)}, v{vA} offset:{64+64*t}"]
    def rdB(slot, t, tile):
        off = (t >> 1) * 160 + 64 * (t & 1)
        return f"ds_read_b128 {vr(BR[slot] + (0 if tile == 1 else 4),4)}, v{vB if tile == 1 else vBz} offset:{off}"
    def body(double, last_range_end=False):
        for t in range(4):
            A(f"s_waitcnt lgkmcnt({4 if double else 3})")
            cur = FR[t]; prev = FR[(t-1) % 4]
            fr = [cur, cur+4, prev, prev+4]
            rd = rdA((t+2) % 4, t+2) + [rdB((t+2) % 4, t+2, 1)] + ([rdB((t+2) % 4, t+2, 0)] if double else [])
            mf = []
            for i in ([1, 0] if double else [1]):
                for h in range(4):
                    c = vr(ACC + (h*2+i)*4, 4)
                    mf.append(f"v_mfma_f32_16x16x32_bf16 {c}, {vr(fr[h],4)}, {vr(BR[t] + (0 if i == 1 else 4),4)}, {c}")
            for j, m in enumerate(mf):
                A(m)
                if j < len(rd): A(rd[j])
        A(f"v_add_u32 v{vA}, 256, v{vA}\nv_add_u32 v{vB}, 320, v{vB}\nv_add_u32 v{vBz}, 320, v{vBz}")
    def set_range(n0expr, ch, double):
        A(n0expr)
        A(f"""
        s_lshl_b32 s44, s58, 6
        v_add_u32 v{vA}, s44, v{vA0}
        s_lshr_b32 s44, s58, 1
        s_mul_i32 s44, s44, 160
        s_add_u32 s44, s44, {LU[ch]}
        v_add_u32 v{vB}, s44, v{vB0}
        v_subrev_u32 v{vBz}, 2560, v{vB}
        """)
        for x in rdA(3, -1): A(x)
        for t in range(2):
            for x in rdA(t, t): A(x)
            A(rdB(t, t, 1))
            if double: A(rdB(t, t, 0))
        A("s_waitcnt lgkmcnt(0)")
    for ch in range(2):
        A("s_waitcnt vmcnt(0)\ns_barrier")
        stamp()
        for r in range(32): A(f"v_mov_b32 v{ACC+r}, 0")
        set_range("s_lshl_b32 s58, s36, 3", ch, False)
        body(False); body(False)
        A("s_waitcnt lgkmcnt(0)")
        set_range("s_lshl_b32 s58, s36, 3\ns_add_u32 s58, s58, 32", ch, True)
        body(True); body(True)
        A("s_waitcnt lgkmcnt(0)\ns_nop 7\ns_barrier")
        A(f"v_lshlrev_b32 v1, 4, v15\ns_lshl_b32 s44, s36, 13\nv_add_u32 v11, s44, v1")
        for h in range(4):
            for i in range(2):
                A(f"ds_write_b128 v11, {vr(ACC+(h*2+i)*4,4)} offset:{LS + (h*2+i)*1024}")
        A("s_waitcnt lgkmcnt(0)\ns_barrier")
        A(f"s_lshl_b32 s44, s36, 11\nv_add_u32 v11, s44, v1")
        for ww in range(4):
            for i in range(2):
                A(f"ds_read_b128 {vr(24+(ww*2+i)*4,4)}, v11 offset:{LS + ww*8192 + i*1024}")
        A(f"""
        v_and_b32 v12, 15, v15
        v_mul_u32_u24 v12, 160, v12
        v_lshrrev_b32 v13, 4, v15
        v_lshlrev_b32 v13, 3, v13
        v_add_u32 v12, v12, v13
        s_lshl_b32 s44, s36, 5
        v_add_u32 v12, s44, v12
        """)
        for i in range(2):
            A(f"ds_read_b64 {vr(56+2*i,2)}, v12 offset:{LU[ch] + (15+16*i)*160}")
        A("s_waitcnt lgkmcnt(0)")
        if ch == 0:
            A("s_barrier")
            A("s_add_u32 s51, s50, 1")
            kdma("s51")
        for i in range(2):
            for ww in range(1, 4):
                A(f"v_pk_add_f32 {vr(24+i*4,2)}, {vr(24+i*4,2)}, {vr(24+(ww*2+i)*4,2)}")
                A(f"v_pk_add_f32 {vr(24+i*4+2,2)}, {vr(24+i*4+2,2)}, {vr(24+(ww*2+i)*4+2,2)}")
        if ch == 0: A("v_lshlrev_b32 v14, 16, v10")
        else: A("v_and_b32 v14, 0xffff0000, v10")
        for i in range(2):
            y = 24 + i*4
            A(f"v_cvt_pk_bf16_f32 v60, v{y}, v{y+1}\nv_cvt_pk_bf16_f32 v61, v{y+2}, v{y+3}")
            A(f"v_lshlrev_b32 v{y}, 16, v60\nv_and_b32 v{y+1}, 0xffff0000, v60\nv_lshlrev_b32 v{y+2}, 16, v61\nv_and_b32 v{y+3}, 0xffff0000, v61")
            u = 56 + 2*i
            A(f"v_lshlrev_b32 v64, 16, v{u}\nv_and_b32 v65, 0xffff0000, v{u}\nv_lshlrev_b32 v66, 16, v{u+1}\nv_and_b32 v67, 0xffff0000, v{u+1}")
            for r in range(4): A(f"v_mul_f32 v{64+r}, v{64+r}, v14")
            A(f"v_cvt_pk_bf16_f32 v60, v64, v65\nv_cvt_pk_bf16_f32 v61, v66, v67")
            A(f"v_lshlrev_b32 v64, 16, v60\nv_and_b32 v65, 0xffff0000, v60\nv_lshlrev_b32 v66, 16, v61\nv_and_b32 v67, 0xffff0000, v61")
            for r in range(4): A(f"v_add_f32 v{y+r}, v{y+r}, v{64+r}")
            if ch == 0:
                A(f"v_cvt_pk_bf16_f32 v{SA+2*i}, v{y}, v{y+1}\nv_cvt_pk_bf16_f32 v{SA+2*i+1}, v{y+2}, v{y+3}")
            else:
                A(f"v_cvt_pk_bf16_f32 v60, v{y}, v{y+1}\nv_cvt_pk_bf16_f32 v61, v{y+2}, v{y+3}")
                o = 68 + 4*i
                A(f"s_mov_b32 s44, 0x05040100\ns_mov_b32 s45, 0x07060302")
                A(f"v_perm_b32 v{o}, v60, v{SA+2*i}, s44\nv_perm_b32 v{o+1}, v60, v{SA+2*i}, s45")
                A(f"v_perm_b32 v{o+2}, v61, v{SA+2*i+1}, s44\nv_perm_b32 v{o+3}, v61, v{SA+2*i+1}, s45")
    A(f"""
    v_and_b32 v12, 15, v15
    v_lshlrev_b32 v12, 8, v12
    v_lshrrev_b32 v13, 4, v15
    v_lshlrev_b32 v13, 4, v13
    v_add_u32 v12, v12, v13
    s_lshl_b32 s44, s47, 13
    s_lshl_b32 s45, s36, 6
    s_add_u32 s44, s44, s45
    s_add_u32 s45, s44, 4096
    """)
    A(f"buffer_store_dwordx4 v[68:71], v12, s[12:15], s44 offen sc1")
    A(f"buffer_store_dwordx4 v[72:75], v12, s[12:15], s45 offen sc1")
    A("s_waitcnt vmcnt(0)\ns_barrier")
    lab = A.newlabel(name + "_sg")
    A(f"s_cmp_eq_u32 s36, 0\ns_cbranch_scc0 {lab}")
    A("s_mul_i32 s44, s47, 1366\ns_lshr_b32 s44, s44, 16\ns_lshl_b32 s44, s44, 2\nv_mov_b32 v1, s44\nv_mov_b32 v2, 1\ns_mov_b64 exec, 1")
    A(f"buffer_atomic_add v2, v1, s[20:23], 0 offen offset:{CNT_BASE} sc1")
    A("s_mov_b64 exec, -1")
    A.label(lab)

def gen_g3b(A, name, stamp, stamps):
    R = 6
    ACC = 16; QB = [48, 72]; PR = 0
    vQd = [2, 3, 4]; vP = [5]; vL = 15; vQr = [6, 7, 8, 9, 10, 11]
    A(f"""
    s_and_b32 s44, s43, 7
    s_lshr_b32 s45, s43, 3
    s_lshl_b32 s34, s44, 2
    s_and_b32 s46, s45, 3
    s_add_u32 s34, s34, s46
    s_lshr_b32 s35, s45, 2
    v_lshlrev_b32 v1, 4, v{vL}
    s_lshl_b32 s44, s34, 2
    s_add_u32 s58, s44, s36
    s_mul_i32 s44, s58, 73728
    v_add_u32 v{vP[0]}, s44, v1
    """)
    A(f"s_mul_i32 s44, s35, {72*6*1024}\ns_add_u32 s44, s44, {WS_WOT}")
    srd_off(A, 4, 32, 33, "s44", 72*6*1024)
    srd_off(A, 8, 32, 33, WS_H, 128 * 72 * 1024)
    c = Core(A, name + "_g", 1, 6, 72, 2, R, ACC, QB, "a", PR, vP, vQd, vQr, 8, 4, "s38", "s39", "s40", "s37", 1024, orient="QP")
    c.setup_addr(1, "s36", 12)
    A("s_mov_b32 s38, 0\ns_mov_b32 s39, 0")
    c.prologue(0)
    stamp()
    srd(A, 12, 30, 31, 2048 * 1152)
    srd_off(A, 16, 32, 33, WS_S, 288 * 8192)
    srd(A, 20, 56, 57, 2048 * 1152)
    srd(A, 24, 54, 55, 256)
    def tail(A):
        A(f"""
        v_and_b32 v1, 15, v{vL}
        s_lshl_b32 s44, s58, 4
        v_add_u32 v1, s44, v1
        v_mul_u32_u24 v1, 1152, v1
        v_lshrrev_b32 v12, 4, v{vL}
        v_lshlrev_b32 v12, 3, v12
        v_add_u32 v1, v1, v12
        s_mul_i32 s44, s35, 192
        v_add_u32 v1, s44, v1
        """)
        for jd in range(6):
            A(f"buffer_load_dwordx2 {vr(52+2*jd,2)}, v1, s[12:15], 0 offen offset:{jd*32}")
    c.loop(True, tail_hook=tail)
    stamp()
    A("s_lshl_b32 s44, s35, 2\nv_mov_b32 v1, s44")
    poll = A.newlabel(name + "_poll")
    A.label(poll)
    A("buffer_load_dword v12, v1, s[24:27], 0 offen sc1\ns_waitcnt vmcnt(0)\nv_readfirstlane_b32 s45, v12")
    A(f"s_cmp_ge_u32 s45, 48\ns_cbranch_scc1 {poll}_ok\ns_sleep 8\ns_branch {poll}")
    A.label(poll + "_ok")
    stamp()
    A(f"""
    v_lshrrev_b32 v12, 4, v{vL}
    v_lshlrev_b32 v12, 14, v12
    v_and_b32 v13, 15, v{vL}
    v_lshlrev_b32 v13, 2, v13
    v_add_u32 v12, v12, v13
    s_mul_i32 s44, s35, {48*8192}
    s_lshl_b32 s45, s58, 6
    s_add_u32 s44, s44, s45
    """)
    for jd in range(6):
        for e in range(2):
            A(f"s_add_u32 s45, s44, {(8*jd + e)*8192}")
            A(f"buffer_load_dword v{64+2*jd+e}, v12, s[16:19], s45 offen sc1")
    NL2E = -math.log2(math.e)
    A(f"v_mov_b32 v76, {hex(f2u(NL2E))}\nv_mov_b32 v77, {hex(f2u(NL2E))}\nv_mov_b32 v78, 1.0\nv_mov_b32 v79, 1.0")
    for jd in range(6):
        cc = ACC + jd*4
        t = 80 + (jd % 2) * 4
        A(f"v_pk_mul_f32 {vr(t,2)}, {vr(cc,2)}, v[76:77]")
        A(f"v_pk_mul_f32 {vr(t+2,2)}, {vr(cc+2,2)}, v[76:77]")
        for r in range(4): A(f"v_exp_f32 v{t+r}, v{t+r}")
        A(f"v_pk_add_f32 {vr(t,2)}, {vr(t,2)}, v[78:79]")
        A(f"v_pk_add_f32 {vr(t+2,2)}, {vr(t+2,2)}, v[78:79]")
        for r in range(4): A(f"v_rcp_f32 v{t+r}, v{t+r}")
        A("s_nop 0")
        A(f"v_pk_mul_f32 {vr(cc,2)}, {vr(cc,2)}, {vr(t,2)}")
        A(f"v_pk_mul_f32 {vr(cc+2,2)}, {vr(cc+2,2)}, {vr(t+2,2)}")
    A("s_waitcnt vmcnt(0)")
    for jd in range(6):
        cc = ACC + jd*4
        t = 88 + (jd % 2) * 8
        A(f"v_lshlrev_b32 v{t+4}, 16, v{64+2*jd}\nv_and_b32 v{t+5}, 0xffff0000, v{64+2*jd}")
        A(f"v_lshlrev_b32 v{t+6}, 16, v{65+2*jd}\nv_and_b32 v{t+7}, 0xffff0000, v{65+2*jd}")
        A(f"v_lshlrev_b32 v{t}, 16, v{52+2*jd}\nv_and_b32 v{t+1}, 0xffff0000, v{52+2*jd}")
        A(f"v_lshlrev_b32 v{t+2}, 16, v{53+2*jd}\nv_and_b32 v{t+3}, 0xffff0000, v{53+2*jd}")
        A(f"v_pk_fma_f32 {vr(cc,2)}, {vr(cc,2)}, {vr(t+4,2)}, {vr(t,2)}")
        A(f"v_pk_fma_f32 {vr(cc+2,2)}, {vr(cc+2,2)}, {vr(t+6,2)}, {vr(t+2,2)}")
        o = 104 + (jd // 2) * 4 + (jd % 2) * 2
        A(f"v_cvt_pk_bf16_f32 v{o}, v{cc}, v{cc+1}")
        A(f"v_cvt_pk_bf16_f32 v{o+1}, v{cc+2}, v{cc+3}")
    A(f"""
    v_and_b32 v1, 15, v{vL}
    s_lshl_b32 s44, s58, 4
    v_add_u32 v1, s44, v1
    v_mul_u32_u24 v1, 1152, v1
    v_bfe_u32 v12, v{vL}, 4, 1
    v_lshlrev_b32 v12, 5, v12
    v_add_u32 v1, v1, v12
    v_lshrrev_b32 v12, 5, v{vL}
    v_lshlrev_b32 v12, 4, v12
    v_add_u32 v1, v1, v12
    s_mul_i32 s44, s35, 192
    v_add_u32 v1, s44, v1
    """)
    for p in range(3):
        o = 104 + p*4
        A(f"v_permlane16_swap_b32 v{o}, v{o+2}")
        A(f"v_permlane16_swap_b32 v{o+1}, v{o+3}")
    A("s_nop 0")
    for p in range(3):
        A(f"buffer_store_dwordx4 {vr(104+p*4,4)}, v1, s[20:23], 0 offen offset:{p*64}")
    stamp()

def gen_l3(name, stamps=False):
    A = Asm(); ST = Stamper(A, 4, stamps)
    nwg = NCONV + 192
    A(f"""
    s_cmp_ge_u32 s2, {nwg}
    s_cbranch_scc1 {name}_end
    s_load_dwordx2 s[28:29], s[0:1], 0
    s_load_dwordx2 s[50:51], s[0:1], 48
    s_load_dwordx4 s[56:59], s[0:1], 96
    s_load_dwordx2 s[32:33], s[0:1], 112
    """)
    ST.start()
    A(f"""
    v_lshrrev_b32 v1, 6, v0
    v_and_b32 v15, 63, v0
    s_nop 0
    v_readfirstlane_b32 s36, v1
    s_waitcnt lgkmcnt(0)
    s_mov_b32 s54, s58
    s_mov_b32 s55, s59
    s_cmp_ge_u32 s2, {NCONV}
    s_cbranch_scc1 {name}_g3
    s_mov_b32 s47, s2
    s_mov_b32 s30, s50
    s_mov_b32 s31, s51
    """)
    if PRIO: A("s_setprio 2")
    gen_conv2(A, name, ST.stamp)
    ST.stamp(); n1 = ST.n
    A(f"s_branch {name}_fin")
    A.label(f"{name}_g3")
    ST.n = 4
    A(f"s_sub_u32 s43, s2, {NCONV}\ns_mov_b32 s30, s28\ns_mov_b32 s31, s29")
    gen_g3b(A, name, ST.stamp, stamps)
    A.label(f"{name}_fin")
    ST.finish(vbase=96)
    A.label(f"{name}_end")
    A("s_endpgm")
    return A.text(), kernel_desc(name, 128, 96), 73728, nwg
```

```python
import re, sys
def add_store_flags(text, flags):
    out = []
    for l in text.split("\n"):
        if ";plain" in l:
            l = l.replace(";plain", "")
        elif l.strip().startswith("buffer_store") and " sc0" not in l and " sc1" not in l and " nt" not in l:
            l = l + " " + flags
        out.append(l)
    return "\n".join(out)
if __name__ == "__main__":
    s = open(sys.argv[1]).read()
    open(sys.argv[2], "w").write(add_store_flags(s, sys.argv[3]))
```

```python
import sys
from asmlib import *
from l0 import gen_l0
from g1 import gen_g1
from g1b import gen_g1b
from g2 import gen_g2
from g3 import gen_g3
from l3 import gen_l3
from fused import gen_fused
from kgen import gen_kgen
from conv import gen_conv
TOUCH = False
SC1 = False
def build(path, parts, stamps=False):
    launches = ""; text = ""; descs = ""
    for p in parts:
        if p == "l0":
            body, desc, nwg = gen_l0("l0_kernel", gen_kgen, stamps); launches += f"; @launch kernel=l0_kernel grid=({nwg},1,1) block=(256,1,1) lds=36864\n"; nm = "l0_kernel"
        elif p == "g1":
            body, desc, lds = gen_g1("g1_kernel", stamps); launches += f"; @launch kernel=g1_kernel grid=(256,1,1) block=(256,1,1) lds={lds}\n"; nm = "g1_kernel"
        elif p == "g1b":
            body, desc, lds = gen_g1b("g1_kernel", stamps); launches += f"; @launch kernel=g1_kernel grid=(512,1,1) block=(256,1,1) lds={lds}\n"; nm = "g1_kernel"
        elif p == "g2":
            body, desc = gen_g2("g2_kernel", stamps); launches += f"; @launch kernel=g2_kernel grid=(256,1,1) block=(256,1,1) lds=147456\n"; nm = "g2_kernel"
        elif p == "g3":
            body, desc, lds = gen_g3("g3_kernel", stamps); launches += f"; @launch kernel=g3_kernel grid=(192,1,1) block=(256,1,1) lds={lds}\n"; nm = "g3_kernel"
        elif p == "fused":
            body, desc, lds = gen_fused("m_kernel", stamps); launches += f"; @launch kernel=m_kernel grid=(256,1,1) block=(256,1,1) lds={lds}\n"; nm = "m_kernel"
        elif p == "l3":
            body, desc, lds, nwg = gen_l3("l3_kernel", stamps); launches += f"; @launch kernel=l3_kernel grid=({nwg},1,1) block=(256,1,1) lds={lds}\n"; nm = "l3_kernel"
        elif p == "conv":
            body, desc, lds, nwg = gen_conv("cv_kernel", 4, stamps); launches += f"; @launch kernel=cv_kernel grid=({nwg},1,1) block=(256,1,1) lds={lds}\n"; nm = "cv_kernel"
        if SC1 and p not in ('l3', 'fused'):
            from post import add_store_flags
            body = add_store_flags(body, 'sc1')
        text += kernel_header(nm) + body
        descs += desc
    s = HEADER + launches + '.amdgcn_target "amdgcn-amd-amdhsa--gfx950"\n.text\n' + text + '.section .rodata,"a"\n' + descs
    open(path, "w").write(s)
if __name__ == "__main__":
    args = sys.argv[1:]
    stamps = "stamps" in args
    TOUCH = "touch" in args
    SC1 = "sc1" in args
    import l3
    l3.PRIO = "prio" in args
    l3.NOCONV = "noconv" in args
    parts = [a for a in args[1:] if a not in ("stamps", "touch", "sc1", "prio", "noconv")]
    build(args[0], parts, stamps)
```

```python
from asmlib import *
from kgen import KR_PITCH, KR1
KBUF = 41216; UBUF = 8192

class Conv1:
    def __init__(self, A, name, LK, LU, from_xn=False):
        self.A = A; self.name = name; self.LK = LK; self.LU = LU; self.from_xn = from_xn; self.LR = LU + UBUF
    def prefetch(self, chs):
        A = self.A; LK = self.LK; LU = self.LU
        srd_off(A, 4, 32, 33, WS_K, 576 * KR_PITCH)
        srd_off(A, 8, 32, 33, WS_XNT, 576 * 4096)
        vKd = 252
        A(f"v_lshlrev_b32 v{vKd}, 4, v15")
        A(f"s_mul_i32 s44, {chs}, {KR_PITCH}")
        A("s_lshl_b32 s45, s36, 2\ns_add_u32 s44, s44, s45")
        for cc in range(2):
            A(f"s_lshl_b32 s45, s36, 1\ns_add_u32 s45, s45, {cc}")
            A("s_mul_i32 s46, s45, 320")
            A(f"s_lshl_b32 s48, s36, 2\ns_add_u32 s48, s48, {cc}\ns_cmp_ge_u32 s45, 5\ns_subb_u32 s48, s48, 0")
            A(f"s_add_u32 s46, s46, s48\ns_lshl_b32 s46, s46, 4")
            A(f"s_add_u32 s48, s44, {cc*KR1}")
            for it in range(5):
                A(f"s_add_u32 m0, s46, {LK + it*1024}\ns_add_u32 s49, s48, {it*1024}")
                A(f"buffer_load_dwordx4 v{vKd}, s[4:7], s49 offen{' sc1' if self.from_xn else ''} lds")
        if self.from_xn:
            srd_off(A, 8, 32, 33, WS_XN, 128 * 18 * 1024)
            A(f"""
            s_and_b32 s46, {chs}, 0xfffffffe
            s_lshr_b32 s44, s46, 5
            s_lshl_b32 s44, s44, 10
            s_bfe_u32 s45, s46, 0x20003
            s_lshl_b32 s45, s45, 8
            s_add_u32 s44, s44, s45
            s_and_b32 s45, s46, 7
            s_lshl_b32 s45, s45, 1
            s_add_u32 s44, s44, s45
            s_mul_i32 s45, s36, {8*4*18432}
            s_add_u32 s44, s44, s45
            v_lshrrev_b32 v252, 4, v15
            v_mul_u32_u24 v252, 18432, v252
            v_and_b32 v253, 15, v15
            v_lshlrev_b32 v253, 4, v253
            v_add_u32 v252, v252, v253
            s_lshl_b32 s46, s36, 11
            s_add_u32 s46, s46, {self.LR}
            """)
            for j in range(8):
                A(f"s_add_u32 s45, s44, {j*4*18432}\ns_add_u32 m0, s46, {j*256}\ns_nop 0\nbuffer_load_dword v252, s[8:11], s45 offen sc1 lds")
        else:
          A(f"s_lshl_b32 s46, {chs}, 12")
          for j in range(2):
            A(f"""
            s_lshl_b32 s44, s36, 7
            s_add_u32 s44, s44, {64*j}
            v_add_u32 v252, s44, v15
            v_mul_u32_u24 v253, 6554, v252
            v_lshrrev_b32 v253, 16, v253
            v_mul_u32_u24 v250, 10, v253
            v_sub_u32 v250, v252, v250
            v_subrev_u32 v253, 15, v253
            v_cmp_gt_u32 vcc, 32, v253
            v_cmp_gt_u32 s[52:53], 8, v250
            v_lshlrev_b32 v253, 7, v253
            v_lshl_add_u32 v253, v250, 4, v253
            s_and_b64 vcc, vcc, s[52:53]
            v_mov_b32 v250, 0x80000000
            s_nop 1
            v_cndmask_b32 v253, v250, v253, vcc
            s_lshl_b32 s45, s36, 11
            s_add_u32 m0, s45, {LU + j*1024}
            s_nop 0
            buffer_load_dwordx4 v253, s[8:11], s46 offen lds
            """)
        srd(A, 12, 88, 89, 1152)
        A(f"s_lshl_b32 s44, {chs}, 1\nv_mov_b32 v252, s44\nbuffer_load_ushort a168, v252, s[12:15], 0 offen")
    def run(self, second, pair_s, mid_hook=None, saA=164, done_hook=None):
        A = self.A; name = self.name; LK = self.LK; LU = self.LU; LS = LK
        vA = 5; vB = 6; vA0 = 7; vB0 = 8; vBz = 9
        A(f"""
        v_and_b32 v16, 15, v15
        v_sub_u32 v17, 0, v16
        v_and_b32 v17, 7, v17
        v_mul_u32_u24 v18, 320, v17
        v_lshrrev_b32 v19, 1, v17
        v_lshlrev_b32 v19, 2, v19
        v_and_b32 v20, 1, v17
        v_add_u32 v19, v19, v20
        v_cmp_le_u32 vcc, 5, v17
        v_add_u32 v18, v18, v19
        s_nop 0
        v_cndmask_b32 v20, 0, 1, vcc
        v_sub_u32 v18, v18, v20
        v_lshrrev_b32 v19, 4, v15
        v_add_u32 v18, v18, v19
        v_add_u32 v19, 7, v16
        v_lshrrev_b32 v19, 3, v19
        v_sub_u32 v18, v18, v19
        v_lshlrev_b32 v18, 4, v18
        v_add_u32 v{vA0}, {32 + LK}, v18
        v_mul_u32_u24 v18, 160, v16
        v_lshrrev_b32 v19, 4, v15
        v_lshlrev_b32 v19, 4, v19
        v_add_u32 v{vB0}, v18, v19
        s_cmp_eq_u32 s36, 0
        s_cselect_b32 s50, 0, 24
        s_cselect_b32 s51, 6, 2
        s_cselect_b32 s54, 0, 2
        s_cmp_ge_u32 s36, 2
        s_cselect_b32 s51, 0, s51
        s_cselect_b32 s54, 3, s54
        s_cmp_eq_u32 s36, 2
        s_cselect_b32 s50, 40, s50
        s_cmp_eq_u32 s36, 3
        s_cselect_b32 s50, 52, s50
        s_lshl_b32 s44, s50, 6
        v_add_u32 v{vA}, s44, v{vA0}
        s_lshr_b32 s44, s50, 1
        s_mul_i32 s44, s44, 160
        s_add_u32 s44, s44, {LU}
        v_add_u32 v{vB}, s44, v{vB0}
        v_subrev_u32 v{vBz}, 2560, v{vB}
        """)
        FR = [24, 32, 40, 48]; BR = [56, 64, 72, 80]; ACC = 96
        for r in range(32): A(f"v_mov_b32 v{ACC+r}, 0")
        return FR, BR, ACC, vA, vB, vBz
    def compute(self, second, pair_s, wait_n, mid_hook=None, saA=164, pre_hook=None, mid_wait=0):
        A = self.A; name = self.name; LK = self.LK; LU = self.LU; LS = LK
        FR, BR, ACC, vA, vB, vBz = self.run(second, pair_s)
        A(f"s_waitcnt vmcnt({wait_n})\ns_barrier")
        if pre_hook:
            pre_hook(); mid_hook = None
        if self.from_xn:
            sel = "0x07060302" if second else "0x05040100"
            A(f"""
            v_lshlrev_b32 v1, 5, v15
            s_lshl_b32 s44, s36, 11
            s_add_u32 s44, s44, {self.LR}
            v_add_u32 v1, s44, v1
            ds_read_b128 v[24:27], v1
            ds_read_b128 v[28:31], v1 offset:16
            s_lshl_b32 s44, s36, 6
            v_add_u32 v10, s44, v15
            v_lshrrev_b32 v11, 3, v10
            v_mul_u32_u24 v11, 160, v11
            v_and_b32 v10, 7, v10
            v_lshlrev_b32 v10, 4, v10
            v_add_u32 v10, v10, v11
            v_add_u32 v10, {LU + 15*160}, v10
            v_mov_b32 v32, 0
            v_mov_b32 v33, 0
            v_mov_b32 v34, 0
            v_mov_b32 v35, 0
            v_lshlrev_b32 v11, 4, v15
            s_lshl_b32 s44, s36, 10
            s_add_u32 s44, s44, {LU}
            v_add_u32 v11, s44, v11
            v_cmp_gt_u32 vcc, {LU + 2400}, v11
            s_and_saveexec_b64 s[52:53], vcc
            ds_write_b128 v11, v[32:35]
            s_mov_b64 exec, s[52:53]
            s_mov_b32 s44, {sel}
            s_waitcnt lgkmcnt(0)
            v_perm_b32 v32, v25, v24, s44
            v_perm_b32 v33, v27, v26, s44
            v_perm_b32 v34, v29, v28, s44
            v_perm_b32 v35, v31, v30, s44
            ds_write_b128 v10, v[32:35]
            s_waitcnt lgkmcnt(0)
            s_barrier
            """)
        def rdA(pair, t): return [f"ds_read_b128 {vr(FR[pair],4)}, v{vA} offset:{96+64*t}", f"ds_read_b128 {vr(FR[pair]+4,4)}, v{vA} offset:{64+64*t}"]
        def rdB(slot, t, tile):
            off = (t >> 1) * 160 + 64 * (t & 1)
            return f"ds_read_b128 {vr(BR[slot] + (0 if tile == 1 else 4),4)}, v{vB if tile == 1 else vBz} offset:{off}"
        for x in rdA(3, -1): A(x)
        for t in range(2):
            for x in rdA(t, t): A(x)
            A(rdB(t, t, 1))
        l0 = A.newlabel(name + "_p0")
        A(f"s_cmp_eq_u32 s51, 0\ns_cbranch_scc0 {l0}")
        for t in range(2): A(rdB(t, t, 0))
        A.label(l0)
        A("s_waitcnt lgkmcnt(0)")
        def body(double):
            for t in range(4):
                A(f"s_waitcnt lgkmcnt({4 if double else 3})")
                cur = FR[t]; prev = FR[(t-1) % 4]
                fr = [cur, cur+4, prev, prev+4]
                rd = rdA((t+2) % 4, t+2) + [rdB((t+2) % 4, t+2, 1)] + ([rdB((t+2) % 4, t+2, 0)] if double else [])
                mf = []
                for i in ([1, 0] if double else [1]):
                    for h in range(4):
                        c = vr(ACC + (h*2+i)*4, 4)
                        mf.append(f"v_mfma_f32_16x16x32_bf16 {c}, {vr(fr[h],4)}, {vr(BR[t] + (0 if i == 1 else 4),4)}, {c}")
                for j, m in enumerate(mf):
                    A(m)
                    if j < len(rd): A(rd[j])
            A(f"v_add_u32 v{vA}, 256, v{vA}\nv_add_u32 v{vB}, 320, v{vB}\nv_add_u32 v{vBz}, 320, v{vBz}")
        l1 = A.newlabel(name + "_s"); l1e = A.newlabel(name + "_se"); l2 = A.newlabel(name + "_d"); l2e = A.newlabel(name + "_de"); l2s = A.newlabel(name + "_ds")
        A(f"s_mov_b32 s55, s51\ns_cmp_eq_u32 s55, 0\ns_cbranch_scc1 {l2s}")
        A.label(l1)
        body(False)
        A(f"s_sub_u32 s55, s55, 1\ns_cmp_lg_u32 s55, 0\ns_cbranch_scc1 {l1}")
        A(f"s_cmp_eq_u32 s54, 0\ns_cbranch_scc1 {l2e}")
        for t in range(2): A(rdB(t, t, 0))
        A("s_waitcnt lgkmcnt(0)")
        A.label(l2s)
        A("s_mov_b32 s55, s54")
        A.label(l2)
        body(True)
        A(f"s_sub_u32 s55, s55, 1\ns_cmp_lg_u32 s55, 0\ns_cbranch_scc1 {l2}")
        A.label(l2e)
        if hasattr(self, "stamp"): self.stamp()
        A(f"s_waitcnt vmcnt({mid_wait}) lgkmcnt(0)\ns_nop 7\ns_barrier")
        if mid_hook: mid_hook()
        A(f"v_lshlrev_b32 v1, 4, v15\ns_lshl_b32 s44, s36, 13\ns_add_u32 s44, s44, {LS}\nv_add_u32 v11, s44, v1")
        for h in range(4):
            for i in range(2):
                A(f"ds_write_b128 v11, {vr(ACC+(h*2+i)*4,4)} offset:{(h*2+i)*1024}")
        A(f"""
        v_and_b32 v12, 15, v15
        v_mul_u32_u24 v12, 160, v12
        v_lshrrev_b32 v13, 4, v15
        v_lshlrev_b32 v13, 3, v13
        v_add_u32 v12, v12, v13
        s_lshl_b32 s44, s36, 5
        s_add_u32 s44, s44, {LU}
        v_add_u32 v12, s44, v12
        """)
        for i in range(2):
            A(f"ds_read_b64 {vr(56+2*i,2)}, v12 offset:{(15+16*i)*160}")
        A("s_waitcnt lgkmcnt(0)\ns_barrier")
        A(f"s_lshl_b32 s44, s36, 11\ns_add_u32 s44, s44, {LS}\nv_add_u32 v11, s44, v1")
        for ww in range(4):
            for i in range(2):
                A(f"ds_read_b128 {vr(24+(ww*2+i)*4,4)}, v11 offset:{ww*8192 + i*1024}")
        A("v_accvgpr_read_b32 v14, a168\ns_nop 0\nv_lshlrev_b32 v14, 16, v14")
        for i in range(2):
            u = 56 + 2*i; t = 64 + 4*i
            A(f"v_lshlrev_b32 v{t}, 16, v{u}\nv_and_b32 v{t+1}, 0xffff0000, v{u}\nv_lshlrev_b32 v{t+2}, 16, v{u+1}\nv_and_b32 v{t+3}, 0xffff0000, v{u+1}")
            for r in range(4): A(f"v_mul_f32 v{t+r}, v{t+r}, v14")
            A(f"v_cvt_pk_bf16_f32 v60, v{t}, v{t+1}\nv_cvt_pk_bf16_f32 v61, v{t+2}, v{t+3}")
            A(f"v_lshlrev_b32 v{t}, 16, v60\nv_and_b32 v{t+1}, 0xffff0000, v60\nv_lshlrev_b32 v{t+2}, 16, v61\nv_and_b32 v{t+3}, 0xffff0000, v61")
        A("s_waitcnt lgkmcnt(0)")
        for i in range(2):
            for ww in range(1, 4):
                A(f"v_pk_add_f32 {vr(24+i*4,2)}, {vr(24+i*4,2)}, {vr(24+(ww*2+i)*4,2)}")
                A(f"v_pk_add_f32 {vr(24+i*4+2,2)}, {vr(24+i*4+2,2)}, {vr(24+(ww*2+i)*4+2,2)}")
        for i in range(2):
            y = 24 + i*4; t = 64 + 4*i
            A(f"v_cvt_pk_bf16_f32 v60, v{y}, v{y+1}\nv_cvt_pk_bf16_f32 v61, v{y+2}, v{y+3}")
            A(f"v_lshlrev_b32 v{y}, 16, v60\nv_and_b32 v{y+1}, 0xffff0000, v60\nv_lshlrev_b32 v{y+2}, 16, v61\nv_and_b32 v{y+3}, 0xffff0000, v61")
            for r in range(4): A(f"v_add_f32 v{y+r}, v{y+r}, v{t+r}")
            A(f"v_cvt_pk_bf16_f32 v60, v{y}, v{y+1}\nv_cvt_pk_bf16_f32 v61, v{y+2}, v{y+3}")
            if not second:
                A(f"v_accvgpr_write_b32 a{saA+2*i}, v60\nv_accvgpr_write_b32 a{saA+2*i+1}, v61")
            else:
                A(f"v_accvgpr_read_b32 v62, a{saA+2*i}\nv_accvgpr_read_b32 v63, a{saA+2*i+1}")
                o = 72 + 4*i
                A(f"s_mov_b32 s44, 0x05040100\ns_mov_b32 s45, 0x07060302")
                A(f"v_perm_b32 v{o}, v60, v62, s44\nv_perm_b32 v{o+1}, v60, v62, s45")
                A(f"v_perm_b32 v{o+2}, v61, v63, s44\nv_perm_b32 v{o+3}, v61, v63, s45")
        if second:
            srd_off(A, 12, 32, 33, WS_S, 288 * 8192)
            A(f"""
            v_and_b32 v12, 15, v15
            v_lshlrev_b32 v12, 8, v12
            v_lshrrev_b32 v13, 4, v15
            v_lshlrev_b32 v13, 4, v13
            v_add_u32 v12, v12, v13
            s_lshl_b32 s44, {pair_s}, 13
            s_lshl_b32 s45, s36, 6
            s_add_u32 s44, s44, s45
            s_add_u32 s45, s44, 4096
            """)
            A(f"buffer_store_dwordx4 v[72:75], v12, s[12:15], s44 offen sc1")
            A(f"buffer_store_dwordx4 v[76:79], v12, s[12:15], s45 offen sc1")
```

```python
from asmlib import *
from core import Core
from g1 import gen_g1, f2u
import l3
from conv1 import Conv1
import math

C2, C3, C4, C5 = 0, 16, 32, 48

class F:
    def __init__(self, A, stamps):
        self.A = A; self.stamps = stamps; self.n = 0
    def stamp(self):
        if not self.stamps: return
        A = self.A; i = self.n; self.n += 1
        assert i < 30
        A("s_memtime s[100:101]\ns_waitcnt lgkmcnt(0)\nv_mov_b32 v254, s100\ns_mov_b64 exec, 1")
        A(f"buffer_store_dword v254, v255, s[96:99], 0 offen offset:{8 + 4*i}\ns_mov_b64 exec, -1")
    def rt(self, slot):
        if not self.stamps: return
        A = self.A
        A("s_memrealtime s[100:101]\ns_waitcnt lgkmcnt(0)\nv_mov_b32 v254, s100\ns_mov_b64 exec, 1")
        A(f"buffer_store_dword v254, v255, s[96:99], 0 offen offset:{4*slot}\ns_mov_b64 exec, -1")
    def ptrs_g1(self):
        self.A("s_mov_b32 s28, s78\ns_mov_b32 s29, s79\ns_mov_b32 s54, s80\ns_mov_b32 s55, s81")

FLAG_BYTES = 4 * 16 * 64 * 128
def flag_off(kind, group_s, slot_s):
    return f"s_add_u32 s44, {group_s}, {kind*16}\ns_lshl_b32 s44, s44, 6\ns_add_u32 s44, s44, {slot_s}\ns_lshl_b32 s44, s44, 7"

def signal(A, name, idx_exprs, sync=True):
    if sync: A("s_waitcnt vmcnt(0)\ns_barrier")
    lab = A.newlabel(name + "_sg")
    A(f"s_cmp_eq_u32 s36, 0\ns_cbranch_scc0 {lab}")
    srd_off(A, 24, 32, 33, WS_FLAG, FLAG_BYTES)
    A("v_mov_b32 v251, 1\ns_mov_b64 exec, 1")
    for e in idx_exprs:
        A(e); A("v_mov_b32 v250, s44\nbuffer_store_dword v251, v250, s[24:27], 0 offen sc1")
    A("s_mov_b64 exec, -1")
    A.label(lab)

def wait_flags(A, name, kind, group_s, nslots, barrier=True):
    lab = A.newlabel(name + "_wf")
    A(f"s_cmp_eq_u32 s36, 0\ns_cbranch_scc0 {lab}")
    srd_off(A, 24, 32, 33, WS_FLAG, FLAG_BYTES)
    A(flag_off(kind, group_s, 0))
    A(f"v_lshlrev_b32 v250, 7, v15\nv_add_u32 v250, s44, v250")
    A(f"s_mov_b32 s46, {hex(((1 << nslots) - 1) & 0xffffffff)}\ns_mov_b32 s47, {hex(((1 << nslots) - 1) >> 32)}")
    poll = A.newlabel(name + "_pl")
    A.label(poll)
    A("buffer_load_dword v251, v250, s[24:27], 0 offen sc1\ns_waitcnt vmcnt(0)")
    A("v_cmp_eq_u32 s[48:49], 1, v251\ns_and_b64 s[48:49], s[48:49], s[46:47]")
    A(f"s_cmp_eq_u64 s[48:49], s[46:47]\ns_cbranch_scc1 {lab}\ns_sleep 2\ns_branch {poll}")
    A.label(lab)
    if barrier: A("s_barrier")

def g2_pre_p(Fo, name):
    A = Fo.A
    srd_off(A, 4, 32, 33, WS_WSP, 2048 * 4096)
    A(f"""
    s_lshl_b32 s44, s34, 7
    s_lshl_b32 s45, s36, 5
    s_add_u32 s44, s44, s45
    v_lshlrev_b32 v1, 4, v15
    s_lshl_b32 s46, s44, 12
    v_add_u32 v2, s46, v1
    v_add_u32 v3, 0x10000, v2
    """)
    for s in range(3):
        A(f"s_mov_b32 s39, {s*4096}")
        for n in range(8 if s < 2 else 4):
            ks, i = n // 2, n % 2
            A(f"buffer_load_dwordx4 {ar(s*32 + ks*8 + i*4, 4)}, v{2+i}, s[4:7], s39 offen offset:{ks*1024} sc1")

def gen_g2f(Fo, name, post_loop=None, mid=None):
    A = Fo.A; stamp = Fo.stamp
    SLOT = 36864
    ACC = 128; PR = 0; QV = [16, 52]; Z1V = 88; Z1A = 128
    vP = [2, 3]; vQd = [4, 5, 6]; vQr = [8, 9, 10, 11]; vB = [12, 13]; vL = 15
    srd_off(A, 4, 32, 33, WS_WSP, 2048 * 4096)
    A("s_mul_i32 s44, s35, 589824")
    A(f"s_add_u32 s44, s44, {WS_Z2N}")
    srd_off(A, 8, 32, 33, "s44", 589824)
    srd_off(A, 16, 32, 33, WS_H, 128 * 72 * 1024)
    srd(A, 20, 82, 83, 4096)
    A(f"""
    s_lshl_b32 s44, s34, 7
    s_lshl_b32 s45, s36, 5
    s_add_u32 s44, s44, s45
    v_and_b32 v1, 15, v{vL}
    v_add_u32 v1, s44, v1
    v_lshlrev_b32 v{vB[0]}, 1, v1
    v_add_u32 v{vB[1]}, 32, v{vB[0]}
    v_lshlrev_b32 v1, 4, v{vL}
    s_lshl_b32 s46, s44, 12
    v_add_u32 v{vP[0]}, s46, v1
    v_add_u32 v{vP[1]}, 0x10000, v{vP[0]}
    s_mul_i32 s45, s36, 9216
    v_add_u32 v{vQd[0]}, s45, v1
    v_add_u32 v{vQd[1]}, 0x1000, v{vQd[0]}
    v_add_u32 v{vQd[2]}, 0x2000, v{vQd[0]}
    v_mov_b32 v{vQr[0]}, v1
    v_add_u32 v{vQr[1]}, {SLOT}, v1
    v_add_u32 v{vQr[2]}, {2*SLOT}, v1
    v_add_u32 v{vQr[3]}, {3*SLOT}, v1
    s_mov_b32 s40, s45
    s_add_u32 s41, s45, {SLOT}
    s_add_u32 s42, s45, {2*SLOT}
    s_add_u32 s43, s45, {3*SLOT}
    """)
    def dm(slot, j):
        g = j // 4
        pre = f"s_add_u32 m0, s{40+slot}, {g*4096}\ns_nop 0\n" if j % 4 == 0 else ""
        return pre + f"buffer_load_dwordx4 v{vQd[g]}, s[8:11], s38 offen offset:{(j%4)*1024} sc1 lds"
    def pl(slot, n):
        ks, i = n // 2, n % 2
        return f"buffer_load_dwordx4 {ar(PR + slot*32 + ks*8 + i*4, 4)}, v{vP[i]}, s[4:7], s39 offen offset:{ks*1024} sc1"
    def G(slot):
        ops = []
        for j in range(9):
            ops.append(dm(slot, j))
            if j < 8: ops.append(pl(slot, j))
        ops[-1] += f"\ns_add_u32 s38, s38, {SLOT}\ns_add_u32 s39, s39, 4096"
        return ops
    for i in range(2):
        A(f"buffer_load_ushort v{124+i}, v{vB[i]}, s[20:23], 0 offen")
    for r in range(72): A(f"v_mov_b32 v{ACC+r}, 0")
    stamp()
    wait_flags(A, name, 1, "s34", 16, barrier=False)
    wait_flags(A, name, 0, "s35", 16)
    stamp()
    A("s_mov_b32 s38, 0\ns_mov_b32 s39, 0")
    for op in G(0): A(op)
    A("s_barrier")
    for op in G(1): A(op)
    for op in G(2)[0:9]: A(op)
    A("s_waitcnt vmcnt(26)")
    A("s_barrier")
    def qreads(buf, slot, ks):
        return [f"ds_read_b128 {vr(QV[buf]+jn*4,4)}, v{vQr[slot]} offset:{(ks*9+jn)*1024}" for jn in range(9)]
    def mfmas(buf, slot, ks):
        out = []
        for jn in range(9):
            for i in range(2):
                c = vr(ACC + (i*9+jn)*4, 4)
                out.append(f"v_mfma_f32_16x16x32_bf16 {c}, {vr(QV[buf]+jn*4,4)}, {ar(PR+slot*32+ks*8+i*4,4)}, {c}")
        return out
    for x in qreads(0, 0, 0): A(x)
    stamp()
    A("s_mov_b32 s37, 0")
    A.label(f"{name}_loop")
    for u in range(4):
        g = G((u + 3) & 3); gprev = G((u + 2) & 3)
        for ks in range(4):
            A("s_waitcnt lgkmcnt(0)")
            rd = qreads((ks + 1) & 1, u, ks + 1) if ks < 3 else qreads(0, (u + 1) & 3, 0)
            gl = [gprev[9:13], gprev[13:17], g[0:5], g[5:9]][ks]
            mf = mfmas(ks & 1, u, ks)
            for j in range(18):
                A(mf[j])
                if j < 9: A(rd[j])
                elif (j - 9) % 2 == 0 and (j - 9) // 2 < len(gl): A(gl[(j - 9) // 2])
            if ks == 1:
                A("s_waitcnt vmcnt(17)")
                A("s_barrier")
                if u == 1:
                    skip = A.newlabel(name + "_sk")
                    A(f"s_cmp_eq_u32 s37, 3\ns_cbranch_scc0 {skip}")
                    for v in vP + vQd: A(f"v_mov_b32 v{v}, 0x80000000")
                    A.label(skip)
    A(f"s_add_u32 s37, s37, 1\ns_cmp_lt_u32 s37, 4\ns_cbranch_scc1 {name}_loop")
    stamp()
    A("s_waitcnt vmcnt(0)\ns_barrier")
    if post_loop: post_loop()
    for r in range(36): A(f"v_accvgpr_read_b32 v{Z1V+r}, a{Z1A+r}")
    A("v_lshlrev_b32 v200, 16, v124\nv_lshlrev_b32 v201, 16, v124\nv_lshlrev_b32 v202, 16, v125\nv_lshlrev_b32 v203, 16, v125")
    A(f"""
    s_lshl_b32 s44, s34, 3
    s_lshl_b32 s45, s36, 1
    s_add_u32 s44, s44, s45
    s_mul_i32 s44, s44, 72
    s_lshr_b32 s45, s35, 1
    s_mul_i32 s45, s45, 9
    s_add_u32 s44, s44, s45
    s_and_b32 s46, s35, 1
    s_mul_i32 s47, s46, 5
    s_add_u32 s47, s47, s44
    s_lshl_b32 s47, s47, 10
    s_add_u32 s48, s44, 4
    s_lshl_b32 s48, s48, 10
    s_lshl_b32 s51, s46, 3
    s_add_u32 s48, s48, s51
    s_add_u32 s49, s47, 73728
    s_add_u32 s50, s48, 73728
    v_lshlrev_b32 v1, 4, v{vL}
    """)
    T = 204
    for i in range(2):
        for jn in range(9):
            c = ACC + (i*9+jn)*4; z = Z1V + (i*9+jn)*2; t = T + ((i*9+jn) & 1) * 4
            A(f"v_lshlrev_b32 v{t}, 16, v{z}")
            A(f"v_and_b32 v{t+1}, 0xffff0000, v{z}")
            A(f"v_lshlrev_b32 v{t+2}, 16, v{z+1}")
            A(f"v_and_b32 v{t+3}, 0xffff0000, v{z+1}")
            A(f"v_pk_add_f32 {vr(c,2)}, {vr(c,2)}, {vr(200+2*i,2)}")
            A(f"v_pk_add_f32 {vr(c+2,2)}, {vr(c+2,2)}, {vr(200+2*i,2)}")
            A(f"v_pk_mul_f32 {vr(c,2)}, {vr(c,2)}, {vr(t,2)}")
            A(f"v_pk_mul_f32 {vr(c+2,2)}, {vr(c+2,2)}, {vr(t+2,2)}")
            A(f"v_cvt_pk_bf16_f32 v{z}, v{c}, v{c+1}")
            A(f"v_cvt_pk_bf16_f32 v{z+1}, v{c+2}, v{c+3}")
    odd = A.newlabel(name + "_odd"); done = A.newlabel(name + "_sd")
    A(f"""
    v_bfe_u32 v2, v{vL}, 4, 1
    v_mul_u32_u24 v2, 73728, v2
    v_lshrrev_b32 v3, 5, v{vL}
    v_lshlrev_b32 v3, 8, v3
    v_add_u32 v2, v2, v3
    v_and_b32 v3, 15, v{vL}
    v_lshlrev_b32 v3, 4, v3
    v_add_u32 v2, v2, v3
    s_add_u32 s48, s44, 4
    s_lshl_b32 s48, s48, 10
    s_lshl_b32 s51, s46, 9
    s_add_u32 s48, s48, s51
    """)
    def single(jn):
        a0 = Z1V + jn*2; a1 = Z1V + (9+jn)*2
        A(f"v_mov_b32 v4, v{a0}\nv_mov_b32 v5, v{a0+1}\nv_mov_b32 v6, v{a1}\nv_mov_b32 v7, v{a1+1}\ns_nop 1")
        A("v_permlane16_swap_b32 v4, v6\nv_permlane16_swap_b32 v5, v7\ns_nop 0")
        A("buffer_store_dwordx4 v[4:7], v2, s[16:19], s48 offen sc1")
    A(f"s_cmp_eq_u32 s46, 1\ns_cbranch_scc1 {odd}")
    for i in range(2):
        for p in range(4):
            A(f"buffer_store_dwordx4 {vr(Z1V+(i*9+2*p)*2,4)}, v1, s[16:19], s{47 if i==0 else 49} offen offset:{p*1024} sc1")
    single(8)
    A(f"s_branch {done}")
    A.label(odd)
    for i in range(2):
        for p in range(4):
            A(f"buffer_store_dwordx4 {vr(Z1V+(i*9+1+2*p)*2,4)}, v1, s[16:19], s{47 if i==0 else 49} offen offset:{p*1024} sc1")
    single(0)
    A.label(done)

def g3_pre_q(Fo, name):
    A = Fo.A
    A(f"""
    s_lshr_b32 s45, s2, 5
    s_min_u32 s45, s45, 5
    s_mul_i32 s44, s45, {72*6*1024}
    s_add_u32 s44, s44, {WS_WOT}
    """)
    srd_off(A, 4, 32, 33, "s44", 72*6*1024)
    A("v_lshlrev_b32 v1, 4, v15\ns_lshl_b32 s40, s36, 10\nv_add_u32 v2, s40, v1")
    for j in range(1, 6): A(f"v_add_u32 v{2+j}, {j*4096}, v2")
    for s in range(4):
        A(f"s_mov_b32 s38, {s*24*1024}")
        for j in range(6):
            A(f"s_add_u32 m0, s40, {s*24576 + j*4096}\ns_nop 0\nbuffer_load_dwordx4 v{2+j}, s[4:7], s38 offen lds")

def gen_g3f(Fo, name):
    A = Fo.A; stamp = Fo.stamp
    R = 6; S = 4
    ACC = 16; QB = [96, 120]; PR = 0
    vQd = [2, 3, 4, 5, 6, 7]; vP = [8]; vL = 15; vQr = [9, 10, 11, 12, 13, 14]
    A(f"""
    s_and_b32 s44, s2, 7
    s_lshr_b32 s45, s2, 3
    s_lshl_b32 s34, s44, 2
    s_and_b32 s46, s45, 3
    s_add_u32 s34, s34, s46
    s_lshr_b32 s35, s45, 2
    v_lshlrev_b32 v1, 4, v{vL}
    s_lshl_b32 s44, s34, 2
    s_add_u32 s58, s44, s36
    s_mul_i32 s44, s58, 73728
    v_add_u32 v{vP[0]}, s44, v1
    """)
    A(f"s_mul_i32 s44, s35, {72*6*1024}\ns_add_u32 s44, s44, {WS_WOT}")
    srd_off(A, 4, 32, 33, "s44", 72*6*1024)
    srd_off(A, 8, 32, 33, WS_H, 128 * 72 * 1024)
    c = Core(A, name + "_g", 1, 6, 72, S, R, ACC, QB, "a", PR, vP, vQd, vQr, 8, 4, "s38", "s39", "s40", "s37", 1024, orient="QP")
    c.p_flags = " sc1"
    c.setup_addr(1, "s36", 12)
    h = c.gsize // 2
    def split(slot):
        ops = c.G(slot);
        return ops
    pre = []; post = []
    for s in range(R - 1):
        ops = c.G(s)
        ops = ops if s < R - 2 else ops[:h]
        q = [o for o in ops if " lds" in o]; p = [o for o in ops if " lds" not in o]
        strip = lambda o: o.split("\ns_add_u32 s38, s38")[0]
        if s == R - 2:
            pre.append(f"s_mov_b32 s38, {s*S*6*1024}"); pre += [strip(o) for o in q]
        post.append(f"s_mov_b32 s39, {s*S*1024}"); post += [strip(o) for o in p]
    Fo.pre_g3()
    for o in pre: A(o)
    srd(A, 12, 76, 77, 2048 * 1152)
    srd_off(A, 16, 32, 33, WS_S, 288 * 8192)
    srd(A, 20, 84, 85, 2048 * 1152)
    for r in range(24): A(f"v_mov_b32 v{ACC+r}, 0")
    stamp()
    A("s_lshr_b32 s59, s34, 1")
    wait_flags(A, name, 2, "s59", 16)
    stamp()
    for o in post: A(o)
    A(f"s_mov_b32 s38, {(R-2)*S*6*1024}\ns_mov_b32 s39, {(R-2)*S*1024}")
    A("s_waitcnt vmcnt(0)\ns_barrier")
    for x in c.qreads(0, 0, 0): A(x)
    stamp()
    def tail(A):
        A(f"""
        v_and_b32 v1, 15, v{vL}
        s_lshl_b32 s44, s58, 4
        v_add_u32 v1, s44, v1
        v_mul_u32_u24 v1, 1152, v1
        v_lshrrev_b32 v40, 4, v{vL}
        v_lshlrev_b32 v40, 3, v40
        v_add_u32 v1, v1, v40
        s_mul_i32 s44, s35, 192
        v_add_u32 v1, s44, v1
        """)
        for jd in range(6):
            A(f"buffer_load_dwordx2 {vr(52+2*jd,2)}, v1, s[12:15], 0 offen offset:{jd*32}")
    c.loop(True, tail_hook=tail)
    stamp()
    wait_flags(A, name, 3, "s35", 48)
    A(f"""
    v_lshrrev_b32 v12, 4, v{vL}
    v_lshlrev_b32 v12, 14, v12
    v_and_b32 v13, 15, v{vL}
    v_lshlrev_b32 v13, 2, v13
    v_add_u32 v12, v12, v13
    s_mul_i32 s44, s35, {48*8192}
    s_lshl_b32 s45, s58, 6
    s_add_u32 s44, s44, s45
    """)
    for jd in range(6):
        for e in range(2):
            A(f"s_add_u32 s45, s44, {(8*jd + e)*8192}")
            A(f"buffer_load_dword v{64+2*jd+e}, v12, s[16:19], s45 offen sc1")
    NL2E = -math.log2(math.e)
    A(f"v_mov_b32 v76, {hex(f2u(NL2E))}\nv_mov_b32 v77, {hex(f2u(NL2E))}\nv_mov_b32 v78, 1.0\nv_mov_b32 v79, 1.0")
    for jd in range(6):
        cc = ACC + jd*4; t = 80 + (jd % 2) * 4
        A(f"v_pk_mul_f32 {vr(t,2)}, {vr(cc,2)}, v[76:77]")
        A(f"v_pk_mul_f32 {vr(t+2,2)}, {vr(cc+2,2)}, v[76:77]")
        for r in range(4): A(f"v_exp_f32 v{t+r}, v{t+r}")
        A(f"v_pk_add_f32 {vr(t,2)}, {vr(t,2)}, v[78:79]")
        A(f"v_pk_add_f32 {vr(t+2,2)}, {vr(t+2,2)}, v[78:79]")
        for r in range(4): A(f"v_rcp_f32 v{t+r}, v{t+r}")
        A("s_nop 0")
        A(f"v_pk_mul_f32 {vr(cc,2)}, {vr(cc,2)}, {vr(t,2)}")
        A(f"v_pk_mul_f32 {vr(cc+2,2)}, {vr(cc+2,2)}, {vr(t+2,2)}")
    A("s_waitcnt vmcnt(0)")
    for jd in range(6):
        cc = ACC + jd*4; t = 88 + (jd % 2) * 8
        A(f"v_lshlrev_b32 v{t+4}, 16, v{64+2*jd}\nv_and_b32 v{t+5}, 0xffff0000, v{64+2*jd}")
        A(f"v_lshlrev_b32 v{t+6}, 16, v{65+2*jd}\nv_and_b32 v{t+7}, 0xffff0000, v{65+2*jd}")
        A(f"v_lshlrev_b32 v{t}, 16, v{52+2*jd}\nv_and_b32 v{t+1}, 0xffff0000, v{52+2*jd}")
        A(f"v_lshlrev_b32 v{t+2}, 16, v{53+2*jd}\nv_and_b32 v{t+3}, 0xffff0000, v{53+2*jd}")
        A(f"v_pk_fma_f32 {vr(cc,2)}, {vr(cc,2)}, {vr(t+4,2)}, {vr(t,2)}")
        A(f"v_pk_fma_f32 {vr(cc+2,2)}, {vr(cc+2,2)}, {vr(t+6,2)}, {vr(t+2,2)}")
        o = 104 + (jd // 2) * 4 + (jd % 2) * 2
        A(f"v_cvt_pk_bf16_f32 v{o}, v{cc}, v{cc+1}")
        A(f"v_cvt_pk_bf16_f32 v{o+1}, v{cc+2}, v{cc+3}")
    A(f"""
    v_and_b32 v1, 15, v{vL}
    s_lshl_b32 s44, s58, 4
    v_add_u32 v1, s44, v1
    v_mul_u32_u24 v1, 1152, v1
    v_bfe_u32 v12, v{vL}, 4, 1
    v_lshlrev_b32 v12, 5, v12
    v_add_u32 v1, v1, v12
    v_lshrrev_b32 v12, 5, v{vL}
    v_lshlrev_b32 v12, 4, v12
    v_add_u32 v1, v1, v12
    s_mul_i32 s44, s35, 192
    v_add_u32 v1, s44, v1
    """)
    for p in range(3):
        o = 104 + p*4
        A(f"v_permlane16_swap_b32 v{o}, v{o+2}")
        A(f"v_permlane16_swap_b32 v{o+1}, v{o+3}")
    A("s_nop 0")
    for p in range(3):
        A(f"buffer_store_dwordx4 {vr(104+p*4,4)}, v1, s[20:23], 0 offen offset:{p*64}")

def gen_fused(name, stamps=False):
    A = Asm(); Fo = F(A, stamps)
    A(f"""
    s_cmp_ge_u32 s2, 256
    s_cbranch_scc1 {name}_end
    s_load_dwordx2 s[76:77], s[0:1], 0
    s_load_dwordx2 s[88:89], s[0:1], 48
    s_load_dwordx2 s[78:79], s[0:1], 64
    s_load_dwordx4 s[80:83], s[0:1], 72
    s_load_dwordx4 s[84:87], s[0:1], 96
    s_load_dwordx2 s[32:33], s[0:1], 112
    s_and_b32 s44, s2, 7
    s_lshr_b32 s45, s2, 3
    s_and_b32 s34, s44, 1
    s_lshl_b32 s34, s34, 3
    s_and_b32 s46, s45, 7
    s_add_u32 s34, s34, s46
    s_lshr_b32 s35, s44, 1
    s_lshl_b32 s35, s35, 2
    s_lshr_b32 s46, s45, 3
    s_add_u32 s35, s35, s46
    v_lshrrev_b32 v1, 6, v0
    v_and_b32 v15, 63, v0
    s_nop 0
    v_readfirstlane_b32 s36, v1
    """)
    if stamps:
        A("s_waitcnt lgkmcnt(0)")
        srd_off(A, 96, 32, 33, WS_STAMP + 0x100000, 0x40000)
        A("s_lshl_b32 s44, s2, 2\ns_add_u32 s44, s44, s36\ns_lshl_b32 s44, s44, 7\nv_mov_b32 v255, s44")
        Fo.rt(0); Fo.stamp()
    cvA = Conv1(A, name + "_ca", 61440, 102656)
    A("s_lshl_b32 s70, s2, 1\ns_add_u32 s71, s70, 1\ns_mov_b32 s72, s2")
    Fo.after_loop = lambda: cvA.prefetch("s70")
    Fo.sig_wsp = lambda: signal(A, name, ["s_lshr_b32 s45, s2, 4\ns_and_b32 s46, s2, 15\n" + flag_off(1, "s45", "s46")], sync=False)
    Fo.wait_wsp = lambda: wait_flags(A, name, 1, "s34", 16)
    gen_g1(name + "_g1", stamps, Fo)
    sigA = lambda: signal(A, name, [flag_off(0, "s35", "s34"), "s_lshr_b32 s45, s2, 4\ns_and_b32 s46, s2, 15\n" + flag_off(1, "s45", "s46")], sync=False)
    def sigA2():
        Fo.stamp(); sigA()
    cvA.stamp = Fo.stamp
    cvA.compute(False, "s72", 63, mid_hook=sigA2)
    Fo.stamp()
    cvB = Conv1(A, name + "_cb", 114432, 114432 + 41216)
    gen_g2f(Fo, name + "_g2", post_loop=lambda: cvB.prefetch("s71"))
    Fo.stamp()
    sigB = lambda: signal(A, name, [flag_off(2, "s34", "s35")], sync=False)
    g3_pre_q(Fo, name + "_g3q")
    cvB.compute(True, "s72", 9 + 24, mid_hook=sigB, mid_wait=24)
    sigS = lambda: signal(A, name, ["s_mul_i32 s45, s72, 1366\ns_lshr_b32 s45, s45, 16\ns_mul_i32 s46, s45, 48\ns_sub_u32 s46, s72, s46\n" + flag_off(3, "s45", "s46")])
    Fo.stamp()
    xtra = A.newlabel(name + "_x"); fin = A.newlabel(name + "_fin")
    A(f"s_lshr_b32 s44, s2, 3\ns_cmp_ge_u32 s44, 24\ns_cbranch_scc1 {xtra}")
    Fo.pre_g3 = sigS
    gen_g3f(Fo, name + "_g3")
    A(f"s_branch {fin}")
    A.label(xtra)
    sigS()
    A(f"s_sub_u32 s44, s2, 192\ns_cmp_ge_u32 s44, 32\ns_cbranch_scc1 {fin}")
    A("s_add_u32 s72, s2, 64\ns_lshl_b32 s70, s72, 1\ns_add_u32 s71, s70, 1")
    cvC = Conv1(A, name + "_cc", 0, 41216)
    cvC.prefetch("s70"); cvC.compute(False, "s72", 0)
    A("s_barrier")
    cvD = Conv1(A, name + "_cd", 0, 41216)
    cvD.prefetch("s71"); cvD.compute(True, "s72", 0)
    sigS()
    A.label(fin)
    if stamps:
        A("s_waitcnt vmcnt(0)")
        Fo.n = 28; Fo.stamp(); Fo.rt(1)
    A.label(f"{name}_end")
    A("s_endpgm")
    return A.text(), kernel_desc(name, 256, 256), 163840
```

```python
from asmlib import *
from core import Core
from g1 import gen_g1, f2u
import l3
from conv1 import Conv1
from phase0 import *
from kgen import gen_kgen
import math

C2, C3, C4, C5 = 0, 16, 32, 48

class F:
    def __init__(self, A, stamps):
        self.A = A; self.stamps = stamps; self.n = 0
    def stamp(self):
        if not self.stamps: return
        A = self.A; i = self.n; self.n += 1
        assert i < 30
        A("s_memtime s[100:101]\ns_waitcnt lgkmcnt(0)\nv_mov_b32 v254, s100\ns_mov_b64 exec, 1")
        A(f"buffer_store_dword v254, v255, s[96:99], 0 offen offset:{8 + 4*i}\ns_mov_b64 exec, -1")
    def rt(self, slot):
        if not self.stamps: return
        A = self.A
        A("s_memrealtime s[100:101]\ns_waitcnt lgkmcnt(0)\nv_mov_b32 v254, s100\ns_mov_b64 exec, 1")
        A(f"buffer_store_dword v254, v255, s[96:99], 0 offen offset:{4*slot}\ns_mov_b64 exec, -1")
    def ptrs_g1(self):
        self.A("s_mov_b32 s28, s78\ns_mov_b32 s29, s79\ns_mov_b32 s54, s80\ns_mov_b32 s55, s81")

FLAG_BYTES = 5 * 16 * 64 * 128
def flag_off(kind, group_s, slot_s):
    return f"s_add_u32 s44, {group_s}, {kind*16}\ns_lshl_b32 s44, s44, 6\ns_add_u32 s44, s44, {slot_s}\ns_lshl_b32 s44, s44, 7"

def signal(A, name, idx_exprs, sync=True):
    if sync: A("s_waitcnt vmcnt(0)\ns_barrier")
    lab = A.newlabel(name + "_sg")
    A(f"s_cmp_eq_u32 s36, 0\ns_cbranch_scc0 {lab}")
    srd_off(A, 24, 32, 33, WS_FLAG, FLAG_BYTES)
    A("v_mov_b32 v251, s69\ns_mov_b64 exec, 1")
    for e in idx_exprs:
        A(e); A("v_mov_b32 v250, s44\nbuffer_store_dword v251, v250, s[24:27], 0 offen sc1")
    A("s_mov_b64 exec, -1")
    A.label(lab)

def wait_flags(A, name, kind, group_s, nslots, barrier=True):
    lab = A.newlabel(name + "_wf")
    A(f"s_cmp_eq_u32 s36, 0\ns_cbranch_scc0 {lab}")
    srd_off(A, 24, 32, 33, WS_FLAG, FLAG_BYTES)
    A(flag_off(kind, group_s, 0))
    A(f"v_lshlrev_b32 v250, 7, v15\nv_add_u32 v250, s44, v250")
    A(f"s_mov_b32 s46, {hex(((1 << nslots) - 1) & 0xffffffff)}\ns_mov_b32 s47, {hex(((1 << nslots) - 1) >> 32)}")
    poll = A.newlabel(name + "_pl")
    A.label(poll)
    A("buffer_load_dword v251, v250, s[24:27], 0 offen sc1\ns_waitcnt vmcnt(0)")
    A("v_cmp_eq_u32 s[48:49], s69, v251\ns_and_b64 s[48:49], s[48:49], s[46:47]")
    A(f"s_cmp_eq_u64 s[48:49], s[46:47]\ns_cbranch_scc1 {lab}\ns_sleep 2\ns_branch {poll}")
    A.label(lab)
    if barrier: A("s_barrier")

def g2_pre_p(Fo, name):
    A = Fo.A
    srd_off(A, 4, 32, 33, WS_WSP, 2048 * 4096)
    A(f"""
    s_lshl_b32 s44, s34, 7
    s_lshl_b32 s45, s36, 5
    s_add_u32 s44, s44, s45
    v_lshlrev_b32 v1, 4, v15
    s_lshl_b32 s46, s44, 12
    v_add_u32 v2, s46, v1
    v_add_u32 v3, 0x10000, v2
    """)
    for s in range(3):
        A(f"s_mov_b32 s39, {s*4096}")
        for n in range(8 if s < 2 else 4):
            ks, i = n // 2, n % 2
            A(f"buffer_load_dwordx4 {ar(s*32 + ks*8 + i*4, 4)}, v{2+i}, s[4:7], s39 offen offset:{ks*1024} sc1")

def wait_flags_all(A, name, kind, nslots_log2, barrier=True):
    lab = A.newlabel(name + "_wa")
    A(f"s_cmp_eq_u32 s36, 0\ns_cbranch_scc0 {lab}")
    srd_off(A, 24, 32, 33, WS_FLAG, FLAG_BYTES)
    gpl = 64 >> nslots_log2
    nld = 16 // gpl
    A(f"v_lshrrev_b32 v250, {nslots_log2}, v15\nv_lshlrev_b32 v250, 13, v250\nv_and_b32 v251, {(1<<nslots_log2)-1}, v15\nv_lshlrev_b32 v251, 7, v251\nv_add_u32 v250, v250, v251")
    poll = A.newlabel(name + "_pa")
    A.label(poll)
    for j in range(nld):
        A(f"s_mov_b32 s44, {(kind*16 + j*gpl)*8192}\nbuffer_load_dword v{240+j}, v250, s[24:27], s44 offen sc1")
    A("s_waitcnt vmcnt(0)")
    A("s_mov_b64 s[46:47], -1")
    for j in range(nld):
        A(f"v_cmp_eq_u32 s[48:49], s69, v{240+j}\ns_and_b64 s[46:47], s[46:47], s[48:49]")
    A(f"s_cmp_eq_u64 s[46:47], -1\ns_cbranch_scc1 {lab}\ns_sleep 2\ns_branch {poll}")
    A.label(lab)
    if barrier: A("s_barrier")

def get_nonce(A, name):
    srd(A, 24, 86, 87, 256)
    poll = A.newlabel(name + "_nn")
    A("v_mov_b32 v250, 0")
    A.label(poll)
    A("buffer_load_dword v251, v250, s[24:27], 0 offen sc1\ns_waitcnt vmcnt(0)\nv_readfirstlane_b32 s69, v251")
    A(f"s_cmp_lg_u32 s69, 0\ns_cbranch_scc1 {poll}_ok\ns_sleep 1\ns_branch {poll}")
    A.label(poll + "_ok")

def gen_g2f(Fo, name, post_loop=None, mid=None):
    A = Fo.A; stamp = Fo.stamp
    SLOT = 36864
    ACC = 128; PR = 0; QV = [16, 52]; Z1V = 88; Z1A = 128
    vP = [2, 3]; vQd = [4, 5, 6]; vQr = [8, 9, 10, 11]; vB = [12, 13]; vL = 15
    srd_off(A, 4, 32, 33, WS_WSP, 2048 * 4096)
    A("s_mul_i32 s44, s35, 589824")
    A(f"s_add_u32 s44, s44, {WS_Z2N}")
    srd_off(A, 8, 32, 33, "s44", 589824)
    srd_off(A, 16, 32, 33, WS_H, 128 * 72 * 1024)
    srd(A, 20, 82, 83, 4096)
    A(f"""
    s_lshl_b32 s44, s34, 7
    s_lshl_b32 s45, s36, 5
    s_add_u32 s44, s44, s45
    v_and_b32 v1, 15, v{vL}
    v_add_u32 v1, s44, v1
    v_lshlrev_b32 v{vB[0]}, 1, v1
    v_add_u32 v{vB[1]}, 32, v{vB[0]}
    v_lshlrev_b32 v1, 4, v{vL}
    s_lshl_b32 s46, s44, 12
    v_add_u32 v{vP[0]}, s46, v1
    v_add_u32 v{vP[1]}, 0x10000, v{vP[0]}
    s_mul_i32 s45, s36, 9216
    v_add_u32 v{vQd[0]}, s45, v1
    v_add_u32 v{vQd[1]}, 0x1000, v{vQd[0]}
    v_add_u32 v{vQd[2]}, 0x2000, v{vQd[0]}
    v_mov_b32 v{vQr[0]}, v1
    v_add_u32 v{vQr[1]}, {SLOT}, v1
    v_add_u32 v{vQr[2]}, {2*SLOT}, v1
    v_add_u32 v{vQr[3]}, {3*SLOT}, v1
    s_mov_b32 s40, s45
    s_add_u32 s41, s45, {SLOT}
    s_add_u32 s42, s45, {2*SLOT}
    s_add_u32 s43, s45, {3*SLOT}
    """)
    def dm(slot, j):
        g = j // 4
        pre = f"s_add_u32 m0, s{40+slot}, {g*4096}\ns_nop 0\n" if j % 4 == 0 else ""
        return pre + f"buffer_load_dwordx4 v{vQd[g]}, s[8:11], s38 offen offset:{(j%4)*1024} sc1 lds"
    def pl(slot, n):
        ks, i = n // 2, n % 2
        return f"buffer_load_dwordx4 {ar(PR + slot*32 + ks*8 + i*4, 4)}, v{vP[i]}, s[4:7], s39 offen offset:{ks*1024} sc1"
    def G(slot):
        ops = []
        for j in range(9):
            ops.append(dm(slot, j))
            if j < 8: ops.append(pl(slot, j))
        ops[-1] += f"\ns_add_u32 s38, s38, {SLOT}\ns_add_u32 s39, s39, 4096"
        return ops
    for i in range(2):
        A(f"buffer_load_ushort v{124+i}, v{vB[i]}, s[20:23], 0 offen")
    for r in range(72): A(f"v_mov_b32 v{ACC+r}, 0")
    stamp()
    wait_flags_all(A, name, 1, 4, barrier=False)
    wait_flags(A, name, 0, "s35", 16)
    stamp()
    A("s_mov_b32 s38, 0\ns_mov_b32 s39, 0")
    for op in G(0): A(op)
    A("s_barrier")
    for op in G(1): A(op)
    for op in G(2)[0:9]: A(op)
    A("s_waitcnt vmcnt(26)")
    A("s_barrier")
    def qreads(buf, slot, ks):
        return [f"ds_read_b128 {vr(QV[buf]+jn*4,4)}, v{vQr[slot]} offset:{(ks*9+jn)*1024}" for jn in range(9)]
    def mfmas(buf, slot, ks):
        out = []
        for jn in range(9):
            for i in range(2):
                c = vr(ACC + (i*9+jn)*4, 4)
                out.append(f"v_mfma_f32_16x16x32_bf16 {c}, {vr(QV[buf]+jn*4,4)}, {ar(PR+slot*32+ks*8+i*4,4)}, {c}")
        return out
    for x in qreads(0, 0, 0): A(x)
    stamp()
    A("s_mov_b32 s37, 0")
    A.label(f"{name}_loop")
    for u in range(4):
        g = G((u + 3) & 3); gprev = G((u + 2) & 3)
        for ks in range(4):
            A("s_waitcnt lgkmcnt(0)")
            rd = qreads((ks + 1) & 1, u, ks + 1) if ks < 3 else qreads(0, (u + 1) & 3, 0)
            gl = [gprev[9:13], gprev[13:17], g[0:5], g[5:9]][ks]
            mf = mfmas(ks & 1, u, ks)
            for j in range(18):
                A(mf[j])
                if j < 9: A(rd[j])
                elif (j - 9) % 2 == 0 and (j - 9) // 2 < len(gl): A(gl[(j - 9) // 2])
            if ks == 1:
                A("s_waitcnt vmcnt(17)")
                A("s_barrier")
                if u == 1:
                    skip = A.newlabel(name + "_sk")
                    A(f"s_cmp_eq_u32 s37, 3\ns_cbranch_scc0 {skip}")
                    for v in vP + vQd: A(f"v_mov_b32 v{v}, 0x80000000")
                    A.label(skip)
    A(f"s_add_u32 s37, s37, 1\ns_cmp_lt_u32 s37, 4\ns_cbranch_scc1 {name}_loop")
    stamp()
    A("s_waitcnt vmcnt(0)\ns_barrier")
    if post_loop: post_loop()
    for r in range(36): A(f"v_accvgpr_read_b32 v{Z1V+r}, a{Z1A+r}")
    A("v_lshlrev_b32 v200, 16, v124\nv_lshlrev_b32 v201, 16, v124\nv_lshlrev_b32 v202, 16, v125\nv_lshlrev_b32 v203, 16, v125")
    A(f"""
    s_lshl_b32 s44, s34, 3
    s_lshl_b32 s45, s36, 1
    s_add_u32 s44, s44, s45
    s_mul_i32 s44, s44, 72
    s_lshr_b32 s45, s35, 1
    s_mul_i32 s45, s45, 9
    s_add_u32 s44, s44, s45
    s_and_b32 s46, s35, 1
    s_mul_i32 s47, s46, 5
    s_add_u32 s47, s47, s44
    s_lshl_b32 s47, s47, 10
    s_add_u32 s48, s44, 4
    s_lshl_b32 s48, s48, 10
    s_lshl_b32 s51, s46, 3
    s_add_u32 s48, s48, s51
    s_add_u32 s49, s47, 73728
    s_add_u32 s50, s48, 73728
    v_lshlrev_b32 v1, 4, v{vL}
    """)
    T = 204
    for i in range(2):
        for jn in range(9):
            c = ACC + (i*9+jn)*4; z = Z1V + (i*9+jn)*2; t = T + ((i*9+jn) & 1) * 4
            A(f"v_lshlrev_b32 v{t}, 16, v{z}")
            A(f"v_and_b32 v{t+1}, 0xffff0000, v{z}")
            A(f"v_lshlrev_b32 v{t+2}, 16, v{z+1}")
            A(f"v_and_b32 v{t+3}, 0xffff0000, v{z+1}")
            A(f"v_pk_add_f32 {vr(c,2)}, {vr(c,2)}, {vr(200+2*i,2)}")
            A(f"v_pk_add_f32 {vr(c+2,2)}, {vr(c+2,2)}, {vr(200+2*i,2)}")
            A(f"v_pk_mul_f32 {vr(c,2)}, {vr(c,2)}, {vr(t,2)}")
            A(f"v_pk_mul_f32 {vr(c+2,2)}, {vr(c+2,2)}, {vr(t+2,2)}")
            A(f"v_cvt_pk_bf16_f32 v{z}, v{c}, v{c+1}")
            A(f"v_cvt_pk_bf16_f32 v{z+1}, v{c+2}, v{c+3}")
    odd = A.newlabel(name + "_odd"); done = A.newlabel(name + "_sd")
    A(f"""
    v_bfe_u32 v2, v{vL}, 4, 1
    v_mul_u32_u24 v2, 73728, v2
    v_lshrrev_b32 v3, 5, v{vL}
    v_lshlrev_b32 v3, 8, v3
    v_add_u32 v2, v2, v3
    v_and_b32 v3, 15, v{vL}
    v_lshlrev_b32 v3, 4, v3
    v_add_u32 v2, v2, v3
    s_add_u32 s48, s44, 4
    s_lshl_b32 s48, s48, 10
    s_lshl_b32 s51, s46, 9
    s_add_u32 s48, s48, s51
    """)
    def single(jn):
        a0 = Z1V + jn*2; a1 = Z1V + (9+jn)*2
        A(f"v_mov_b32 v4, v{a0}\nv_mov_b32 v5, v{a0+1}\nv_mov_b32 v6, v{a1}\nv_mov_b32 v7, v{a1+1}\ns_nop 1")
        A("v_permlane16_swap_b32 v4, v6\nv_permlane16_swap_b32 v5, v7\ns_nop 0")
        A("buffer_store_dwordx4 v[4:7], v2, s[16:19], s48 offen sc1")
    A(f"s_cmp_eq_u32 s46, 1\ns_cbranch_scc1 {odd}")
    for i in range(2):
        for p in range(4):
            A(f"buffer_store_dwordx4 {vr(Z1V+(i*9+2*p)*2,4)}, v1, s[16:19], s{47 if i==0 else 49} offen offset:{p*1024} sc1")
    single(8)
    A(f"s_branch {done}")
    A.label(odd)
    for i in range(2):
        for p in range(4):
            A(f"buffer_store_dwordx4 {vr(Z1V+(i*9+1+2*p)*2,4)}, v1, s[16:19], s{47 if i==0 else 49} offen offset:{p*1024} sc1")
    single(0)
    A.label(done)

def g3_pre_q(Fo, name):
    A = Fo.A
    A(f"""
    s_lshr_b32 s45, s2, 5
    s_min_u32 s45, s45, 5
    s_mul_i32 s44, s45, {72*6*1024}
    s_add_u32 s44, s44, {WS_WOT}
    """)
    srd_off(A, 4, 32, 33, "s44", 72*6*1024)
    A("v_lshlrev_b32 v1, 4, v15\ns_lshl_b32 s40, s36, 10\nv_add_u32 v2, s40, v1")
    for j in range(1, 6): A(f"v_add_u32 v{2+j}, {j*4096}, v2")
    for s in range(4):
        A(f"s_mov_b32 s38, {s*24*1024}")
        for j in range(6):
            A(f"s_add_u32 m0, s40, {s*24576 + j*4096}\ns_nop 0\nbuffer_load_dwordx4 v{2+j}, s[4:7], s38 offen lds")

def gen_g3f(Fo, name):
    A = Fo.A; stamp = Fo.stamp
    R = 6; S = 4
    ACC = 16; QB = [96, 120]; PR = 0
    vQd = [2, 3, 4, 5, 6, 7]; vP = [8]; vL = 15; vQr = [9, 10, 11, 12, 13, 14]
    A(f"""
    s_and_b32 s44, s2, 7
    s_lshr_b32 s45, s2, 3
    s_lshl_b32 s34, s44, 2
    s_and_b32 s46, s45, 3
    s_add_u32 s34, s34, s46
    s_lshr_b32 s35, s45, 2
    v_lshlrev_b32 v1, 4, v{vL}
    s_lshl_b32 s44, s34, 2
    s_add_u32 s58, s44, s36
    s_mul_i32 s44, s58, 73728
    v_add_u32 v{vP[0]}, s44, v1
    """)
    A(f"s_mul_i32 s44, s35, {72*6*1024}\ns_add_u32 s44, s44, {WS_WOT}")
    srd_off(A, 4, 32, 33, "s44", 72*6*1024)
    srd_off(A, 8, 32, 33, WS_H, 128 * 72 * 1024)
    c = Core(A, name + "_g", 1, 6, 72, S, R, ACC, QB, "a", PR, vP, vQd, vQr, 8, 4, "s38", "s39", "s40", "s37", 1024, orient="QP")
    c.p_flags = " sc1"
    c.setup_addr(1, "s36", 12)
    h = c.gsize // 2
    def split(slot):
        ops = c.G(slot);
        return ops
    pre = []; post = []
    for s in range(R - 1):
        ops = c.G(s)
        ops = ops if s < R - 2 else ops[:h]
        q = [o for o in ops if " lds" in o]; p = [o for o in ops if " lds" not in o]
        strip = lambda o: o.split("\ns_add_u32 s38, s38")[0]
        if s == R - 2:
            pre.append(f"s_mov_b32 s38, {s*S*6*1024}"); pre += [strip(o) for o in q]
        post.append(f"s_mov_b32 s39, {s*S*1024}"); post += [strip(o) for o in p]
    Fo.pre_g3()
    for o in pre: A(o)
    srd(A, 12, 76, 77, 2048 * 1152)
    srd_off(A, 16, 32, 33, WS_S, 288 * 8192)
    srd(A, 20, 84, 85, 2048 * 1152)
    for r in range(24): A(f"v_mov_b32 v{ACC+r}, 0")
    stamp()
    A("s_lshr_b32 s59, s34, 1")
    wait_flags(A, name, 2, "s59", 16)
    stamp()
    for o in post: A(o)
    A(f"s_mov_b32 s38, {(R-2)*S*6*1024}\ns_mov_b32 s39, {(R-2)*S*1024}")
    A("s_waitcnt vmcnt(0)\ns_barrier")
    for x in c.qreads(0, 0, 0): A(x)
    stamp()
    def tail(A):
        A(f"""
        v_and_b32 v1, 15, v{vL}
        s_lshl_b32 s44, s58, 4
        v_add_u32 v1, s44, v1
        v_mul_u32_u24 v1, 1152, v1
        v_lshrrev_b32 v40, 4, v{vL}
        v_lshlrev_b32 v40, 3, v40
        v_add_u32 v1, v1, v40
        s_mul_i32 s44, s35, 192
        v_add_u32 v1, s44, v1
        """)
        for jd in range(6):
            A(f"buffer_load_dwordx2 {vr(52+2*jd,2)}, v1, s[12:15], 0 offen offset:{jd*32}")
    c.loop(True, tail_hook=tail)
    stamp()
    wait_flags(A, name, 3, "s35", 48)
    A(f"""
    v_lshrrev_b32 v12, 4, v{vL}
    v_lshlrev_b32 v12, 14, v12
    v_and_b32 v13, 15, v{vL}
    v_lshlrev_b32 v13, 2, v13
    v_add_u32 v12, v12, v13
    s_mul_i32 s44, s35, {48*8192}
    s_lshl_b32 s45, s58, 6
    s_add_u32 s44, s44, s45
    """)
    for jd in range(6):
        for e in range(2):
            A(f"s_add_u32 s45, s44, {(8*jd + e)*8192}")
            A(f"buffer_load_dword v{64+2*jd+e}, v12, s[16:19], s45 offen sc1")
    NL2E = -math.log2(math.e)
    A(f"v_mov_b32 v76, {hex(f2u(NL2E))}\nv_mov_b32 v77, {hex(f2u(NL2E))}\nv_mov_b32 v78, 1.0\nv_mov_b32 v79, 1.0")
    for jd in range(6):
        cc = ACC + jd*4; t = 80 + (jd % 2) * 4
        A(f"v_pk_mul_f32 {vr(t,2)}, {vr(cc,2)}, v[76:77]")
        A(f"v_pk_mul_f32 {vr(t+2,2)}, {vr(cc+2,2)}, v[76:77]")
        for r in range(4): A(f"v_exp_f32 v{t+r}, v{t+r}")
        A(f"v_pk_add_f32 {vr(t,2)}, {vr(t,2)}, v[78:79]")
        A(f"v_pk_add_f32 {vr(t+2,2)}, {vr(t+2,2)}, v[78:79]")
        for r in range(4): A(f"v_rcp_f32 v{t+r}, v{t+r}")
        A("s_nop 0")
        A(f"v_pk_mul_f32 {vr(cc,2)}, {vr(cc,2)}, {vr(t,2)}")
        A(f"v_pk_mul_f32 {vr(cc+2,2)}, {vr(cc+2,2)}, {vr(t+2,2)}")
    A("s_waitcnt vmcnt(0)")
    for jd in range(6):
        cc = ACC + jd*4; t = 88 + (jd % 2) * 8
        A(f"v_lshlrev_b32 v{t+4}, 16, v{64+2*jd}\nv_and_b32 v{t+5}, 0xffff0000, v{64+2*jd}")
        A(f"v_lshlrev_b32 v{t+6}, 16, v{65+2*jd}\nv_and_b32 v{t+7}, 0xffff0000, v{65+2*jd}")
        A(f"v_lshlrev_b32 v{t}, 16, v{52+2*jd}\nv_and_b32 v{t+1}, 0xffff0000, v{52+2*jd}")
        A(f"v_lshlrev_b32 v{t+2}, 16, v{53+2*jd}\nv_and_b32 v{t+3}, 0xffff0000, v{53+2*jd}")
        A(f"v_pk_fma_f32 {vr(cc,2)}, {vr(cc,2)}, {vr(t+4,2)}, {vr(t,2)}")
        A(f"v_pk_fma_f32 {vr(cc+2,2)}, {vr(cc+2,2)}, {vr(t+6,2)}, {vr(t+2,2)}")
        o = 104 + (jd // 2) * 4 + (jd % 2) * 2
        A(f"v_cvt_pk_bf16_f32 v{o}, v{cc}, v{cc+1}")
        A(f"v_cvt_pk_bf16_f32 v{o+1}, v{cc+2}, v{cc+3}")
    A(f"""
    v_and_b32 v1, 15, v{vL}
    s_lshl_b32 s44, s58, 4
    v_add_u32 v1, s44, v1
    v_mul_u32_u24 v1, 1152, v1
    v_bfe_u32 v12, v{vL}, 4, 1
    v_lshlrev_b32 v12, 5, v12
    v_add_u32 v1, v1, v12
    v_lshrrev_b32 v12, 5, v{vL}
    v_lshlrev_b32 v12, 4, v12
    v_add_u32 v1, v1, v12
    s_mul_i32 s44, s35, 192
    v_add_u32 v1, s44, v1
    """)
    for p in range(3):
        o = 104 + p*4
        A(f"v_permlane16_swap_b32 v{o}, v{o+2}")
        A(f"v_permlane16_swap_b32 v{o+1}, v{o+3}")
    A("s_nop 0")
    for p in range(3):
        A(f"buffer_store_dwordx4 {vr(104+p*4,4)}, v1, s[20:23], 0 offen offset:{p*64}")

def gen_fused(name, stamps=False):
    A = Asm(); Fo = F(A, stamps); Fo.single = True
    A(f"""
    s_cmp_ge_u32 s2, 256
    s_cbranch_scc1 {name}_end
    s_load_dwordx2 s[76:77], s[0:1], 0
    s_load_dwordx8 s[56:63], s[0:1], 8
    s_load_dwordx2 s[64:65], s[0:1], 40
    s_load_dwordx2 s[88:89], s[0:1], 48
    s_load_dwordx2 s[78:79], s[0:1], 64
    s_load_dwordx4 s[80:83], s[0:1], 72
    s_load_dwordx2 s[74:75], s[0:1], 88
    s_load_dwordx4 s[84:87], s[0:1], 96
    s_load_dwordx2 s[32:33], s[0:1], 112
    s_memrealtime s[66:67]
    s_and_b32 s44, s2, 7
    s_lshr_b32 s45, s2, 3
    s_and_b32 s34, s44, 1
    s_lshl_b32 s34, s34, 3
    s_and_b32 s46, s45, 7
    s_add_u32 s34, s34, s46
    s_lshr_b32 s35, s44, 1
    s_lshl_b32 s35, s35, 2
    s_lshr_b32 s46, s45, 3
    s_add_u32 s35, s35, s46
    v_lshrrev_b32 v1, 6, v0
    v_and_b32 v15, 63, v0
    s_nop 0
    v_readfirstlane_b32 s36, v1
    s_waitcnt lgkmcnt(0)
    """)
    if stamps:
        srd_off(A, 96, 32, 33, WS_STAMP + 0x100000, 0x40000)
        A("s_lshl_b32 s44, s2, 2\ns_add_u32 s44, s44, s36\ns_lshl_b32 s44, s44, 7\nv_mov_b32 v255, s44")
        Fo.rt(0); Fo.stamp()
    nl = A.newlabel(name + "_np")
    A(f"s_cmp_eq_u32 s2, 0\ns_cbranch_scc0 {nl}\ns_cmp_eq_u32 s36, 0\ns_cbranch_scc0 {nl}")
    srd(A, 24, 86, 87, 256)
    A("s_or_b32 s66, s66, 1\nv_mov_b32 v251, s66\nv_mov_b32 v250, 0\ns_mov_b64 exec, 1")
    A("buffer_store_dword v251, v250, s[24:27], 0 offen sc1\ns_mov_b64 exec, -1")
    A.label(nl)
    p0_issue(A, name)
    A("s_lshl_b32 s70, s2, 1\ns_add_u32 s71, s70, 1\ns_mov_b32 s72, s2")
    def kgen_call(nm, pair0_s, first):
        A(f"s_lshr_b32 s38, s36, 1\ns_and_b32 s37, s36, 1\ns_add_u32 s73, {pair0_s}, s38")
        def nonce_async():
            srd(A, 24, 86, 87, 256)
            A("v_mov_b32 v250, 0\nbuffer_load_dword v249, v250, s[24:27], 0 offen sc1")
        def hook():
            p0_issue_hi(A, nm)
            p0_ln(A, nm, None, Fo.stamp, pre_store=nonce_async)
            Fo.stamp()
            l1 = A.newlabel(nm + "_pw"); l2 = A.newlabel(nm + "_pw2")
            A(f"s_cmp_ge_u32 s36, 2\ns_cbranch_scc1 {l1}\ns_waitcnt vmcnt(4)\ns_branch {l2}")
            A.label(l1)
            A("s_waitcnt vmcnt(11)")
            A.label(l2)
        def xflag():
            A("s_waitcnt vmcnt(0)\nv_readfirstlane_b32 s69, v249")
            have = A.newlabel(nm + "_hv")
            A(f"s_cmp_lg_u32 s69, 0\ns_cbranch_scc1 {have}")
            get_nonce(A, nm)
            A.label(have)
            srd_off(A, 24, 32, 33, WS_FLAG, FLAG_BYTES)
            A("s_lshr_b32 s45, s2, 4\ns_and_b32 s46, s2, 15\ns_lshl_b32 s46, s46, 1\ns_add_u32 s46, s46, s36")
            A(flag_off(4, "s45", "s46"))
            A("v_mov_b32 v250, s44\nv_mov_b32 v251, s69\ns_mov_b64 exec, 1\nbuffer_store_dword v251, v250, s[24:27], 0 offen sc1\ns_mov_b64 exec, -1")
            A(f"v_mov_b32 v250, {P0_LN + 9600}\nds_write_b32 v250, v251\ns_waitcnt lgkmcnt(0)")
        def iter_hook():
            l1 = A.newlabel(nm + "_ih"); l2 = A.newlabel(nm + "_ih2")
            A(f"s_cmp_eq_u32 s52, 2\ns_cbranch_scc0 {l1}\ns_cmp_ge_u32 s36, 2\ns_cbranch_scc1 {l2}")
            xflag()
            A(f"s_branch {l1}")
            A.label(l2)
            A("s_barrier")
            A.label(l1)
        def after_loop():
            Fo.stamp()
        def mid2():
            Fo.stamp()
            A(f"v_mov_b32 v250, {P0_LN + 9600}\nds_read_b32 v251, v250\ns_waitcnt lgkmcnt(0)\nv_readfirstlane_b32 s69, v251")
        gen_kgen(A, nm, "s73", P0_KG if first else 0, after_loads=hook if first else None, wait_extra=(63 if first else 0), mid2=mid2 if first else None, iter_hook=iter_hook if first else None, after_loop=after_loop if first else None)
    kgen_call(name + "_k0", "s70", True)
    Fo.stamp()
    A("s_barrier")
    Fo.wot_ops = wot_dma_ops(A)
    Fo.wot_fin = lambda: p0_wot(A, name)
    cvA = Conv1(A, name + "_ca", 61440, 102656, True)
    def pfA():
        wait_flags_all(A, name, 4, 5)
        cvA.prefetch("s70")
    Fo.after_loop = pfA
    Fo.wait_xn = lambda: wait_flags(A, name, 4, "s34", 32)
    Fo.sig_wsp = lambda: signal(A, name, ["s_lshr_b32 s45, s2, 4\ns_and_b32 s46, s2, 15\n" + flag_off(1, "s45", "s46")], sync=False)
    Fo.wait_wsp = lambda: wait_flags(A, name, 1, "s34", 16)
    gen_g1(name + "_g1", stamps, Fo)
    sigA = lambda: signal(A, name, [flag_off(0, "s35", "s34"), "s_lshr_b32 s45, s2, 4\ns_and_b32 s46, s2, 15\n" + flag_off(1, "s45", "s46")], sync=False)
    def sigA2():
        Fo.stamp(); sigA()
    cvA.stamp = Fo.stamp
    cvA.compute(False, "s72", 63, mid_hook=sigA2)
    Fo.stamp()
    cvB = Conv1(A, name + "_cb", 106240, 106240 + 41216, True)
    gen_g2f(Fo, name + "_g2", post_loop=lambda: cvB.prefetch("s71"))
    Fo.stamp()
    sigB = lambda: signal(A, name, [flag_off(2, "s34", "s35")], sync=False)
    g3_pre_q(Fo, name + "_g3q")
    cvB.compute(True, "s72", 9 + 24, mid_hook=sigB, mid_wait=24)
    sigS = lambda: signal(A, name, ["s_mul_i32 s45, s72, 1366\ns_lshr_b32 s45, s45, 16\ns_mul_i32 s46, s45, 48\ns_sub_u32 s46, s72, s46\n" + flag_off(3, "s45", "s46")])
    Fo.stamp()
    xtra = A.newlabel(name + "_x"); fin = A.newlabel(name + "_fin")
    A(f"s_lshr_b32 s44, s2, 3\ns_cmp_ge_u32 s44, 24\ns_cbranch_scc1 {xtra}")
    Fo.pre_g3 = sigS
    gen_g3f(Fo, name + "_g3")
    A(f"s_branch {fin}")
    A.label(xtra)
    sigS()
    A(f"s_sub_u32 s44, s2, 192\ns_cmp_ge_u32 s44, 32\ns_cbranch_scc1 {fin}")
    A("s_add_u32 s72, s2, 64\ns_lshl_b32 s70, s72, 1\ns_add_u32 s71, s70, 1")
    A("s_load_dwordx8 s[56:63], s[0:1], 8\ns_load_dwordx2 s[64:65], s[0:1], 40\ns_waitcnt lgkmcnt(0)")
    kgen_call(name + "_k1", "s70", False)
    A("s_waitcnt vmcnt(0)\ns_barrier")
    cvC = Conv1(A, name + "_cc", 0, 41216, True)
    cvC.prefetch("s70"); cvC.compute(False, "s72", 0)
    A("s_barrier")
    cvD = Conv1(A, name + "_cd", 0, 41216, True)
    cvD.prefetch("s71"); cvD.compute(True, "s72", 0)
    sigS()
    A.label(fin)
    if stamps:
        A("s_waitcnt vmcnt(0)")
        Fo.n = 28; Fo.stamp(); Fo.rt(1)
    A.label(f"{name}_end")
    A("s_endpgm")
    return A.text(), kernel_desc(name, 256, 256), 163840
```

```python
from asmlib import *
import math

class VM:
    def __init__(self): self.ops = []
    def issue(self, tag): self.ops.append(tag)
    def wait(self, tags):
        if not isinstance(tags, (list, tuple, set)): tags = [tags]
        c = [i for i, t in enumerate(self.ops) if t in tags]
        if not c: return 63
        last = max(c)
        return len(self.ops) - 1 - last

GC0 = -2.0 * math.log2(math.e) * math.sqrt(2.0 / math.pi)
GC1 = GC0 * 0.044715
import struct
def f2u(x): return struct.unpack("<I", struct.pack("<f", x))[0]

def gelu_ops(pairs, tmp, vC0, vC1, vOne):
    ops = []
    n = len(tmp)
    for g in range(0, len(pairs), n):
        grp = pairs[g:g+n]
        seq = [[] for _ in grp]
        for j, c in enumerate(grp):
            t = tmp[j]
            seq[j] = [
                f"v_pk_mul_f32 {vr(t,2)}, {vr(c,2)}, {vr(c,2)}",
                f"v_pk_fma_f32 {vr(t,2)}, {vr(t,2)}, {vr(vC1,2)}, {vr(vC0,2)}",
                f"v_pk_mul_f32 {vr(t,2)}, {vr(t,2)}, {vr(c,2)}",
                f"v_exp_f32 v{t}, v{t}",
                f"v_exp_f32 v{t+1}, v{t+1}",
                f"v_pk_add_f32 {vr(t,2)}, {vr(t,2)}, {vr(vOne,2)}",
                f"v_rcp_f32 v{t}, v{t}",
                f"v_rcp_f32 v{t+1}, v{t+1}",
                f"v_pk_mul_f32 {vr(c,2)}, {vr(c,2)}, {vr(t,2)}",
            ]
        for k in range(9):
            for j in range(len(grp)):
                ops.append(seq[j][k])
    return ops


EXP = set()
def gen_g1(name, stamps=False, F=None):
    vm = VM()
    if F is None:
        A = Asm(); ST = Stamper(A, 1, stamps); stamp = ST.stamp
    else:
        A = F.A; stamp = F.stamp
    SC = ' sc1' if F else ''
    R = 5; SLOT = 20480; WSCR = 102400
    NST = 18
    PR = 0; QA = [144, 180]
    ACCA = 16; ACCB = 88
    vQd = [2, 3, 4, 5, 6]; vE0 = 7; vO0 = 8; vE = 9; vO = 10; vL = 15; vP0 = 11; vP1 = 12
    vC0 = 160; vC1 = 162; vOne = 164; TMP = [166, 168, 170]
    S1 = 172; S2 = 180
    W = 188
    if F is None:
        A(f"""
        s_cmp_ge_u32 s2, 256
        s_cbranch_scc1 {name}_end
        s_load_dwordx2 s[28:29], s[0:1], 64
        s_load_dwordx2 s[54:55], s[0:1], 72
        s_load_dwordx2 s[32:33], s[0:1], 112
        """)
        ST.start()
        A(f"""
        s_and_b32 s44, s2, 7
        s_lshr_b32 s45, s2, 3
        s_and_b32 s34, s44, 1
        s_lshl_b32 s34, s34, 3
        s_and_b32 s46, s45, 7
        s_add_u32 s34, s34, s46
        s_lshr_b32 s35, s44, 1
        s_lshl_b32 s35, s35, 2
        s_lshr_b32 s46, s45, 3
        s_add_u32 s35, s35, s46
        v_lshrrev_b32 v1, 6, v0
        v_and_b32 v{vL}, 63, v0
        s_nop 0
        v_readfirstlane_b32 s36, v1
        """)

    for j in range(5):
        d = vQd[j]
        A(f"""
        s_lshl_b32 s44, s36, 6
        s_add_u32 s44, s44, {256*j}
        v_add_u32 v16, s44, v{vL}
        v_mul_u32_u24 v17, 1821, v16
        v_lshrrev_b32 v17, 16, v17
        v_mul_u32_u24 v18, 36, v17
        v_sub_u32 v18, v16, v18
        v_lshrrev_b32 v19, 1, v18
        v_bfe_u32 v20, v17, 3, 1
        v_xor_b32 v19, v19, v20
        v_cmp_le_u32 vcc, 9, v19
        s_nop 1
        v_cndmask_b32 v20, 0, 1, vcc
        v_mul_u32_u24 v21, 9, v20
        v_sub_u32 v19, v19, v21
        v_lshlrev_b32 v20, 5, v20
        v_add_u32 v17, v17, v20
        v_mul_u32_u24 v17, 9216, v17
        v_lshlrev_b32 v19, 5, v19
        v_and_b32 v18, 1, v18
        v_lshlrev_b32 v18, 4, v18
        v_add3_u32 v{d}, v17, v19, v18
        """)
        if j == 4:
            A(f"v_mov_b32 v17, 0x80000000\nv_cmp_gt_u32 vcc, 1152, v16\ns_nop 1\nv_cndmask_b32 v{d}, v17, v{d}, vcc")
    A(f"""
    v_lshrrev_b32 v16, 4, v{vL}
    v_bfe_u32 v17, v{vL}, 2, 2
    v_lshlrev_b32 v18, 3, v16
    v_add_u32 v18, v18, v17
    v_mul_u32_u24 v18, 576, v18
    v_and_b32 v19, 3, v{vL}
    v_lshlrev_b32 v19, 3, v19
    v_add_u32 v18, v18, v19
    v_and_b32 v16, 1, v16
    v_lshlrev_b32 v16, 5, v16
    v_add_u32 v{vE0}, v18, v16
    v_sub_u32 v{vO0}, v18, v16
    v_lshlrev_b32 v1, 4, v{vL}
    s_lshl_b32 s44, s34, 3
    s_lshl_b32 s45, s36, 1
    s_add_u32 s44, s44, s45
    s_mul_i32 s44, s44, 18432
    v_add_u32 v{vP0}, s44, v1
    v_add_u32 v{vP1}, 18432, v{vP0}
    s_waitcnt lgkmcnt(0)
    """)
    if F: F.ptrs_g1()
    srd(A, 4, 28, 29, 576 * 9216)
    srd_off(A, 8, 32, 33, WS_XN, 128 * 18 * 1024)
    A("s_lshl_b32 s44, s34, 4\ns_add_u32 s44, s44, s35\ns_mul_i32 s44, s44, 36864")
    A(f"s_add_u32 s44, s44, {WS_Z1}")
    srd_off(A, 12, 32, 33, "s44", 36864)
    srd_off(A, 16, 32, 33, WS_Z2N, 16 * 589824)
    srd_off(A, 20, 32, 33, WS_STAT, 16 * 16 * 2048)
    A("s_mul_i32 s38, s35, 288\ns_add_u32 s37, s38, 4608")
    A("s_lshl_b32 s39, s36, 10")
    for i in range(5): A(f"s_mov_b32 s{64+i}, {4096*i}")
    def G(st):
        ops = []
        slot = st % R
        base = "s37" if st < 9 else "s38"
        koff = (st % 9) * 64 * 9216
        for j in range(5):
            pre = f"s_add_u32 s40, {base}, {koff}\n"
            pre += f"s_add_u32 m0, s39, {slot*SLOT + j*4096}\ns_nop 0\n"
            ops.append((pre + f"buffer_load_dwordx4 v{vQd[j]}, s[4:7], s40 offen lds", f"G{st}"))
        return ops
    def Pl(ks):
        return [(f"buffer_load_dwordx4 {ar(PR+(ks*2+i)*4,4)}, v{[vP0,vP1][i]}, s[8:11], s{64+ks//4} offen offset:{(ks%4)*1024}{' sc1' if (F is not None and getattr(F, 'single', False)) else ''}", f"P{ks}") for i in range(2)]
    def issue(op):
        if 'novm' in EXP and op[1][0] in 'GP' and op[1] not in ('G0','P0','P1'): return
        A(op[0]); vm.issue(op[1])
    srd_off(A, 56, 54, 55, 0, 2048 * 4096)
    srd_off(A, 60, 32, 33, WS_WSP, 2048 * 4096)
    vW = 13; vWs = 14; vWr = 253
    A(f"""
    s_lshr_b32 s44, s2, 1
    s_lshl_b32 s45, s44, 4
    v_lshrrev_b32 v16, 2, v{vL}
    v_add_u32 v16, s45, v16
    v_lshlrev_b32 v16, 12, v16
    v_and_b32 v17, 3, v{vL}
    v_lshlrev_b32 v17, 4, v17
    v_add_u32 v{vW}, v16, v17
    s_and_b32 s45, s2, 1
    s_lshl_b32 s45, s45, 2
    s_add_u32 s45, s45, s36
    s_lshl_b32 s46, s45, 9
    v_add_u32 v{vW}, s46, v{vW}
    s_lshl_b32 s44, s44, 16
    s_lshl_b32 s45, s45, 13
    s_add_u32 s41, s44, s45
    s_add_u32 s42, s41, 4096
    v_lshlrev_b32 v{vWs}, 4, v{vL}
    s_lshl_b32 s43, s36, 13
    s_add_u32 s43, s43, {WSCR}
    v_and_b32 v16, 15, v{vL}
    v_lshlrev_b32 v16, 2, v16
    v_lshrrev_b32 v17, 4, v{vL}
    v_add_u32 v16, v16, v17
    v_lshlrev_b32 v16, 4, v16
    v_add_u32 v{vWr}, s43, v16
    """)
    WR = 216
    wl = [(f"s_mov_b32 s40, {j*64}\ns_add_u32 m0, s43, {j*1024}\ns_nop 0\nbuffer_load_dwordx4 v{vW}, s[56:59], s40 offen lds", "WL") for j in range(8)]
    wrd = [f"ds_read_b128 {ar(WR+4*j,4)}, v{vWr} offset:{j*1024}" for j in range(8)]
    wsx = [(f"buffer_store_dwordx4 {ar(WR+4*j,4)}, v{vWs}, s[60:63], {'s41' if j < 4 else 's42'} offen offset:{(j%4)*1024}{SC}", "WS") for j in range(8)]
    single = F is not None and getattr(F, "single", False)
    if single:
        for st in (0, 1, 2):
            for op in G(st): issue(op)
        F.wait_xn()
        for ks in range(6):
            for op in Pl(ks): issue(op)
    else:
        for op in G(0): issue(op)
        for ks in (0, 1):
            for op in Pl(ks): issue(op)
        A("s_barrier")
        for st in (1, 2):
            for op in G(st): issue(op)
            for ks in (2*st, 2*st+1):
                for op in Pl(ks): issue(op)
    A(f"v_mov_b32 v{vC0}, {hex(f2u(GC0))}\nv_mov_b32 v{vC0+1}, {hex(f2u(GC0))}\nv_mov_b32 v{vC1}, {hex(f2u(GC1))}\nv_mov_b32 v{vC1+1}, {hex(f2u(GC1))}")
    A(f"v_mov_b32 v{vOne}, 1.0\nv_mov_b32 v{vOne+1}, 1.0")
    for r in range(72): A(f"v_mov_b32 v{ACCA+r}, 0")
    A(f"v_mov_b32 v{vE}, v{vE0}\nv_mov_b32 v{vO}, v{vO0}")
    A(f"s_waitcnt vmcnt({vm.wait(['G0','P0','P1'])})")
    A("s_barrier")
    stamp()
    def qreads(buf, ksl):
        out = []
        for jn in range(9):
            X = ksl * 9 + jn
            b = vE if X % 2 == 0 else vO
            for hf in range(2):
                out.append(f"ds_read_b64_tr_b16 {ar(QA[buf]+jn*4+hf*2,2)}, v{b} offset:{X*32 + hf*2304}")
        return out
    def mfmas(buf, ksg, phaseB):
        out = []
        for jn in range(9):
            for i in range(2):
                q = ar(QA[buf]+jn*4, 4); p = ar(PR+(ksg*2+i)*4, 4)
                if not phaseB:
                    c = vr(ACCA+(i*9+jn)*4, 4); out.append(f"v_mfma_f32_16x16x32_bf16 {c}, {p}, {q}, {c}")
                else:
                    c = vr(ACCB+(i*9+jn)*4, 4); out.append(f"v_mfma_f32_16x16x32_bf16 {c}, {q}, {p}, {c}")
        return out
    for x in qreads(0, 0): A(x)
    fa = [f"v_mov_b32 v{ACCB+r}, 0" for r in range(72)] + [f"v_mov_b32 v{S1+r}, 0" for r in range(16)]
    pairsA = [ACCA + (i*9+jn)*4 + 2*h for i in range(2) for jn in range(9) for h in range(2)]
    eq = []
    for g in range(0, 36, 6):
        grp = pairsA[g:g+6]
        eq += gelu_ops(grp, [166, 168, 170, 228, 230, 232], vC0, vC1, vOne)
        for c in grp:
            idx = (c - ACCA) // 4; i = idx // 9; h = ((c - ACCA) % 4) // 2
            s1 = S1 + i*4 + 2*h; s2 = S2 + i*4 + 2*h
            eq.append(f"v_pk_add_f32 {vr(s1,2)}, {vr(s1,2)}, {vr(c,2)}")
            eq.append(f"v_pk_fma_f32 {vr(s2,2)}, {vr(c,2)}, {vr(c,2)}, {vr(s2,2)}")
    for n in (8, 4, 2, 1):
        for r in range(16):
            eq.append(f"v_add_f32_dpp v{S1+r}, v{S1+r}, v{S1+r} row_ror:{n} row_mask:0xf bank_mask:0xf")
    single0 = F is not None and getattr(F, "single", False)
    WT = 192
    for i in range(2):
        for r in range(4):
            if single0:
                b = WT + (i*4+r)*4
                eq.append(f"v_mov_b32 v{b}, v{S1+i*4+r}"); eq.append(f"v_mov_b32 v{b+1}, s69")
                eq.append(f"v_mov_b32 v{b+2}, v{S2+i*4+r}"); eq.append(f"v_mov_b32 v{b+3}, s69")
            else:
                eq.append(f"v_mov_b32 v{W+i*8+2*r}, v{S1+i*4+r}")
                eq.append(f"v_max_f32 v{W+i*8+2*r+1}, 0, v{S2+i*4+r}")
    pend = []
    for st in range(3, NST):
        e = (0, 0) if st < R else (st - R + 1, 1)
        e = max(e, (st - 3, 0))
        for op in G(st): pend.append((e, op))
        if st < 9:
            for ks in (2*st, 2*st+1):
                for op in Pl(ks): pend.append((e, op))
    published = [False]
    def publish():
        sh = 11 if single0 else 10
        A(f"""
        s_lshl_b32 s44, s34, 4
        s_add_u32 s44, s44, s35
        s_lshl_b32 s44, s44, {sh}
        s_lshl_b32 s45, s36, {sh-2}
        s_add_u32 s44, s44, s45
        v_lshrrev_b32 v1, 4, v{vL}
        v_lshlrev_b32 v1, {6 if single0 else 5}, v1
        v_and_b32 v{TMP[0]}, 15, v{vL}
        """)
        A(f"v_cmp_eq_u32 vcc, 0, v{TMP[0]}\ns_and_saveexec_b64 s[52:53], vcc")
        if single0:
            for i in range(2):
                for r in range(4):
                    A(f"buffer_store_dwordx4 {vr(WT+(i*4+r)*4,4)}, v1, s[20:23], s44 offen offset:{i*256+r*16} sc1"); vm.issue("ST")
        else:
            for i in range(2):
                for hh in range(2):
                    A(f"buffer_store_dwordx4 {vr(W+i*8+hh*4,4)}, v1, s[20:23], s44 offen offset:{i*128+hh*16} sc1"); vm.issue("ST")
        A("s_mov_b64 exec, s[52:53]")
    ws_q = list(wsx); wl_q = []
    if 'nowsp' in EXP: ws_q = []; wl_q = []; vm.issue('WL')
    for st in range(NST):
        phaseB = st >= 9
        if st == 9:
            stamp()
            A("s_nop 7")
            for k, o in enumerate(eq): A(o)
            bulk_later = [(o, "WL") for o in (F.wot_ops if single else [])] + list(wl)
            eq.clear()
            publish(); published[0] = True
            stamp()
        for ksl in range(2):
            ksg = (st % 9) * 2 + ksl
            buf = ksl
            first = (st == 0 and ksl == 0) or (st == 9 and ksl == 0)
            if first: A("s_waitcnt lgkmcnt(0)")
            if ksl == 0:
                rd = qreads(1, 1)
            elif st + 1 < NST:
                nslot = (st + 1) % R
                A(f"v_add_u32 v{vE}, {nslot*SLOT}, v{vE0}\nv_add_u32 v{vO}, {nslot*SLOT}, v{vO0}")
                rd = qreads(0, 0)
            else: rd = []
            nrd = len(rd)
            NV = 5 if st < 6 else 3
            gl = []
            while pend and len(gl) < NV and pend[0][0] <= (st, ksl):
                gl.append(pend.pop(0)[1])
            if 10 <= st <= 15 and bulk_later: gl.append(bulk_later.pop(0))
            mf = mfmas(buf, ksg, phaseB)
            gpos = [int((k + 0.5) * 18 / max(1, len(gl))) for k in range(len(gl))]
            for j in range(18):
                if j % 4 == 0 and not first:
                    need = min(j + 3, 17)
                    issued_now = min(j, nrd)
                    A(f"s_waitcnt lgkmcnt({min(15, (17 - need) + issued_now)})")
                if 'nomfma' not in EXP: A(mf[j])
                if rd:
                    x = rd.pop(0)
                    if 'nord' not in EXP: A(x)
                while gl and gpos[0] <= j:
                    gpos.pop(0); issue(gl.pop(0))
                if not phaseB and fa and j >= 9:
                    for _ in range(2):
                        if fa: A(fa.pop(0))
            if ksl == 0 and st + 1 < NST:
                tags = [f"G{st+1}"]
                if st + 1 < 9: tags += [f"P{2*(st+1)}", f"P{2*(st+1)+1}"]
                A(f"s_waitcnt vmcnt({min(63, vm.wait(tags))})")
                A("s_barrier")
    assert not pend and not eq and not fa and published[0], (len(pend), len(eq), len(fa))
    stamp()
    A(f"s_waitcnt vmcnt({min(63, vm.wait('WL'))})")
    if single: A("s_barrier")
    for x in wrd: A(x)
    for j, op in enumerate(ws_q):
        A(f"s_waitcnt lgkmcnt({7-j})"); issue(op)
    if single: F.wot_fin()
    if F:
        A("s_barrier")
        F.after_loop()
    A("s_nop 7")
    pairsB = [ACCB + (i*9+jn)*4 + 2*h for i in range(2) for jn in range(9) for h in range(2)]
    A(f"v_lshlrev_b32 v1, 4, v{vL}\ns_mul_i32 s44, s36, 9216")
    ZB = 192
    T6 = [166, 168, 170, 228, 230, 232]
    done = 0
    for g in range(0, 36, 6):
        grp = pairsB[g:g+6]
        for o in gelu_ops(grp, T6, vC0, vC1, vOne): A(o)
        for k, c in enumerate(grp):
            A(f"v_cvt_pk_bf16_f32 v{ZB+g+k}, v{c}, v{c+1}")
        if F:
            for k in range(6): A(f"v_accvgpr_write_b32 a{128+g+k}, v{ZB+g+k}")
            pass
        while (not F) and (done + 1) * 4 <= g + 6:
            A(f"s_add_u32 s45, s44, {done*1024}")
            A(f"buffer_store_dwordx4 {vr(ZB+done*4,4)}, v1, s[12:15], s45 offen")
            done += 1
    stamp()
    gsz = 4 if single0 else 3
    A(f"""
    v_and_b32 v1, 31, v{vL}
    v_lshlrev_b32 v1, {gsz}, v1
    v_lshrrev_b32 v13, 5, v{vL}
    v_lshlrev_b32 v13, {gsz+10}, v13
    v_add_u32 v1, v1, v13
    s_lshl_b32 s44, s34, {gsz+11}
    s_lshl_b32 s45, s36, {gsz+5}
    s_add_u32 s44, s44, s45
    """)
    poll = A.newlabel(name + "_poll")
    W2 = 234
    WG4 = 192
    A.label(poll)
    if single0:
        for j in range(8):
            A(f"s_add_u32 s45, s44, {j*2048}")
            A(f"buffer_load_dwordx4 {vr(WG4+4*j,4)}, v1, s[20:23], s45 offen sc1")
        A("s_waitcnt vmcnt(0)")
        A("s_mov_b64 s[52:53], -1")
        for j in range(8):
            for e in (1, 3):
                A(f"v_cmp_eq_u32 vcc, s69, v{WG4+4*j+e}\ns_and_b64 s[52:53], s[52:53], vcc")
        A(f"s_cmp_eq_u64 s[52:53], -1\ns_cbranch_scc1 {poll}_ok\ns_sleep 4\ns_branch {poll}")
    else:
        for j in range(8):
            A(f"s_add_u32 s45, s44, {j*1024}")
            A(f"buffer_load_dwordx2 {vr(W2+2*j,2)}, v1, s[20:23], s45 offen sc1")
        A("s_waitcnt vmcnt(0)")
        A(f"v_or_b32 v13, v{W2+1}, v{W2+3}")
        for j in range(2, 8): A(f"v_or_b32 v13, v13, v{W2+2*j+1}")
        A("v_cmp_gt_i32 s[52:53], 0, v13")
        A(f"s_cmp_eq_u64 s[52:53], 0\ns_cbranch_scc1 {poll}_ok\ns_sleep 4\ns_branch {poll}")
    A.label(poll + "_ok")
    stamp()

    Wm = W2
    if single0:
        for j in range(8):
            A(f"v_mov_b32 v{W2+2*j}, v{WG4+4*j}\nv_mov_b32 v{W2+2*j+1}, v{WG4+4*j+2}")
    for j in range(1, 8):
        A(f"v_pk_add_f32 {vr(Wm,2)}, {vr(Wm,2)}, {vr(Wm+2*j,2)}")
    A(f"v_mov_b32 v{Wm+2}, v{Wm}\nv_mov_b32 v{Wm+3}, v{Wm+1}\ns_nop 1")
    A(f"v_permlane32_swap_b32 v{Wm+2}, v{Wm}\nv_permlane32_swap_b32 v{Wm+3}, v{Wm+1}")
    A(f"v_pk_add_f32 {vr(Wm,2)}, {vr(Wm,2)}, {vr(Wm+2,2)}")
    A(f"v_mul_f32 v{Wm}, {hex(f2u(1.0/2304))}, v{Wm}")
    A(f"v_mul_f32 v{Wm+1}, {hex(f2u(1.0/2304))}, v{Wm+1}")
    A(f"v_fma_f32 v{Wm+1}, -v{Wm}, v{Wm}, v{Wm+1}")
    A(f"v_max_f32 v{Wm+1}, 0, v{Wm+1}")
    from l0 import bf16_round
    bf16_round(A, Wm+1)
    A(f"v_add_f32 v{Wm+1}, 0x3727c5ac, v{Wm+1}")
    bf16_round(A, Wm+1)
    A(f"v_sqrt_f32 v{Wm+1}, v{Wm+1}\ns_nop 0")
    bf16_round(A, Wm+1)
    A(f"v_rcp_f32 v{Wm+1}, v{Wm+1}")
    bf16_round(A, Wm)
    A(f"v_mul_f32 v{Wm}, v{Wm}, v{Wm+1}")
    LB = 143360
    A(f"""
    v_and_b32 v1, 31, v{vL}
    v_lshlrev_b32 v1, 3, v1
    s_lshl_b32 s45, s36, 8
    s_add_u32 s45, s45, {LB}
    v_add_u32 v1, s45, v1
    ds_write_b64 v1, {vr(Wm,2)}
    v_lshrrev_b32 v13, 4, v{vL}
    v_lshlrev_b32 v13, 5, v13
    v_add_u32 v13, s45, v13
    s_waitcnt lgkmcnt(0)
    """)
    MS = 172
    for i in range(2):
        A(f"ds_read_b128 {vr(MS+i*8,4)}, v13 offset:{i*128}")
        A(f"ds_read_b128 {vr(MS+4+i*8,4)}, v13 offset:{i*128+16}")
    A(f"""
    s_mul_i32 s44, s35, 64
    s_lshl_b32 s45, s34, 2
    s_add_u32 s44, s44, s45
    s_add_u32 s44, s44, s36
    s_mul_i32 s44, s44, 9216
    v_lshrrev_b32 v1, 4, v{vL}
    v_and_b32 v13, 1, v1
    v_lshlrev_b32 v13, 1, v13
    v_lshrrev_b32 v1, 1, v1
    v_or_b32 v1, v1, v13
    v_lshlrev_b32 v1, 4, v1
    v_and_b32 v13, 15, v{vL}
    v_add_u32 v1, v1, v13
    v_lshlrev_b32 v1, 4, v1
    s_waitcnt lgkmcnt(0)
    """)
    stamp()
    OB = 192
    for jn in range(9):
        o = OB + jn * 4
        for i in range(2):
            c = ACCA + (i*9+jn)*4
            for r in range(4):
                m = MS+i*8+2*r
                A(f"v_fma_f32 v{c+r}, v{c+r}, v{m+1}, -v{m}")
            A(f"v_cvt_pk_bf16_f32 v{o+2*i}, v{c}, v{c+1}")
            A(f"v_cvt_pk_bf16_f32 v{o+2*i+1}, v{c+2}, v{c+3}")
        if jn > 0:
            po = OB + (jn-1)*4
            A(f"v_permlane16_swap_b32 v{po}, v{po+2}")
            A(f"v_permlane16_swap_b32 v{po+1}, v{po+3}")
            A(f"s_add_u32 s45, s44, {(jn-1)*1024}")
            A(f"buffer_store_dwordx4 {vr(po,4)}, v1, s[16:19], s45 offen{SC}")
    po = OB + 8*4
    A("s_nop 1")
    A(f"v_permlane16_swap_b32 v{po}, v{po+2}")
    A(f"v_permlane16_swap_b32 v{po+1}, v{po+3}")
    A(f"s_add_u32 s45, s44, {8*1024}")
    A(f"buffer_store_dwordx4 {vr(po,4)}, v1, s[16:19], s45 offen{SC}")
    stamp()
    if F: return
    ST.finish(vbase=200)
    A.label(f"{name}_end")
    A("s_endpgm")
    return A.text(), kernel_desc(name, 254, 248), 144384
```

```python
from asmlib import *
from g1 import f2u
from l0 import bf16_round
import math
LOG2E = math.log2(math.e)
KR_PITCH = 10752; KR1 = 5376

def csq_ops(e, t):
    return [f"v_pk_mul_f32 {vr(t,2)}, {vr(e,2)}, {vr(e,2)} op_sel:[1,1] op_sel_hi:[0,1]",
            f"v_pk_fma_f32 {vr(e,2)}, {vr(e,2)}, {vr(e,2)}, {vr(t,2)} op_sel:[0,0,0] op_sel_hi:[0,1,1] neg_lo:[0,0,1]"]
def cmul_ops(x, c, g, t):
    return [f"v_pk_mul_f32 {vr(t,2)}, {vr(c,2)}, {vr(g,2)} op_sel:[1,1] op_sel_hi:[1,0]",
            f"v_pk_fma_f32 {vr(x,2)}, {vr(c,2)}, {vr(g,2)}, {vr(t,2)} op_sel:[0,0,0] op_sel_hi:[0,1,1] neg_lo:[0,0,1]"]

def gen_kgen(A, name, chs="s47", lds_base=0, after_loads=None, wait_extra=None, mid2=None, iter_hook=None, after_loop=None):
    srd(A, 4, 56, 57, 576*256); srd(A, 8, 58, 59, 576*256); srd(A, 12, 60, 61, 576*256); srd(A, 16, 62, 63, 576*256)
    srd(A, 20, 64, 65, 1152)
    PB = 16; F = 48; E = 64; C = 72; X = 80; T = 88; Bq = 96; Aq = 112
    vLo = 120; vDt = 121; vOff = 122
    CH = 13312
    LR = 8192
    A(f"s_mul_i32 s39, s38, {CH}\ns_add_u32 s39, s39, {lds_base}")
    A(f"""
    s_lshl_b32 s44, {chs}, 1
    v_mov_b32 v1, s44
    buffer_load_ushort v{vDt}, v1, s[20:23], 0 offen
    v_lshrrev_b32 v{vOff}, 4, v15
    v_lshlrev_b32 v{vOff}, 3, v{vOff}
    s_lshl_b32 s44, {chs}, 8
    s_lshl_b32 s45, s37, 7
    s_add_u32 s44, s44, s45
    v_add_u32 v{vOff}, s44, v{vOff}
    """)
    for ks in range(4):
        for a in range(4):
            A(f"buffer_load_dwordx2 {vr(PB+8*ks+2*a,2)}, v{vOff}, s[{4+4*a}:{7+4*a}], 0 offen offset:{32*ks}")
    if after_loads: after_loads()
    A(f"v_and_b32 v1, 15, v15\nv_cvt_f32_u32 v{vLo}, v1")
    for r in range(16): A(f"v_mov_b32 v{F+r}, 0")
    A(f"v_lshlrev_b32 v1, 3, v15\nv_add_u32 v1, s39, v1\nv_mov_b32 v8, 0\nv_mov_b32 v9, 0\nds_write_b64 v1, v[8:9] offset:{LR+4352}")
    A(f"s_waitcnt vmcnt({wait_extra if wait_extra is not None else 0})")
    A(f"v_lshlrev_b32 v{vDt}, 16, v{vDt}")
    A(f"v_mul_f32 v{vDt}, {hex(f2u(LOG2E))}, v{vDt}")
    A(f"v_exp_f32 v{vDt}, v{vDt}\ns_nop 0")
    bf16_round(A, vDt)
    A(f"v_add_f32 v5, v{vDt}, v{vDt}")
    A(f"v_mul_f32 v6, {hex(f2u(-LOG2E))}, v{vDt}")
    A(f"v_mul_f32 v7, {hex(f2u(1/(2*math.pi)))}, v{vDt}")
    p = PB
    A("s_mov_b32 s52, 0")
    kloop = A.newlabel(name + "_kl")
    A.label(kloop)
    if iter_hook: iter_hook()
    for c in range(4):
        for dst, a in ((X+2*c, 0), (X+2*c+1, 1), (C+2*c, 2), (C+2*c+1, 3)):
            s = p + 2*a + c//2
            if c % 2 == 0: A(f"v_lshlrev_b32 v{dst}, 16, v{s}")
            else: A(f"v_and_b32 v{dst}, 0xffff0000, v{s}")
    def each(fmt):
        for c in range(4): A(fmt(c))
    each(lambda c: f"v_mul_f32 v{X+2*c}, {hex(f2u(LOG2E))}, v{X+2*c}")
    each(lambda c: f"v_exp_f32 v{X+2*c}, v{X+2*c}")
    each(lambda c: f"v_mul_f32 v{X+2*c+1}, v{X+2*c+1}, v7")
    each(lambda c: f"v_cvt_pk_bf16_f32 v{X+2*c}, v{X+2*c}, v{X+2*c}")
    each(lambda c: f"v_and_b32 v{X+2*c}, 0xffff0000, v{X+2*c}")
    each(lambda c: f"v_mul_f32 v{C+2*c}, v{C+2*c}, v5")
    each(lambda c: f"v_mul_f32 v{C+2*c+1}, v{C+2*c+1}, v5")
    each(lambda c: f"v_mul_f32 v{X+2*c}, v{X+2*c}, v6")
    each(lambda c: f"v_mul_f32 v{X+2*c}, v{X+2*c}, v{vLo}")
    each(lambda c: f"v_mul_f32 v{X+2*c+1}, v{X+2*c+1}, v{vLo}")
    each(lambda c: f"v_exp_f32 v{X+2*c}, v{X+2*c}")
    each(lambda c: f"v_fract_f32 v{X+2*c+1}, v{X+2*c+1}")
    each(lambda c: f"v_cos_f32 v{E+2*c}, v{X+2*c+1}")
    each(lambda c: f"v_sin_f32 v{E+2*c+1}, v{X+2*c+1}")
    each(lambda c: f"v_mul_f32 v{E+2*c}, v{E+2*c}, v{X+2*c}")
    each(lambda c: f"v_mul_f32 v{E+2*c+1}, v{E+2*c+1}, v{X+2*c}")
    def emit2(opsl):
        for k in range(2):
            for c in range(4): A(opsl[c][k])
    def square_all(): emit2([csq_ops(E+2*c, T+2*c) for c in range(4)])
    for i in range(4):
        each(lambda c: f"v_cvt_pk_bf16_f32 v{Bq+4*i+c}, v{E+2*c}, -v{E+2*c+1}")
        square_all()
    for i in range(4):
        if i == 3:
            for c in range(4):
                A(f"v_mov_b32_dpp v{X+2*c}, v{E+2*c} row_newbcast:1 row_mask:0xf bank_mask:0xf")
                A(f"v_mov_b32_dpp v{X+2*c+1}, v{E+2*c+1} row_newbcast:1 row_mask:0xf bank_mask:0xf")
            emit2([cmul_ops(C+2*c, C+2*c, X+2*c, T+2*c) for c in range(4)])
        emit2([cmul_ops(X+2*c, C+2*c, E+2*c, T+2*c) for c in range(4)])
        aq = Aq + 4*(i % 2)
        each(lambda c: f"v_cvt_pk_bf16_f32 v{aq+c}, v{X+2*c}, v{X+2*c+1}")
        if i < 3: square_all()
        else: A("s_nop 1")
        A(f"v_mfma_f32_16x16x32_bf16 {vr(F+4*i,4)}, {vr(aq,4)}, {vr(Bq+4*i,4)}, {vr(F+4*i,4)}")

    for r in range(24): A(f"v_mov_b32 v{PB+r}, v{PB+8+r}")
    A(f"s_add_u32 s52, s52, 1\ns_cmp_lt_u32 s52, 4\ns_cbranch_scc1 {kloop}")
    if after_loop: after_loop()
    A("s_nop 7")
    A(f"v_lshlrev_b32 v1, 4, v15\ns_lshl_b32 s44, s37, 12\ns_add_u32 s44, s44, s39\nv_add_u32 v8, s44, v1")
    for i in range(4): A(f"ds_write_b128 v8, {vr(F+4*i,4)} offset:{i*1024}")
    A("s_waitcnt lgkmcnt(0)\ns_barrier")
    A(f"s_xor_b32 s44, s37, 1\ns_lshl_b32 s44, s44, 12\ns_add_u32 s44, s44, s39\nv_add_u32 v8, s44, v1")
    for i in range(4): A(f"ds_read_b128 {vr(96+4*i,4)}, v8 offset:{i*1024}")
    A(f"""
    v_lshrrev_b32 v1, 4, v15
    v_lshlrev_b32 v1, 6, v1
    v_and_b32 v8, 15, v15
    v_add_u32 v1, v1, v8
    s_waitcnt lgkmcnt(0)
    """)
    for i in range(8): A(f"v_pk_add_f32 {vr(F+2*i,2)}, {vr(F+2*i,2)}, {vr(96+2*i,2)}")
    for r in range(16): A(f"v_cvt_pk_bf16_f32 v{F+r}, v{F+r}, v{F+r}")
    done = A.newlabel(name + "_kd")
    lab1 = A.newlabel(name + "_ks")
    A(f"s_cmp_eq_u32 s37, 1\ns_cbranch_scc1 {lab1}")
    def seg(i):
        h = 1 << i
        A(f"v_lshlrev_b32 v8, {i+1}, v1")
        A(f"v_sub_u32 v8, {LR + (128+2048)*2}, v8")
        A("v_add_u32 v8, s39, v8")
        for r in range(4):
            dq = (16*r + (16 if i == 3 else 0)) << (i+1)
            A(f"v_subrev_u32 v9, {dq + h}, v8")
            if i == 0: rowmask = 0xffffffffffffffff
            elif i == 3 and r == 3: rowmask = 0xffffffffffff0000
            else: rowmask = 0xffffffff00000000
            for o in range(-(h//2), h//2 + 1):
                m = rowmask
                if i > 0 and abs(o) == h//2: m &= 0x5555555555555555
                if i > 0 and 4*o > h:
                    if i < 3 and r == 0: m &= ~(1 << 32)
                    if i == 3 and r == 3: m &= ~(1 << 16)
                A(f"s_mov_b32 exec_lo, {hex(m & 0xffffffff)}\ns_mov_b32 exec_hi, {hex(m >> 32)}")
                A(f"ds_write_b16 v9, v{F+4*i+r} offset:{h + 2*o}")
            A("s_mov_b64 exec, -1")
    seg(3); seg(0)
    A(f"s_branch {done}")
    A.label(lab1)
    seg(2); seg(1)
    A.label(done)
    A("s_waitcnt lgkmcnt(0)\ns_barrier")
    srd_off(A, 24, 32, 33, WS_K, 576 * KR_PITCH)
    if mid2: mid2()
    A(f"""
    v_lshlrev_b32 v1, 4, v15
    s_lshl_b32 s44, s37, 11
    v_add_u32 v1, s44, v1
    v_add_u32 v2, s39, v1
    s_mul_i32 s45, {chs}, {KR_PITCH}
    """)
    def rb(b, off):
        A(f"ds_read_b128 {vr(b,4)}, v2 offset:{LR + 256 + off}")
        A(f"ds_read_b32 v{b+4}, v2 offset:{LR + 256 + off + 16}")
    def st(b, off):
        for k in range(4): A(f"v_alignbit_b32 v{b+6+k}, v{b+k+1}, v{b+k}, 16")
        A(f"s_add_u32 s46, s45, {off}")
        A(f"buffer_store_dwordx4 {vr(b,4)}, v1, s[24:27], s46 offen")
        A(f"s_add_u32 s46, s46, {KR1}")
        A(f"buffer_store_dwordx4 {vr(b+6,4)}, v1, s[24:27], s46 offen")
    rb(16, 0); rb(28, 1024)
    A("s_waitcnt lgkmcnt(0)")
    st(16, 0); st(28, 1024)
    lab = A.newlabel(name + "_k5")
    A(f"s_cmp_eq_u32 s37, 0\ns_cbranch_scc0 {lab}")
    A("s_mov_b32 exec_lo, 0x1ffff\ns_mov_b32 exec_hi, 0")
    rb(40, 4096)
    A("s_waitcnt lgkmcnt(0)")
    st(40, 4096)
    A("s_mov_b64 exec, -1")
    A.label(lab)
```

```python
from asmlib import *

def bf16_round(A, v, tmp=None):
    A(f"v_cvt_pk_bf16_f32 v{v}, v{v}, v{v}")
    A(f"v_and_b32 v{v}, 0xffff0000, v{v}")

def dpp_sum16(A, v):
    for n in (8, 4, 2, 1):
        A("s_nop 1")
        A(f"v_add_f32_dpp v{v}, v{v}, v{v} row_ror:{n} row_mask:0xf bank_mask:0xf")

def gen_ln(A, name, stamp=lambda: None):
    PITCH = 1168
    stamp()
    srd(A, 4, 28, 29, 2048 * 1152)
    srd_off(A, 8, 32, 33, WS_XN, 128 * 18 * 1024)
    srd_off(A, 12, 32, 33, WS_XNT, 576 * 4096)
    A(f"""
    s_lshl_b32 s44, s66, 4
    s_lshl_b32 s45, s36, 2
    s_add_u32 s44, s44, s45
    v_lshrrev_b32 v1, 4, v15
    v_add_u32 v2, s44, v1
    v_mul_u32_u24 v2, 1152, v2
    v_and_b32 v3, 15, v15
    v_lshlrev_b32 v4, 4, v3
    v_add_u32 v2, v2, v4
    """)
    for j in range(4):
        A(f"buffer_load_dwordx4 {vr(16+4*j,4)}, v2, s[4:7], 0 offen offset:{j*256}")
    A("s_mov_b32 s50, 0x00ff00ff\ns_mov_b32 s51, 0x00ff00ff")
    A("v_mov_b32 v32, 0\nv_mov_b32 v33, 0\nv_mov_b32 v34, 0\nv_mov_b32 v35, 0")
    A("s_mov_b64 exec, s[50:51]")
    A(f"buffer_load_dwordx4 v[32:35], v2, s[4:7], 0 offen offset:1024")
    A("s_mov_b64 exec, -1")
    A(f"""
    v_add_u32 v5, s45, v1
    v_mul_u32_u24 v5, {PITCH}, v5
    v_add_u32 v5, v5, v4
    s_waitcnt vmcnt(0)
    """)
    stamp()
    for q in range(20):
        A(f"v_lshlrev_b32 v{40+2*q}, 16, v{16+q}")
        A(f"v_and_b32 v{41+2*q}, 0xffff0000, v{16+q}")
    A("v_add_f32 v6, v40, v41")
    for q in range(2, 40): A(f"v_add_f32 v6, v6, v{40+q}")
    dpp_sum16(A, 6)
    A("v_mul_f32 v6, 0x3ae38e39, v6")
    A("v_mov_b32 v7, 0")
    for q in range(32):
        A(f"v_sub_f32 v8, v{40+q}, v6")
        A(f"v_fmac_f32 v7, v8, v8")
    A("s_mov_b64 exec, s[50:51]")
    for q in range(32, 40):
        A(f"v_sub_f32 v8, v{40+q}, v6")
        A(f"v_fmac_f32 v7, v8, v8")
    A("s_mov_b64 exec, -1")
    dpp_sum16(A, 7)
    A("v_mul_f32 v7, 0x3ae38e39, v7")
    bf16_round(A, 7)
    A("v_add_f32 v7, 0x3727c5ac, v7")
    bf16_round(A, 7)
    A("v_sqrt_f32 v7, v7")
    A("s_nop 0")
    bf16_round(A, 7)
    A("v_rcp_f32 v7, v7")
    bf16_round(A, 6)
    for q in range(20):
        a, b = 40+2*q, 41+2*q
        A(f"v_sub_f32 v{a}, v{a}, v6")
        A(f"v_sub_f32 v{b}, v{b}, v6")
        A(f"v_cvt_pk_bf16_f32 v8, v{a}, v{b}")
        A(f"v_lshlrev_b32 v{a}, 16, v8")
        A(f"v_and_b32 v{b}, 0xffff0000, v8")
        A(f"v_mul_f32 v{a}, v{a}, v7")
        A(f"v_mul_f32 v{b}, v{b}, v7")
        A(f"v_cvt_pk_bf16_f32 v{16+q}, v{a}, v{b}")
    for j in range(4):
        A(f"ds_write_b128 v5, {vr(16+4*j,4)} offset:{j*256}")
    A("s_mov_b64 exec, s[50:51]")
    A(f"ds_write_b128 v5, v[32:35] offset:1024")
    A("s_mov_b64 exec, -1")
    A("s_waitcnt lgkmcnt(0)\ns_barrier")
    stamp()
    A(f"""
    v_and_b32 v1, 15, v15
    v_mul_u32_u24 v1, {PITCH}, v1
    v_lshrrev_b32 v2, 4, v15
    v_lshlrev_b32 v2, 4, v2
    v_add_u32 v1, v1, v2
    s_lshl_b32 s45, s36, 6
    v_add_u32 v1, s45, v1
    v_lshlrev_b32 v3, 4, v15              ; lane*16
    s_mul_i32 s44, s66, 18
    s_add_u32 s44, s44, s36
    s_lshl_b32 s44, s44, 10               ; (stile*18 + w)*1024
    """)
    for j in range(4):
        A(f"ds_read_b128 {vr(16+4*j,4)}, v1 offset:{j*256}")
    lab = A.newlabel(name + "_ln")
    A(f"s_cmp_lt_u32 s36, 2\ns_cbranch_scc0 {lab}")
    A(f"ds_read_b128 v[32:35], v1 offset:1024")
    A("s_waitcnt lgkmcnt(0)")
    A("s_add_u32 s45, s44, 16384")
    A(f"buffer_store_dwordx4 v[32:35], v3, s[8:11], s45 offen")
    A.label(lab)
    A("s_waitcnt lgkmcnt(0)")
    for j in range(4):
        A(f"s_add_u32 s45, s44, {j*4096}")
        A(f"buffer_store_dwordx4 {vr(16+4*j,4)}, v3, s[8:11], s45 offen")
    A(f"""
    v_lshrrev_b32 v1, 2, v15              ; 4g + r = (l>>2) (since g=l>>4, r=(l>>2)&3)
    v_mul_u32_u24 v1, {PITCH}, v1
    v_and_b32 v2, 3, v15
    v_lshlrev_b32 v2, 3, v2
    v_add_u32 v1, v1, v2
    s_mul_i32 s45, s36, 288
    v_add_u32 v1, s45, v1                 ; + w*9*32 bytes
    v_and_b32 v2, 15, v15
    v_lshlrev_b32 v2, 12, v2              ; channel*4096
    v_lshrrev_b32 v3, 4, v15
    v_lshlrev_b32 v3, 3, v3               ; g*8
    v_add_u32 v2, v2, v3
    s_lshl_b32 s44, s66, 5                 ; t0*2
    s_mul_i32 s45, s36, {9*16*4096}
    s_add_u32 s44, s44, s45
    """)
    for j in range(9):
        A(f"ds_read_b64_tr_b16 {vr(40+2*j,2)}, v1 offset:{j*32}")
    A("s_waitcnt lgkmcnt(0)")
    for j in range(9):
        A(f"s_add_u32 s45, s44, {j*16*4096}")
        A(f"buffer_store_dwordx2 {vr(40+2*j,2)}, v2, s[12:15], s45 offen")

    srd_off(A, 16, 32, 33, WS_STAT, 16 * 16 * 1024)
    lab = A.newlabel(name + "_rs")
    A(f"s_cmp_eq_u32 s36, 0\ns_cbranch_scc0 {lab}")
    A(f"""
    v_lshrrev_b32 v1, 2, v15
    v_lshlrev_b32 v1, 10, v1
    v_and_b32 v2, 3, v15
    v_lshlrev_b32 v2, 5, v2
    v_add_u32 v1, v1, v2
    s_lshr_b32 s44, s66, 3
    s_lshl_b32 s44, s44, 14
    s_and_b32 s45, s66, 7
    s_lshl_b32 s45, s45, 7
    s_add_u32 s44, s44, s45
    v_mov_b32 v16, -1
    v_mov_b32 v17, -1
    v_mov_b32 v18, -1
    v_mov_b32 v19, -1
    buffer_store_dwordx4 v[16:19], v1, s[16:19], s44 offen
    buffer_store_dwordx4 v[16:19], v1, s[16:19], s44 offen offset:16
    """)
    A.label(lab)
    srd_off(A, 16, 32, 33, WS_FLAG, 4 * 16 * 64 * 128)
    lab2 = A.newlabel(name + "_fz")
    A(f"s_cmp_eq_u32 s36, 1\ns_cbranch_scc0 {lab2}")
    A("s_lshl_b32 s44, s66, 12\nv_lshlrev_b32 v1, 7, v15\nv_mov_b32 v16, 0\ns_mov_b32 exec_hi, 0")
    A("buffer_store_dword v16, v1, s[16:19], s44 offen")
    A("s_mov_b64 exec, -1")
    A.label(lab2)

def gen_wsp(A, name):
    srd(A, 4, 30, 31, 2048 * 4096)
    srd_off(A, 8, 32, 33, WS_WSP, 2048 * 4096)
    A(f"""
    v_lshrrev_b32 v1, 2, v15
    s_lshr_b32 s48, s47, 1
    s_lshl_b32 s44, s48, 4
    v_add_u32 v1, s44, v1
    v_lshlrev_b32 v1, 12, v1
    v_and_b32 v2, 3, v15
    v_lshlrev_b32 v2, 4, v2
    v_add_u32 v1, v1, v2
    s_and_b32 s49, s47, 1
    s_lshl_b32 s49, s49, 2
    s_add_u32 s49, s49, s36
    s_lshl_b32 s45, s49, 9
    s_lshl_b32 s46, s36, 13
    """)
    for j in range(8):
        A(f"s_add_u32 s50, s45, {j*64}\ns_add_u32 m0, s46, {j*1024}\ns_nop 0\nbuffer_load_dwordx4 v1, s[4:7], s50 offen lds")
    A(f"""
    v_and_b32 v2, 15, v15
    v_lshlrev_b32 v2, 2, v2
    v_lshrrev_b32 v3, 4, v15
    v_add_u32 v2, v2, v3
    v_lshlrev_b32 v2, 4, v2
    v_add_u32 v2, s46, v2
    v_lshlrev_b32 v3, 4, v15
    s_lshl_b32 s44, s48, 16
    s_lshl_b32 s45, s49, 13
    s_add_u32 s44, s44, s45
    s_add_u32 s45, s44, 4096
    s_waitcnt vmcnt(0)
    """)
    for j in range(8):
        A(f"ds_read_b128 {vr(16+4*j,4)}, v2 offset:{j*1024}")
    for j in range(8):
        A(f"s_waitcnt lgkmcnt({7-j})")
        A(f"buffer_store_dwordx4 {vr(16+4*j,4)}, v3, s[8:11], {'s44' if j < 4 else 's45'} offen offset:{(j%4)*1024}")

def gen_wtile(A, name, which):
    pitch = 9216 if which == 'in' else 1152
    srd(A, 4, 30, 31, 576 * 9216 if which == 'in' else 2304 * 1152)
    srd_off(A, 8, 32, 33, WS_WIT if which == 'in' else WS_WOT, 576 * 9216 if which == 'in' else 2304 * 1152)
    if which == 'in':
        A(f"s_lshr_b32 s48, s47, 3\ns_and_b32 s49, s47, 7\ns_mul_i32 s44, s48, {32*pitch}\ns_mul_i32 s45, s49, 1152\ns_add_u32 s44, s44, s45")
    else:
        A(f"s_mov_b32 s48, s47\ns_mul_i32 s44, s48, {32*pitch}")
    A(f"s_mul_i32 s45, s36, {8*pitch}\ns_add_u32 s44, s44, s45\ns_mul_i32 s46, s36, 9216")
    for j in range(9):
        A(f"""
        v_add_u32 v1, {64*j}, v15
        v_mul_u32_u24 v2, 911, v1
        v_lshrrev_b32 v2, 16, v2
        v_mul_u32_u24 v3, 72, v2
        v_sub_u32 v3, v1, v3
        v_mul_u32_u24 v2, {pitch}, v2
        v_lshl_add_u32 v{16+j}, v3, 4, v2
        """)
    for j in range(9):
        A(f"s_add_u32 m0, s46, {j*1024}\ns_nop 0\nbuffer_load_dwordx4 v{16+j}, s[4:7], s44 offen lds")
    def lane_addr(natural):
        if natural:
            A("v_lshrrev_b32 v1, 4, v15\nv_lshlrev_b32 v1, 3, v1\nv_bfe_u32 v2, v15, 2, 2\nv_add_u32 v1, v1, v2")
        else:
            A("v_lshrrev_b32 v1, 2, v15")
        A(f"""
        v_mul_u32_u24 v1, 1152, v1
        v_and_b32 v2, 3, v15
        v_lshlrev_b32 v2, 3, v2
        v_add_u32 v1, v1, v2
        s_mul_i32 s45, s36, 288
        v_add_u32 v1, s45, v1
        """)
    def reads(hfo):
        for j in range(9):
            for hf in range(2):
                A(f"ds_read_b64_tr_b16 {vr(32+4*j+2*hf,2)}, v1 offset:{j*32 + hf*hfo}")
    A("v_lshlrev_b32 v3, 4, v15\ns_waitcnt vmcnt(0)\ns_barrier")
    if which == 'in':
        lane_addr(True); reads(4*1152)
    else:
        nat = A.newlabel(name + "_nat"); dn = A.newlabel(name + "_nd")
        A(f"s_mul_i32 s50, s48, 57\ns_lshr_b32 s50, s50, 9\ns_mul_i32 s50, s50, 9\ns_sub_u32 s50, s48, s50\ns_cmp_eq_u32 s50, 4\ns_cbranch_scc1 {nat}")
        lane_addr(False); reads(16*1152)
        A(f"s_branch {dn}")
        A.label(nat)
        lane_addr(True); reads(4*1152)
        A.label(dn)
    if which == 'in':
        A("s_lshl_b32 s44, s49, 2\ns_add_u32 s44, s44, s36\ns_mul_i32 s44, s44, 18\ns_add_u32 s44, s44, s48\ns_mul_i32 s44, s44, 9216")
    A("s_waitcnt lgkmcnt(0)")
    for j in range(9):
        if which == 'in':
            A(f"s_add_u32 s45, s44, {j*1024}")
        else:
            A(f"s_mul_i32 s45, s36, 9\ns_add_u32 s45, s45, {j}\ns_mul_i32 s50, s45, 43\ns_lshr_b32 s50, s50, 8\ns_mul_i32 s51, s50, 6\ns_sub_u32 s45, s45, s51")
            A("s_mul_i32 s50, s50, 72\ns_add_u32 s50, s50, s48\ns_mul_i32 s50, s50, 6\ns_add_u32 s45, s45, s50\ns_lshl_b32 s45, s45, 10")
        A(f"buffer_store_dwordx4 {vr(32+4*j,4)}, v3, s[8:11], s45 offen")

def gen_l0(name, kgen=None, stamps=False):
    A = Asm()
    def mk():
        st = Stamper(A, 0, stamps); st.n = 1; return st
    nwg = 552 + 128
    A(f"""
    s_cmp_ge_u32 s2, {nwg}
    s_cbranch_scc1 {name}_end
    s_load_dwordx4 s[28:31], s[0:1], 0
    s_load_dwordx8 s[56:63], s[0:1], 8
    s_load_dwordx2 s[64:65], s[0:1], 40
    s_load_dwordx4 s[88:91], s[0:1], 64
    s_load_dwordx2 s[92:93], s[0:1], 88
    s_load_dwordx2 s[32:33], s[0:1], 112
    """)
    if stamps: A("s_memrealtime s[96:97]\ns_memtime s[70:71]")
    A(f"""
    v_lshrrev_b32 v1, 6, v0
    v_and_b32 v15, 63, v0
    s_nop 0
    v_readfirstlane_b32 s36, v1
    s_waitcnt lgkmcnt(0)
    s_cmp_ge_u32 s2, 128
    s_cbranch_scc1 {name}_r1
    """)
    A("s_and_b32 s44, s2, 7\ns_lshl_b32 s44, s44, 4\ns_lshr_b32 s45, s2, 3\ns_add_u32 s66, s44, s45")
    st = mk()
    gen_ln(A, name, st.stamp)
    st.stamp()
    st.finish(vbase=100)
    A("s_endpgm")
    A.label(f"{name}_r1")
    A(f"s_cmp_ge_u32 s2, 416\ns_cbranch_scc1 {name}_r2")
    A("s_sub_u32 s47, s2, 128\ns_lshl_b32 s47, s47, 1\ns_lshr_b32 s38, s36, 1\ns_and_b32 s37, s36, 1\ns_add_u32 s47, s47, s38")
    kgen(A, name)
    mk().finish(vbase=100)
    A("s_endpgm")
    A.label(f"{name}_r2")
    A(f"s_cmp_ge_u32 s2, 488\ns_cbranch_scc1 {name}_r3")
    A("s_sub_u32 s47, s2, 416\ns_mov_b32 s30, s92\ns_mov_b32 s31, s93")
    gen_wtile(A, name, 'out')
    mk().finish(vbase=100)
    A("s_endpgm")
    A.label(f"{name}_r3")
    A(f"s_cmp_ge_u32 s2, 552\ns_cbranch_scc0 {name}_r3b")
    srd(A, 4, 90, 91, 2048*4096)
    A("s_sub_u32 s44, s2, 552\ns_lshl_b32 s44, s44, 2\ns_add_u32 s44, s44, s36\ns_lshl_b32 s44, s44, 14\nv_lshlrev_b32 v1, 4, v15")
    for j in range(16):
        A(f"s_add_u32 s46, s44, {j*1024}\nbuffer_load_dwordx4 v[16:19], v1, s[4:7], s46 offen")
    A("s_waitcnt vmcnt(0)\ns_endpgm")
    A.label(f"{name}_r3b")
    srd(A, 4, 88, 89, 576*9216)
    A("s_sub_u32 s44, s2, 488\ns_lshl_b32 s44, s44, 2\ns_add_u32 s44, s44, s36\ns_mul_i32 s44, s44, 20736\nv_lshlrev_b32 v1, 4, v15")
    for j in range(21):
        A(f"s_add_u32 s46, s44, {j*1024}\nbuffer_load_dwordx4 v[16:19], v1, s[4:7], s46 offen")
    A("s_waitcnt vmcnt(0)")
    mk().finish(vbase=100)
    A.label(f"{name}_end")
    A("s_endpgm")
    return A.text(), kernel_desc(name, 124, 0), nwg
```

```python
from asmlib import *
from l0 import bf16_round, dpp_sum16
from kgen import gen_kgen

P0_LN = 61440
P0_KG = 71680
P0_WSP = 102400
P0_WOT = 135168
PITCH = 1168

def p0_issue(A, name):
    lo = A.newlabel(name + "_hi"); done = A.newlabel(name + "_id")
    A(f"s_cmp_ge_u32 s36, 2\ns_cbranch_scc1 {lo}")
    srd(A, 4, 76, 77, 2048 * 1152)
    A(f"""
    s_lshl_b32 s44, s2, 3
    s_lshl_b32 s45, s36, 2
    s_add_u32 s44, s44, s45
    v_lshrrev_b32 v1, 4, v15
    v_add_u32 v2, s44, v1
    v_mul_u32_u24 v2, 1152, v2
    v_and_b32 v3, 15, v15
    v_lshlrev_b32 v4, 4, v3
    v_add_u32 v2, v2, v4
    """)
    for j in range(4):
        A(f"buffer_load_dwordx4 {vr(128+4*j,4)}, v2, s[4:7], 0 offen offset:{j*256}")
    A("s_mov_b32 s50, 0x00ff00ff\ns_mov_b32 s51, 0x00ff00ff")
    A("v_mov_b32 v144, 0\nv_mov_b32 v145, 0\nv_mov_b32 v146, 0\nv_mov_b32 v147, 0")
    A("s_mov_b64 exec, s[50:51]")
    A(f"buffer_load_dwordx4 v[144:147], v2, s[4:7], 0 offen offset:1024")
    A("s_mov_b64 exec, -1")
    A(f"s_branch {done}")
    A.label(lo)
    A.label(done)

def p0_issue_hi(A, name):
    skip = A.newlabel(name + "_sh")
    A(f"s_cmp_ge_u32 s36, 2\ns_cbranch_scc0 {skip}")
    srd(A, 4, 78, 79, 576 * 9216)
    A("s_mul_i32 s44, s2, 20736\ns_sub_u32 s45, s36, 2\ns_mul_i32 s45, s45, 10368\ns_add_u32 s44, s44, s45\nv_lshlrev_b32 v1, 4, v15")
    for j in range(11):
        A(f"s_add_u32 s45, s44, {j*1024}\nbuffer_load_dwordx4 v[148:151], v1, s[4:7], s45 offen")
    A.label(skip)

def wot_dma_ops(A):
    setup = f"""s_mul_i32 s44, s2, 171
    s_lshr_b32 s44, s44, 9
    s_mul_i32 s45, s44, 3
    s_sub_u32 s45, s2, s45
    s_mul_i32 s44, s44, {32*1152}
    s_mul_i32 s45, s45, 384
    s_add_u32 s44, s44, s45
    s_cmp_lt_u32 s2, 216
    s_cselect_b32 s47, s44, 0x7fffffff
    s_mov_b32 s24, s74
    s_and_b32 s25, s75, 0xffff
    s_mov_b32 s26, {2304*1152}
    s_mov_b32 s27, 0x00020000
    """
    ops = []
    for j in range(3):
        o = (setup if j == 0 else "") + f"""s_mul_i32 s48, s36, 192
        s_add_u32 s48, s48, {64*j}
        v_add_u32 v250, s48, v15
        v_mul_u32_u24 v251, 2731, v250
        v_lshrrev_b32 v251, 16, v251
        v_mul_u32_u24 v252, 24, v251
        v_sub_u32 v252, v250, v252
        v_mul_u32_u24 v251, 1152, v251
        v_lshl_add_u32 v251, v252, 4, v251
        s_mul_i32 s48, s36, 3072
        s_add_u32 m0, s48, {P0_WOT + j*1024}
        s_nop 0
        buffer_load_dwordx4 v251, s[24:27], s47 offen lds"""
        ops.append("\n".join(l.strip() for l in o.split("\n")))
    return ops
P0_HI_OPS = 16 + 6 + 11

def p0_ln(A, name, flagfn, stamp=lambda: None, pre_store=None):
    skip = A.newlabel(name + "_ls")
    A(f"s_cmp_lt_u32 s36, 2\ns_cbranch_scc0 {skip}")
    A("s_mov_b32 s50, 0x00ff00ff\ns_mov_b32 s51, 0x00ff00ff")
    A(f"""
    v_lshrrev_b32 v1, 4, v15
    s_lshl_b32 s45, s36, 2
    v_add_u32 v5, s45, v1
    v_mul_u32_u24 v5, {PITCH}, v5
    v_and_b32 v3, 15, v15
    v_lshlrev_b32 v4, 4, v3
    v_add_u32 v5, v5, v4
    v_add_u32 v5, {P0_LN}, v5
    s_waitcnt vmcnt(17)
    """)
    if pre_store: pre_store()
    D = 128; U = 160
    for q in range(20):
        A(f"v_lshlrev_b32 v{U+2*q}, 16, v{D+q}")
        A(f"v_and_b32 v{U+1+2*q}, 0xffff0000, v{D+q}")
    A(f"v_add_f32 v6, v{U}, v{U+1}")
    for q in range(2, 40): A(f"v_add_f32 v6, v6, v{U+q}")
    dpp_sum16(A, 6)
    A("v_mul_f32 v6, 0x3ae38e39, v6")
    A("v_mov_b32 v7, 0\nv_mov_b32 v9, 0")
    for q in range(0, 32, 2):
        A(f"v_sub_f32 v8, v{U+q}, v6\nv_sub_f32 v10, v{U+q+1}, v6\nv_fmac_f32 v7, v8, v8\nv_fmac_f32 v9, v10, v10")
    A("s_mov_b64 exec, s[50:51]")
    for q in range(32, 40, 2):
        A(f"v_sub_f32 v8, v{U+q}, v6\nv_sub_f32 v10, v{U+q+1}, v6\nv_fmac_f32 v7, v8, v8\nv_fmac_f32 v9, v10, v10")
    A("s_mov_b64 exec, -1")
    A("v_add_f32 v7, v7, v9")
    dpp_sum16(A, 7)
    A("v_mul_f32 v7, 0x3ae38e39, v7")
    bf16_round(A, 7)
    A("v_add_f32 v7, 0x3727c5ac, v7")
    bf16_round(A, 7)
    A("v_sqrt_f32 v7, v7\ns_nop 0")
    bf16_round(A, 7)
    A("v_rcp_f32 v7, v7")
    bf16_round(A, 6)
    for q in range(20):
        a, b = U+2*q, U+1+2*q
        A(f"v_sub_f32 v{a}, v{a}, v6\nv_sub_f32 v{b}, v{b}, v6\nv_cvt_pk_bf16_f32 v8, v{a}, v{b}")
        A(f"v_lshlrev_b32 v{a}, 16, v8\nv_and_b32 v{b}, 0xffff0000, v8")
        A(f"v_mul_f32 v{a}, v{a}, v7\nv_mul_f32 v{b}, v{b}, v7\nv_cvt_pk_bf16_f32 v{D+q}, v{a}, v{b}")
    for j in range(4):
        A(f"ds_write_b128 v5, {vr(D+4*j,4)} offset:{j*256}")
    A("s_mov_b64 exec, s[50:51]")
    A(f"ds_write_b128 v5, v[{D+16}:{D+19}] offset:1024")
    A("s_mov_b64 exec, -1")
    A("s_waitcnt lgkmcnt(0)")
    stamp()
    A("s_barrier")
    skip2 = skip
    srd_off(A, 8, 32, 33, WS_XN, 128 * 18 * 1024)
    A(f"""
    v_and_b32 v1, 7, v15
    v_mul_u32_u24 v2, {PITCH}, v1
    v_lshrrev_b32 v3, 3, v15
    v_lshlrev_b32 v4, 4, v3
    v_add_u32 v2, v2, v4
    v_add_u32 v2, {P0_LN}, v2
    s_lshl_b32 s45, s36, 7                ; e=w -> 2 ksteps * 64B
    v_add_u32 v2, s45, v2
    v_lshlrev_b32 v3, 8, v3
    v_lshlrev_b32 v1, 4, v1
    v_add_u32 v3, v3, v1                  ; + row*16
    s_lshr_b32 s44, s2, 1                 ; s-tile
    s_mul_i32 s44, s44, 18432
    s_and_b32 s45, s2, 1
    s_lshl_b32 s45, s45, 7
    s_add_u32 s44, s44, s45
    s_lshl_b32 s45, s36, 11
    s_add_u32 s44, s44, s45               ; + w*2048
    """)
    for j in range(5):
        A(f"ds_read_b128 {vr(128+4*j,4)}, v2 offset:{j*256}")
    A("s_waitcnt lgkmcnt(0)")
    for j in range(4):
        A(f"s_add_u32 s45, s44, {j*4096}\nbuffer_store_dwordx4 {vr(128+4*j,4)}, v3, s[8:11], s45 offen sc1")
    l5 = A.newlabel(name + "_l5")
    A(f"s_cmp_eq_u32 s36, 0\ns_cbranch_scc0 {l5}")
    A(f"s_add_u32 s45, s44, {4*4096}\nbuffer_store_dwordx4 v[144:147], v3, s[8:11], s45 offen sc1")
    A.label(l5)
    A.label(skip2)

def p0_wot(A, name):
    skip = A.newlabel(name + "_ws")
    A(f"s_cmp_lt_u32 s2, 216\ns_cbranch_scc0 {skip}")
    srd_off(A, 8, 32, 33, WS_WOT, 2304 * 1152)
    A(f"""
    s_mul_i32 s48, s2, 171
    s_lshr_b32 s48, s48, 9            ; ks
    s_mul_i32 s45, s48, 3
    s_sub_u32 s49, s2, s45            ; cg
    s_mul_i32 s50, s48, 57
    s_lshr_b32 s50, s50, 9
    s_mul_i32 s50, s50, 9
    s_sub_u32 s50, s48, s50           ; ks % 9
    v_lshrrev_b32 v1, 2, v15          ; 4kg + r
    v_lshrrev_b32 v2, 4, v15
    v_lshlrev_b32 v2, 3, v2
    v_bfe_u32 v3, v15, 2, 2
    v_add_u32 v2, v2, v3              ; 8kg + r
    s_cmp_eq_u32 s50, 4
    s_mov_b32 s51, {16*384}
    s_cselect_b32 s51, {4*384}, s51
    s_cselect_b64 vcc, -1, 0
    s_nop 1
    v_cndmask_b32 v1, v1, v2, vcc
    v_mul_u32_u24 v1, 384, v1
    v_and_b32 v2, 3, v15
    v_lshlrev_b32 v2, 3, v2
    v_add_u32 v1, v1, v2
    s_mul_i32 s45, s36, 96
    s_add_u32 s45, s45, {P0_WOT}
    v_add_u32 v1, s45, v1
    v_add_u32 v2, s51, v1
    v_lshlrev_b32 v3, 4, v15
    """)
    for j in range(3):
        A(f"ds_read_b64_tr_b16 {vr(204+4*j,2)}, v1 offset:{j*32}")
        A(f"ds_read_b64_tr_b16 {vr(206+4*j,2)}, v2 offset:{j*32}")
    A("s_waitcnt lgkmcnt(0)")
    for j in range(3):
        A(f"s_mul_i32 s45, s36, 3\ns_add_u32 s45, s45, {j}\ns_cmp_ge_u32 s45, 6\ns_cselect_b32 s46, 1, 0\ns_mul_i32 s47, s46, 6\ns_sub_u32 s45, s45, s47")
        A("s_lshl_b32 s47, s49, 1\ns_add_u32 s46, s46, s47\ns_mul_i32 s46, s46, 72\ns_add_u32 s46, s46, s48\ns_mul_i32 s46, s46, 6\ns_add_u32 s45, s45, s46\ns_lshl_b32 s45, s45, 10")
        A(f"buffer_store_dwordx4 {vr(204+4*j,4)}, v3, s[8:11], s45 offen sc1")
    A.label(skip)
```

```python
import sys
from asmlib import *
from l0 import gen_l0
from g1 import gen_g1
from g1b import gen_g1b
from g2 import gen_g2
from g3 import gen_g3
from l3 import gen_l3
from fused import gen_fused
import fused3
from kgen import gen_kgen
from conv import gen_conv
TOUCH = False
SC1 = False
def build(path, parts, stamps=False):
    launches = ""; text = ""; descs = ""
    for p in parts:
        if p == "l0":
            body, desc, nwg = gen_l0("l0_kernel", gen_kgen, stamps); launches += f"; @launch kernel=l0_kernel grid=({nwg},1,1) block=(256,1,1) lds=36864\n"; nm = "l0_kernel"
        elif p == "g1":
            body, desc, lds = gen_g1("g1_kernel", stamps); launches += f"; @launch kernel=g1_kernel grid=(256,1,1) block=(256,1,1) lds={lds}\n"; nm = "g1_kernel"
        elif p == "g1b":
            body, desc, lds = gen_g1b("g1_kernel", stamps); launches += f"; @launch kernel=g1_kernel grid=(512,1,1) block=(256,1,1) lds={lds}\n"; nm = "g1_kernel"
        elif p == "g2":
            body, desc = gen_g2("g2_kernel", stamps); launches += f"; @launch kernel=g2_kernel grid=(256,1,1) block=(256,1,1) lds=147456\n"; nm = "g2_kernel"
        elif p == "g3":
            body, desc, lds = gen_g3("g3_kernel", stamps); launches += f"; @launch kernel=g3_kernel grid=(192,1,1) block=(256,1,1) lds={lds}\n"; nm = "g3_kernel"
        elif p == "fused":
            body, desc, lds = gen_fused("m_kernel", stamps); launches += f"; @launch kernel=m_kernel grid=(256,1,1) block=(256,1,1) lds={lds}\n"; nm = "m_kernel"
        elif p == "single":
            nm = "recurrent_scan__ssm_conv_s4d__mixer_gmlp__prompt_kernel"
            body, desc, lds = fused3.gen_fused(nm, stamps); launches += f"; @launch grid=(256,1,1) block=(256,1,1) lds={lds}\n"
        elif p == "l3":
            body, desc, lds, nwg = gen_l3("l3_kernel", stamps); launches += f"; @launch kernel=l3_kernel grid=({nwg},1,1) block=(256,1,1) lds={lds}\n"; nm = "l3_kernel"
        elif p == "conv":
            body, desc, lds, nwg = gen_conv("cv_kernel", 4, stamps); launches += f"; @launch kernel=cv_kernel grid=({nwg},1,1) block=(256,1,1) lds={lds}\n"; nm = "cv_kernel"
        if SC1 and p not in ('l3', 'fused', 'single'):
            from post import add_store_flags
            body = add_store_flags(body, 'sc1')
        text += kernel_header(nm) + body
        descs += desc
    s = HEADER + launches + '.amdgcn_target "amdgcn-amd-amdhsa--gfx950"\n.text\n' + text + '.section .rodata,"a"\n' + descs
    open(path, "w").write(s)
if __name__ == "__main__":
    args = sys.argv[1:]
    stamps = "stamps" in args
    TOUCH = "touch" in args
    SC1 = "sc1" in args
    import g1
    g1.EXP = set(a[2:] for a in args if a.startswith("x_"))
    args = [a for a in args if not a.startswith("x_")]
    import l3
    l3.PRIO = "prio" in args
    l3.NOCONV = "noconv" in args
    parts = [a for a in args[1:] if a not in ("stamps", "touch", "sc1", "prio", "noconv")]
    build(args[0], parts, stamps)
```

```python
from asmlib import *
from kgen import KR_PITCH, KR1
import kgen
KBUF = 41216; UBUF = 8192

class Conv1:
    def __init__(self, A, name, LK, LU, from_xn=False):
        self.A = A; self.name = name; self.LK = LK; self.LU = LU; self.from_xn = from_xn; self.LR = LU + UBUF
    def prefetch(self, chs):
        A = self.A; LK = self.LK; LU = self.LU
        srd_off(A, 4, 32, 33, WS_K, 576 * KR_PITCH)
        srd_off(A, 8, 32, 33, WS_XNT, 576 * 4096)
        vKd = 252
        A(f"v_lshlrev_b32 v{vKd}, 4, v15")
        A(f"s_mul_i32 s44, {chs}, {KR_PITCH}")
        A("s_lshl_b32 s45, s36, 2\ns_add_u32 s44, s44, s45")
        for cc in range(2):
            A(f"s_lshl_b32 s45, s36, 1\ns_add_u32 s45, s45, {cc}")
            A("s_mul_i32 s46, s45, 320")
            A(f"s_lshl_b32 s48, s36, 2\ns_add_u32 s48, s48, {cc}\ns_cmp_ge_u32 s45, 5\ns_subb_u32 s48, s48, 0")
            A(f"s_add_u32 s46, s46, s48\ns_lshl_b32 s46, s46, 4")
            A(f"s_add_u32 s48, s44, {cc*(2 if kgen.UNAL else KR1)}")
            for it in range(5):
                A(f"s_add_u32 m0, s46, {LK + it*1024}\ns_add_u32 s49, s48, {it*1024}")
                A(f"buffer_load_dwordx4 v{vKd}, s[4:7], s49 offen{' sc1' if self.from_xn else ''} lds")
        if self.from_xn:
            srd_off(A, 8, 32, 33, WS_XN, 128 * 18 * 1024)
            A(f"""
            s_and_b32 s46, {chs}, 0xfffffffe
            s_lshr_b32 s44, s46, 5
            s_lshl_b32 s44, s44, 10
            s_bfe_u32 s45, s46, 0x20003
            s_lshl_b32 s45, s45, 8
            s_add_u32 s44, s44, s45
            s_and_b32 s45, s46, 7
            s_lshl_b32 s45, s45, 1
            s_add_u32 s44, s44, s45
            s_mul_i32 s45, s36, {8*4*18432}
            s_add_u32 s44, s44, s45
            v_lshrrev_b32 v252, 4, v15
            v_mul_u32_u24 v252, 18432, v252
            v_and_b32 v253, 15, v15
            v_lshlrev_b32 v253, 4, v253
            v_add_u32 v252, v252, v253
            s_lshl_b32 s46, s36, 11
            s_add_u32 s46, s46, {self.LR}
            """)
            for j in range(8):
                A(f"s_add_u32 s45, s44, {j*4*18432}\ns_add_u32 m0, s46, {j*256}\ns_nop 0\nbuffer_load_dword v252, s[8:11], s45 offen sc1 lds")
        else:
          A(f"s_lshl_b32 s46, {chs}, 12")
          for j in range(2):
            A(f"""
            s_lshl_b32 s44, s36, 7
            s_add_u32 s44, s44, {64*j}
            v_add_u32 v252, s44, v15
            v_mul_u32_u24 v253, 6554, v252
            v_lshrrev_b32 v253, 16, v253
            v_mul_u32_u24 v250, 10, v253
            v_sub_u32 v250, v252, v250
            v_subrev_u32 v253, 15, v253
            v_cmp_gt_u32 vcc, 32, v253
            v_cmp_gt_u32 s[52:53], 8, v250
            v_lshlrev_b32 v253, 7, v253
            v_lshl_add_u32 v253, v250, 4, v253
            s_and_b64 vcc, vcc, s[52:53]
            v_mov_b32 v250, 0x80000000
            s_nop 1
            v_cndmask_b32 v253, v250, v253, vcc
            s_lshl_b32 s45, s36, 11
            s_add_u32 m0, s45, {LU + j*1024}
            s_nop 0
            buffer_load_dwordx4 v253, s[8:11], s46 offen lds
            """)
        srd(A, 12, 88, 89, 1152)
        A(f"s_lshl_b32 s44, {chs}, 1\nv_mov_b32 v252, s44\nbuffer_load_ushort a168, v252, s[12:15], 0 offen")
    def run(self, second, pair_s, mid_hook=None, saA=164, done_hook=None):
        A = self.A; name = self.name; LK = self.LK; LU = self.LU; LS = LK
        vA = 5; vB = 6; vA0 = 7; vB0 = 8; vBz = 9
        A(f"""
        v_and_b32 v16, 15, v15
        v_sub_u32 v17, 0, v16
        v_and_b32 v17, 7, v17
        v_mul_u32_u24 v18, 320, v17
        v_lshrrev_b32 v19, 1, v17
        v_lshlrev_b32 v19, 2, v19
        v_and_b32 v20, 1, v17
        v_add_u32 v19, v19, v20
        v_cmp_le_u32 vcc, 5, v17
        v_add_u32 v18, v18, v19
        s_nop 0
        v_cndmask_b32 v20, 0, 1, vcc
        v_sub_u32 v18, v18, v20
        v_lshrrev_b32 v19, 4, v15
        v_add_u32 v18, v18, v19
        v_add_u32 v19, 7, v16
        v_lshrrev_b32 v19, 3, v19
        v_sub_u32 v18, v18, v19
        v_lshlrev_b32 v18, 4, v18
        v_add_u32 v{vA0}, {32 + LK}, v18
        v_mul_u32_u24 v18, 160, v16
        v_lshrrev_b32 v19, 4, v15
        v_lshlrev_b32 v19, 4, v19
        v_add_u32 v{vB0}, v18, v19
        s_cmp_eq_u32 s36, 0
        s_cselect_b32 s50, 0, 24
        s_cselect_b32 s51, 6, 2
        s_cselect_b32 s54, 0, 2
        s_cmp_ge_u32 s36, 2
        s_cselect_b32 s51, 0, s51
        s_cselect_b32 s54, 3, s54
        s_cmp_eq_u32 s36, 2
        s_cselect_b32 s50, 40, s50
        s_cmp_eq_u32 s36, 3
        s_cselect_b32 s50, 52, s50
        s_lshl_b32 s44, s50, 6
        v_add_u32 v{vA}, s44, v{vA0}
        s_lshr_b32 s44, s50, 1
        s_mul_i32 s44, s44, 160
        s_add_u32 s44, s44, {LU}
        v_add_u32 v{vB}, s44, v{vB0}
        v_subrev_u32 v{vBz}, 2560, v{vB}
        """)
        FR = [24, 32, 40, 48]; BR = [56, 64, 72, 80]; ACC = 96
        for r in range(32): A(f"v_mov_b32 v{ACC+r}, 0")
        return FR, BR, ACC, vA, vB, vBz
    def compute(self, second, pair_s, wait_n, mid_hook=None, saA=164, pre_hook=None, mid_wait=0, dyn=False, split=None):
        A = self.A; name = self.name; LK = self.LK; LU = self.LU; LS = LK
        FR, BR, ACC, vA, vB, vBz = self.run(second, pair_s)
        A(f"s_waitcnt vmcnt({wait_n})\ns_barrier" if wait_n is not None else "s_barrier")
        if pre_hook:
            pre_hook(); mid_hook = None
        if self.from_xn:
            sel = "0x07060302" if second else "0x05040100"
            selasm = f"s_mov_b32 s44, {sel}" if not dyn else "s_mov_b32 s44, 0x05040100\n            s_cmp_eq_u32 s60, 1\n            s_cselect_b32 s44, 0x07060302, s44"
            A(f"""
            v_lshlrev_b32 v1, 5, v15
            s_lshl_b32 s44, s36, 11
            s_add_u32 s44, s44, {self.LR}
            v_add_u32 v1, s44, v1
            ds_read_b128 v[24:27], v1
            ds_read_b128 v[28:31], v1 offset:16
            s_lshl_b32 s44, s36, 6
            v_add_u32 v10, s44, v15
            v_lshrrev_b32 v11, 3, v10
            v_mul_u32_u24 v11, 160, v11
            v_and_b32 v10, 7, v10
            v_lshlrev_b32 v10, 4, v10
            v_add_u32 v10, v10, v11
            v_add_u32 v10, {LU + 15*160}, v10
            v_mov_b32 v32, 0
            v_mov_b32 v33, 0
            v_mov_b32 v34, 0
            v_mov_b32 v35, 0
            v_lshlrev_b32 v11, 4, v15
            s_lshl_b32 s44, s36, 10
            s_add_u32 s44, s44, {LU}
            v_add_u32 v11, s44, v11
            v_cmp_gt_u32 vcc, {LU + 2400}, v11
            s_and_saveexec_b64 s[52:53], vcc
            ds_write_b128 v11, v[32:35]
            s_mov_b64 exec, s[52:53]
            {selasm}
            s_waitcnt lgkmcnt(0)
            v_perm_b32 v32, v25, v24, s44
            v_perm_b32 v33, v27, v26, s44
            v_perm_b32 v34, v29, v28, s44
            v_perm_b32 v35, v31, v30, s44
            ds_write_b128 v10, v[32:35]
            s_waitcnt lgkmcnt(0)
            s_barrier
            """)
        def rdA(pair, t): return [f"ds_read_b128 {vr(FR[pair],4)}, v{vA} offset:{96+64*t}", f"ds_read_b128 {vr(FR[pair]+4,4)}, v{vA} offset:{64+64*t}"]
        def rdB(slot, t, tile):
            off = (t >> 1) * 160 + 64 * (t & 1)
            return f"ds_read_b128 {vr(BR[slot] + (0 if tile == 1 else 4),4)}, v{vB if tile == 1 else vBz} offset:{off}"
        for x in rdA(3, -1): A(x)
        for t in range(2):
            for x in rdA(t, t): A(x)
            A(rdB(t, t, 1))
        l0 = A.newlabel(name + "_p0")
        A(f"s_cmp_eq_u32 s51, 0\ns_cbranch_scc0 {l0}")
        for t in range(2): A(rdB(t, t, 0))
        A.label(l0)
        A("s_waitcnt lgkmcnt(0)")
        def body(double):
            for t in range(4):
                A(f"s_waitcnt lgkmcnt({4 if double else 3})")
                cur = FR[t]; prev = FR[(t-1) % 4]
                fr = [cur, cur+4, prev, prev+4]
                rd = rdA((t+2) % 4, t+2) + [rdB((t+2) % 4, t+2, 1)] + ([rdB((t+2) % 4, t+2, 0)] if double else [])
                mf = []
                for i in ([1, 0] if double else [1]):
                    for h in range(4):
                        c = vr(ACC + (h*2+i)*4, 4)
                        mf.append(f"v_mfma_f32_16x16x32_bf16 {c}, {vr(fr[h],4)}, {vr(BR[t] + (0 if i == 1 else 4),4)}, {c}")
                for j, m in enumerate(mf):
                    A(m)
                    if j < len(rd): A(rd[j])
            A(f"v_add_u32 v{vA}, 256, v{vA}\nv_add_u32 v{vB}, 320, v{vB}\nv_add_u32 v{vBz}, 320, v{vBz}")
        l1 = A.newlabel(name + "_s"); l1e = A.newlabel(name + "_se"); l2 = A.newlabel(name + "_d"); l2e = A.newlabel(name + "_de"); l2s = A.newlabel(name + "_ds")
        A(f"s_mov_b32 s55, s51\ns_cmp_eq_u32 s55, 0\ns_cbranch_scc1 {l2s}")
        A.label(l1)
        body(False)
        A(f"s_sub_u32 s55, s55, 1\ns_cmp_lg_u32 s55, 0\ns_cbranch_scc1 {l1}")
        A(f"s_cmp_eq_u32 s54, 0\ns_cbranch_scc1 {l2e}")
        for t in range(2): A(rdB(t, t, 0))
        A("s_waitcnt lgkmcnt(0)")
        A.label(l2s)
        A("s_mov_b32 s55, s54")
        A.label(l2)
        body(True)
        A(f"s_sub_u32 s55, s55, 1\ns_cmp_lg_u32 s55, 0\ns_cbranch_scc1 {l2}")
        A.label(l2e)
        if hasattr(self, "stamp"): self.stamp()
        A(f"s_waitcnt vmcnt({mid_wait}) lgkmcnt(0)\ns_nop 7\ns_barrier")
        if mid_hook: mid_hook()
        if split: split()
        A(f"v_lshlrev_b32 v1, 4, v15\ns_lshl_b32 s44, s36, 13\ns_add_u32 s44, s44, {LS}\nv_add_u32 v11, s44, v1")
        for h in range(4):
            for i in range(2):
                A(f"ds_write_b128 v11, {vr(ACC+(h*2+i)*4,4)} offset:{(h*2+i)*1024}")
        A(f"""
        v_and_b32 v12, 15, v15
        v_mul_u32_u24 v12, 160, v12
        v_lshrrev_b32 v13, 4, v15
        v_lshlrev_b32 v13, 3, v13
        v_add_u32 v12, v12, v13
        s_lshl_b32 s44, s36, 5
        s_add_u32 s44, s44, {LU}
        v_add_u32 v12, s44, v12
        """)
        for i in range(2):
            A(f"ds_read_b64 {vr(56+2*i,2)}, v12 offset:{(15+16*i)*160}")
        A("s_waitcnt lgkmcnt(0)\ns_barrier")
        A(f"s_lshl_b32 s44, s36, 11\ns_add_u32 s44, s44, {LS}\nv_add_u32 v11, s44, v1")
        for ww in range(4):
            for i in range(2):
                A(f"ds_read_b128 {vr(24+(ww*2+i)*4,4)}, v11 offset:{ww*8192 + i*1024}")
        A("v_accvgpr_read_b32 v14, a168\ns_nop 0\nv_lshlrev_b32 v14, 16, v14")
        for i in range(2):
            u = 56 + 2*i; t = 64 + 4*i
            A(f"v_lshlrev_b32 v{t}, 16, v{u}\nv_and_b32 v{t+1}, 0xffff0000, v{u}\nv_lshlrev_b32 v{t+2}, 16, v{u+1}\nv_and_b32 v{t+3}, 0xffff0000, v{u+1}")
            for r in range(4): A(f"v_mul_f32 v{t+r}, v{t+r}, v14")
            A(f"v_cvt_pk_bf16_f32 v60, v{t}, v{t+1}\nv_cvt_pk_bf16_f32 v61, v{t+2}, v{t+3}")
            A(f"v_lshlrev_b32 v{t}, 16, v60\nv_and_b32 v{t+1}, 0xffff0000, v60\nv_lshlrev_b32 v{t+2}, 16, v61\nv_and_b32 v{t+3}, 0xffff0000, v61")
        A("s_waitcnt lgkmcnt(0)")
        for i in range(2):
            for ww in range(1, 4):
                A(f"v_pk_add_f32 {vr(24+i*4,2)}, {vr(24+i*4,2)}, {vr(24+(ww*2+i)*4,2)}")
                A(f"v_pk_add_f32 {vr(24+i*4+2,2)}, {vr(24+i*4+2,2)}, {vr(24+(ww*2+i)*4+2,2)}")
        for i in range(2):
            y = 24 + i*4; t = 64 + 4*i
            A(f"v_cvt_pk_bf16_f32 v60, v{y}, v{y+1}\nv_cvt_pk_bf16_f32 v61, v{y+2}, v{y+3}")
            A(f"v_lshlrev_b32 v{y}, 16, v60\nv_and_b32 v{y+1}, 0xffff0000, v60\nv_lshlrev_b32 v{y+2}, 16, v61\nv_and_b32 v{y+3}, 0xffff0000, v61")
            for r in range(4): A(f"v_add_f32 v{y+r}, v{y+r}, v{t+r}")
            A(f"v_cvt_pk_bf16_f32 v60, v{y}, v{y+1}\nv_cvt_pk_bf16_f32 v61, v{y+2}, v{y+3}")
            if dyn:
                A(f"v_mov_b32 v{80+2*i}, v60\nv_mov_b32 v{81+2*i}, v61")
            elif not second:
                A(f"v_accvgpr_write_b32 a{saA+2*i}, v60\nv_accvgpr_write_b32 a{saA+2*i+1}, v61")
            else:
                A(f"v_accvgpr_read_b32 v62, a{saA+2*i}\nv_accvgpr_read_b32 v63, a{saA+2*i+1}")
                o = 72 + 4*i
                A(f"s_mov_b32 s44, 0x05040100\ns_mov_b32 s45, 0x07060302")
                A(f"v_perm_b32 v{o}, v60, v62, s44\nv_perm_b32 v{o+1}, v60, v62, s45")
                A(f"v_perm_b32 v{o+2}, v61, v63, s44\nv_perm_b32 v{o+3}, v61, v63, s45")
        if dyn:
            l2nd = A.newlabel(name + "_2nd"); lend = A.newlabel(name + "_ce")
            A(f"s_cmp_eq_u32 s60, 1\ns_cbranch_scc1 {l2nd}")
            for r in range(4): A(f"v_accvgpr_write_b32 a{saA+r}, v{80+r}")
            A(f"s_branch {lend}")
            A.label(l2nd)
            A(f"s_mov_b32 s44, 0x05040100\ns_mov_b32 s45, 0x07060302")
            for i in range(2):
                o = 72 + 4*i
                A(f"v_accvgpr_read_b32 v62, a{saA+2*i}\nv_accvgpr_read_b32 v63, a{saA+2*i+1}\ns_nop 0")
                A(f"v_perm_b32 v{o}, v{80+2*i}, v62, s44\nv_perm_b32 v{o+1}, v{80+2*i}, v62, s45")
                A(f"v_perm_b32 v{o+2}, v{81+2*i}, v63, s44\nv_perm_b32 v{o+3}, v{81+2*i}, v63, s45")
            second = True
        if second:
            srd_off(A, 12, 32, 33, WS_S, 288 * 8192)
            A(f"""
            v_and_b32 v12, 15, v15
            v_lshlrev_b32 v12, 8, v12
            v_lshrrev_b32 v13, 4, v15
            v_lshlrev_b32 v13, 4, v13
            v_add_u32 v12, v12, v13
            s_lshl_b32 s44, {pair_s}, 13
            s_lshl_b32 s45, s36, 6
            s_add_u32 s44, s44, s45
            s_add_u32 s45, s44, 4096
            """)
            A(f"buffer_store_dwordx4 v[72:75], v12, s[12:15], s44 offen sc1")
            A(f"buffer_store_dwordx4 v[76:79], v12, s[12:15], s45 offen sc1")
            if dyn: A.label(lend)
```

```python
from asmlib import *

class Core:
    def __init__(self, A, name, nP, nQ, KS, S, R, ACC, QB, QBp, PR, vP, vQd, vQr, sP, sQ, s_q, s_p, s_lds, s_it, p_ks_stride,
                 orient="QP", lds_base=0, slot_pitch=None, q_stage_stride=None, qreads_fn=None, reads_per_gap=None, nwaves=4):
        self.__dict__.update(locals()); del self.self
        self.nd = (S * nQ + 3) // 4
        self.SLOT = slot_pitch or self.nd * 4 * 1024
        self.NS = KS // S
        self.gsize = self.nd + S * nP
    def reg(self, kind, b, n): return vr(b, n, kind)
    def G(self, slot):
        c = self
        dm = []
        for j in range(c.nd):
            dm.append(f"s_add_u32 m0, {c.s_lds}, {c.lds_base + slot*c.SLOT + j*4096}\ns_nop 0\n"
                      f"buffer_load_dwordx4 v{c.vQd[j]}, s[{c.sQ}:{c.sQ+3}], {c.s_q} offen lds")
        pl = []
        for ks in range(c.S):
            for i in range(c.nP):
                pl.append(f"buffer_load_dwordx4 {ar(c.PR + ((slot*c.S + ks)*c.nP + i)*4, 4)}, v{c.vP[i]}, s[{c.sP}:{c.sP+3}], {c.s_p} offen offset:{ks*c.p_ks_stride}{getattr(c, 'p_flags', '')}")
        ops = []
        a, b = list(dm), list(pl)
        while a or b:
            if a: ops.append(a.pop(0))
            if b: ops.append(b.pop(0))
        ops[-1] += f"\ns_add_u32 {c.s_q}, {c.s_q}, {c.q_stage_stride or c.S*c.nQ*1024}\ns_add_u32 {c.s_p}, {c.s_p}, {c.S*c.p_ks_stride}"
        return ops
    def qreads(self, buf, slot, ks):
        c = self
        if c.qreads_fn: return c.qreads_fn(buf, slot, ks)
        return [f"ds_read_b128 {vr(c.QB[buf]+j*4, 4, c.QBp)}, v{c.vQr[slot]} offset:{(ks*c.nQ+j)*1024}" for j in range(c.nQ)]
    def mfmas(self, buf, slot, ks):
        c = self; out = []
        for j in range(c.nQ):
            for i in range(c.nP):
                acc = vr(c.ACC + (i*c.nQ+j)*4, 4)
                q = vr(c.QB[buf]+j*4, 4, c.QBp); p = ar(c.PR + ((slot*c.S+ks)*c.nP+i)*4, 4)
                a, b = (q, p) if c.orient == "QP" else (p, q)
                out.append(f"v_mfma_f32_16x16x32_bf16 {acc}, {a}, {b}, {acc}")
        return out
    def setup_addr(self, vlane16, s_wave, vtmp):
        A = self.A; c = self
        A(f"s_lshl_b32 {c.s_lds}, {s_wave}, 10")
        for j in range(c.nd):
            A(f"v_add_u32 v{c.vQd[j]}, {c.s_lds}, v{vlane16}")
            if j: A(f"v_add_u32 v{c.vQd[j]}, {j*4096}, v{c.vQd[j]}")
            if (4*j + 3) >= c.S * c.nQ:
                nvalid = c.S*c.nQ - 4*j
                A(f"s_cmp_lt_u32 {s_wave}, {nvalid}\ns_cselect_b32 s45, 0, 0x80000000\nv_or_b32 v{c.vQd[j]}, s45, v{c.vQd[j]}")
        for s in range(c.R):
            A(f"v_add_u32 v{c.vQr[s]}, {c.lds_base + s*c.SLOT}, v{vlane16}")
    def prologue(self, npre, extra=None):
        A = self.A; c = self
        for op in c.G(0): A(op)
        A("s_barrier")
        for s in range(1, c.R - 2):
            for op in c.G(s): A(op)
        h = c.gsize // 2
        for op in c.G(c.R - 2)[:h]: A(op)
        if extra: extra()
        for r in range(c.nP*c.nQ*4): A(f"v_mov_b32 v{c.ACC+r}, 0")
        A(f"s_waitcnt vmcnt({(c.R-3)*c.gsize + h})")
        A("s_barrier")
        for x in c.qreads(0, 0, 0): A(x)
    def kstep(self, mf, rd, gl, fill=None, nfill=0):
        A = self.A
        n = len(mf)
        half = max(1, n // 2)
        rper = -(-len(rd) // half) if rd else 0
        rd = list(rd); gl = list(gl)
        gpos = [half + (k * (n - half)) // max(1, len(gl)) for k in range(len(gl))] if n - half > 0 else []
        for j in range(n):
            A(mf[j])
            if j < half:
                for _ in range(rper):
                    if rd: A(rd.pop(0))
            while gl and gpos and gpos[0] <= j:
                gpos.pop(0); A(gl.pop(0))
            if fill:
                for _ in range(nfill):
                    if fill: A(fill.pop(0))
        for x in rd: A(x)
        for x in gl: A(x)
    def loop(self, looped, tail_hook=None, stage_hook=None, fill=None, nfill=0, late_hook=None):
        A = self.A; c = self
        h = c.gsize // 2
        nb = c.R if looped else c.NS
        if looped:
            assert c.NS % c.R == 0
            A(f"s_mov_b32 {c.s_it}, 0")
            A.label(f"{c.name}_loop")
        bpos = (c.S - 1) // 2 if c.S > 2 else 0
        for u in range(nb):
            slot = u % c.R
            gi = u + c.R - 1; gpi = u + c.R - 2
            g = c.G(gi % c.R) if (looped or gi < c.NS) else []
            gp = c.G(gpi % c.R) if (looped or gpi < c.NS) else []
            gp2 = gp[h:]; g1 = g[:h]
            nA = bpos + 1; nB = c.S - nA
            for ks in range(c.S):
                gk = u * c.S + ks
                A("s_waitcnt lgkmcnt(0)")
                last = (not looped) and u == nb - 1 and ks == c.S - 1
                if last: rd = []
                elif ks < c.S - 1: rd = c.qreads((gk + 1) & 1, slot, ks + 1)
                else: rd = c.qreads((gk + 1) & 1, (u + 1) % c.R, 0)
                if ks <= bpos:
                    k0 = (len(gp2) * ks) // nA; k1 = (len(gp2) * (ks + 1)) // nA; gl = gp2[k0:k1]
                else:
                    kk = ks - nA; k0 = (len(g1) * kk) // nB; k1 = (len(g1) * (kk + 1)) // nB; gl = g1[k0:k1]
                c.kstep(c.mfmas(gk & 1, slot, ks), rd, gl, fill, nfill)
                if ks == bpos and (looped or u + 1 < c.NS):
                    if looped: n = (c.R - 3) * c.gsize
                    else: n = max(0, min(u + c.R - 2, c.NS - 1) - (u + 1)) * c.gsize
                    n += c.extra_vm(u) if hasattr(c, "extra_vm") else 0
                    A(f"s_waitcnt vmcnt({min(n, 63)})")
                    A("s_barrier")
                    if looped and tail_hook is not None:
                        if u == 1:
                            skip = A.newlabel(c.name + "_sk")
                            A(f"s_cmp_eq_u32 {c.s_it}, {c.NS//c.R - 1}\ns_cbranch_scc0 {skip}")
                            for v in list(c.vQd) + list(c.vP): A(f"v_mov_b32 v{v}, 0x80000000")
                            tail_hook(A)
                            A.label(skip)
                    if looped and late_hook is not None and u == c.R - 2:
                        skip = A.newlabel(c.name + "_lk")
                        A(f"s_cmp_eq_u32 {c.s_it}, {c.NS//c.R - 1}\ns_cbranch_scc0 {skip}")
                        late_hook(A)
                        A.label(skip)
                    if stage_hook: stage_hook(u)
        if looped:
            A(f"s_add_u32 {c.s_it}, {c.s_it}, 1\ns_cmp_lt_u32 {c.s_it}, {c.NS//c.R}\ns_cbranch_scc1 {c.name}_loop")
```

```python
from asmlib import *
from core import Core
from g1 import gen_g1, f2u
import l3
from conv1 import Conv1
import math

FROM_XN = False
CONV_LK = 110592
C2, C3, C4, C5 = 0, 16, 32, 48

class F:
    def __init__(self, A, stamps):
        self.A = A; self.stamps = stamps; self.n = 0
    def stamp(self):
        if not self.stamps: return
        A = self.A; i = self.n; self.n += 1
        assert i < 30
        A("s_memtime s[100:101]\ns_waitcnt lgkmcnt(0)\nv_mov_b32 v254, s100\ns_mov_b64 exec, 1")
        A(f"buffer_store_dword v254, v255, s[96:99], 0 offen offset:{8 + 4*i}\ns_mov_b64 exec, -1")
    def rt(self, slot):
        if not self.stamps: return
        A = self.A
        A("s_memrealtime s[100:101]\ns_waitcnt lgkmcnt(0)\nv_mov_b32 v254, s100\ns_mov_b64 exec, 1")
        A(f"buffer_store_dword v254, v255, s[96:99], 0 offen offset:{4*slot}\ns_mov_b64 exec, -1")
    def ptrs_g1(self):
        self.A("s_mov_b32 s28, s78\ns_mov_b32 s29, s79\ns_mov_b32 s54, s80\ns_mov_b32 s55, s81")

FLAG_BYTES = 4 * 16 * 64 * 128
def flag_off(kind, group_s, slot_s):
    return f"s_add_u32 s44, {group_s}, {kind*16}\ns_lshl_b32 s44, s44, 6\ns_add_u32 s44, s44, {slot_s}\ns_lshl_b32 s44, s44, 7"

def signal(A, name, idx_exprs, sync=True):
    if sync: A("s_waitcnt vmcnt(0)\ns_barrier")
    lab = A.newlabel(name + "_sg")
    A(f"s_cmp_eq_u32 s36, 0\ns_cbranch_scc0 {lab}")
    srd_off(A, 24, 32, 33, WS_FLAG, FLAG_BYTES)
    A("v_mov_b32 v251, 1\ns_mov_b64 exec, 1")
    for e in idx_exprs:
        A(e); A("v_mov_b32 v250, s44\nbuffer_store_dword v251, v250, s[24:27], 0 offen sc1")
    A("s_mov_b64 exec, -1")
    A.label(lab)

def wait_flags(A, name, kind, group_s, nslots, barrier=True, allwaves=False):
    lab = A.newlabel(name + "_wf")
    if not allwaves: A(f"s_cmp_eq_u32 s36, 0\ns_cbranch_scc0 {lab}")
    srd_off(A, 24, 32, 33, WS_FLAG, FLAG_BYTES)
    A(flag_off(kind, group_s, 0))
    A(f"v_lshlrev_b32 v250, 7, v15\nv_add_u32 v250, s44, v250")
    A(f"s_mov_b32 s46, {hex(((1 << nslots) - 1) & 0xffffffff)}\ns_mov_b32 s47, {hex(((1 << nslots) - 1) >> 32)}")
    poll = A.newlabel(name + "_pl")
    A.label(poll)
    A("buffer_load_dword v251, v250, s[24:27], 0 offen sc1\ns_waitcnt vmcnt(0)")
    A("v_cmp_eq_u32 s[48:49], 1, v251\ns_and_b64 s[48:49], s[48:49], s[46:47]")
    A(f"s_cmp_eq_u64 s[48:49], s[46:47]\ns_cbranch_scc1 {lab}\ns_sleep 2\ns_branch {poll}")
    A.label(lab)
    if barrier: A("s_barrier")

def g2_pre_p(Fo, name):
    A = Fo.A
    srd_off(A, 4, 32, 33, WS_WSP, 2048 * 4096)
    A(f"""
    s_lshl_b32 s44, s34, 7
    s_lshl_b32 s45, s36, 5
    s_add_u32 s44, s44, s45
    v_lshlrev_b32 v1, 4, v15
    s_lshl_b32 s46, s44, 12
    v_add_u32 v2, s46, v1
    v_add_u32 v3, 0x10000, v2
    """)
    for s in range(3):
        A(f"s_mov_b32 s39, {s*4096}")
        for n in range(8 if s < 2 else 4):
            ks, i = n // 2, n % 2
            A(f"buffer_load_dwordx4 {ar(s*32 + ks*8 + i*4, 4)}, v{2+i}, s[4:7], s39 offen offset:{ks*1024} sc1")

def wait_flags2(A, name, a, b):
    lab = A.newlabel(name + "_w2")
    A(f"s_cmp_eq_u32 s36, 0\ns_cbranch_scc0 {lab}")
    srd_off(A, 24, 32, 33, WS_FLAG, FLAG_BYTES)
    A(flag_off(a[0], a[1], 0)); A("s_mov_b32 s47, s44")
    A(flag_off(b[0], b[1], 0))
    A("v_mov_b32 v250, s47\nv_mov_b32 v251, s44\nv_cmp_gt_u32 vcc, 16, v15\ns_nop 1\nv_cndmask_b32 v250, v251, v250, vcc")
    A("v_and_b32 v251, 15, v15\nv_lshlrev_b32 v251, 7, v251\nv_add_u32 v250, v250, v251")
    poll = A.newlabel(name + "_p2")
    A.label(poll)
    A("buffer_load_dword v251, v250, s[24:27], 0 offen sc1\ns_waitcnt vmcnt(0)")
    A("v_cmp_eq_u32 s[48:49], 1, v251")
    A(f"s_cmp_eq_u32 s48, -1\ns_cbranch_scc1 {lab}\ns_sleep 1\ns_branch {poll}")
    A.label(lab)
    A("s_barrier")

def gen_g2f(Fo, name, post_loop=None, mid=None):
    A = Fo.A; stamp = Fo.stamp
    SLOT = 36864
    ACC = 128; PR = 0; QV = [16, 52]; Z1V = 88; Z1A = 128
    vP = [2, 3]; vQd = [4, 5, 6]; vQr = [8, 9, 10, 11]; vB = [12, 13]; vL = 15
    srd_off(A, 4, 32, 33, WS_WSP, 2048 * 4096)
    A("s_mul_i32 s44, s35, 589824")
    A(f"s_add_u32 s44, s44, {WS_Z2N}")
    srd_off(A, 8, 32, 33, "s44", 589824)
    srd_off(A, 16, 32, 33, WS_H, 128 * 72 * 1024)
    srd(A, 20, 82, 83, 4096)
    A(f"""
    s_lshl_b32 s44, s34, 7
    s_lshl_b32 s45, s36, 5
    s_add_u32 s44, s44, s45
    v_lshlrev_b32 v1, 4, v{vL}
    s_lshl_b32 s46, s44, 12
    v_add_u32 v{vP[0]}, s46, v1
    v_add_u32 v{vP[1]}, 0x10000, v{vP[0]}
    s_mul_i32 s45, s36, 9216
    v_add_u32 v{vQd[0]}, s45, v1
    v_add_u32 v{vQd[1]}, 0x1000, v{vQd[0]}
    v_add_u32 v{vQd[2]}, 0x2000, v{vQd[0]}
    s_mov_b32 s40, s45
    s_add_u32 s41, s45, {SLOT}
    s_add_u32 s42, s45, {2*SLOT}
    s_add_u32 s43, s45, {3*SLOT}
    """)
    def setupB():
        A(f"""
        s_lshl_b32 s44, s34, 7
        s_lshl_b32 s45, s36, 5
        s_add_u32 s44, s44, s45
        v_and_b32 v1, 15, v{vL}
        v_add_u32 v1, s44, v1
        v_lshlrev_b32 v{vB[0]}, 1, v1
        v_add_u32 v{vB[1]}, 32, v{vB[0]}
        v_lshlrev_b32 v1, 4, v{vL}
        v_mov_b32 v{vQr[0]}, v1
        v_add_u32 v{vQr[1]}, {SLOT}, v1
        v_add_u32 v{vQr[2]}, {2*SLOT}, v1
        v_add_u32 v{vQr[3]}, {3*SLOT}, v1
        """)
        for i in range(2):
            A(f"buffer_load_ushort v{124+i}, v{vB[i]}, s[20:23], 0 offen")
    def dm(slot, j):
        g = j // 4
        pre = f"s_add_u32 m0, s{40+slot}, {g*4096}\ns_nop 0\n" if j % 4 == 0 else ""
        return pre + f"buffer_load_dwordx4 v{vQd[g]}, s[8:11], s38 offen offset:{(j%4)*1024} sc1 lds"
    def pl(slot, n):
        ks, i = n // 2, n % 2
        return f"buffer_load_dwordx4 {ar(PR + slot*32 + ks*8 + i*4, 4)}, v{vP[i]}, s[4:7], s39 offen offset:{ks*1024} sc1"
    def G(slot):
        ops = []
        for j in range(9):
            ops.append(dm(slot, j))
            if j < 8: ops.append(pl(slot, j))
        ops[-1] += f"\ns_add_u32 s38, s38, {SLOT}\ns_add_u32 s39, s39, 4096"
        return ops
    for r in range(72): A(f"v_mov_b32 v{ACC+r}, 0")
    stamp()
    wait_flags2(A, name, (0, "s35"), (1, "s34"))
    stamp()
    A("s_mov_b32 s38, 0\ns_mov_b32 s39, 0")
    for op in G(0): A(op)
    A("s_barrier")
    for op in G(1): A(op)
    for op in G(2)[0:9]: A(op)
    if mid: mid()
    setupB()
    A("s_waitcnt vmcnt(26)")
    A("s_barrier")
    def qreads(buf, slot, ks):
        return [f"ds_read_b128 {vr(QV[buf]+jn*4,4)}, v{vQr[slot]} offset:{(ks*9+jn)*1024}" for jn in range(9)]
    def mfmas(buf, slot, ks):
        out = []
        for jn in range(9):
            for i in range(2):
                c = vr(ACC + (i*9+jn)*4, 4)
                out.append(f"v_mfma_f32_16x16x32_bf16 {c}, {vr(QV[buf]+jn*4,4)}, {ar(PR+slot*32+ks*8+i*4,4)}, {c}")
        return out
    for x in qreads(0, 0, 0): A(x)
    stamp()
    A("s_mov_b32 s37, 0")
    A.label(f"{name}_loop")
    for u in range(4):
        g = G((u + 3) & 3); gprev = G((u + 2) & 3)
        for ks in range(4):
            A("s_waitcnt lgkmcnt(0)")
            rd = qreads((ks + 1) & 1, u, ks + 1) if ks < 3 else qreads(0, (u + 1) & 3, 0)
            gl = [gprev[9:13], gprev[13:17], g[0:5], g[5:9]][ks]
            mf = mfmas(ks & 1, u, ks)
            for j in range(18):
                A(mf[j])
                if j < 9: A(rd[j])
                elif (j - 9) % 2 == 0 and (j - 9) // 2 < len(gl): A(gl[(j - 9) // 2])
            if ks == 1:
                A("s_waitcnt vmcnt(17)")
                A("s_barrier")
                if u == 1:
                    skip = A.newlabel(name + "_sk")
                    A(f"s_cmp_eq_u32 s37, 3\ns_cbranch_scc0 {skip}")
                    for v in vP + vQd: A(f"v_mov_b32 v{v}, 0x80000000")
                    A.label(skip)
    A(f"s_add_u32 s37, s37, 1\ns_cmp_lt_u32 s37, 4\ns_cbranch_scc1 {name}_loop")
    stamp()
    A("s_waitcnt vmcnt(0)\ns_barrier")
    if post_loop: post_loop()
    for r in range(36): A(f"v_accvgpr_read_b32 v{Z1V+r}, a{Z1A+r}")
    A("v_lshlrev_b32 v200, 16, v124\nv_lshlrev_b32 v201, 16, v124\nv_lshlrev_b32 v202, 16, v125\nv_lshlrev_b32 v203, 16, v125")
    A(f"""
    s_lshl_b32 s44, s34, 3
    s_lshl_b32 s45, s36, 1
    s_add_u32 s44, s44, s45
    s_mul_i32 s44, s44, 72
    s_lshr_b32 s45, s35, 1
    s_mul_i32 s45, s45, 9
    s_add_u32 s44, s44, s45
    s_and_b32 s46, s35, 1
    s_mul_i32 s47, s46, 5
    s_add_u32 s47, s47, s44
    s_lshl_b32 s47, s47, 10
    s_add_u32 s48, s44, 4
    s_lshl_b32 s48, s48, 10
    s_lshl_b32 s51, s46, 3
    s_add_u32 s48, s48, s51
    s_add_u32 s49, s47, 73728
    s_add_u32 s50, s48, 73728
    v_lshlrev_b32 v1, 4, v{vL}
    """)
    T = 204
    for i in range(2):
        for jn in range(9):
            c = ACC + (i*9+jn)*4; z = Z1V + (i*9+jn)*2; t = T + ((i*9+jn) & 1) * 4
            A(f"v_lshlrev_b32 v{t}, 16, v{z}")
            A(f"v_and_b32 v{t+1}, 0xffff0000, v{z}")
            A(f"v_lshlrev_b32 v{t+2}, 16, v{z+1}")
            A(f"v_and_b32 v{t+3}, 0xffff0000, v{z+1}")
            A(f"v_pk_add_f32 {vr(c,2)}, {vr(c,2)}, {vr(200+2*i,2)}")
            A(f"v_pk_add_f32 {vr(c+2,2)}, {vr(c+2,2)}, {vr(200+2*i,2)}")
            A(f"v_pk_mul_f32 {vr(c,2)}, {vr(c,2)}, {vr(t,2)}")
            A(f"v_pk_mul_f32 {vr(c+2,2)}, {vr(c+2,2)}, {vr(t+2,2)}")
            A(f"v_cvt_pk_bf16_f32 v{z}, v{c}, v{c+1}")
            A(f"v_cvt_pk_bf16_f32 v{z+1}, v{c+2}, v{c+3}")
    odd = A.newlabel(name + "_odd"); done = A.newlabel(name + "_sd")
    A(f"""
    v_bfe_u32 v2, v{vL}, 4, 1
    v_mul_u32_u24 v2, 73728, v2
    v_lshrrev_b32 v3, 5, v{vL}
    v_lshlrev_b32 v3, 8, v3
    v_add_u32 v2, v2, v3
    v_and_b32 v3, 15, v{vL}
    v_lshlrev_b32 v3, 4, v3
    v_add_u32 v2, v2, v3
    s_add_u32 s48, s44, 4
    s_lshl_b32 s48, s48, 10
    s_lshl_b32 s51, s46, 9
    s_add_u32 s48, s48, s51
    """)
    def single(jn):
        a0 = Z1V + jn*2; a1 = Z1V + (9+jn)*2
        A(f"v_mov_b32 v4, v{a0}\nv_mov_b32 v5, v{a0+1}\nv_mov_b32 v6, v{a1}\nv_mov_b32 v7, v{a1+1}\ns_nop 1")
        A("v_permlane16_swap_b32 v4, v6\nv_permlane16_swap_b32 v5, v7\ns_nop 0")
        A("buffer_store_dwordx4 v[4:7], v2, s[16:19], s48 offen sc1")
    A(f"s_cmp_eq_u32 s46, 1\ns_cbranch_scc1 {odd}")
    for i in range(2):
        for p in range(4):
            A(f"buffer_store_dwordx4 {vr(Z1V+(i*9+2*p)*2,4)}, v1, s[16:19], s{47 if i==0 else 49} offen offset:{p*1024} sc1")
    single(8)
    A(f"s_branch {done}")
    A.label(odd)
    for i in range(2):
        for p in range(4):
            A(f"buffer_store_dwordx4 {vr(Z1V+(i*9+1+2*p)*2,4)}, v1, s[16:19], s{47 if i==0 else 49} offen offset:{p*1024} sc1")
    single(0)
    A.label(done)

def g3_pre_q(Fo, name):
    A = Fo.A
    A(f"""
    s_lshr_b32 s45, s2, 5
    s_min_u32 s45, s45, 5
    s_mul_i32 s44, s45, {72*6*1024}
    s_add_u32 s44, s44, {WS_WOT}
    """)
    srd_off(A, 4, 32, 33, "s44", 72*6*1024)
    A("v_lshlrev_b32 v1, 4, v15\ns_lshl_b32 s40, s36, 10\nv_add_u32 v2, s40, v1")
    for j in range(1, 6): A(f"v_add_u32 v{2+j}, {j*4096}, v2")
    for s in range(4):
        A(f"s_mov_b32 s38, {s*24*1024}")
        for j in range(6):
            A(f"s_add_u32 m0, s40, {s*24576 + j*4096}\ns_nop 0\nbuffer_load_dwordx4 v{2+j}, s[4:7], s38 offen lds")

def gen_g3f(Fo, name):
    A = Fo.A; stamp = Fo.stamp
    R = 6; S = 4
    ACC = 16; QB = [96, 120]; PR = 0
    vQd = [2, 3, 4, 5, 6, 7]; vP = [8]; vL = 15; vQr = [9, 10, 11, 12, 13, 14]
    A(f"""
    s_and_b32 s44, s2, 7
    s_lshr_b32 s45, s2, 3
    s_lshl_b32 s34, s44, 2
    s_and_b32 s46, s45, 3
    s_add_u32 s34, s34, s46
    s_lshr_b32 s35, s45, 2
    v_lshlrev_b32 v1, 4, v{vL}
    s_lshl_b32 s44, s34, 2
    s_add_u32 s58, s44, s36
    s_mul_i32 s44, s58, 73728
    v_add_u32 v{vP[0]}, s44, v1
    """)
    A(f"s_mul_i32 s44, s35, {72*6*1024}\ns_add_u32 s44, s44, {WS_WOT}")
    srd_off(A, 4, 32, 33, "s44", 72*6*1024)
    srd_off(A, 8, 32, 33, WS_H, 128 * 72 * 1024)
    c = Core(A, name + "_g", 1, 6, 72, S, R, ACC, QB, "a", PR, vP, vQd, vQr, 8, 4, "s38", "s39", "s40", "s37", 1024, orient="QP")
    c.p_flags = " sc1"
    c.setup_addr(1, "s36", 12)
    h = c.gsize // 2
    def split(slot):
        ops = c.G(slot);
        return ops
    pre_a = []; pre_b = []; post = []
    for s in range(R - 1):
        ops = c.G(s)
        ops = ops if s < R - 2 else ops[:h]
        q = [o for o in ops if " lds" in o]; p = [o for o in ops if " lds" not in o]
        strip = lambda o: o.split("\ns_add_u32 s38, s38")[0]
        (pre_a if s < 4 else pre_b).append(f"s_mov_b32 s38, {s*S*6*1024}"); (pre_a if s < 4 else pre_b).extend(strip(o) for o in q)
        post.append(f"s_mov_b32 s39, {s*S*1024}"); post += [strip(o) for o in p]
    for o in pre_a: A(o)
    Fo.conv_fin()
    c.setup_addr(1, "s36", 12)
    A("s_barrier")
    for o in pre_b: A(o)
    srd(A, 12, 76, 77, 2048 * 1152)
    srd_off(A, 16, 32, 33, WS_S, 288 * 8192)
    srd(A, 20, 84, 85, 2048 * 1152)
    for r in range(24): A(f"v_mov_b32 v{ACC+r}, 0")
    stamp()
    A("s_lshr_b32 s59, s34, 1")
    wait_flags(A, name, 2, "s59", 16)
    stamp()
    for o in post: A(o)
    A(f"s_mov_b32 s38, {(R-2)*S*6*1024}\ns_mov_b32 s39, {(R-2)*S*1024}")
    Fo.pre_g3()
    for x in c.qreads(0, 0, 0): A(x)
    stamp()
    def tail(A):
        A(f"""
        v_and_b32 v1, 15, v{vL}
        s_lshl_b32 s44, s58, 4
        v_add_u32 v1, s44, v1
        v_mul_u32_u24 v1, 1152, v1
        v_lshrrev_b32 v40, 4, v{vL}
        v_lshlrev_b32 v40, 3, v40
        v_add_u32 v1, v1, v40
        s_mul_i32 s44, s35, 192
        v_add_u32 v1, s44, v1
        """)
        for jd in range(6):
            A(f"buffer_load_dwordx2 {vr(52+2*jd,2)}, v1, s[12:15], 0 offen offset:{jd*32}")
    def late(A):
        wait_flags(A, name, 3, "s35", 48, barrier=False, allwaves=True)
        A(f"""
        v_lshrrev_b32 v42, 4, v{vL}
        v_lshlrev_b32 v42, 14, v42
        v_and_b32 v43, 15, v{vL}
        v_lshlrev_b32 v43, 2, v43
        v_add_u32 v42, v42, v43
        s_mul_i32 s44, s35, {48*8192}
        s_lshl_b32 s45, s58, 6
        s_add_u32 s44, s44, s45
        """)
        for jd in range(6):
            for e in range(2):
                A(f"s_add_u32 s45, s44, {(8*jd + e)*8192}")
                A(f"buffer_load_dword v{64+2*jd+e}, v42, s[16:19], s45 offen sc1")
    c.loop(True, tail_hook=tail, late_hook=late)
    stamp()
    NL2E = -math.log2(math.e)
    A(f"v_mov_b32 v76, {hex(f2u(NL2E))}\nv_mov_b32 v77, {hex(f2u(NL2E))}\nv_mov_b32 v78, 1.0\nv_mov_b32 v79, 1.0")
    for jd in range(6):
        cc = ACC + jd*4; t = 80 + (jd % 2) * 4
        A(f"v_pk_mul_f32 {vr(t,2)}, {vr(cc,2)}, v[76:77]")
        A(f"v_pk_mul_f32 {vr(t+2,2)}, {vr(cc+2,2)}, v[76:77]")
        for r in range(4): A(f"v_exp_f32 v{t+r}, v{t+r}")
        A(f"v_pk_add_f32 {vr(t,2)}, {vr(t,2)}, v[78:79]")
        A(f"v_pk_add_f32 {vr(t+2,2)}, {vr(t+2,2)}, v[78:79]")
        for r in range(4): A(f"v_rcp_f32 v{t+r}, v{t+r}")
        A("s_nop 0")
        A(f"v_pk_mul_f32 {vr(cc,2)}, {vr(cc,2)}, {vr(t,2)}")
        A(f"v_pk_mul_f32 {vr(cc+2,2)}, {vr(cc+2,2)}, {vr(t+2,2)}")
    A("s_waitcnt vmcnt(0)")
    for jd in range(6):
        cc = ACC + jd*4; t = 88 + (jd % 2) * 8
        A(f"v_lshlrev_b32 v{t+4}, 16, v{64+2*jd}\nv_and_b32 v{t+5}, 0xffff0000, v{64+2*jd}")
        A(f"v_lshlrev_b32 v{t+6}, 16, v{65+2*jd}\nv_and_b32 v{t+7}, 0xffff0000, v{65+2*jd}")
        A(f"v_lshlrev_b32 v{t}, 16, v{52+2*jd}\nv_and_b32 v{t+1}, 0xffff0000, v{52+2*jd}")
        A(f"v_lshlrev_b32 v{t+2}, 16, v{53+2*jd}\nv_and_b32 v{t+3}, 0xffff0000, v{53+2*jd}")
        A(f"v_pk_fma_f32 {vr(cc,2)}, {vr(cc,2)}, {vr(t+4,2)}, {vr(t,2)}")
        A(f"v_pk_fma_f32 {vr(cc+2,2)}, {vr(cc+2,2)}, {vr(t+6,2)}, {vr(t+2,2)}")
        o = 104 + (jd // 2) * 4 + (jd % 2) * 2
        A(f"v_cvt_pk_bf16_f32 v{o}, v{cc}, v{cc+1}")
        A(f"v_cvt_pk_bf16_f32 v{o+1}, v{cc+2}, v{cc+3}")
    A(f"""
    v_and_b32 v1, 15, v{vL}
    s_lshl_b32 s44, s58, 4
    v_add_u32 v1, s44, v1
    v_mul_u32_u24 v1, 1152, v1
    v_bfe_u32 v12, v{vL}, 4, 1
    v_lshlrev_b32 v12, 5, v12
    v_add_u32 v1, v1, v12
    v_lshrrev_b32 v12, 5, v{vL}
    v_lshlrev_b32 v12, 4, v12
    v_add_u32 v1, v1, v12
    s_mul_i32 s44, s35, 192
    v_add_u32 v1, s44, v1
    """)
    for p in range(3):
        o = 104 + p*4
        A(f"v_permlane16_swap_b32 v{o}, v{o+2}")
        A(f"v_permlane16_swap_b32 v{o+1}, v{o+3}")
    A("s_nop 0")
    for p in range(3):
        A(f"buffer_store_dwordx4 {vr(104+p*4,4)}, v1, s[20:23], 0 offen offset:{p*64}")

def gen_fused(name, stamps=False):
    A = Asm(); Fo = F(A, stamps)
    A(f"""
    s_cmp_ge_u32 s2, 256
    s_cbranch_scc1 {name}_end
    s_load_dwordx2 s[76:77], s[0:1], 0
    s_load_dwordx2 s[88:89], s[0:1], 48
    s_load_dwordx2 s[78:79], s[0:1], 64
    s_load_dwordx4 s[80:83], s[0:1], 72
    s_load_dwordx4 s[84:87], s[0:1], 96
    s_load_dwordx2 s[32:33], s[0:1], 112
    s_and_b32 s44, s2, 7
    s_lshr_b32 s45, s2, 3
    s_and_b32 s34, s44, 1
    s_lshl_b32 s34, s34, 3
    s_and_b32 s46, s45, 7
    s_add_u32 s34, s34, s46
    s_lshr_b32 s35, s44, 1
    s_lshl_b32 s35, s35, 2
    s_lshr_b32 s46, s45, 3
    s_add_u32 s35, s35, s46
    v_lshrrev_b32 v1, 6, v0
    v_and_b32 v15, 63, v0
    s_nop 0
    v_readfirstlane_b32 s36, v1
    """)
    if stamps:
        A("s_waitcnt lgkmcnt(0)")
        srd_off(A, 96, 32, 33, WS_STAMP + 0x100000, 0x40000)
        A("s_lshl_b32 s44, s2, 2\ns_add_u32 s44, s44, s36\ns_lshl_b32 s44, s44, 7\nv_mov_b32 v255, s44")
        Fo.rt(0); Fo.stamp()
    cv = Conv1(A, name + "_cv", CONV_LK, CONV_LK + 41216, FROM_XN)
    subP = name + "_subP"; subC = name + "_subC"; subF = name + "_subF"
    def call(target):
        ref = A.newlabel(name + "_pc")
        A("s_getpc_b64 s[28:29]")
        A.label(ref)
        A(f"s_add_u32 s28, s28, {target}-{ref}\ns_addc_u32 s29, s29, 0\ns_swappc_b64 s[30:31], s[28:29]")
    def prefetch(chs):
        A(f"s_mov_b32 s73, {chs}"); call(subP)
    def compute(second, wait_n, f1, f2, finish=True):
        for reg, f in ((61, f1), (62, f2)):
            if f: A(f); A(f"s_mov_b32 s{reg}, s44")
            else: A(f"s_mov_b32 s{reg}, -1")
        A(f"s_mov_b32 s60, {1 if second else 0}")
        A(f"s_waitcnt vmcnt({wait_n})")
        call(subC)
        if finish: call(subF)
    A("s_lshl_b32 s70, s2, 1\ns_add_u32 s71, s70, 1\ns_mov_b32 s72, s2")
    Fo.after_loop = lambda: prefetch("s70")
    def sig_z2n():
        A("s_waitcnt vmcnt(0)\ns_barrier")
        signal(A, name, [flag_off(0, "s35", "s34"), "s_lshr_b32 s45, s2, 4\ns_and_b32 s46, s2, 15\n" + flag_off(1, "s45", "s46")], sync=False)
    Fo.sig_z2n = sig_z2n
    gen_g1(name + "_g1", stamps, Fo)
    compute(False, 63, None, None)
    Fo.stamp()
    gen_g2f(Fo, name + "_g2", post_loop=lambda: prefetch("s71"))
    Fo.stamp()
    compute(True, 9, flag_off(2, "s34", "s35"), None)
    Fo.conv_fin = lambda: None
    sigS = lambda: signal(A, name, ["s_mul_i32 s45, s72, 1366\ns_lshr_b32 s45, s45, 16\ns_mul_i32 s46, s45, 48\ns_sub_u32 s46, s72, s46\n" + flag_off(3, "s45", "s46")])
    Fo.stamp()
    xtra = A.newlabel(name + "_x"); fin = A.newlabel(name + "_fin")
    A(f"s_lshr_b32 s44, s2, 3\ns_cmp_ge_u32 s44, 24\ns_cbranch_scc1 {xtra}")
    Fo.pre_g3 = sigS
    gen_g3f(Fo, name + "_g3")
    A(f"s_branch {fin}")
    A.label(xtra)
    sigS()
    A(f"s_sub_u32 s44, s2, 192\ns_cmp_ge_u32 s44, 32\ns_cbranch_scc1 {fin}")
    A("s_add_u32 s72, s2, 64\ns_lshl_b32 s70, s72, 1\ns_add_u32 s71, s70, 1")
    prefetch("s70"); compute(False, 0, None, None)
    A("s_barrier")
    prefetch("s71"); compute(True, 0, None, None)
    sigS()
    A.label(fin)
    if stamps:
        A("s_waitcnt vmcnt(0)")
        Fo.n = 28; Fo.stamp(); Fo.rt(1)
    A.label(f"{name}_end")
    A("s_endpgm")
    A.label(subP)
    cv.prefetch("s73")
    A("s_setpc_b64 s[30:31]")
    A.label(subC)
    def midsig():
        lab = A.newlabel(name + "_ms")
        A(f"s_cmp_eq_u32 s36, 0\ns_cbranch_scc0 {lab}")
        srd_off(A, 24, 32, 33, WS_FLAG, FLAG_BYTES)
        A("v_mov_b32 v251, 1\ns_mov_b64 exec, 1")
        for reg in (61, 62):
            sk = A.newlabel(name + "_mk")
            A(f"s_cmp_eq_u32 s{reg}, -1\ns_cbranch_scc1 {sk}\nv_mov_b32 v250, s{reg}\nbuffer_store_dword v251, v250, s[24:27], 0 offen sc1")
            A.label(sk)
        A("s_mov_b64 exec, -1")
        A.label(lab)
    def split():
        A("s_setpc_b64 s[30:31]")
        A.label(subF)
    cv.compute(False, "s72", None, mid_hook=midsig, dyn=True, split=split)
    A("s_setpc_b64 s[30:31]")
    return A.text(), kernel_desc(name, 256, 256), 163840
```

```python
from asmlib import *
import math

class VM:
    def __init__(self): self.ops = []
    def issue(self, tag): self.ops.append(tag)
    def wait(self, tags):
        if not isinstance(tags, (list, tuple, set)): tags = [tags]
        c = [i for i, t in enumerate(self.ops) if t in tags]
        if not c: return 63
        last = max(c)
        return len(self.ops) - 1 - last

GC0 = -2.0 * math.log2(math.e) * math.sqrt(2.0 / math.pi)
GC1 = GC0 * 0.044715
import struct
def f2u(x): return struct.unpack("<I", struct.pack("<f", x))[0]

def gelu_ops(pairs, tmp, vC0, vC1, vOne):
    ops = []
    n = len(tmp)
    for g in range(0, len(pairs), n):
        grp = pairs[g:g+n]
        seq = [[] for _ in grp]
        for j, c in enumerate(grp):
            t = tmp[j]
            seq[j] = [
                f"v_pk_mul_f32 {vr(t,2)}, {vr(c,2)}, {vr(c,2)}",
                f"v_pk_fma_f32 {vr(t,2)}, {vr(t,2)}, {vr(vC1,2)}, {vr(vC0,2)}",
                f"v_pk_mul_f32 {vr(t,2)}, {vr(t,2)}, {vr(c,2)}",
                f"v_exp_f32 v{t}, v{t}",
                f"v_exp_f32 v{t+1}, v{t+1}",
                f"v_pk_add_f32 {vr(t,2)}, {vr(t,2)}, {vr(vOne,2)}",
                f"v_rcp_f32 v{t}, v{t}",
                f"v_rcp_f32 v{t+1}, v{t+1}",
                f"v_pk_mul_f32 {vr(c,2)}, {vr(c,2)}, {vr(t,2)}",
            ]
        for k in range(9):
            for j in range(len(grp)):
                ops.append(seq[j][k])
    return ops


EXP = set()
def gen_g1(name, stamps=False, F=None):
    vm = VM()
    if F is None:
        A = Asm(); ST = Stamper(A, 1, stamps); stamp = ST.stamp
    else:
        A = F.A; stamp = F.stamp
    SC = ' sc1' if F else ''
    R = 5; SLOT = 20480; WSCR = 102400
    NST = 18
    PR = 0; QA = [144, 180]
    ACCA = 16; ACCB = 88
    vQd = [2, 3, 4, 5, 6]; vE0 = 7; vO0 = 8; vE = 9; vO = 10; vL = 15; vP0 = 11; vP1 = 12
    vC0 = 160; vC1 = 162; vOne = 164; TMP = [166, 168, 170]
    S1 = 172; S2 = 180
    W = 188
    if F is None:
        A(f"""
        s_cmp_ge_u32 s2, 256
        s_cbranch_scc1 {name}_end
        s_load_dwordx2 s[28:29], s[0:1], 64
        s_load_dwordx2 s[54:55], s[0:1], 72
        s_load_dwordx2 s[32:33], s[0:1], 112
        """)
        ST.start()
        A(f"""
        s_and_b32 s44, s2, 7
        s_lshr_b32 s45, s2, 3
        s_and_b32 s34, s44, 1
        s_lshl_b32 s34, s34, 3
        s_and_b32 s46, s45, 7
        s_add_u32 s34, s34, s46
        s_lshr_b32 s35, s44, 1
        s_lshl_b32 s35, s35, 2
        s_lshr_b32 s46, s45, 3
        s_add_u32 s35, s35, s46
        v_lshrrev_b32 v1, 6, v0
        v_and_b32 v{vL}, 63, v0
        s_nop 0
        v_readfirstlane_b32 s36, v1
        """)

    for j in range(5):
        d = vQd[j]
        A(f"""
        s_lshl_b32 s44, s36, 6
        s_add_u32 s44, s44, {256*j}
        v_add_u32 v16, s44, v{vL}
        v_mul_u32_u24 v17, 1821, v16
        v_lshrrev_b32 v17, 16, v17
        v_mul_u32_u24 v18, 36, v17
        v_sub_u32 v18, v16, v18
        v_lshrrev_b32 v19, 1, v18
        v_bfe_u32 v20, v17, 3, 1
        v_xor_b32 v19, v19, v20
        v_cmp_le_u32 vcc, 9, v19
        s_nop 1
        v_cndmask_b32 v20, 0, 1, vcc
        v_mul_u32_u24 v21, 9, v20
        v_sub_u32 v19, v19, v21
        v_lshlrev_b32 v20, 5, v20
        v_add_u32 v17, v17, v20
        v_mul_u32_u24 v17, 9216, v17
        v_lshlrev_b32 v19, 5, v19
        v_and_b32 v18, 1, v18
        v_lshlrev_b32 v18, 4, v18
        v_add3_u32 v{d}, v17, v19, v18
        """)
        if j == 4:
            A(f"v_mov_b32 v17, 0x80000000\nv_cmp_gt_u32 vcc, 1152, v16\ns_nop 1\nv_cndmask_b32 v{d}, v17, v{d}, vcc")
    A(f"""
    v_lshrrev_b32 v16, 4, v{vL}
    v_bfe_u32 v17, v{vL}, 2, 2
    v_lshlrev_b32 v18, 3, v16
    v_add_u32 v18, v18, v17
    v_mul_u32_u24 v18, 576, v18
    v_and_b32 v19, 3, v{vL}
    v_lshlrev_b32 v19, 3, v19
    v_add_u32 v18, v18, v19
    v_and_b32 v16, 1, v16
    v_lshlrev_b32 v16, 5, v16
    v_add_u32 v{vE0}, v18, v16
    v_sub_u32 v{vO0}, v18, v16
    v_lshlrev_b32 v1, 4, v{vL}
    s_lshl_b32 s44, s34, 3
    s_lshl_b32 s45, s36, 1
    s_add_u32 s44, s44, s45
    s_mul_i32 s44, s44, 18432
    v_add_u32 v{vP0}, s44, v1
    v_add_u32 v{vP1}, 18432, v{vP0}
    s_waitcnt lgkmcnt(0)
    """)
    if F: F.ptrs_g1()
    srd(A, 4, 28, 29, 576 * 9216)
    srd_off(A, 8, 32, 33, WS_XN, 128 * 18 * 1024)
    A("s_lshl_b32 s44, s34, 4\ns_add_u32 s44, s44, s35\ns_mul_i32 s44, s44, 36864")
    A(f"s_add_u32 s44, s44, {WS_Z1}")
    srd_off(A, 12, 32, 33, "s44", 36864)
    srd_off(A, 16, 32, 33, WS_Z2N, 16 * 589824)
    srd_off(A, 20, 32, 33, WS_STAT, 16 * 16 * 2048)
    A("s_mul_i32 s38, s35, 288\ns_add_u32 s37, s38, 4608")
    A("s_lshl_b32 s39, s36, 10")
    for i in range(5): A(f"s_mov_b32 s{64+i}, {4096*i}")
    def G(st):
        ops = []
        slot = st % R
        base = "s37" if st < 9 else "s38"
        koff = (st % 9) * 64 * 9216
        for j in range(5):
            pre = f"s_add_u32 s40, {base}, {koff}\n"
            pre += f"s_add_u32 m0, s39, {slot*SLOT + j*4096}\ns_nop 0\n"
            ops.append((pre + f"buffer_load_dwordx4 v{vQd[j]}, s[4:7], s40 offen lds", f"G{st}"))
        return ops
    def Pl(ks):
        return [(f"buffer_load_dwordx4 {ar(PR+(ks*2+i)*4,4)}, v{[vP0,vP1][i]}, s[8:11], s{64+ks//4} offen offset:{(ks%4)*1024}{' sc1' if (F is not None and getattr(F, 'single', False)) else ''}", f"P{ks}") for i in range(2)]
    def issue(op):
        if 'novm' in EXP and op[1][0] in 'GP' and op[1] not in ('G0','P0','P1'): return
        A(op[0]); vm.issue(op[1])
    srd_off(A, 56, 54, 55, 0, 2048 * 4096)
    srd_off(A, 60, 32, 33, WS_WSP, 2048 * 4096)
    vW = 13; vWs = 14; vWr = 253
    A(f"""
    s_lshr_b32 s44, s2, 1
    s_lshl_b32 s45, s44, 4
    v_lshrrev_b32 v16, 2, v{vL}
    v_add_u32 v16, s45, v16
    v_lshlrev_b32 v16, 12, v16
    v_and_b32 v17, 3, v{vL}
    v_lshlrev_b32 v17, 4, v17
    v_add_u32 v{vW}, v16, v17
    s_and_b32 s45, s2, 1
    s_lshl_b32 s45, s45, 2
    s_add_u32 s45, s45, s36
    s_lshl_b32 s46, s45, 9
    v_add_u32 v{vW}, s46, v{vW}
    s_lshl_b32 s44, s44, 16
    s_lshl_b32 s45, s45, 13
    s_add_u32 s41, s44, s45
    s_add_u32 s42, s41, 4096
    v_lshlrev_b32 v{vWs}, 4, v{vL}
    s_lshl_b32 s43, s36, 13
    s_add_u32 s43, s43, {WSCR}
    v_and_b32 v16, 15, v{vL}
    v_lshlrev_b32 v16, 2, v16
    v_lshrrev_b32 v17, 4, v{vL}
    v_add_u32 v16, v16, v17
    v_lshlrev_b32 v16, 4, v16
    v_add_u32 v{vWr}, s43, v16
    """)
    WR = 216
    wl = [(f"s_mov_b32 s40, {j*64}\ns_add_u32 m0, s43, {j*1024}\ns_nop 0\nbuffer_load_dwordx4 v{vW}, s[56:59], s40 offen lds", "WL") for j in range(8)]
    wrd = [f"ds_read_b128 {ar(WR+4*j,4)}, v{vWr} offset:{j*1024}" for j in range(8)]
    wsx = [(f"buffer_store_dwordx4 {ar(WR+4*j,4)}, v{vWs}, s[60:63], {'s41' if j < 4 else 's42'} offen offset:{(j%4)*1024}{SC}", "WS") for j in range(8)]
    single = F is not None and getattr(F, "single", False)
    if single:
        for st in (0, 1, 2):
            for op in G(st): issue(op)
        F.wait_xn()
        for ks in range(6):
            for op in Pl(ks): issue(op)
    else:
        for op in G(0): issue(op)
        for ks in (0, 1):
            for op in Pl(ks): issue(op)
        A("s_barrier")
        for st in (1, 2):
            for op in G(st): issue(op)
            for ks in (2*st, 2*st+1):
                for op in Pl(ks): issue(op)
    A(f"v_mov_b32 v{vC0}, {hex(f2u(GC0))}\nv_mov_b32 v{vC0+1}, {hex(f2u(GC0))}\nv_mov_b32 v{vC1}, {hex(f2u(GC1))}\nv_mov_b32 v{vC1+1}, {hex(f2u(GC1))}")
    A(f"v_mov_b32 v{vOne}, 1.0\nv_mov_b32 v{vOne+1}, 1.0")
    for r in range(72): A(f"v_mov_b32 v{ACCA+r}, 0")
    A(f"v_mov_b32 v{vE}, v{vE0}\nv_mov_b32 v{vO}, v{vO0}")
    A(f"s_waitcnt vmcnt({vm.wait(['G0','P0','P1'])})")
    A("s_barrier")
    stamp()
    def qreads(buf, ksl):
        out = []
        for jn in range(9):
            X = ksl * 9 + jn
            b = vE if X % 2 == 0 else vO
            for hf in range(2):
                out.append(f"ds_read_b64_tr_b16 {ar(QA[buf]+jn*4+hf*2,2)}, v{b} offset:{X*32 + hf*2304}")
        return out
    def mfmas(buf, ksg, phaseB):
        out = []
        for jn in range(9):
            for i in range(2):
                q = ar(QA[buf]+jn*4, 4); p = ar(PR+(ksg*2+i)*4, 4)
                if not phaseB:
                    c = vr(ACCA+(i*9+jn)*4, 4); out.append(f"v_mfma_f32_16x16x32_bf16 {c}, {p}, {q}, {c}")
                else:
                    c = vr(ACCB+(i*9+jn)*4, 4); out.append(f"v_mfma_f32_16x16x32_bf16 {c}, {q}, {p}, {c}")
        return out
    for x in qreads(0, 0): A(x)
    fa = [f"v_mov_b32 v{ACCB+r}, 0" for r in range(72)] + [f"v_mov_b32 v{S1+r}, 0" for r in range(16)]
    pairsA = [ACCA + (i*9+jn)*4 + 2*h for i in range(2) for jn in range(9) for h in range(2)]
    eq = []
    for g in range(0, 36, 6):
        grp = pairsA[g:g+6]
        eq += gelu_ops(grp, [166, 168, 170, 228, 230, 232], vC0, vC1, vOne)
        for c in grp:
            idx = (c - ACCA) // 4; i = idx // 9; h = ((c - ACCA) % 4) // 2
            s1 = S1 + i*4 + 2*h; s2 = S2 + i*4 + 2*h
            eq.append(f"v_pk_add_f32 {vr(s1,2)}, {vr(s1,2)}, {vr(c,2)}")
            eq.append(f"v_pk_fma_f32 {vr(s2,2)}, {vr(c,2)}, {vr(c,2)}, {vr(s2,2)}")
    for n in (8, 4, 2, 1):
        for r in range(16):
            eq.append(f"v_add_f32_dpp v{S1+r}, v{S1+r}, v{S1+r} row_ror:{n} row_mask:0xf bank_mask:0xf")
    single0 = F is not None and getattr(F, "single", False)
    WT = 192
    for i in range(2):
        for r in range(4):
            if single0:
                b = WT + (i*4+r)*4
                eq.append(f"v_mov_b32 v{b}, v{S1+i*4+r}"); eq.append(f"v_mov_b32 v{b+1}, s69")
                eq.append(f"v_mov_b32 v{b+2}, v{S2+i*4+r}"); eq.append(f"v_mov_b32 v{b+3}, s69")
            else:
                eq.append(f"v_mov_b32 v{W+i*8+2*r}, v{S1+i*4+r}")
                eq.append(f"v_max_f32 v{W+i*8+2*r+1}, 0, v{S2+i*4+r}")
    pend = []
    for st in range(3, NST):
        e = (0, 0) if st < R else (st - R + 1, 1)
        e = max(e, (st - 3, 0))
        for op in G(st): pend.append((e, op))
        if st < 9:
            for ks in (2*st, 2*st+1):
                for op in Pl(ks): pend.append((e, op))
    published = [False]
    def publish():
        sh = 11 if single0 else 10
        A(f"""
        s_lshl_b32 s44, s34, 4
        s_add_u32 s44, s44, s35
        s_lshl_b32 s44, s44, {sh}
        s_lshl_b32 s45, s36, {sh-2}
        s_add_u32 s44, s44, s45
        v_lshrrev_b32 v1, 4, v{vL}
        v_lshlrev_b32 v1, {6 if single0 else 5}, v1
        v_and_b32 v{TMP[0]}, 15, v{vL}
        """)
        A(f"v_cmp_eq_u32 vcc, 0, v{TMP[0]}\ns_and_saveexec_b64 s[52:53], vcc")
        if single0:
            for i in range(2):
                for r in range(4):
                    A(f"buffer_store_dwordx4 {vr(WT+(i*4+r)*4,4)}, v1, s[20:23], s44 offen offset:{i*256+r*16} sc1"); vm.issue("ST")
        else:
            for i in range(2):
                for hh in range(2):
                    A(f"buffer_store_dwordx4 {vr(W+i*8+hh*4,4)}, v1, s[20:23], s44 offen offset:{i*128+hh*16} sc1"); vm.issue("ST")
        A("s_mov_b64 exec, s[52:53]")
    ws_q = list(wsx); wl_q = list(wl)
    if 'nowsp' in EXP: ws_q = []; wl_q = []; vm.issue('WL')
    for st in range(NST):
        phaseB = st >= 9
        if st == 9:
            stamp()
            A("s_nop 7")
            if single:
                bulk_later = list(wl) + [(o, "WL") for o in F.wot_ops]
                for _ in range(4): issue(bulk_later.pop(0))
                for k, o in enumerate(eq): A(o)
            else:
                bulk_later = []
                A(f"s_waitcnt vmcnt({min(63, vm.wait('WL'))}) lgkmcnt(0)")
                for x in wrd: A(x)
                for k, o in enumerate(eq):
                    A(o)
                    if k == 16: A("s_waitcnt lgkmcnt(0)")
                    if k >= 16 and k % 12 == 4 and ws_q: issue(ws_q.pop(0))
                assert not ws_q
            eq.clear()
            publish(); published[0] = True
            stamp()
        for ksl in range(2):
            ksg = (st % 9) * 2 + ksl
            buf = ksl
            first = (st == 0 and ksl == 0) or (st == 9 and ksl == 0)
            if first: A("s_waitcnt lgkmcnt(0)")
            if ksl == 0:
                rd = qreads(1, 1)
            elif st + 1 < NST:
                nslot = (st + 1) % R
                A(f"v_add_u32 v{vE}, {nslot*SLOT}, v{vE0}\nv_add_u32 v{vO}, {nslot*SLOT}, v{vO0}")
                rd = qreads(0, 0)
            else: rd = []
            nrd = len(rd)
            NV = 5 if st < 6 else 3
            gl = []
            while pend and len(gl) < NV and pend[0][0] <= (st, ksl):
                gl.append(pend.pop(0)[1])
            if 10 <= st <= 16 and bulk_later and (ksl == 0 if single else st <= 15): gl.append(bulk_later.pop(0))
            if (not single) and 4 <= st <= 7 and wl_q: gl.append(wl_q.pop(0))
            mf = mfmas(buf, ksg, phaseB)
            gpos = [int((k + 0.5) * 18 / max(1, len(gl))) for k in range(len(gl))]
            for j in range(18):
                if j % 4 == 0 and not first:
                    need = min(j + 3, 17)
                    issued_now = min(j, nrd)
                    A(f"s_waitcnt lgkmcnt({min(15, (17 - need) + issued_now)})")
                if 'nomfma' not in EXP: A(mf[j])
                if rd:
                    x = rd.pop(0)
                    if 'nord' not in EXP: A(x)
                while gl and gpos[0] <= j:
                    gpos.pop(0); issue(gl.pop(0))
                if not phaseB and fa and j >= 9:
                    for _ in range(2):
                        if fa: A(fa.pop(0))
            if ksl == 0 and st + 1 < NST:
                tags = [f"G{st+1}"]
                if st + 1 < 9: tags += [f"P{2*(st+1)}", f"P{2*(st+1)+1}"]
                A(f"s_waitcnt vmcnt({min(63, vm.wait(tags))})")
                A("s_barrier")
    assert not pend and not eq and not fa and published[0], (len(pend), len(eq), len(fa))
    stamp()
    def blkW():
        if not (F and not single): A(f"s_waitcnt vmcnt({min(63, vm.wait('WL'))})")
        if single: A("s_barrier")
        for x in (wrd if ws_q else []): A(x)
        for j, op in enumerate(ws_q):
            A(f"s_waitcnt lgkmcnt({7-j})"); issue(op)
        if single: F.wot_fin()
        if F:
            A("s_barrier")
            F.after_loop()
    def blkZ():
        done = 0
        A("s_nop 7")
        pairsB = [ACCB + (i*9+jn)*4 + 2*h for i in range(2) for jn in range(9) for h in range(2)]
        A(f"v_lshlrev_b32 v1, 4, v{vL}\ns_mul_i32 s44, s36, 9216")
        ZB = 192
        T6 = [166, 168, 170, 228, 230, 232]
        done = 0
        for g in range(0, 36, 6):
            grp = pairsB[g:g+6]
            for o in gelu_ops(grp, T6, vC0, vC1, vOne): A(o)
            for k, c in enumerate(grp):
                A(f"v_cvt_pk_bf16_f32 v{ZB+g+k}, v{c}, v{c+1}")
            if F:
                for k in range(6): A(f"v_accvgpr_write_b32 a{128+g+k}, v{ZB+g+k}")
                pass
            while (not F) and (done + 1) * 4 <= g + 6:
                A(f"s_add_u32 s45, s44, {done*1024}")
                A(f"buffer_store_dwordx4 {vr(ZB+done*4,4)}, v1, s[12:15], s45 offen")
                done += 1
        stamp()
    def blkN():
        gsz = 4 if single0 else 3
        A(f"""
        v_and_b32 v1, 31, v{vL}
        v_lshlrev_b32 v1, {gsz}, v1
        v_lshrrev_b32 v13, 5, v{vL}
        v_lshlrev_b32 v13, {gsz+10}, v13
        v_add_u32 v1, v1, v13
        s_lshl_b32 s44, s34, {gsz+11}
        s_lshl_b32 s45, s36, {gsz+5}
        s_add_u32 s44, s44, s45
        """)
        poll = A.newlabel(name + "_poll")
        W2 = 234
        WG4 = 192
        A.label(poll)
        if single0:
            for j in range(8):
                A(f"s_add_u32 s45, s44, {j*2048}")
                A(f"buffer_load_dwordx4 {vr(WG4+4*j,4)}, v1, s[20:23], s45 offen sc1")
            A("s_waitcnt vmcnt(0)")
            A("s_mov_b64 s[52:53], -1")
            for j in range(8):
                for e in (1, 3):
                    A(f"v_cmp_eq_u32 vcc, s69, v{WG4+4*j+e}\ns_and_b64 s[52:53], s[52:53], vcc")
            A(f"s_cmp_eq_u64 s[52:53], -1\ns_cbranch_scc1 {poll}_ok\ns_sleep 4\ns_branch {poll}")
        else:
            for j in range(8):
                A(f"s_add_u32 s45, s44, {j*1024}")
                A(f"buffer_load_dwordx2 {vr(W2+2*j,2)}, v1, s[20:23], s45 offen sc1")
            A("s_waitcnt vmcnt(0)")
            A(f"v_or_b32 v13, v{W2+1}, v{W2+3}")
            for j in range(2, 8): A(f"v_or_b32 v13, v13, v{W2+2*j+1}")
            A("v_cmp_gt_i32 s[52:53], 0, v13")
            A(f"s_cmp_eq_u64 s[52:53], 0\ns_cbranch_scc1 {poll}_ok\ns_sleep 4\ns_branch {poll}")
        A.label(poll + "_ok")
        stamp()

        Wm = W2
        if single0:
            for j in range(8):
                A(f"v_mov_b32 v{W2+2*j}, v{WG4+4*j}\nv_mov_b32 v{W2+2*j+1}, v{WG4+4*j+2}")
        for j in range(1, 8):
            A(f"v_pk_add_f32 {vr(Wm,2)}, {vr(Wm,2)}, {vr(Wm+2*j,2)}")
        A(f"v_mov_b32 v{Wm+2}, v{Wm}\nv_mov_b32 v{Wm+3}, v{Wm+1}\ns_nop 1")
        A(f"v_permlane32_swap_b32 v{Wm+2}, v{Wm}\nv_permlane32_swap_b32 v{Wm+3}, v{Wm+1}")
        A(f"v_pk_add_f32 {vr(Wm,2)}, {vr(Wm,2)}, {vr(Wm+2,2)}")
        A(f"v_mul_f32 v{Wm}, {hex(f2u(1.0/2304))}, v{Wm}")
        A(f"v_mul_f32 v{Wm+1}, {hex(f2u(1.0/2304))}, v{Wm+1}")
        A(f"v_fma_f32 v{Wm+1}, -v{Wm}, v{Wm}, v{Wm+1}")
        A(f"v_max_f32 v{Wm+1}, 0, v{Wm+1}")
        from l0 import bf16_round
        bf16_round(A, Wm+1)
        A(f"v_add_f32 v{Wm+1}, 0x3727c5ac, v{Wm+1}")
        bf16_round(A, Wm+1)
        A(f"v_sqrt_f32 v{Wm+1}, v{Wm+1}\ns_nop 0")
        bf16_round(A, Wm+1)
        A(f"v_rcp_f32 v{Wm+1}, v{Wm+1}")
        bf16_round(A, Wm)
        A(f"v_mul_f32 v{Wm}, v{Wm}, v{Wm+1}")
        LB = 143360
        A(f"""
        v_and_b32 v1, 31, v{vL}
        v_lshlrev_b32 v1, 3, v1
        s_lshl_b32 s45, s36, 8
        s_add_u32 s45, s45, {LB}
        v_add_u32 v1, s45, v1
        ds_write_b64 v1, {vr(Wm,2)}
        v_lshrrev_b32 v13, 4, v{vL}
        v_lshlrev_b32 v13, 5, v13
        v_add_u32 v13, s45, v13
        s_waitcnt lgkmcnt(0)
        """)
        MS = 172
        for i in range(2):
            A(f"ds_read_b128 {vr(MS+i*8,4)}, v13 offset:{i*128}")
            A(f"ds_read_b128 {vr(MS+4+i*8,4)}, v13 offset:{i*128+16}")
        A(f"""
        s_mul_i32 s44, s35, 64
        s_lshl_b32 s45, s34, 2
        s_add_u32 s44, s44, s45
        s_add_u32 s44, s44, s36
        s_mul_i32 s44, s44, 9216
        v_lshrrev_b32 v1, 4, v{vL}
        v_and_b32 v13, 1, v1
        v_lshlrev_b32 v13, 1, v13
        v_lshrrev_b32 v1, 1, v1
        v_or_b32 v1, v1, v13
        v_lshlrev_b32 v1, 4, v1
        v_and_b32 v13, 15, v{vL}
        v_add_u32 v1, v1, v13
        v_lshlrev_b32 v1, 4, v1
        s_waitcnt lgkmcnt(0)
        """)
        stamp()
        OB = 192
        for jn in range(9):
            o = OB + jn * 4
            for i in range(2):
                c = ACCA + (i*9+jn)*4
                for r in range(4):
                    m = MS+i*8+2*r
                    A(f"v_fma_f32 v{c+r}, v{c+r}, v{m+1}, -v{m}")
                A(f"v_cvt_pk_bf16_f32 v{o+2*i}, v{c}, v{c+1}")
                A(f"v_cvt_pk_bf16_f32 v{o+2*i+1}, v{c+2}, v{c+3}")
            if jn > 0:
                po = OB + (jn-1)*4
                A(f"v_permlane16_swap_b32 v{po}, v{po+2}")
                A(f"v_permlane16_swap_b32 v{po+1}, v{po+3}")
                A(f"s_add_u32 s45, s44, {(jn-1)*1024}")
                A(f"buffer_store_dwordx4 {vr(po,4)}, v1, s[16:19], s45 offen{SC}")
        po = OB + 8*4
        A("s_nop 1")
        A(f"v_permlane16_swap_b32 v{po}, v{po+2}")
        A(f"v_permlane16_swap_b32 v{po+1}, v{po+3}")
        A(f"s_add_u32 s45, s44, {8*1024}")
        A(f"buffer_store_dwordx4 {vr(po,4)}, v1, s[16:19], s45 offen{SC}")
        stamp()
    if F and not single:
        blkN(); blkW(); blkZ()
        F.sig_z2n()
    else:
        blkW(); blkZ(); blkN()
    if F: return
    ST.finish(vbase=200)
    A.label(f"{name}_end")
    A("s_endpgm")
    return A.text(), kernel_desc(name, 254, 248), 144384
```

```python
from asmlib import *
from g1 import f2u
from l0 import bf16_round
import math
LOG2E = math.log2(math.e)
KR_PITCH = 10752; KR1 = 5376
UNAL = False

def csq_ops(e, t):
    return [f"v_pk_mul_f32 {vr(t,2)}, {vr(e,2)}, {vr(e,2)} op_sel:[1,1] op_sel_hi:[0,1]",
            f"v_pk_fma_f32 {vr(e,2)}, {vr(e,2)}, {vr(e,2)}, {vr(t,2)} op_sel:[0,0,0] op_sel_hi:[0,1,1] neg_lo:[0,0,1]"]
def cmul_ops(x, c, g, t):
    return [f"v_pk_mul_f32 {vr(t,2)}, {vr(c,2)}, {vr(g,2)} op_sel:[1,1] op_sel_hi:[1,0]",
            f"v_pk_fma_f32 {vr(x,2)}, {vr(c,2)}, {vr(g,2)}, {vr(t,2)} op_sel:[0,0,0] op_sel_hi:[0,1,1] neg_lo:[0,0,1]"]

def gen_kgen(A, name, chs="s47", lds_base=0, after_loads=None, wait_extra=None, mid2=None, iter_hook=None, after_loop=None):
    srd(A, 4, 56, 57, 576*256); srd(A, 8, 58, 59, 576*256); srd(A, 12, 60, 61, 576*256); srd(A, 16, 62, 63, 576*256)
    srd(A, 20, 64, 65, 1152)
    PB = 16; F = 48; E = 64; C = 72; X = 80; T = 88; Bq = 96; Aq = 112
    vLo = 120; vDt = 121; vOff = 122
    CH = 13312
    LR = 8192
    A(f"s_mul_i32 s39, s38, {CH}\ns_add_u32 s39, s39, {lds_base}")
    A(f"""
    s_lshl_b32 s44, {chs}, 1
    v_mov_b32 v1, s44
    buffer_load_ushort v{vDt}, v1, s[20:23], 0 offen
    v_lshrrev_b32 v{vOff}, 4, v15
    v_lshlrev_b32 v{vOff}, 3, v{vOff}
    s_lshl_b32 s44, {chs}, 8
    s_lshl_b32 s45, s37, 7
    s_add_u32 s44, s44, s45
    v_add_u32 v{vOff}, s44, v{vOff}
    """)
    for ks in range(4):
        for a in range(4):
            A(f"buffer_load_dwordx2 {vr(PB+8*ks+2*a,2)}, v{vOff}, s[{4+4*a}:{7+4*a}], 0 offen offset:{32*ks}")
    if after_loads: after_loads()
    A(f"v_and_b32 v1, 15, v15\nv_cvt_f32_u32 v{vLo}, v1")
    for r in range(16): A(f"v_mov_b32 v{F+r}, 0")
    A(f"v_lshlrev_b32 v1, 3, v15\nv_add_u32 v1, s39, v1\nv_mov_b32 v8, 0\nv_mov_b32 v9, 0\nds_write_b64 v1, v[8:9] offset:{LR+4352}")
    A(f"s_waitcnt vmcnt({wait_extra if wait_extra is not None else 0})")
    A(f"v_lshlrev_b32 v{vDt}, 16, v{vDt}")
    A(f"v_mul_f32 v{vDt}, {hex(f2u(LOG2E))}, v{vDt}")
    A(f"v_exp_f32 v{vDt}, v{vDt}\ns_nop 0")
    bf16_round(A, vDt)
    A(f"v_add_f32 v5, v{vDt}, v{vDt}")
    A(f"v_mul_f32 v6, {hex(f2u(-LOG2E))}, v{vDt}")
    A(f"v_mul_f32 v7, {hex(f2u(1/(2*math.pi)))}, v{vDt}")
    p = PB
    A("s_mov_b32 s52, 0")
    kloop = A.newlabel(name + "_kl")
    A.label(kloop)
    if iter_hook: iter_hook()
    for c in range(4):
        for dst, a in ((X+2*c, 0), (X+2*c+1, 1), (C+2*c, 2), (C+2*c+1, 3)):
            s = p + 2*a + c//2
            if c % 2 == 0: A(f"v_lshlrev_b32 v{dst}, 16, v{s}")
            else: A(f"v_and_b32 v{dst}, 0xffff0000, v{s}")
    def each(fmt):
        for c in range(4): A(fmt(c))
    each(lambda c: f"v_mul_f32 v{X+2*c}, {hex(f2u(LOG2E))}, v{X+2*c}")
    each(lambda c: f"v_exp_f32 v{X+2*c}, v{X+2*c}")
    each(lambda c: f"v_mul_f32 v{X+2*c+1}, v{X+2*c+1}, v7")
    each(lambda c: f"v_cvt_pk_bf16_f32 v{X+2*c}, v{X+2*c}, v{X+2*c}")
    each(lambda c: f"v_and_b32 v{X+2*c}, 0xffff0000, v{X+2*c}")
    each(lambda c: f"v_mul_f32 v{C+2*c}, v{C+2*c}, v5")
    each(lambda c: f"v_mul_f32 v{C+2*c+1}, v{C+2*c+1}, v5")
    each(lambda c: f"v_mul_f32 v{X+2*c}, v{X+2*c}, v6")
    each(lambda c: f"v_mul_f32 v{X+2*c}, v{X+2*c}, v{vLo}")
    each(lambda c: f"v_mul_f32 v{X+2*c+1}, v{X+2*c+1}, v{vLo}")
    each(lambda c: f"v_exp_f32 v{X+2*c}, v{X+2*c}")
    each(lambda c: f"v_fract_f32 v{X+2*c+1}, v{X+2*c+1}")
    each(lambda c: f"v_cos_f32 v{E+2*c}, v{X+2*c+1}")
    each(lambda c: f"v_sin_f32 v{E+2*c+1}, v{X+2*c+1}")
    each(lambda c: f"v_mul_f32 v{E+2*c}, v{E+2*c}, v{X+2*c}")
    each(lambda c: f"v_mul_f32 v{E+2*c+1}, v{E+2*c+1}, v{X+2*c}")
    def emit2(opsl):
        for k in range(2):
            for c in range(4): A(opsl[c][k])
    def square_all(): emit2([csq_ops(E+2*c, T+2*c) for c in range(4)])
    for i in range(4):
        each(lambda c: f"v_cvt_pk_bf16_f32 v{Bq+4*i+c}, v{E+2*c}, -v{E+2*c+1}")
        square_all()
    for i in range(4):
        if i == 3:
            for c in range(4):
                A(f"v_mov_b32_dpp v{X+2*c}, v{E+2*c} row_newbcast:1 row_mask:0xf bank_mask:0xf")
                A(f"v_mov_b32_dpp v{X+2*c+1}, v{E+2*c+1} row_newbcast:1 row_mask:0xf bank_mask:0xf")
            emit2([cmul_ops(C+2*c, C+2*c, X+2*c, T+2*c) for c in range(4)])
        emit2([cmul_ops(X+2*c, C+2*c, E+2*c, T+2*c) for c in range(4)])
        aq = Aq + 4*(i % 2)
        each(lambda c: f"v_cvt_pk_bf16_f32 v{aq+c}, v{X+2*c}, v{X+2*c+1}")
        if i < 3: square_all()
        else: A("s_nop 1")
        A(f"v_mfma_f32_16x16x32_bf16 {vr(F+4*i,4)}, {vr(aq,4)}, {vr(Bq+4*i,4)}, {vr(F+4*i,4)}")

    for r in range(24): A(f"v_mov_b32 v{PB+r}, v{PB+8+r}")
    A(f"s_add_u32 s52, s52, 1\ns_cmp_lt_u32 s52, 4\ns_cbranch_scc1 {kloop}")
    if after_loop: after_loop()
    A("s_nop 7")
    A(f"v_lshlrev_b32 v1, 4, v15\ns_lshl_b32 s44, s37, 12\ns_add_u32 s44, s44, s39\nv_add_u32 v8, s44, v1")
    for i in range(4): A(f"ds_write_b128 v8, {vr(F+4*i,4)} offset:{i*1024}")
    A("s_waitcnt lgkmcnt(0)\ns_barrier")
    A(f"s_xor_b32 s44, s37, 1\ns_lshl_b32 s44, s44, 12\ns_add_u32 s44, s44, s39\nv_add_u32 v8, s44, v1")
    for i in range(4): A(f"ds_read_b128 {vr(96+4*i,4)}, v8 offset:{i*1024}")
    A(f"""
    v_lshrrev_b32 v1, 4, v15
    v_lshlrev_b32 v1, 6, v1
    v_and_b32 v8, 15, v15
    v_add_u32 v1, v1, v8
    s_waitcnt lgkmcnt(0)
    """)
    for i in range(8): A(f"v_pk_add_f32 {vr(F+2*i,2)}, {vr(F+2*i,2)}, {vr(96+2*i,2)}")
    for r in range(16): A(f"v_cvt_pk_bf16_f32 v{F+r}, v{F+r}, v{F+r}")
    done = A.newlabel(name + "_kd")
    lab1 = A.newlabel(name + "_ks")
    A(f"s_cmp_eq_u32 s37, 1\ns_cbranch_scc1 {lab1}")
    def seg(i):
        h = 1 << i
        A(f"v_lshlrev_b32 v8, {i+1}, v1")
        A(f"v_sub_u32 v8, {LR + (128+2048)*2}, v8")
        A("v_add_u32 v8, s39, v8")
        for r in range(4):
            dq = (16*r + (16 if i == 3 else 0)) << (i+1)
            A(f"v_subrev_u32 v9, {dq + h}, v8")
            if i == 0: rowmask = 0xffffffffffffffff
            elif i == 3 and r == 3: rowmask = 0xffffffffffff0000
            else: rowmask = 0xffffffff00000000
            for o in range(-(h//2), h//2 + 1):
                m = rowmask
                if i > 0 and abs(o) == h//2: m &= 0x5555555555555555
                if i > 0 and 4*o > h:
                    if i < 3 and r == 0: m &= ~(1 << 32)
                    if i == 3 and r == 3: m &= ~(1 << 16)
                A(f"s_mov_b32 exec_lo, {hex(m & 0xffffffff)}\ns_mov_b32 exec_hi, {hex(m >> 32)}")
                A(f"ds_write_b16 v9, v{F+4*i+r} offset:{h + 2*o}")
            A("s_mov_b64 exec, -1")
    seg(3); seg(0)
    A(f"s_branch {done}")
    A.label(lab1)
    seg(2); seg(1)
    A.label(done)
    A("s_waitcnt lgkmcnt(0)\ns_barrier")
    srd_off(A, 24, 32, 33, WS_K, 576 * KR_PITCH)
    if mid2: mid2()
    A(f"""
    v_lshlrev_b32 v1, 4, v15
    s_lshl_b32 s44, s37, 11
    v_add_u32 v1, s44, v1
    v_add_u32 v2, s39, v1
    s_mul_i32 s45, {chs}, {KR_PITCH}
    """)
    def rb(b, off):
        A(f"ds_read_b128 {vr(b,4)}, v2 offset:{LR + 256 + off}")
        A(f"ds_read_b32 v{b+4}, v2 offset:{LR + 256 + off + 16}")
    def st(b, off):
        A(f"s_add_u32 s46, s45, {off}")
        A(f"buffer_store_dwordx4 {vr(b,4)}, v1, s[24:27], s46 offen")
        if not UNAL:
            for k in range(4): A(f"v_alignbit_b32 v{b+6+k}, v{b+k+1}, v{b+k}, 16")
            A(f"s_add_u32 s46, s46, {KR1}")
            A(f"buffer_store_dwordx4 {vr(b+6,4)}, v1, s[24:27], s46 offen")
    rb(16, 0); rb(28, 1024)
    A("s_waitcnt lgkmcnt(0)")
    st(16, 0); st(28, 1024)
    lab = A.newlabel(name + "_k5")
    A(f"s_cmp_eq_u32 s37, 0\ns_cbranch_scc0 {lab}")
    A("s_mov_b32 exec_lo, 0x1ffff\ns_mov_b32 exec_hi, 0")
    rb(40, 4096)
    A("s_waitcnt lgkmcnt(0)")
    st(40, 4096)
    A("s_mov_b64 exec, -1")
    A.label(lab)
```

```python
from asmlib import *

def bf16_round(A, v, tmp=None):
    A(f"v_cvt_pk_bf16_f32 v{v}, v{v}, v{v}")
    A(f"v_and_b32 v{v}, 0xffff0000, v{v}")

def dpp_sum16(A, v):
    for n in (8, 4, 2, 1):
        A("s_nop 1")
        A(f"v_add_f32_dpp v{v}, v{v}, v{v} row_ror:{n} row_mask:0xf bank_mask:0xf")

NO_XNT = False
NOWAIT = False
NOTOUCH_SP = False
def gen_ln(A, name, stamp=lambda: None):
    PITCH = 1168
    stamp()
    srd(A, 4, 28, 29, 2048 * 1152)
    srd_off(A, 8, 32, 33, WS_XN, 128 * 18 * 1024)
    srd_off(A, 12, 32, 33, WS_XNT, 576 * 4096)
    A(f"""
    s_lshl_b32 s44, s66, 4
    s_lshl_b32 s45, s36, 2
    s_add_u32 s44, s44, s45
    v_lshrrev_b32 v1, 4, v15
    v_add_u32 v2, s44, v1
    v_mul_u32_u24 v2, 1152, v2
    v_and_b32 v3, 15, v15
    v_lshlrev_b32 v4, 4, v3
    v_add_u32 v2, v2, v4
    """)
    for j in range(4):
        A(f"buffer_load_dwordx4 {vr(16+4*j,4)}, v2, s[4:7], 0 offen offset:{j*256}")
    A("s_mov_b32 s50, 0x00ff00ff\ns_mov_b32 s51, 0x00ff00ff")
    A("v_mov_b32 v32, 0\nv_mov_b32 v33, 0\nv_mov_b32 v34, 0\nv_mov_b32 v35, 0")
    A("s_mov_b64 exec, s[50:51]")
    A(f"buffer_load_dwordx4 v[32:35], v2, s[4:7], 0 offen offset:1024")
    A("s_mov_b64 exec, -1")
    A(f"""
    v_add_u32 v5, s45, v1
    v_mul_u32_u24 v5, {PITCH}, v5
    v_add_u32 v5, v5, v4
    s_waitcnt vmcnt(0)
    """)
    stamp()
    for q in range(20):
        A(f"v_lshlrev_b32 v{40+2*q}, 16, v{16+q}")
        A(f"v_and_b32 v{41+2*q}, 0xffff0000, v{16+q}")
    A("v_add_f32 v6, v40, v41")
    for q in range(2, 40): A(f"v_add_f32 v6, v6, v{40+q}")
    dpp_sum16(A, 6)
    A("v_mul_f32 v6, 0x3ae38e39, v6")
    A("v_mov_b32 v7, 0")
    for q in range(32):
        A(f"v_sub_f32 v8, v{40+q}, v6")
        A(f"v_fmac_f32 v7, v8, v8")
    A("s_mov_b64 exec, s[50:51]")
    for q in range(32, 40):
        A(f"v_sub_f32 v8, v{40+q}, v6")
        A(f"v_fmac_f32 v7, v8, v8")
    A("s_mov_b64 exec, -1")
    dpp_sum16(A, 7)
    A("v_mul_f32 v7, 0x3ae38e39, v7")
    bf16_round(A, 7)
    A("v_add_f32 v7, 0x3727c5ac, v7")
    bf16_round(A, 7)
    A("v_sqrt_f32 v7, v7")
    A("s_nop 0")
    bf16_round(A, 7)
    A("v_rcp_f32 v7, v7")
    bf16_round(A, 6)
    for q in range(20):
        a, b = 40+2*q, 41+2*q
        A(f"v_sub_f32 v{a}, v{a}, v6")
        A(f"v_sub_f32 v{b}, v{b}, v6")
        A(f"v_cvt_pk_bf16_f32 v8, v{a}, v{b}")
        A(f"v_lshlrev_b32 v{a}, 16, v8")
        A(f"v_and_b32 v{b}, 0xffff0000, v8")
        A(f"v_mul_f32 v{a}, v{a}, v7")
        A(f"v_mul_f32 v{b}, v{b}, v7")
        A(f"v_cvt_pk_bf16_f32 v{16+q}, v{a}, v{b}")
    for j in range(4):
        A(f"ds_write_b128 v5, {vr(16+4*j,4)} offset:{j*256}")
    A("s_mov_b64 exec, s[50:51]")
    A(f"ds_write_b128 v5, v[32:35] offset:1024")
    A("s_mov_b64 exec, -1")
    A("s_waitcnt lgkmcnt(0)\ns_barrier")
    stamp()
    A(f"""
    v_and_b32 v1, 15, v15
    v_mul_u32_u24 v1, {PITCH}, v1
    v_lshrrev_b32 v2, 4, v15
    v_lshlrev_b32 v2, 4, v2
    v_add_u32 v1, v1, v2
    s_lshl_b32 s45, s36, 6
    v_add_u32 v1, s45, v1
    v_lshlrev_b32 v3, 4, v15              ; lane*16
    s_mul_i32 s44, s66, 18
    s_add_u32 s44, s44, s36
    s_lshl_b32 s44, s44, 10               ; (stile*18 + w)*1024
    """)
    for j in range(4):
        A(f"ds_read_b128 {vr(16+4*j,4)}, v1 offset:{j*256}")
    lab = A.newlabel(name + "_ln")
    A(f"s_cmp_lt_u32 s36, 2\ns_cbranch_scc0 {lab}")
    A(f"ds_read_b128 v[32:35], v1 offset:1024")
    A("s_waitcnt lgkmcnt(0)")
    A("s_add_u32 s45, s44, 16384")
    A(f"buffer_store_dwordx4 v[32:35], v3, s[8:11], s45 offen")
    A.label(lab)
    A("s_waitcnt lgkmcnt(0)")
    for j in range(4):
        A(f"s_add_u32 s45, s44, {j*4096}")
        A(f"buffer_store_dwordx4 {vr(16+4*j,4)}, v3, s[8:11], s45 offen")
    if not NO_XNT:
        A(f"""
        v_lshrrev_b32 v1, 2, v15              ; 4g + r = (l>>2) (since g=l>>4, r=(l>>2)&3)
        v_mul_u32_u24 v1, {PITCH}, v1
        v_and_b32 v2, 3, v15
        v_lshlrev_b32 v2, 3, v2
        v_add_u32 v1, v1, v2
        s_mul_i32 s45, s36, 288
        v_add_u32 v1, s45, v1                 ; + w*9*32 bytes
        v_and_b32 v2, 15, v15
        v_lshlrev_b32 v2, 12, v2              ; channel*4096
        v_lshrrev_b32 v3, 4, v15
        v_lshlrev_b32 v3, 3, v3               ; g*8
        v_add_u32 v2, v2, v3
        s_lshl_b32 s44, s66, 5                 ; t0*2
        s_mul_i32 s45, s36, {9*16*4096}
        s_add_u32 s44, s44, s45
        """)
        for j in range(9):
            A(f"ds_read_b64_tr_b16 {vr(40+2*j,2)}, v1 offset:{j*32}")
        A("s_waitcnt lgkmcnt(0)")
        for j in range(9):
            A(f"s_add_u32 s45, s44, {j*16*4096}")
            A(f"buffer_store_dwordx2 {vr(40+2*j,2)}, v2, s[12:15], s45 offen")

    srd_off(A, 16, 32, 33, WS_STAT, 16 * 16 * 1024)
    lab = A.newlabel(name + "_rs")
    A(f"s_cmp_eq_u32 s36, 0\ns_cbranch_scc0 {lab}")
    A(f"""
    v_lshrrev_b32 v1, 2, v15
    v_lshlrev_b32 v1, 10, v1
    v_and_b32 v2, 3, v15
    v_lshlrev_b32 v2, 5, v2
    v_add_u32 v1, v1, v2
    s_lshr_b32 s44, s66, 3
    s_lshl_b32 s44, s44, 14
    s_and_b32 s45, s66, 7
    s_lshl_b32 s45, s45, 7
    s_add_u32 s44, s44, s45
    v_mov_b32 v16, -1
    v_mov_b32 v17, -1
    v_mov_b32 v18, -1
    v_mov_b32 v19, -1
    buffer_store_dwordx4 v[16:19], v1, s[16:19], s44 offen
    buffer_store_dwordx4 v[16:19], v1, s[16:19], s44 offen offset:16
    """)
    A.label(lab)
    srd_off(A, 16, 32, 33, WS_FLAG, 4 * 16 * 64 * 128)
    lab2 = A.newlabel(name + "_fz")
    A(f"s_cmp_eq_u32 s36, 1\ns_cbranch_scc0 {lab2}")
    A("s_lshl_b32 s44, s66, 12\nv_lshlrev_b32 v1, 7, v15\nv_mov_b32 v16, 0\ns_mov_b32 exec_hi, 0")
    A("buffer_store_dword v16, v1, s[16:19], s44 offen")
    A("s_mov_b64 exec, -1")
    A.label(lab2)

def gen_wsp(A, name):
    srd(A, 4, 30, 31, 2048 * 4096)
    srd_off(A, 8, 32, 33, WS_WSP, 2048 * 4096)
    A(f"""
    v_lshrrev_b32 v1, 2, v15
    s_lshr_b32 s48, s47, 1
    s_lshl_b32 s44, s48, 4
    v_add_u32 v1, s44, v1
    v_lshlrev_b32 v1, 12, v1
    v_and_b32 v2, 3, v15
    v_lshlrev_b32 v2, 4, v2
    v_add_u32 v1, v1, v2
    s_and_b32 s49, s47, 1
    s_lshl_b32 s49, s49, 2
    s_add_u32 s49, s49, s36
    s_lshl_b32 s45, s49, 9
    s_lshl_b32 s46, s36, 13
    """)
    for j in range(8):
        A(f"s_add_u32 s50, s45, {j*64}\ns_add_u32 m0, s46, {j*1024}\ns_nop 0\nbuffer_load_dwordx4 v1, s[4:7], s50 offen lds")
    A(f"""
    v_and_b32 v2, 15, v15
    v_lshlrev_b32 v2, 2, v2
    v_lshrrev_b32 v3, 4, v15
    v_add_u32 v2, v2, v3
    v_lshlrev_b32 v2, 4, v2
    v_add_u32 v2, s46, v2
    v_lshlrev_b32 v3, 4, v15
    s_lshl_b32 s44, s48, 16
    s_lshl_b32 s45, s49, 13
    s_add_u32 s44, s44, s45
    s_add_u32 s45, s44, 4096
    s_waitcnt vmcnt(0)
    """)
    for j in range(8):
        A(f"ds_read_b128 {vr(16+4*j,4)}, v2 offset:{j*1024}")
    for j in range(8):
        A(f"s_waitcnt lgkmcnt({7-j})")
        A(f"buffer_store_dwordx4 {vr(16+4*j,4)}, v3, s[8:11], {'s44' if j < 4 else 's45'} offen offset:{(j%4)*1024}")

def gen_wtile(A, name, which):
    pitch = 9216 if which == 'in' else 1152
    srd(A, 4, 30, 31, 576 * 9216 if which == 'in' else 2304 * 1152)
    srd_off(A, 8, 32, 33, WS_WIT if which == 'in' else WS_WOT, 576 * 9216 if which == 'in' else 2304 * 1152)
    if which == 'in':
        A(f"s_lshr_b32 s48, s47, 3\ns_and_b32 s49, s47, 7\ns_mul_i32 s44, s48, {32*pitch}\ns_mul_i32 s45, s49, 1152\ns_add_u32 s44, s44, s45")
    else:
        A(f"s_mov_b32 s48, s47\ns_mul_i32 s44, s48, {32*pitch}")
    A(f"s_mul_i32 s45, s36, {8*pitch}\ns_add_u32 s44, s44, s45\ns_mul_i32 s46, s36, 9216")
    for j in range(9):
        A(f"""
        v_add_u32 v1, {64*j}, v15
        v_mul_u32_u24 v2, 911, v1
        v_lshrrev_b32 v2, 16, v2
        v_mul_u32_u24 v3, 72, v2
        v_sub_u32 v3, v1, v3
        v_mul_u32_u24 v2, {pitch}, v2
        v_lshl_add_u32 v{16+j}, v3, 4, v2
        """)
    for j in range(9):
        A(f"s_add_u32 m0, s46, {j*1024}\ns_nop 0\nbuffer_load_dwordx4 v{16+j}, s[4:7], s44 offen lds")
    def lane_addr(natural):
        if natural:
            A("v_lshrrev_b32 v1, 4, v15\nv_lshlrev_b32 v1, 3, v1\nv_bfe_u32 v2, v15, 2, 2\nv_add_u32 v1, v1, v2")
        else:
            A("v_lshrrev_b32 v1, 2, v15")
        A(f"""
        v_mul_u32_u24 v1, 1152, v1
        v_and_b32 v2, 3, v15
        v_lshlrev_b32 v2, 3, v2
        v_add_u32 v1, v1, v2
        s_mul_i32 s45, s36, 288
        v_add_u32 v1, s45, v1
        """)
    def reads(hfo):
        for j in range(9):
            for hf in range(2):
                A(f"ds_read_b64_tr_b16 {vr(32+4*j+2*hf,2)}, v1 offset:{j*32 + hf*hfo}")
    A("v_lshlrev_b32 v3, 4, v15\ns_waitcnt vmcnt(0)\ns_barrier")
    if which == 'in':
        lane_addr(True); reads(4*1152)
    else:
        nat = A.newlabel(name + "_nat"); dn = A.newlabel(name + "_nd")
        A(f"s_mul_i32 s50, s48, 57\ns_lshr_b32 s50, s50, 9\ns_mul_i32 s50, s50, 9\ns_sub_u32 s50, s48, s50\ns_cmp_eq_u32 s50, 4\ns_cbranch_scc1 {nat}")
        lane_addr(False); reads(16*1152)
        A(f"s_branch {dn}")
        A.label(nat)
        lane_addr(True); reads(4*1152)
        A.label(dn)
    if which == 'in':
        A("s_lshl_b32 s44, s49, 2\ns_add_u32 s44, s44, s36\ns_mul_i32 s44, s44, 18\ns_add_u32 s44, s44, s48\ns_mul_i32 s44, s44, 9216")
    A("s_waitcnt lgkmcnt(0)")
    for j in range(9):
        if which == 'in':
            A(f"s_add_u32 s45, s44, {j*1024}")
        else:
            A(f"s_mul_i32 s45, s36, 9\ns_add_u32 s45, s45, {j}\ns_mul_i32 s50, s45, 43\ns_lshr_b32 s50, s50, 8\ns_mul_i32 s51, s50, 6\ns_sub_u32 s45, s45, s51")
            A("s_mul_i32 s50, s50, 72\ns_add_u32 s50, s50, s48\ns_mul_i32 s50, s50, 6\ns_add_u32 s45, s45, s50\ns_lshl_b32 s45, s45, 10")
        A(f"buffer_store_dwordx4 {vr(32+4*j,4)}, v3, s[8:11], s45 offen")

def gen_l0(name, kgen=None, stamps=False):
    A = Asm()
    def mk():
        st = Stamper(A, 0, stamps); st.n = 1; return st
    nwg = 552 + (0 if NOTOUCH_SP else 128)
    A(f"""
    s_cmp_ge_u32 s2, {nwg}
    s_cbranch_scc1 {name}_end
    s_load_dwordx4 s[28:31], s[0:1], 0
    s_load_dwordx8 s[56:63], s[0:1], 8
    s_load_dwordx2 s[64:65], s[0:1], 40
    s_load_dwordx4 s[88:91], s[0:1], 64
    s_load_dwordx2 s[92:93], s[0:1], 88
    s_load_dwordx2 s[32:33], s[0:1], 112
    """)
    if stamps: A("s_memrealtime s[96:97]\ns_memtime s[70:71]")
    A(f"""
    v_lshrrev_b32 v1, 6, v0
    v_and_b32 v15, 63, v0
    s_nop 0
    v_readfirstlane_b32 s36, v1
    s_waitcnt lgkmcnt(0)
    s_cmp_ge_u32 s2, 128
    s_cbranch_scc1 {name}_r1
    """)
    A("s_and_b32 s44, s2, 7\ns_lshl_b32 s44, s44, 4\ns_lshr_b32 s45, s2, 3\ns_add_u32 s66, s44, s45")
    st = mk()
    gen_ln(A, name, st.stamp)
    st.stamp()
    st.finish(vbase=100)
    A("s_endpgm")
    A.label(f"{name}_r1")
    A(f"s_cmp_ge_u32 s2, 416\ns_cbranch_scc1 {name}_r2")
    A("s_sub_u32 s47, s2, 128\ns_lshl_b32 s47, s47, 1\ns_lshr_b32 s38, s36, 1\ns_and_b32 s37, s36, 1\ns_add_u32 s47, s47, s38")
    kgen(A, name)
    mk().finish(vbase=100)
    A("s_endpgm")
    A.label(f"{name}_r2")
    A(f"s_cmp_ge_u32 s2, 488\ns_cbranch_scc1 {name}_r3")
    A("s_sub_u32 s47, s2, 416\ns_mov_b32 s30, s92\ns_mov_b32 s31, s93")
    gen_wtile(A, name, 'out')
    mk().finish(vbase=100)
    A("s_endpgm")
    A.label(f"{name}_r3")
    A(f"s_cmp_ge_u32 s2, 552\ns_cbranch_scc0 {name}_r3b")
    srd(A, 4, 90, 91, 2048*4096)
    A("s_sub_u32 s44, s2, 552\ns_lshl_b32 s44, s44, 2\ns_add_u32 s44, s44, s36\ns_lshl_b32 s44, s44, 14\nv_lshlrev_b32 v1, 4, v15")
    for j in range(16):
        A(f"s_add_u32 s46, s44, {j*1024}\nbuffer_load_dwordx4 v[16:19], v1, s[4:7], s46 offen")
    A("s_endpgm" if NOWAIT else "s_waitcnt vmcnt(0)\ns_endpgm")
    A.label(f"{name}_r3b")
    srd(A, 4, 88, 89, 576*9216)
    A("s_sub_u32 s44, s2, 488\ns_lshl_b32 s44, s44, 2\ns_add_u32 s44, s44, s36\ns_mul_i32 s44, s44, 20736\nv_lshlrev_b32 v1, 4, v15")
    for j in range(21):
        A(f"s_add_u32 s46, s44, {j*1024}\nbuffer_load_dwordx4 v[16:19], v1, s[4:7], s46 offen")
    if not NOWAIT:
        A("s_waitcnt vmcnt(0)")
        mk().finish(vbase=100)
    A.label(f"{name}_end")
    A("s_endpgm")
    return A.text(), kernel_desc(name, 124, 0), nwg
```

```python
import sys
from asmlib import *
from l0 import gen_l0
from g1 import gen_g1
from g1b import gen_g1b
from g2 import gen_g2
from g3 import gen_g3
from l3 import gen_l3
from fused import gen_fused
import fused3
from kgen import gen_kgen
from conv import gen_conv
TOUCH = False
SC1 = False
def build(path, parts, stamps=False):
    launches = ""; text = ""; descs = ""
    for p in parts:
        if p == "l0":
            body, desc, nwg = gen_l0("l0_kernel", gen_kgen, stamps); launches += f"; @launch kernel=l0_kernel grid=({nwg},1,1) block=(256,1,1) lds=36864\n"; nm = "l0_kernel"
        elif p == "g1":
            body, desc, lds = gen_g1("g1_kernel", stamps); launches += f"; @launch kernel=g1_kernel grid=(256,1,1) block=(256,1,1) lds={lds}\n"; nm = "g1_kernel"
        elif p == "g1b":
            body, desc, lds = gen_g1b("g1_kernel", stamps); launches += f"; @launch kernel=g1_kernel grid=(512,1,1) block=(256,1,1) lds={lds}\n"; nm = "g1_kernel"
        elif p == "g2":
            body, desc = gen_g2("g2_kernel", stamps); launches += f"; @launch kernel=g2_kernel grid=(256,1,1) block=(256,1,1) lds=147456\n"; nm = "g2_kernel"
        elif p == "g3":
            body, desc, lds = gen_g3("g3_kernel", stamps); launches += f"; @launch kernel=g3_kernel grid=(192,1,1) block=(256,1,1) lds={lds}\n"; nm = "g3_kernel"
        elif p == "fused":
            body, desc, lds = gen_fused("m_kernel", stamps); launches += f"; @launch kernel=m_kernel grid=(256,1,1) block=(256,1,1) lds={lds}\n"; nm = "m_kernel"
        elif p == "single":
            nm = "recurrent_scan__ssm_conv_s4d__mixer_gmlp__prompt_kernel"
            body, desc, lds = fused3.gen_fused(nm, stamps); launches += f"; @launch grid=(256,1,1) block=(256,1,1) lds={lds}\n"
        elif p == "l3":
            body, desc, lds, nwg = gen_l3("l3_kernel", stamps); launches += f"; @launch kernel=l3_kernel grid=({nwg},1,1) block=(256,1,1) lds={lds}\n"; nm = "l3_kernel"
        elif p == "conv":
            body, desc, lds, nwg = gen_conv("cv_kernel", 4, stamps); launches += f"; @launch kernel=cv_kernel grid=({nwg},1,1) block=(256,1,1) lds={lds}\n"; nm = "cv_kernel"
        if SC1 and p not in ('l3', 'fused', 'single'):
            from post import add_store_flags
            body = add_store_flags(body, 'sc1')
        text += kernel_header(nm) + body
        descs += desc
    s = HEADER + launches + '.amdgcn_target "amdgcn-amd-amdhsa--gfx950"\n.text\n' + text + '.section .rodata,"a"\n' + descs
    open(path, "w").write(s)
if __name__ == "__main__":
    args = sys.argv[1:]
    stamps = "stamps" in args
    TOUCH = "touch" in args
    SC1 = "sc1" in args
    import l0 as _l00
    _l00.NOWAIT = "nowait" in args
    args = [a for a in args if a != "nowait"]
    import l0 as _l0, fused as _f
    if "fromxn" in args:
        _l0.NO_XNT = True; _f.FROM_XN = True; _f.CONV_LK = 106240
    args = [a for a in args if a != "fromxn"]
    import kgen
    kgen.UNAL = "unal" in args
    args = [a for a in args if a != "unal"]
    import g1
    g1.EXP = set(a[2:] for a in args if a.startswith("x_"))
    args = [a for a in args if not a.startswith("x_")]
    import l3
    l3.PRIO = "prio" in args
    l3.NOCONV = "noconv" in args
    parts = [a for a in args[1:] if a not in ("stamps", "touch", "sc1", "prio", "noconv")]
    build(args[0], parts, stamps)
```

```python
from asmlib import *
from kgen import KR_PITCH, KR1
import kgen
KBUF = 41216; UBUF = 8192

import re
class RemapAsm:
    MAP = {1: 244, 5: 234, 6: 235, 7: 236, 8: 237, 9: 238, 10: 239, 11: 240, 12: 241, 13: 242, 14: 243}
    def __init__(self, A): self.A = A
    def __call__(self, s):
        s = s.replace("buffer_load_ushort a168", "buffer_load_ushort v248").replace("v_accvgpr_read_b32 v14, a168", "v_mov_b32 v14, v248")
        s = re.sub(r"\bv(\d+)\b", lambda m: f"v{self.MAP.get(int(m.group(1)), int(m.group(1)))}", s)
        self.A(s)
    def label(self, n): self.A.label(n)
    def newlabel(self, p="L"): return self.A.newlabel(p)

class Conv1:
    def __init__(self, A, name, LK, LU, from_xn=False, remap=False):
        if remap: A = RemapAsm(A)
        self.A = A; self.name = name; self.LK = LK; self.LU = LU; self.from_xn = from_xn; self.LR = LU + UBUF
    def prefetch(self, chs):
        A = self.A; LK = self.LK; LU = self.LU
        srd_off(A, 4, 32, 33, WS_K, 576 * KR_PITCH)
        srd_off(A, 8, 32, 33, WS_XNT, 576 * 4096)
        vKd = 252
        A(f"v_lshlrev_b32 v{vKd}, 4, v15")
        A(f"s_mul_i32 s44, {chs}, {KR_PITCH}")
        A("s_lshl_b32 s45, s36, 2\ns_add_u32 s44, s44, s45")
        for cc in range(2):
            A(f"s_lshl_b32 s45, s36, 1\ns_add_u32 s45, s45, {cc}")
            A("s_mul_i32 s46, s45, 320")
            A(f"s_lshl_b32 s48, s36, 2\ns_add_u32 s48, s48, {cc}\ns_cmp_ge_u32 s45, 5\ns_subb_u32 s48, s48, 0")
            A(f"s_add_u32 s46, s46, s48\ns_lshl_b32 s46, s46, 4")
            A(f"s_add_u32 s48, s44, {cc*(2 if kgen.UNAL else KR1)}")
            for it in range(5):
                A(f"s_add_u32 m0, s46, {LK + it*1024}\ns_add_u32 s49, s48, {it*1024}")
                A(f"buffer_load_dwordx4 v{vKd}, s[4:7], s49 offen{' sc1' if self.from_xn else ''} lds")
        if self.from_xn:
            srd_off(A, 8, 32, 33, WS_XN, 128 * 18 * 1024)
            A(f"""
            s_and_b32 s46, {chs}, 0xfffffffe
            s_lshr_b32 s44, s46, 5
            s_lshl_b32 s44, s44, 10
            s_bfe_u32 s45, s46, 0x20003
            s_lshl_b32 s45, s45, 8
            s_add_u32 s44, s44, s45
            s_and_b32 s45, s46, 7
            s_lshl_b32 s45, s45, 1
            s_add_u32 s44, s44, s45
            s_mul_i32 s45, s36, {8*4*18432}
            s_add_u32 s44, s44, s45
            v_lshrrev_b32 v252, 4, v15
            v_mul_u32_u24 v252, 18432, v252
            v_and_b32 v253, 15, v15
            v_lshlrev_b32 v253, 4, v253
            v_add_u32 v252, v252, v253
            s_lshl_b32 s46, s36, 11
            s_add_u32 s46, s46, {self.LR}
            """)
            for j in range(8):
                A(f"s_add_u32 s45, s44, {j*4*18432}\ns_add_u32 m0, s46, {j*256}\ns_nop 0\nbuffer_load_dword v252, s[8:11], s45 offen sc1 lds")
        else:
          A(f"s_lshl_b32 s46, {chs}, 12")
          for j in range(2):
            A(f"""
            s_lshl_b32 s44, s36, 7
            s_add_u32 s44, s44, {64*j}
            v_add_u32 v252, s44, v15
            v_mul_u32_u24 v253, 6554, v252
            v_lshrrev_b32 v253, 16, v253
            v_mul_u32_u24 v250, 10, v253
            v_sub_u32 v250, v252, v250
            v_subrev_u32 v253, 15, v253
            v_cmp_gt_u32 vcc, 32, v253
            v_cmp_gt_u32 s[52:53], 8, v250
            v_lshlrev_b32 v253, 7, v253
            v_lshl_add_u32 v253, v250, 4, v253
            s_and_b64 vcc, vcc, s[52:53]
            v_mov_b32 v250, 0x80000000
            s_nop 1
            v_cndmask_b32 v253, v250, v253, vcc
            s_lshl_b32 s45, s36, 11
            s_add_u32 m0, s45, {LU + j*1024}
            s_nop 0
            buffer_load_dwordx4 v253, s[8:11], s46 offen lds
            """)
        srd(A, 12, 88, 89, 1152)
        A(f"s_lshl_b32 s44, {chs}, 1\nv_mov_b32 v252, s44\nbuffer_load_ushort a168, v252, s[12:15], 0 offen")
    def prefetch_ops(self, chs):
        class Rec:
            def __init__(s2): s2.l = []
            def __call__(s2, t): s2.l += [x.strip() for x in t.strip("\n").split("\n") if x.strip()]
            def label(s2, n): raise Exception
            def newlabel(s2, p="L"): raise Exception
        rec = Rec(); saveA = self.A
        self.A = RemapAsm(rec) if isinstance(saveA, RemapAsm) else rec
        self.prefetch(chs)
        self.A = saveA
        ops = []; cur = []
        for l in rec.l:
            cur.append(l)
            if l.startswith("buffer_load"):
                ops.append("\n".join(cur)); cur = []
        assert not cur
        return ops
    def run(self, second, pair_s, mid_hook=None, saA=164, done_hook=None):
        A = self.A; name = self.name; LK = self.LK; LU = self.LU; LS = LK
        vA = 5; vB = 6; vA0 = 7; vB0 = 8; vBz = 9
        A(f"""
        v_and_b32 v16, 15, v15
        v_sub_u32 v17, 0, v16
        v_and_b32 v17, 7, v17
        v_mul_u32_u24 v18, 320, v17
        v_lshrrev_b32 v19, 1, v17
        v_lshlrev_b32 v19, 2, v19
        v_and_b32 v20, 1, v17
        v_add_u32 v19, v19, v20
        v_cmp_le_u32 vcc, 5, v17
        v_add_u32 v18, v18, v19
        s_nop 0
        v_cndmask_b32 v20, 0, 1, vcc
        v_sub_u32 v18, v18, v20
        v_lshrrev_b32 v19, 4, v15
        v_add_u32 v18, v18, v19
        v_add_u32 v19, 7, v16
        v_lshrrev_b32 v19, 3, v19
        v_sub_u32 v18, v18, v19
        v_lshlrev_b32 v18, 4, v18
        v_add_u32 v{vA0}, {32 + LK}, v18
        v_mul_u32_u24 v18, 160, v16
        v_lshrrev_b32 v19, 4, v15
        v_lshlrev_b32 v19, 4, v19
        v_add_u32 v{vB0}, v18, v19
        s_cmp_eq_u32 s36, 0
        s_cselect_b32 s50, 0, 24
        s_cselect_b32 s51, 6, 2
        s_cselect_b32 s54, 0, 2
        s_cmp_ge_u32 s36, 2
        s_cselect_b32 s51, 0, s51
        s_cselect_b32 s54, 3, s54
        s_cmp_eq_u32 s36, 2
        s_cselect_b32 s50, 40, s50
        s_cmp_eq_u32 s36, 3
        s_cselect_b32 s50, 52, s50
        s_lshl_b32 s44, s50, 6
        v_add_u32 v{vA}, s44, v{vA0}
        s_lshr_b32 s44, s50, 1
        s_mul_i32 s44, s44, 160
        s_add_u32 s44, s44, {LU}
        v_add_u32 v{vB}, s44, v{vB0}
        v_subrev_u32 v{vBz}, 2560, v{vB}
        """)
        FR = [24, 32, 40, 48]; BR = [56, 64, 72, 80]; ACC = 96
        for r in range(32): A(f"v_mov_b32 v{ACC+r}, 0")
        return FR, BR, ACC, vA, vB, vBz
    def compute(self, second, pair_s, wait_n, mid_hook=None, saA=164, pre_hook=None, mid_wait=0, dyn=False, split=None):
        A = self.A; name = self.name; LK = self.LK; LU = self.LU; LS = LK
        FR, BR, ACC, vA, vB, vBz = self.run(second, pair_s)
        A(f"s_waitcnt vmcnt({wait_n})\ns_barrier" if wait_n is not None else "s_barrier")
        if pre_hook:
            pre_hook(); mid_hook = None
        if self.from_xn:
            sel = "0x07060302" if second else "0x05040100"
            selasm = f"s_mov_b32 s44, {sel}" if not dyn else "s_mov_b32 s44, 0x05040100\n            s_cmp_eq_u32 s60, 1\n            s_cselect_b32 s44, 0x07060302, s44"
            A(f"""
            v_lshlrev_b32 v1, 5, v15
            s_lshl_b32 s44, s36, 11
            s_add_u32 s44, s44, {self.LR}
            v_add_u32 v1, s44, v1
            ds_read_b128 v[24:27], v1
            ds_read_b128 v[28:31], v1 offset:16
            s_lshl_b32 s44, s36, 6
            v_add_u32 v10, s44, v15
            v_lshrrev_b32 v11, 3, v10
            v_mul_u32_u24 v11, 160, v11
            v_and_b32 v10, 7, v10
            v_lshlrev_b32 v10, 4, v10
            v_add_u32 v10, v10, v11
            v_add_u32 v10, {LU + 15*160}, v10
            v_mov_b32 v32, 0
            v_mov_b32 v33, 0
            v_mov_b32 v34, 0
            v_mov_b32 v35, 0
            v_lshlrev_b32 v11, 4, v15
            s_lshl_b32 s44, s36, 10
            s_add_u32 s44, s44, {LU}
            v_add_u32 v11, s44, v11
            v_cmp_gt_u32 vcc, {LU + 2400}, v11
            s_and_saveexec_b64 s[52:53], vcc
            ds_write_b128 v11, v[32:35]
            s_mov_b64 exec, s[52:53]
            {selasm}
            s_waitcnt lgkmcnt(0)
            v_perm_b32 v32, v25, v24, s44
            v_perm_b32 v33, v27, v26, s44
            v_perm_b32 v34, v29, v28, s44
            v_perm_b32 v35, v31, v30, s44
            ds_write_b128 v10, v[32:35]
            s_waitcnt lgkmcnt(0)
            s_barrier
            """)
        def rdA(pair, t): return [f"ds_read_b128 {vr(FR[pair],4)}, v{vA} offset:{96+64*t}", f"ds_read_b128 {vr(FR[pair]+4,4)}, v{vA} offset:{64+64*t}"]
        def rdB(slot, t, tile):
            off = (t >> 1) * 160 + 64 * (t & 1)
            return f"ds_read_b128 {vr(BR[slot] + (0 if tile == 1 else 4),4)}, v{vB if tile == 1 else vBz} offset:{off}"
        for x in rdA(3, -1): A(x)
        for t in range(2):
            for x in rdA(t, t): A(x)
            A(rdB(t, t, 1))
        l0 = A.newlabel(name + "_p0")
        A(f"s_cmp_eq_u32 s51, 0\ns_cbranch_scc0 {l0}")
        for t in range(2): A(rdB(t, t, 0))
        A.label(l0)
        A("s_waitcnt lgkmcnt(0)")
        def body(double):
            for t in range(4):
                A(f"s_waitcnt lgkmcnt({4 if double else 3})")
                cur = FR[t]; prev = FR[(t-1) % 4]
                fr = [cur, cur+4, prev, prev+4]
                rd = rdA((t+2) % 4, t+2) + [rdB((t+2) % 4, t+2, 1)] + ([rdB((t+2) % 4, t+2, 0)] if double else [])
                mf = []
                for i in ([1, 0] if double else [1]):
                    for h in range(4):
                        c = vr(ACC + (h*2+i)*4, 4)
                        mf.append(f"v_mfma_f32_16x16x32_bf16 {c}, {vr(fr[h],4)}, {vr(BR[t] + (0 if i == 1 else 4),4)}, {c}")
                for j, m in enumerate(mf):
                    A(m)
                    if j < len(rd): A(rd[j])
            A(f"v_add_u32 v{vA}, 256, v{vA}\nv_add_u32 v{vB}, 320, v{vB}\nv_add_u32 v{vBz}, 320, v{vBz}")
        l1 = A.newlabel(name + "_s"); l1e = A.newlabel(name + "_se"); l2 = A.newlabel(name + "_d"); l2e = A.newlabel(name + "_de"); l2s = A.newlabel(name + "_ds")
        A(f"s_mov_b32 s55, s51\ns_cmp_eq_u32 s55, 0\ns_cbranch_scc1 {l2s}")
        A.label(l1)
        body(False)
        A(f"s_sub_u32 s55, s55, 1\ns_cmp_lg_u32 s55, 0\ns_cbranch_scc1 {l1}")
        A(f"s_cmp_eq_u32 s54, 0\ns_cbranch_scc1 {l2e}")
        for t in range(2): A(rdB(t, t, 0))
        A("s_waitcnt lgkmcnt(0)")
        A.label(l2s)
        A("s_mov_b32 s55, s54")
        A.label(l2)
        body(True)
        A(f"s_sub_u32 s55, s55, 1\ns_cmp_lg_u32 s55, 0\ns_cbranch_scc1 {l2}")
        A.label(l2e)
        if hasattr(self, "stamp"): self.stamp()
        A(f"s_waitcnt vmcnt({mid_wait}) lgkmcnt(0)\ns_nop 7\ns_barrier")
        if mid_hook: mid_hook()
        if split: split()
        A(f"v_lshlrev_b32 v1, 4, v15\ns_lshl_b32 s44, s36, 13\ns_add_u32 s44, s44, {LS}\nv_add_u32 v11, s44, v1")
        for h in range(4):
            for i in range(2):
                A(f"ds_write_b128 v11, {vr(ACC+(h*2+i)*4,4)} offset:{(h*2+i)*1024}")
        A(f"""
        v_and_b32 v12, 15, v15
        v_mul_u32_u24 v12, 160, v12
        v_lshrrev_b32 v13, 4, v15
        v_lshlrev_b32 v13, 3, v13
        v_add_u32 v12, v12, v13
        s_lshl_b32 s44, s36, 5
        s_add_u32 s44, s44, {LU}
        v_add_u32 v12, s44, v12
        """)
        for i in range(2):
            A(f"ds_read_b64 {vr(56+2*i,2)}, v12 offset:{(15+16*i)*160}")
        A("s_waitcnt lgkmcnt(0)\ns_barrier")
        A(f"s_lshl_b32 s44, s36, 11\ns_add_u32 s44, s44, {LS}\nv_add_u32 v11, s44, v1")
        for ww in range(4):
            for i in range(2):
                A(f"ds_read_b128 {vr(24+(ww*2+i)*4,4)}, v11 offset:{ww*8192 + i*1024}")
        A("v_accvgpr_read_b32 v14, a168\ns_nop 0\nv_lshlrev_b32 v14, 16, v14")
        for i in range(2):
            u = 56 + 2*i; t = 64 + 4*i
            A(f"v_lshlrev_b32 v{t}, 16, v{u}\nv_and_b32 v{t+1}, 0xffff0000, v{u}\nv_lshlrev_b32 v{t+2}, 16, v{u+1}\nv_and_b32 v{t+3}, 0xffff0000, v{u+1}")
            for r in range(4): A(f"v_mul_f32 v{t+r}, v{t+r}, v14")
            A(f"v_cvt_pk_bf16_f32 v60, v{t}, v{t+1}\nv_cvt_pk_bf16_f32 v61, v{t+2}, v{t+3}")
            A(f"v_lshlrev_b32 v{t}, 16, v60\nv_and_b32 v{t+1}, 0xffff0000, v60\nv_lshlrev_b32 v{t+2}, 16, v61\nv_and_b32 v{t+3}, 0xffff0000, v61")
        A("s_waitcnt lgkmcnt(0)")
        for i in range(2):
            for ww in range(1, 4):
                A(f"v_pk_add_f32 {vr(24+i*4,2)}, {vr(24+i*4,2)}, {vr(24+(ww*2+i)*4,2)}")
                A(f"v_pk_add_f32 {vr(24+i*4+2,2)}, {vr(24+i*4+2,2)}, {vr(24+(ww*2+i)*4+2,2)}")
        for i in range(2):
            y = 24 + i*4; t = 64 + 4*i
            A(f"v_cvt_pk_bf16_f32 v60, v{y}, v{y+1}\nv_cvt_pk_bf16_f32 v61, v{y+2}, v{y+3}")
            A(f"v_lshlrev_b32 v{y}, 16, v60\nv_and_b32 v{y+1}, 0xffff0000, v60\nv_lshlrev_b32 v{y+2}, 16, v61\nv_and_b32 v{y+3}, 0xffff0000, v61")
            for r in range(4): A(f"v_add_f32 v{y+r}, v{y+r}, v{t+r}")
            A(f"v_cvt_pk_bf16_f32 v60, v{y}, v{y+1}\nv_cvt_pk_bf16_f32 v61, v{y+2}, v{y+3}")
            if dyn:
                A(f"v_mov_b32 v{80+2*i}, v60\nv_mov_b32 v{81+2*i}, v61")
            elif not second:
                A(f"v_accvgpr_write_b32 a{saA+2*i}, v60\nv_accvgpr_write_b32 a{saA+2*i+1}, v61")
            else:
                A(f"v_accvgpr_read_b32 v62, a{saA+2*i}\nv_accvgpr_read_b32 v63, a{saA+2*i+1}")
                o = 72 + 4*i
                A(f"s_mov_b32 s44, 0x05040100\ns_mov_b32 s45, 0x07060302")
                A(f"v_perm_b32 v{o}, v60, v62, s44\nv_perm_b32 v{o+1}, v60, v62, s45")
                A(f"v_perm_b32 v{o+2}, v61, v63, s44\nv_perm_b32 v{o+3}, v61, v63, s45")
        if dyn:
            l2nd = A.newlabel(name + "_2nd"); lend = A.newlabel(name + "_ce")
            A(f"s_cmp_eq_u32 s60, 1\ns_cbranch_scc1 {l2nd}")
            for r in range(4): A(f"v_accvgpr_write_b32 a{saA+r}, v{80+r}")
            A(f"s_branch {lend}")
            A.label(l2nd)
            A(f"s_mov_b32 s44, 0x05040100\ns_mov_b32 s45, 0x07060302")
            for i in range(2):
                o = 72 + 4*i
                A(f"v_accvgpr_read_b32 v62, a{saA+2*i}\nv_accvgpr_read_b32 v63, a{saA+2*i+1}\ns_nop 0")
                A(f"v_perm_b32 v{o}, v{80+2*i}, v62, s44\nv_perm_b32 v{o+1}, v{80+2*i}, v62, s45")
                A(f"v_perm_b32 v{o+2}, v{81+2*i}, v63, s44\nv_perm_b32 v{o+3}, v{81+2*i}, v63, s45")
            second = True
        if second:
            srd_off(A, 12, 32, 33, WS_S, 288 * 8192)
            A(f"""
            v_and_b32 v12, 15, v15
            v_lshlrev_b32 v12, 8, v12
            v_lshrrev_b32 v13, 4, v15
            v_lshlrev_b32 v13, 4, v13
            v_add_u32 v12, v12, v13
            s_lshl_b32 s44, {pair_s}, 13
            s_lshl_b32 s45, s36, 6
            s_add_u32 s44, s44, s45
            s_add_u32 s45, s44, 4096
            """)
            A(f"buffer_store_dwordx4 v[72:75], v12, s[12:15], s44 offen sc1")
            A(f"buffer_store_dwordx4 v[76:79], v12, s[12:15], s45 offen sc1")
            if dyn: A.label(lend)
```

```python
from asmlib import *
from core import Core
from g1 import f2u
from g1n import gen_g1n
import l3
from conv1 import Conv1
import math

OUTSC1 = False
FROM_XN = False
CONV_LK = 110592
C2, C3, C4, C5 = 0, 16, 32, 48

class F:
    def __init__(self, A, stamps):
        self.A = A; self.stamps = stamps; self.n = 0
    def stamp(self):
        if not self.stamps: return
        A = self.A; i = self.n; self.n += 1
        assert i < 30
        A("s_memtime s[100:101]\ns_waitcnt lgkmcnt(0)\nv_mov_b32 v254, s100\ns_mov_b64 exec, 1")
        A(f"buffer_store_dword v254, v255, s[96:99], 0 offen offset:{8 + 4*i}\ns_mov_b64 exec, -1")
    def rt(self, slot):
        if not self.stamps: return
        A = self.A
        A("s_memrealtime s[100:101]\ns_waitcnt lgkmcnt(0)\nv_mov_b32 v254, s100\ns_mov_b64 exec, 1")
        A(f"buffer_store_dword v254, v255, s[96:99], 0 offen offset:{4*slot}\ns_mov_b64 exec, -1")
    def ptrs_g1(self):
        self.A("s_mov_b32 s28, s78\ns_mov_b32 s29, s79\ns_mov_b32 s54, s80\ns_mov_b32 s55, s81")

FLAG_BYTES = 4 * 16 * 64 * 128
def flag_off(kind, group_s, slot_s):
    return f"s_add_u32 s44, {group_s}, {kind*16}\ns_lshl_b32 s44, s44, 6\ns_add_u32 s44, s44, {slot_s}\ns_lshl_b32 s44, s44, 7"

def signal(A, name, idx_exprs, sync=True):
    if sync: A("s_waitcnt vmcnt(0)\ns_barrier")
    lab = A.newlabel(name + "_sg")
    A(f"s_cmp_eq_u32 s36, 0\ns_cbranch_scc0 {lab}")
    srd_off(A, 24, 32, 33, WS_FLAG, FLAG_BYTES)
    A("v_mov_b32 v251, 1\ns_mov_b64 exec, 1")
    for e in idx_exprs:
        A(e); A("v_mov_b32 v250, s44\nbuffer_store_dword v251, v250, s[24:27], 0 offen sc1")
    A("s_mov_b64 exec, -1")
    A.label(lab)

def wait_flags(A, name, kind, group_s, nslots, barrier=True, allwaves=False):
    lab = A.newlabel(name + "_wf")
    if not allwaves: A(f"s_cmp_eq_u32 s36, 0\ns_cbranch_scc0 {lab}")
    srd_off(A, 24, 32, 33, WS_FLAG, FLAG_BYTES)
    A(flag_off(kind, group_s, 0))
    A(f"v_lshlrev_b32 v250, 7, v15\nv_add_u32 v250, s44, v250")
    A(f"s_mov_b32 s46, {hex(((1 << nslots) - 1) & 0xffffffff)}\ns_mov_b32 s47, {hex(((1 << nslots) - 1) >> 32)}")
    poll = A.newlabel(name + "_pl")
    A.label(poll)
    A("buffer_load_dword v251, v250, s[24:27], 0 offen sc1\ns_waitcnt vmcnt(0)")
    A("v_cmp_eq_u32 s[48:49], 1, v251\ns_and_b64 s[48:49], s[48:49], s[46:47]")
    A(f"s_cmp_eq_u64 s[48:49], s[46:47]\ns_cbranch_scc1 {lab}\ns_sleep 2\ns_branch {poll}")
    A.label(lab)
    if barrier: A("s_barrier")

def g2_pre_p(Fo, name):
    A = Fo.A
    srd_off(A, 4, 32, 33, WS_WSP, 2048 * 4096)
    A(f"""
    s_lshl_b32 s44, s34, 7
    s_lshl_b32 s45, s36, 5
    s_add_u32 s44, s44, s45
    v_lshlrev_b32 v1, 4, v15
    s_lshl_b32 s46, s44, 12
    v_add_u32 v2, s46, v1
    v_add_u32 v3, 0x10000, v2
    """)
    for s in range(3):
        A(f"s_mov_b32 s39, {s*4096}")
        for n in range(8 if s < 2 else 4):
            ks, i = n // 2, n % 2
            A(f"buffer_load_dwordx4 {ar(s*32 + ks*8 + i*4, 4)}, v{2+i}, s[4:7], s39 offen offset:{ks*1024} sc1")

def wait_flags2(A, name, a, b):
    lab = A.newlabel(name + "_w2")
    A(f"s_cmp_eq_u32 s36, 0\ns_cbranch_scc0 {lab}")
    srd_off(A, 24, 32, 33, WS_FLAG, FLAG_BYTES)
    A(flag_off(a[0], a[1], 0)); A("s_mov_b32 s47, s44")
    A(flag_off(b[0], b[1], 0))
    A("v_mov_b32 v250, s47\nv_mov_b32 v251, s44\nv_cmp_gt_u32 vcc, 16, v15\ns_nop 1\nv_cndmask_b32 v250, v251, v250, vcc")
    A("v_and_b32 v251, 15, v15\nv_lshlrev_b32 v251, 7, v251\nv_add_u32 v250, v250, v251")
    poll = A.newlabel(name + "_p2")
    A.label(poll)
    A("buffer_load_dword v251, v250, s[24:27], 0 offen sc1\ns_waitcnt vmcnt(0)")
    A("v_cmp_eq_u32 s[48:49], 1, v251")
    A(f"s_cmp_eq_u32 s48, -1\ns_cbranch_scc1 {lab}\ns_sleep 1\ns_branch {poll}")
    A.label(lab)
    A("s_barrier")

def gen_g2f(Fo, name, post_loop=None, part="early"):
    A = Fo.A; stamp = Fo.stamp
    SLOT = 36864
    ACC = 128; PR = 0; QV = [16, 52]; Z1V = 88; Z1A = 128
    vP = [2, 3]; vQd = [4, 5, 6]; vQr = [8, 9, 10, 11]; vB = [12, 13]; vL = 15
    def dm(slot, j):
        g = j // 4
        pre = f"s_add_u32 m0, s{40+slot}, {g*4096}\ns_nop 0\n" if j % 4 == 0 else ""
        return pre + f"buffer_load_dwordx4 v{vQd[g]}, s[8:11], s38 offen offset:{(j%4)*1024} sc1 lds"
    def pl(slot, n):
        ks, i = n // 2, n % 2
        return f"buffer_load_dwordx4 {ar(PR + slot*32 + ks*8 + i*4, 4)}, v{vP[i]}, s[4:7], s39 offen offset:{ks*1024} sc1"
    def G(slot):
        ops = []
        for j in range(9):
            ops.append(dm(slot, j))
            if j < 8: ops.append(pl(slot, j))
        ops[-1] += f"\ns_add_u32 s38, s38, {SLOT}\ns_add_u32 s39, s39, 4096"
        return ops
    if part == "early":
        srd_off(A, 4, 32, 33, WS_WSP, 2048 * 4096)
        A("s_mul_i32 s44, s35, 589824")
        A(f"s_add_u32 s44, s44, {WS_Z2N}")
        srd_off(A, 8, 32, 33, "s44", 589824)
        A(f"""
        s_lshl_b32 s44, s34, 7
        s_lshl_b32 s45, s36, 5
        s_add_u32 s44, s44, s45
        v_lshlrev_b32 v1, 4, v{vL}
        s_lshl_b32 s46, s44, 12
        v_add_u32 v{vP[0]}, s46, v1
        v_add_u32 v{vP[1]}, 0x10000, v{vP[0]}
        s_mul_i32 s45, s36, 9216
        v_add_u32 v{vQd[0]}, s45, v1
        v_add_u32 v{vQd[1]}, 0x1000, v{vQd[0]}
        v_add_u32 v{vQd[2]}, 0x2000, v{vQd[0]}
        s_mov_b32 s40, s45
        s_add_u32 s41, s45, {SLOT}
        s_add_u32 s42, s45, {2*SLOT}
        s_add_u32 s43, s45, {3*SLOT}
        """)
        wait_flags2(A, name, (0, "s35"), (1, "s34"))
        A("s_mov_b32 s38, 0\ns_mov_b32 s39, 0")
        for op in G(0): A(op)
        Fo.g2_late_ops = G(1) + G(2)[0:9]
        return
    srd_off(A, 16, 32, 33, WS_H, 128 * 72 * 1024)
    srd(A, 20, 82, 83, 4096)
    A(f"""
    s_lshl_b32 s44, s34, 7
    s_lshl_b32 s45, s36, 5
    s_add_u32 s44, s44, s45
    v_and_b32 v1, 15, v{vL}
    v_add_u32 v1, s44, v1
    v_lshlrev_b32 v{vB[0]}, 1, v1
    v_add_u32 v{vB[1]}, 32, v{vB[0]}
    v_lshlrev_b32 v1, 4, v{vL}
    v_mov_b32 v{vQr[0]}, v1
    v_add_u32 v{vQr[1]}, {SLOT}, v1
    v_add_u32 v{vQr[2]}, {2*SLOT}, v1
    v_add_u32 v{vQr[3]}, {3*SLOT}, v1
    """)
    for i in range(2):
        A(f"buffer_load_ushort v{124+i}, v{vB[i]}, s[20:23], 0 offen")
    for r in range(72): A(f"v_mov_b32 v{ACC+r}, 0")
    A("s_waitcnt vmcnt(26)")
    A("s_barrier")
    def qreads(buf, slot, ks):
        return [f"ds_read_b128 {vr(QV[buf]+jn*4,4)}, v{vQr[slot]} offset:{(ks*9+jn)*1024}" for jn in range(9)]
    def mfmas(buf, slot, ks):
        out = []
        for jn in range(9):
            for i in range(2):
                c = vr(ACC + (i*9+jn)*4, 4)
                out.append(f"v_mfma_f32_16x16x32_bf16 {c}, {vr(QV[buf]+jn*4,4)}, {ar(PR+slot*32+ks*8+i*4,4)}, {c}")
        return out
    for x in qreads(0, 0, 0): A(x)
    stamp()
    A("s_mov_b32 s37, 0")
    A.label(f"{name}_loop")
    for u in range(4):
        g = G((u + 3) & 3); gprev = G((u + 2) & 3)
        for ks in range(4):
            A("s_waitcnt lgkmcnt(0)")
            rd = qreads((ks + 1) & 1, u, ks + 1) if ks < 3 else qreads(0, (u + 1) & 3, 0)
            gl = [gprev[9:13], gprev[13:17], g[0:5], g[5:9]][ks]
            mf = mfmas(ks & 1, u, ks)
            for j in range(18):
                A(mf[j])
                if j < 9: A(rd[j])
                elif (j - 9) % 2 == 0 and (j - 9) // 2 < len(gl): A(gl[(j - 9) // 2])
            if ks == 1:
                A("s_waitcnt vmcnt(17)")
                A("s_barrier")
                if u == 1:
                    skip = A.newlabel(name + "_sk")
                    A(f"s_cmp_eq_u32 s37, 3\ns_cbranch_scc0 {skip}")
                    for v in vP + vQd: A(f"v_mov_b32 v{v}, 0x80000000")
                    A.label(skip)
    A(f"s_add_u32 s37, s37, 1\ns_cmp_lt_u32 s37, 4\ns_cbranch_scc1 {name}_loop")
    stamp()
    A("s_waitcnt vmcnt(0)\ns_barrier")
    if post_loop: post_loop()
    pfo = []
    for r in range(36): A(f"v_accvgpr_read_b32 v{Z1V+r}, a{Z1A+r}")
    A("v_lshlrev_b32 v200, 16, v124\nv_lshlrev_b32 v201, 16, v124\nv_lshlrev_b32 v202, 16, v125\nv_lshlrev_b32 v203, 16, v125")
    A(f"""
    s_lshl_b32 s66, s34, 3
    s_lshl_b32 s67, s36, 1
    s_add_u32 s66, s66, s67
    s_mul_i32 s66, s66, 72
    s_lshr_b32 s67, s35, 1
    s_mul_i32 s67, s67, 9
    s_add_u32 s66, s66, s67
    s_and_b32 s95, s35, 1
    s_mul_i32 s90, s95, 5
    s_add_u32 s90, s90, s66
    s_lshl_b32 s90, s90, 10
    s_add_u32 s91, s66, 4
    s_lshl_b32 s91, s91, 10
    s_lshl_b32 s94, s95, 3
    s_add_u32 s91, s91, s94
    s_add_u32 s92, s90, 73728
    s_add_u32 s93, s91, 73728
    v_lshlrev_b32 v1, 4, v{vL}
    """)
    T = 204
    for i in range(2):
        for jn in range(9):
            c = ACC + (i*9+jn)*4; z = Z1V + (i*9+jn)*2; t = T + ((i*9+jn) & 1) * 4
            A(f"v_lshlrev_b32 v{t}, 16, v{z}")
            A(f"v_and_b32 v{t+1}, 0xffff0000, v{z}")
            A(f"v_lshlrev_b32 v{t+2}, 16, v{z+1}")
            A(f"v_and_b32 v{t+3}, 0xffff0000, v{z+1}")
            A(f"v_pk_add_f32 {vr(c,2)}, {vr(c,2)}, {vr(200+2*i,2)}")
            A(f"v_pk_add_f32 {vr(c+2,2)}, {vr(c+2,2)}, {vr(200+2*i,2)}")
            A(f"v_pk_mul_f32 {vr(c,2)}, {vr(c,2)}, {vr(t,2)}")
            A(f"v_pk_mul_f32 {vr(c+2,2)}, {vr(c+2,2)}, {vr(t+2,2)}")
            A(f"v_cvt_pk_bf16_f32 v{z}, v{c}, v{c+1}")
            A(f"v_cvt_pk_bf16_f32 v{z+1}, v{c+2}, v{c+3}")
            if pfo: A(pfo.pop(0))
    odd = A.newlabel(name + "_odd"); done = A.newlabel(name + "_sd")
    A(f"""
    v_bfe_u32 v2, v{vL}, 4, 1
    v_mul_u32_u24 v2, 73728, v2
    v_lshrrev_b32 v3, 5, v{vL}
    v_lshlrev_b32 v3, 8, v3
    v_add_u32 v2, v2, v3
    v_and_b32 v3, 15, v{vL}
    v_lshlrev_b32 v3, 4, v3
    v_add_u32 v2, v2, v3
    s_add_u32 s91, s66, 4
    s_lshl_b32 s91, s91, 10
    s_lshl_b32 s94, s95, 9
    s_add_u32 s91, s91, s94
    """)
    def single(jn):
        a0 = Z1V + jn*2; a1 = Z1V + (9+jn)*2
        A(f"v_mov_b32 v4, v{a0}\nv_mov_b32 v5, v{a0+1}\nv_mov_b32 v6, v{a1}\nv_mov_b32 v7, v{a1+1}\ns_nop 1")
        A("v_permlane16_swap_b32 v4, v6\nv_permlane16_swap_b32 v5, v7\ns_nop 0")
        A("buffer_store_dwordx4 v[4:7], v2, s[16:19], s91 offen sc1")
    A(f"s_cmp_eq_u32 s95, 1\ns_cbranch_scc1 {odd}")
    for i in range(2):
        for p in range(4):
            A(f"buffer_store_dwordx4 {vr(Z1V+(i*9+2*p)*2,4)}, v1, s[16:19], s{90 if i==0 else 92} offen offset:{p*1024} sc1")
    single(8)
    A(f"s_branch {done}")
    A.label(odd)
    for i in range(2):
        for p in range(4):
            A(f"buffer_store_dwordx4 {vr(Z1V+(i*9+1+2*p)*2,4)}, v1, s[16:19], s{90 if i==0 else 92} offen offset:{p*1024} sc1")
    single(0)
    A.label(done)

def g3_pre_q(Fo, name):
    A = Fo.A
    A(f"""
    s_lshr_b32 s45, s2, 5
    s_min_u32 s45, s45, 5
    s_mul_i32 s44, s45, {72*6*1024}
    s_add_u32 s44, s44, {WS_WOT}
    """)
    srd_off(A, 4, 32, 33, "s44", 72*6*1024)
    A("v_lshlrev_b32 v1, 4, v15\ns_lshl_b32 s40, s36, 10\nv_add_u32 v2, s40, v1")
    for j in range(1, 6): A(f"v_add_u32 v{2+j}, {j*4096}, v2")
    for s in range(4):
        A(f"s_mov_b32 s38, {s*24*1024}")
        for j in range(6):
            A(f"s_add_u32 m0, s40, {s*24576 + j*4096}\ns_nop 0\nbuffer_load_dwordx4 v{2+j}, s[4:7], s38 offen lds")

def gen_g3f(Fo, name):
    A = Fo.A; stamp = Fo.stamp
    R = 6; S = 4
    ACC = 16; QB = [96, 120]; PR = 0
    vQd = [2, 3, 4, 5, 6, 7]; vP = [8]; vL = 15; vQr = [9, 10, 11, 12, 13, 14]
    A(f"""
    s_and_b32 s44, s2, 7
    s_lshr_b32 s45, s2, 3
    s_lshl_b32 s34, s44, 2
    s_and_b32 s46, s45, 3
    s_add_u32 s34, s34, s46
    s_lshr_b32 s35, s45, 2
    v_lshlrev_b32 v1, 4, v{vL}
    s_lshl_b32 s44, s34, 2
    s_add_u32 s58, s44, s36
    s_mul_i32 s44, s58, 73728
    v_add_u32 v{vP[0]}, s44, v1
    """)
    A(f"s_mul_i32 s44, s35, {72*6*1024}\ns_add_u32 s44, s44, {WS_WOT}")
    srd_off(A, 4, 32, 33, "s44", 72*6*1024)
    srd_off(A, 8, 32, 33, WS_H, 128 * 72 * 1024)
    c = Core(A, name + "_g", 1, 6, 72, S, R, ACC, QB, "a", PR, vP, vQd, vQr, 8, 4, "s38", "s39", "s40", "s37", 1024, orient="QP")
    c.p_flags = " sc1"
    c.setup_addr(1, "s36", 12)
    h = c.gsize // 2
    def split(slot):
        ops = c.G(slot);
        return ops
    pre_a = []; pre_b = []; post = []
    for s in range(R - 1):
        ops = c.G(s)
        ops = ops if s < R - 2 else ops[:h]
        q = [o for o in ops if " lds" in o]; p = [o for o in ops if " lds" not in o]
        strip = lambda o: o.split("\ns_add_u32 s38, s38")[0]
        (pre_a if s < 4 else pre_b).append(f"s_mov_b32 s38, {s*S*6*1024}"); (pre_a if s < 4 else pre_b).extend(strip(o) for o in q)
        post.append(f"s_mov_b32 s39, {s*S*1024}"); post += [strip(o) for o in p]
    for o in pre_a: A(o)
    Fo.conv_fin()
    c.setup_addr(1, "s36", 12)
    A("s_barrier")
    for o in pre_b: A(o)
    srd(A, 12, 76, 77, 2048 * 1152)
    srd_off(A, 16, 32, 33, WS_S, 288 * 8192)
    srd(A, 20, 84, 85, 2048 * 1152)
    for r in range(24): A(f"v_mov_b32 v{ACC+r}, 0")
    stamp()
    A("s_lshr_b32 s59, s34, 1")
    wait_flags(A, name, 2, "s59", 16)
    stamp()
    for o in post: A(o)
    A(f"s_mov_b32 s38, {(R-2)*S*6*1024}\ns_mov_b32 s39, {(R-2)*S*1024}")
    Fo.pre_g3()
    for x in c.qreads(0, 0, 0): A(x)
    stamp()
    def tail(A):
        A(f"""
        v_and_b32 v1, 15, v{vL}
        s_lshl_b32 s44, s58, 4
        v_add_u32 v1, s44, v1
        v_mul_u32_u24 v1, 1152, v1
        v_lshrrev_b32 v40, 4, v{vL}
        v_lshlrev_b32 v40, 3, v40
        v_add_u32 v1, v1, v40
        s_mul_i32 s44, s35, 192
        v_add_u32 v1, s44, v1
        """)
        for jd in range(6):
            A(f"buffer_load_dwordx2 {vr(52+2*jd,2)}, v1, s[12:15], 0 offen offset:{jd*32}")
    def late(A):
        wait_flags(A, name, 3, "s35", 48, barrier=False, allwaves=True)
        A(f"""
        v_lshrrev_b32 v42, 4, v{vL}
        v_lshlrev_b32 v42, 14, v42
        v_and_b32 v43, 15, v{vL}
        v_lshlrev_b32 v43, 2, v43
        v_add_u32 v42, v42, v43
        s_mul_i32 s44, s35, {48*8192}
        s_lshl_b32 s45, s58, 6
        s_add_u32 s44, s44, s45
        """)
        for jd in range(6):
            for e in range(2):
                A(f"s_add_u32 s45, s44, {(8*jd + e)*8192}")
                A(f"buffer_load_dword v{64+2*jd+e}, v42, s[16:19], s45 offen sc1")
    c.loop(True, tail_hook=tail, late_hook=late)
    stamp()
    NL2E = -math.log2(math.e)
    A(f"v_mov_b32 v76, {hex(f2u(NL2E))}\nv_mov_b32 v77, {hex(f2u(NL2E))}\nv_mov_b32 v78, 1.0\nv_mov_b32 v79, 1.0")
    for jd in range(6):
        cc = ACC + jd*4; t = 80 + (jd % 2) * 4
        A(f"v_pk_mul_f32 {vr(t,2)}, {vr(cc,2)}, v[76:77]")
        A(f"v_pk_mul_f32 {vr(t+2,2)}, {vr(cc+2,2)}, v[76:77]")
        for r in range(4): A(f"v_exp_f32 v{t+r}, v{t+r}")
        A(f"v_pk_add_f32 {vr(t,2)}, {vr(t,2)}, v[78:79]")
        A(f"v_pk_add_f32 {vr(t+2,2)}, {vr(t+2,2)}, v[78:79]")
        for r in range(4): A(f"v_rcp_f32 v{t+r}, v{t+r}")
        A("s_nop 0")
        A(f"v_pk_mul_f32 {vr(cc,2)}, {vr(cc,2)}, {vr(t,2)}")
        A(f"v_pk_mul_f32 {vr(cc+2,2)}, {vr(cc+2,2)}, {vr(t+2,2)}")
    A("s_waitcnt vmcnt(0)")
    for jd in range(6):
        cc = ACC + jd*4; t = 88 + (jd % 2) * 8
        A(f"v_lshlrev_b32 v{t+4}, 16, v{64+2*jd}\nv_and_b32 v{t+5}, 0xffff0000, v{64+2*jd}")
        A(f"v_lshlrev_b32 v{t+6}, 16, v{65+2*jd}\nv_and_b32 v{t+7}, 0xffff0000, v{65+2*jd}")
        A(f"v_lshlrev_b32 v{t}, 16, v{52+2*jd}\nv_and_b32 v{t+1}, 0xffff0000, v{52+2*jd}")
        A(f"v_lshlrev_b32 v{t+2}, 16, v{53+2*jd}\nv_and_b32 v{t+3}, 0xffff0000, v{53+2*jd}")
        A(f"v_pk_fma_f32 {vr(cc,2)}, {vr(cc,2)}, {vr(t+4,2)}, {vr(t,2)}")
        A(f"v_pk_fma_f32 {vr(cc+2,2)}, {vr(cc+2,2)}, {vr(t+6,2)}, {vr(t+2,2)}")
        o = 104 + (jd // 2) * 4 + (jd % 2) * 2
        A(f"v_cvt_pk_bf16_f32 v{o}, v{cc}, v{cc+1}")
        A(f"v_cvt_pk_bf16_f32 v{o+1}, v{cc+2}, v{cc+3}")
    A(f"""
    v_and_b32 v1, 15, v{vL}
    s_lshl_b32 s44, s58, 4
    v_add_u32 v1, s44, v1
    v_mul_u32_u24 v1, 1152, v1
    v_bfe_u32 v12, v{vL}, 4, 1
    v_lshlrev_b32 v12, 5, v12
    v_add_u32 v1, v1, v12
    v_lshrrev_b32 v12, 5, v{vL}
    v_lshlrev_b32 v12, 4, v12
    v_add_u32 v1, v1, v12
    s_mul_i32 s44, s35, 192
    v_add_u32 v1, s44, v1
    """)
    for p in range(3):
        o = 104 + p*4
        A(f"v_permlane16_swap_b32 v{o}, v{o+2}")
        A(f"v_permlane16_swap_b32 v{o+1}, v{o+3}")
    A("s_nop 0")
    for p in range(3):
        A(f"buffer_store_dwordx4 {vr(104+p*4,4)}, v1, s[20:23], 0 offen offset:{p*64}{' sc1' if OUTSC1 else ''}")

def gen_fused(name, stamps=False):
    A = Asm(); Fo = F(A, stamps)
    A(f"""
    s_cmp_ge_u32 s2, 256
    s_cbranch_scc1 {name}_end
    s_load_dwordx2 s[76:77], s[0:1], 0
    s_load_dwordx2 s[88:89], s[0:1], 48
    s_load_dwordx2 s[78:79], s[0:1], 64
    s_load_dwordx4 s[80:83], s[0:1], 72
    s_load_dwordx4 s[84:87], s[0:1], 96
    s_load_dwordx2 s[32:33], s[0:1], 112
    s_and_b32 s44, s2, 7
    s_lshr_b32 s45, s2, 3
    s_and_b32 s34, s44, 1
    s_lshl_b32 s34, s34, 3
    s_and_b32 s46, s45, 7
    s_add_u32 s34, s34, s46
    s_lshr_b32 s35, s44, 1
    s_lshl_b32 s35, s35, 2
    s_lshr_b32 s46, s45, 3
    s_add_u32 s35, s35, s46
    v_lshrrev_b32 v1, 6, v0
    v_and_b32 v15, 63, v0
    s_nop 0
    v_readfirstlane_b32 s36, v1
    """)
    if stamps:
        A("s_waitcnt lgkmcnt(0)")
        srd_off(A, 96, 32, 33, WS_STAMP + 0x100000, 0x40000)
        A("s_lshl_b32 s44, s2, 2\ns_add_u32 s44, s44, s36\ns_lshl_b32 s44, s44, 7\nv_mov_b32 v255, s44")
        Fo.rt(0); Fo.stamp()
    cv = Conv1(A, name + "_cv", CONV_LK, CONV_LK + 41216, FROM_XN, remap=True)
    subP = name + "_subP"; subC = name + "_subC"; subF = name + "_subF"
    def call(target):
        ref = A.newlabel(name + "_pc")
        A("s_getpc_b64 s[28:29]")
        A.label(ref)
        A(f"s_add_u32 s28, s28, {target}-{ref}\ns_addc_u32 s29, s29, 0\ns_swappc_b64 s[30:31], s[28:29]")
    def prefetch(chs):
        A(f"s_mov_b32 s73, {chs}"); call(subP)
    def compute(second, wait_n, f1, f2, finish=True):
        for reg, f in ((61, f1), (62, f2)):
            if f: A(f); A(f"s_mov_b32 s{reg}, s44")
            else: A(f"s_mov_b32 s{reg}, -1")
        A(f"s_mov_b32 s60, {1 if second else 0}")
        A(f"s_waitcnt vmcnt({wait_n})")
        call(subC)
        if finish: call(subF)
    A("s_lshl_b32 s70, s2, 1\ns_add_u32 s71, s70, 1\ns_mov_b32 s72, s2")
    Fo.conv_prefetch_ops = lambda: cv.prefetch_ops("s70")
    Fo.conv_A = lambda: compute(False, 0, None, None)
    Fo.sig_z2n = lambda: signal(A, name, [flag_off(0, "s35", "s34"), "s_lshr_b32 s45, s2, 4\ns_and_b32 s46, s2, 15\n" + flag_off(1, "s45", "s46")], sync=False)
    Fo.g2_early = lambda: gen_g2f(Fo, name + "_g2", part="early")
    gen_g1n(name + "_g1", Fo)
    gen_g2f(Fo, name + "_g2", post_loop=lambda: prefetch("s71"), part="late")
    Fo.stamp()
    compute(True, 9, flag_off(2, "s34", "s35"), None)
    Fo.conv_fin = lambda: None
    sigS = lambda: signal(A, name, ["s_mul_i32 s45, s72, 1366\ns_lshr_b32 s45, s45, 16\ns_mul_i32 s46, s45, 48\ns_sub_u32 s46, s72, s46\n" + flag_off(3, "s45", "s46")])
    Fo.stamp()
    xtra = A.newlabel(name + "_x"); fin = A.newlabel(name + "_fin")
    A(f"s_lshr_b32 s44, s2, 3\ns_cmp_ge_u32 s44, 24\ns_cbranch_scc1 {xtra}")
    Fo.pre_g3 = sigS
    gen_g3f(Fo, name + "_g3")
    A(f"s_branch {fin}")
    A.label(xtra)
    sigS()
    A(f"s_sub_u32 s44, s2, 192\ns_cmp_ge_u32 s44, 32\ns_cbranch_scc1 {fin}")
    A("s_add_u32 s72, s2, 64\ns_lshl_b32 s70, s72, 1\ns_add_u32 s71, s70, 1")
    prefetch("s70"); compute(False, 0, None, None)
    A("s_barrier")
    prefetch("s71"); compute(True, 0, None, None)
    sigS()
    A.label(fin)
    if stamps:
        A("s_waitcnt vmcnt(0)")
        Fo.n = 28; Fo.stamp(); Fo.rt(1)
    A.label(f"{name}_end")
    A("s_endpgm")
    A.label(subP)
    cv.prefetch("s73")
    A("s_setpc_b64 s[30:31]")
    A.label(subC)
    def midsig():
        lab = A.newlabel(name + "_ms")
        A(f"s_cmp_eq_u32 s36, 0\ns_cbranch_scc0 {lab}")
        srd_off(A, 24, 32, 33, WS_FLAG, FLAG_BYTES)
        A("v_mov_b32 v251, 1\ns_mov_b64 exec, 1")
        for reg in (61, 62):
            sk = A.newlabel(name + "_mk")
            A(f"s_cmp_eq_u32 s{reg}, -1\ns_cbranch_scc1 {sk}\nv_mov_b32 v250, s{reg}\nbuffer_store_dword v251, v250, s[24:27], 0 offen sc1")
            A.label(sk)
        A("s_mov_b64 exec, -1")
        A.label(lab)
    def split():
        A("s_setpc_b64 s[30:31]")
        A.label(subF)
    cv.compute(False, "s72", None, mid_hook=midsig, dyn=True, split=split, saA=252)
    A("s_setpc_b64 s[30:31]")
    return A.text(), kernel_desc(name, 256, 256), 163840
```

```python
from asmlib import *
from g1 import VM, f2u, GC0, GC1, gelu_ops
EXP = set()
def gen_g1n(name, F):
    stamps = False
    vm = VM()
    if F is None:
        A = Asm(); ST = Stamper(A, 1, stamps); stamp = ST.stamp
    else:
        A = F.A; stamp = F.stamp
    SC = ' sc1' if F else ''
    R = 5; SLOT = 20480; WSCR = 102400
    NST = 18
    PR = 0; QA = [144, 180]
    ACCA = 128; ACCB = 16
    vQd = [2, 3, 4, 5, 6]; vE0 = 7; vO0 = 8; vE = 9; vO = 10; vL = 15; vP0 = 11; vP1 = 12
    vC0 = 200; vC1 = 202; vOne = 204; T6 = [206, 208, 210, 212, 214, 216]
    S1 = 218; S2 = 226
    W = 88
    if F is None:
        A(f"""
        s_cmp_ge_u32 s2, 256
        s_cbranch_scc1 {name}_end
        s_load_dwordx2 s[28:29], s[0:1], 64
        s_load_dwordx2 s[54:55], s[0:1], 72
        s_load_dwordx2 s[32:33], s[0:1], 112
        """)
        ST.start()
        A(f"""
        s_and_b32 s44, s2, 7
        s_lshr_b32 s45, s2, 3
        s_and_b32 s34, s44, 1
        s_lshl_b32 s34, s34, 3
        s_and_b32 s46, s45, 7
        s_add_u32 s34, s34, s46
        s_lshr_b32 s35, s44, 1
        s_lshl_b32 s35, s35, 2
        s_lshr_b32 s46, s45, 3
        s_add_u32 s35, s35, s46
        v_lshrrev_b32 v1, 6, v0
        v_and_b32 v{vL}, 63, v0
        s_nop 0
        v_readfirstlane_b32 s36, v1
        """)

    for j in range(5):
        d = vQd[j]
        A(f"""
        s_lshl_b32 s44, s36, 6
        s_add_u32 s44, s44, {256*j}
        v_add_u32 v16, s44, v{vL}
        v_mul_u32_u24 v17, 1821, v16
        v_lshrrev_b32 v17, 16, v17
        v_mul_u32_u24 v18, 36, v17
        v_sub_u32 v18, v16, v18
        v_lshrrev_b32 v19, 1, v18
        v_bfe_u32 v20, v17, 3, 1
        v_xor_b32 v19, v19, v20
        v_cmp_le_u32 vcc, 9, v19
        s_nop 1
        v_cndmask_b32 v20, 0, 1, vcc
        v_mul_u32_u24 v21, 9, v20
        v_sub_u32 v19, v19, v21
        v_lshlrev_b32 v20, 5, v20
        v_add_u32 v17, v17, v20
        v_mul_u32_u24 v17, 9216, v17
        v_lshlrev_b32 v19, 5, v19
        v_and_b32 v18, 1, v18
        v_lshlrev_b32 v18, 4, v18
        v_add3_u32 v{d}, v17, v19, v18
        """)
        if j == 4:
            A(f"v_mov_b32 v17, 0x80000000\nv_cmp_gt_u32 vcc, 1152, v16\ns_nop 1\nv_cndmask_b32 v{d}, v17, v{d}, vcc")
    A(f"""
    v_lshrrev_b32 v16, 4, v{vL}
    v_bfe_u32 v17, v{vL}, 2, 2
    v_lshlrev_b32 v18, 3, v16
    v_add_u32 v18, v18, v17
    v_mul_u32_u24 v18, 576, v18
    v_and_b32 v19, 3, v{vL}
    v_lshlrev_b32 v19, 3, v19
    v_add_u32 v18, v18, v19
    v_and_b32 v16, 1, v16
    v_lshlrev_b32 v16, 5, v16
    v_add_u32 v{vE0}, v18, v16
    v_sub_u32 v{vO0}, v18, v16
    v_lshlrev_b32 v1, 4, v{vL}
    s_lshl_b32 s44, s34, 3
    s_lshl_b32 s45, s36, 1
    s_add_u32 s44, s44, s45
    s_mul_i32 s44, s44, 18432
    v_add_u32 v{vP0}, s44, v1
    v_add_u32 v{vP1}, 18432, v{vP0}
    s_waitcnt lgkmcnt(0)
    """)
    if F: F.ptrs_g1()
    srd(A, 4, 28, 29, 576 * 9216)
    srd_off(A, 8, 32, 33, WS_XN, 128 * 18 * 1024)
    A("s_lshl_b32 s44, s34, 4\ns_add_u32 s44, s44, s35\ns_mul_i32 s44, s44, 36864")
    A(f"s_add_u32 s44, s44, {WS_Z1}")
    srd_off(A, 12, 32, 33, "s44", 36864)
    srd_off(A, 16, 32, 33, WS_Z2N, 16 * 589824)
    srd_off(A, 20, 32, 33, WS_STAT, 16 * 16 * 2048)
    A("s_mul_i32 s38, s35, 288\ns_add_u32 s37, s38, 4608")
    A("s_lshl_b32 s39, s36, 10")
    for i in range(5): A(f"s_mov_b32 s{64+i}, {4096*i}")
    def G(st):
        ops = []
        slot = st % R
        base = "s37" if st < 9 else "s38"
        koff = (st % 9) * 64 * 9216
        for j in range(5):
            pre = f"s_add_u32 s40, {base}, {koff}\n"
            pre += f"s_add_u32 m0, s39, {slot*SLOT + j*4096}\ns_nop 0\n"
            ops.append((pre + f"buffer_load_dwordx4 v{vQd[j]}, s[4:7], s40 offen lds", f"G{st}"))
        return ops
    def Pl(ks):
        return [(f"buffer_load_dwordx4 {ar(PR+(ks*2+i)*4,4)}, v{[vP0,vP1][i]}, s[8:11], s{64+ks//4} offen offset:{(ks%4)*1024}{' sc1' if (F is not None and getattr(F, 'single', False)) else ''}", f"P{ks}") for i in range(2)]
    def issue(op):
        if 'novm' in EXP and op[1][0] in 'GP' and op[1] not in ('G0','P0','P1'): return
        A(op[0]); vm.issue(op[1])
    srd_off(A, 56, 54, 55, 0, 2048 * 4096)
    srd_off(A, 60, 32, 33, WS_WSP, 2048 * 4096)
    vW = 13; vWs = 14; vWr = 253
    A(f"""
    s_lshr_b32 s44, s2, 1
    s_lshl_b32 s45, s44, 4
    v_lshrrev_b32 v16, 2, v{vL}
    v_add_u32 v16, s45, v16
    v_lshlrev_b32 v16, 12, v16
    v_and_b32 v17, 3, v{vL}
    v_lshlrev_b32 v17, 4, v17
    v_add_u32 v{vW}, v16, v17
    s_and_b32 s45, s2, 1
    s_lshl_b32 s45, s45, 2
    s_add_u32 s45, s45, s36
    s_lshl_b32 s46, s45, 9
    v_add_u32 v{vW}, s46, v{vW}
    s_lshl_b32 s44, s44, 16
    s_lshl_b32 s45, s45, 13
    s_add_u32 s41, s44, s45
    s_add_u32 s42, s41, 4096
    v_lshlrev_b32 v{vWs}, 4, v{vL}
    s_lshl_b32 s43, s36, 13
    s_add_u32 s43, s43, {WSCR}
    v_and_b32 v16, 15, v{vL}
    v_lshlrev_b32 v16, 2, v16
    v_lshrrev_b32 v17, 4, v{vL}
    v_add_u32 v16, v16, v17
    v_lshlrev_b32 v16, 4, v16
    v_add_u32 v{vWr}, s43, v16
    """)
    WR = 216
    wl = [(f"s_mov_b32 s40, {j*64}\ns_add_u32 m0, s43, {j*1024}\ns_nop 0\nbuffer_load_dwordx4 v{vW}, s[56:59], s40 offen lds", "WL") for j in range(8)]
    wrd = [f"ds_read_b128 {ar(WR+4*j,4)}, v{vWr} offset:{j*1024}" for j in range(8)]
    wsx = [(f"buffer_store_dwordx4 {ar(WR+4*j,4)}, v{vWs}, s[60:63], {'s41' if j < 4 else 's42'} offen offset:{(j%4)*1024}{SC}", "WS") for j in range(8)]
    for op in G(0): issue(op)
    for ks in (0, 1):
        for op in Pl(ks): issue(op)
    A("s_barrier")
    for st in (1, 2):
        for op in G(st): issue(op)
        for ks in (2*st, 2*st+1):
            for op in Pl(ks): issue(op)
    A(f"v_mov_b32 v{vC0}, {hex(f2u(GC0))}\nv_mov_b32 v{vC0+1}, {hex(f2u(GC0))}\nv_mov_b32 v{vC1}, {hex(f2u(GC1))}\nv_mov_b32 v{vC1+1}, {hex(f2u(GC1))}")
    A(f"v_mov_b32 v{vOne}, 1.0\nv_mov_b32 v{vOne+1}, 1.0")
    A(f"v_mov_b32 v{vE}, v{vE0}\nv_mov_b32 v{vO}, v{vO0}")
    A(f"s_waitcnt vmcnt({vm.wait(['G0','P0','P1'])})")
    A("s_barrier")
    stamp()
    def qreads(buf, ksl):
        out = []
        for jn in range(9):
            X = ksl * 9 + jn
            b = vE if X % 2 == 0 else vO
            for hf in range(2):
                out.append(f"ds_read_b64_tr_b16 {ar(QA[buf]+jn*4+hf*2,2)}, v{b} offset:{X*32 + hf*2304}")
        return out
    def mfmas(buf, ksg, phaseB):
        out = []
        for jn in range(9):
            for i in range(2):
                q = ar(QA[buf]+jn*4, 4); p = ar(PR+(ksg*2+i)*4, 4)
                c = vr((ACCB if phaseB else ACCA)+(i*9+jn)*4, 4)
                src = "0" if ksg == 0 else c
                if not phaseB: out.append(f"v_mfma_f32_16x16x32_bf16 {c}, {p}, {q}, {src}")
                else: out.append(f"v_mfma_f32_16x16x32_bf16 {c}, {q}, {p}, {src}")
        return out
    for x in qreads(0, 0): A(x)
    pairsA = [ACCA + (i*9+jn)*4 + 2*h for i in range(2) for jn in range(9) for h in range(2)]
    eq = [f"v_mov_b32 v{S1+r}, 0" for r in range(16)]
    for g in range(0, 36, 6):
        grp = pairsA[g:g+6]
        eq += gelu_ops(grp, T6, vC0, vC1, vOne)
        for c in grp:
            idx = (c - ACCA) // 4; i = idx // 9; h = ((c - ACCA) % 4) // 2
            s1 = S1 + i*4 + 2*h; s2 = S2 + i*4 + 2*h
            eq.append(f"v_pk_add_f32 {vr(s1,2)}, {vr(s1,2)}, {vr(c,2)}")
            eq.append(f"v_pk_fma_f32 {vr(s2,2)}, {vr(c,2)}, {vr(c,2)}, {vr(s2,2)}")
    for n in (8, 4, 2, 1):
        for r in range(16):
            eq.append(f"v_add_f32_dpp v{S1+r}, v{S1+r}, v{S1+r} row_ror:{n} row_mask:0xf bank_mask:0xf")
    for i in range(2):
        for r in range(4):
            eq.append(f"v_mov_b32 v{W+i*8+2*r}, v{S1+i*4+r}")
            eq.append(f"v_max_f32 v{W+i*8+2*r+1}, 0, v{S2+i*4+r}")
    pend = []
    for st in range(3, NST):
        e = (0, 0) if st < R else (st - R + 1, 1)
        e = max(e, (st - 3, 0))
        for op in G(st): pend.append((e, op))
        if st < 9:
            for ks in (2*st, 2*st+1):
                for op in Pl(ks): pend.append((e, op))
    def publish():
        A(f"""
        s_lshl_b32 s44, s34, 4
        s_add_u32 s44, s44, s35
        s_lshl_b32 s44, s44, 11
        s_lshl_b32 s45, s36, 9
        s_lshr_b32 s44, s44, 1
        s_lshr_b32 s45, s45, 1
        s_add_u32 s44, s44, s45
        v_lshrrev_b32 v1, 4, v{vL}
        v_lshlrev_b32 v1, 5, v1
        v_and_b32 v{T6[0]}, 15, v{vL}
        """)
        A(f"v_cmp_eq_u32 vcc, 0, v{T6[0]}\ns_and_saveexec_b64 s[52:53], vcc")
        for i in range(2):
            for hh in range(2):
                A(f"buffer_store_dwordx4 {vr(W+i*8+hh*4,4)}, v1, s[20:23], s44 offen offset:{i*128+hh*16} sc1"); vm.issue("ST")
        A("s_mov_b64 exec, s[52:53]")
    def blkN():
        A(f"""
        v_and_b32 v1, 31, v{vL}
        v_lshlrev_b32 v1, 3, v1
        v_lshrrev_b32 v13, 5, v{vL}
        v_lshlrev_b32 v13, 13, v13
        v_add_u32 v1, v1, v13
        s_lshl_b32 s44, s34, 14
        s_lshl_b32 s45, s36, 8
        s_add_u32 s44, s44, s45
        """)
        poll = A.newlabel(name + "_poll")
        W2 = 234
        A.label(poll)
        for j in range(8):
            A(f"s_add_u32 s45, s44, {j*1024}")
            A(f"buffer_load_dwordx2 {vr(W2+2*j,2)}, v1, s[20:23], s45 offen sc1")
        A("s_waitcnt vmcnt(0)")
        A(f"v_or_b32 v13, v{W2+1}, v{W2+3}")
        for j in range(2, 8): A(f"v_or_b32 v13, v13, v{W2+2*j+1}")
        A("v_cmp_gt_i32 s[52:53], 0, v13")
        A(f"s_cmp_eq_u64 s[52:53], 0\ns_cbranch_scc1 {poll}_ok\ns_sleep 4\ns_branch {poll}")
        A.label(poll + "_ok")
        stamp()
        Wm = W2
        for j in range(1, 8): A(f"v_pk_add_f32 {vr(Wm,2)}, {vr(Wm,2)}, {vr(Wm+2*j,2)}")
        A(f"v_mov_b32 v{Wm+2}, v{Wm}\nv_mov_b32 v{Wm+3}, v{Wm+1}\ns_nop 1")
        A(f"v_permlane32_swap_b32 v{Wm+2}, v{Wm}\nv_permlane32_swap_b32 v{Wm+3}, v{Wm+1}")
        A(f"v_pk_add_f32 {vr(Wm,2)}, {vr(Wm,2)}, {vr(Wm+2,2)}")
        A(f"v_mul_f32 v{Wm}, {hex(f2u(1.0/2304))}, v{Wm}")
        A(f"v_mul_f32 v{Wm+1}, {hex(f2u(1.0/2304))}, v{Wm+1}")
        A(f"v_fma_f32 v{Wm+1}, -v{Wm}, v{Wm}, v{Wm+1}")
        A(f"v_max_f32 v{Wm+1}, 0, v{Wm+1}")
        from l0 import bf16_round
        bf16_round(A, Wm+1)
        A(f"v_add_f32 v{Wm+1}, 0x3727c5ac, v{Wm+1}")
        bf16_round(A, Wm+1)
        A(f"v_sqrt_f32 v{Wm+1}, v{Wm+1}\ns_nop 0")
        bf16_round(A, Wm+1)
        A(f"v_rcp_f32 v{Wm+1}, v{Wm+1}")
        bf16_round(A, Wm)
        A(f"v_mul_f32 v{Wm}, v{Wm}, v{Wm+1}")
        LB = 163840 - 1024
        A(f"""
        v_and_b32 v1, 31, v{vL}
        v_lshlrev_b32 v1, 3, v1
        s_lshl_b32 s45, s36, 8
        s_add_u32 s45, s45, {LB}
        v_add_u32 v1, s45, v1
        ds_write_b64 v1, {vr(Wm,2)}
        v_lshrrev_b32 v13, 4, v{vL}
        v_lshlrev_b32 v13, 5, v13
        v_add_u32 v13, s45, v13
        s_waitcnt lgkmcnt(0)
        """)
        MS = 218
        for i in range(2):
            A(f"ds_read_b128 {vr(MS+i*8,4)}, v13 offset:{i*128}")
            A(f"ds_read_b128 {vr(MS+4+i*8,4)}, v13 offset:{i*128+16}")
        A(f"""
        s_mul_i32 s44, s35, 64
        s_lshl_b32 s45, s34, 2
        s_add_u32 s44, s44, s45
        s_add_u32 s44, s44, s36
        s_mul_i32 s44, s44, 9216
        v_lshrrev_b32 v1, 4, v{vL}
        v_and_b32 v13, 1, v1
        v_lshlrev_b32 v13, 1, v13
        v_lshrrev_b32 v1, 1, v1
        v_or_b32 v1, v1, v13
        v_lshlrev_b32 v1, 4, v1
        v_and_b32 v13, 15, v{vL}
        v_add_u32 v1, v1, v13
        v_lshlrev_b32 v1, 4, v1
        s_waitcnt lgkmcnt(0)
        """)
        OB = 88
        def fin(jn):
            po = OB + jn*4
            A(f"v_permlane16_swap_b32 v{po}, v{po+2}")
            A(f"v_permlane16_swap_b32 v{po+1}, v{po+3}")
            A(f"s_add_u32 s45, s44, {jn*1024}")
            A(f"buffer_store_dwordx4 {vr(po,4)}, v1, s[16:19], s45 offen sc1"); vm.issue("Z")
        for jn in range(9):
            o = OB + jn * 4
            for i in range(2):
                c = ACCA + (i*9+jn)*4
                for r in range(4):
                    m = MS+i*8+2*r
                    A(f"v_fma_f32 v{c+r}, v{c+r}, v{m+1}, -v{m}")
                A(f"v_cvt_pk_bf16_f32 v{o+2*i}, v{c}, v{c+1}")
                A(f"v_cvt_pk_bf16_f32 v{o+2*i+1}, v{c+2}, v{c+3}")
            if jn > 0: fin(jn - 1)
        A("s_nop 1")
        fin(8)
    ws_q = list(wsx); wl_q = list(wl)
    for st in range(NST):
        phaseB = st >= 9
        if st == 9:
            stamp()
            A(f"s_waitcnt vmcnt({min(63, vm.wait('WL'))}) lgkmcnt(0)")
            for x in wrd: A(x)
            A("s_waitcnt lgkmcnt(0)\ns_barrier")
            pfo = F.conv_prefetch_ops()
            for k, o in enumerate(eq):
                A(o)
                if k % 16 == 2 and pfo: A(pfo.pop(0))
                if k % 16 == 10 and ws_q: issue(ws_q.pop(0))
            assert not pfo
            assert not ws_q
            publish()
            stamp()
            F.conv_A()
            srd(A, 4, 78, 79, 576 * 9216)
            srd_off(A, 16, 32, 33, WS_Z2N, 16 * 589824)
            srd_off(A, 20, 32, 33, WS_STAT, 16 * 16 * 2048)
            stamp()
            blkN()
            stamp()
        for ksl in range(2):
            ksg = (st % 9) * 2 + ksl
            buf = ksl
            first = (st == 0 and ksl == 0) or (st == 9 and ksl == 0)
            if first: A("s_waitcnt lgkmcnt(0)")
            if ksl == 0:
                rd = qreads(1, 1)
            elif st + 1 < NST:
                nslot = (st + 1) % R
                A(f"v_add_u32 v{vE}, {nslot*SLOT}, v{vE0}\nv_add_u32 v{vO}, {nslot*SLOT}, v{vO0}")
                rd = qreads(0, 0)
            else: rd = []
            nrd = len(rd)
            NV = 5 if st < 6 else 3
            gl = []
            while pend and len(gl) < NV and pend[0][0] <= (st, ksl):
                gl.append(pend.pop(0)[1])
            if 4 <= st <= 7 and wl_q: gl.append(wl_q.pop(0))
            mf = mfmas(buf, ksg, phaseB)
            gpos = [int((k + 0.5) * 18 / max(1, len(gl))) for k in range(len(gl))]
            for j in range(18):
                if j % 4 == 0 and not first:
                    need = min(j + 3, 17)
                    A(f"s_waitcnt lgkmcnt({min(15, (17 - need) + min(j, nrd))})")
                A(mf[j])
                if rd: A(rd.pop(0))
                while gl and gpos[0] <= j:
                    gpos.pop(0); issue(gl.pop(0))
            if ksl == 0 and st + 1 < NST:
                tags = [f"G{st+1}"]
                if st + 1 < 9: tags += [f"P{2*(st+1)}", f"P{2*(st+1)+1}"]
                if st == 15:
                    A("s_waitcnt vmcnt(0)\ns_barrier")
                    F.sig_z2n()
                else:
                    A(f"s_waitcnt vmcnt({min(63, vm.wait(tags))})")
                    A("s_barrier")
    assert not pend
    stamp()
    F.g2_early()
    stamp()
    A("s_nop 7")
    pairsB = [ACCB + (i*9+jn)*4 + 2*h for i in range(2) for jn in range(9) for h in range(2)]
    ZB = 88
    late = list(F.g2_late_ops)
    cnt = 0
    for g in range(0, 36, 6):
        grp = pairsB[g:g+6]
        for o in gelu_ops(grp, T6, vC0, vC1, vOne):
            A(o); cnt += 1
            if cnt % 11 == 0 and late: A(late.pop(0))
        for k, c in enumerate(grp):
            A(f"v_cvt_pk_bf16_f32 v{ZB+g+k}, v{c}, v{c+1}")
        for k in range(6): A(f"v_accvgpr_write_b32 a{128+g+k}, v{ZB+g+k}")
    for o in late: A(o)
    stamp()
```

```python
import sys
from asmlib import *
from l0 import gen_l0
from g1 import gen_g1
from g1b import gen_g1b
from g2 import gen_g2
from g3 import gen_g3
from l3 import gen_l3
from fused import gen_fused
import fused3
import fused4
from kgen import gen_kgen
from conv import gen_conv
TOUCH = False
SC1 = False
def build(path, parts, stamps=False):
    launches = ""; text = ""; descs = ""
    for p in parts:
        if p == "l0":
            body, desc, nwg = gen_l0("l0_kernel", gen_kgen, stamps); launches += f"; @launch kernel=l0_kernel grid=({nwg},1,1) block=(256,1,1) lds=36864\n"; nm = "l0_kernel"
        elif p == "g1":
            body, desc, lds = gen_g1("g1_kernel", stamps); launches += f"; @launch kernel=g1_kernel grid=(256,1,1) block=(256,1,1) lds={lds}\n"; nm = "g1_kernel"
        elif p == "g1b":
            body, desc, lds = gen_g1b("g1_kernel", stamps); launches += f"; @launch kernel=g1_kernel grid=(512,1,1) block=(256,1,1) lds={lds}\n"; nm = "g1_kernel"
        elif p == "g2":
            body, desc = gen_g2("g2_kernel", stamps); launches += f"; @launch kernel=g2_kernel grid=(256,1,1) block=(256,1,1) lds=147456\n"; nm = "g2_kernel"
        elif p == "g3":
            body, desc, lds = gen_g3("g3_kernel", stamps); launches += f"; @launch kernel=g3_kernel grid=(192,1,1) block=(256,1,1) lds={lds}\n"; nm = "g3_kernel"
        elif p == "fused":
            body, desc, lds = gen_fused("m_kernel", stamps); launches += f"; @launch kernel=m_kernel grid=(256,1,1) block=(256,1,1) lds={lds}\n"; nm = "m_kernel"
        elif p == "fused4":
            body, desc, lds = fused4.gen_fused("m_kernel", stamps); launches += f"; @launch kernel=m_kernel grid=(256,1,1) block=(256,1,1) lds={lds}\n"; nm = "m_kernel"
        elif p == "single":
            nm = "recurrent_scan__ssm_conv_s4d__mixer_gmlp__prompt_kernel"
            body, desc, lds = fused3.gen_fused(nm, stamps); launches += f"; @launch grid=(256,1,1) block=(256,1,1) lds={lds}\n"
        elif p == "l3":
            body, desc, lds, nwg = gen_l3("l3_kernel", stamps); launches += f"; @launch kernel=l3_kernel grid=({nwg},1,1) block=(256,1,1) lds={lds}\n"; nm = "l3_kernel"
        elif p == "conv":
            body, desc, lds, nwg = gen_conv("cv_kernel", 4, stamps); launches += f"; @launch kernel=cv_kernel grid=({nwg},1,1) block=(256,1,1) lds={lds}\n"; nm = "cv_kernel"
        if SC1 and p not in ('l3', 'fused', 'single', 'fused4'):
            from post import add_store_flags
            body = add_store_flags(body, 'sc1')
        text += kernel_header(nm) + body
        descs += desc
    s = HEADER + launches + '.amdgcn_target "amdgcn-amd-amdhsa--gfx950"\n.text\n' + text + '.section .rodata,"a"\n' + descs
    open(path, "w").write(s)
if __name__ == "__main__":
    args = sys.argv[1:]
    stamps = "stamps" in args
    TOUCH = "touch" in args
    SC1 = "sc1" in args
    import l0 as _l00
    _l00.NOWAIT = "nowait" in args
    _l00.NOTOUCH_SP = "notsp" in args
    args = [a for a in args if a != "notsp"]
    args = [a for a in args if a != "nowait"]
    import l0 as _l0, fused as _f
    if "fromxn" in args:
        _l0.NO_XNT = True; _f.FROM_XN = True; _f.CONV_LK = 106240; fused4.FROM_XN = True; fused4.CONV_LK = 106240
    args = [a for a in args if a != "fromxn"]
    import kgen
    kgen.UNAL = "unal" in args
    args = [a for a in args if a != "unal"]
    import g1
    g1.EXP = set(a[2:] for a in args if a.startswith("x_"))
    args = [a for a in args if not a.startswith("x_")]
    import l3
    l3.PRIO = "prio" in args
    l3.NOCONV = "noconv" in args
    parts = [a for a in args[1:] if a not in ("stamps", "touch", "sc1", "prio", "noconv")]
    build(args[0], parts, stamps)
```

```python
from asmlib import *
from g1 import f2u
from l0 import bf16_round
import math
LOG2E = math.log2(math.e)
KR_PITCH = 10752; KR1 = 5376
UNAL = False

def csq_ops(e, t):
    return [f"v_pk_mul_f32 {vr(t,2)}, {vr(e,2)}, {vr(e,2)} op_sel:[1,1] op_sel_hi:[0,1]",
            f"v_pk_fma_f32 {vr(e,2)}, {vr(e,2)}, {vr(e,2)}, {vr(t,2)} op_sel:[0,0,0] op_sel_hi:[0,1,1] neg_lo:[0,0,1]"]
def cmul_ops(x, c, g, t):
    return [f"v_pk_mul_f32 {vr(t,2)}, {vr(c,2)}, {vr(g,2)} op_sel:[1,1] op_sel_hi:[1,0]",
            f"v_pk_fma_f32 {vr(x,2)}, {vr(c,2)}, {vr(g,2)}, {vr(t,2)} op_sel:[0,0,0] op_sel_hi:[0,1,1] neg_lo:[0,0,1]"]

def gen_kgen(A, name, chs="s47", lds_base=0, after_loads=None, wait_extra=None, mid2=None, iter_hook=None, after_loop=None):
    srd(A, 4, 56, 57, 576*256); srd(A, 8, 58, 59, 576*256); srd(A, 12, 60, 61, 576*256); srd(A, 16, 62, 63, 576*256)
    srd(A, 20, 64, 65, 1152)
    PB = 16; F = 48; E = 64; C = 72; X = 80; T = 88; Bq = 96; Aq = 112
    vLo = 120; vDt = 121; vOff = 122
    CH = 13312
    LR = 8192
    A(f"s_mul_i32 s39, s38, {CH}\ns_add_u32 s39, s39, {lds_base}")
    A(f"""
    s_lshl_b32 s44, {chs}, 1
    v_mov_b32 v1, s44
    buffer_load_ushort v{vDt}, v1, s[20:23], 0 offen
    v_lshrrev_b32 v{vOff}, 4, v15
    v_lshlrev_b32 v{vOff}, 3, v{vOff}
    s_lshl_b32 s44, {chs}, 8
    s_lshl_b32 s45, s37, 7
    s_add_u32 s44, s44, s45
    v_add_u32 v{vOff}, s44, v{vOff}
    """)
    for ks in range(4):
        for a in range(4):
            A(f"buffer_load_dwordx2 {vr(PB+8*ks+2*a,2)}, v{vOff}, s[{4+4*a}:{7+4*a}], 0 offen offset:{32*ks}")
    if after_loads: after_loads()
    A(f"v_and_b32 v1, 15, v15\nv_cvt_f32_u32 v{vLo}, v1")
    for r in range(16): A(f"v_mov_b32 v{F+r}, 0")
    A(f"v_lshlrev_b32 v1, 3, v15\nv_add_u32 v1, s39, v1\nv_mov_b32 v8, 0\nv_mov_b32 v9, 0\nds_write_b64 v1, v[8:9] offset:{LR+4352}")
    A(f"s_waitcnt vmcnt({wait_extra if wait_extra is not None else 0})")
    A(f"v_lshlrev_b32 v{vDt}, 16, v{vDt}")
    A(f"v_mul_f32 v{vDt}, {hex(f2u(LOG2E))}, v{vDt}")
    A(f"v_exp_f32 v{vDt}, v{vDt}\ns_nop 0")
    bf16_round(A, vDt)
    A(f"v_add_f32 v5, v{vDt}, v{vDt}")
    A(f"v_mul_f32 v6, {hex(f2u(-LOG2E))}, v{vDt}")
    A(f"v_mul_f32 v7, {hex(f2u(1/(2*math.pi)))}, v{vDt}")
    p = PB
    A("s_mov_b32 s52, 0")
    kloop = A.newlabel(name + "_kl")
    A.label(kloop)
    if iter_hook: iter_hook()
    for c in range(4):
        for dst, a in ((X+2*c, 0), (X+2*c+1, 1), (C+2*c, 2), (C+2*c+1, 3)):
            s = p + 2*a + c//2
            if c % 2 == 0: A(f"v_lshlrev_b32 v{dst}, 16, v{s}")
            else: A(f"v_and_b32 v{dst}, 0xffff0000, v{s}")
    def each(fmt):
        for c in range(4): A(fmt(c))
    each(lambda c: f"v_mul_f32 v{X+2*c}, {hex(f2u(LOG2E))}, v{X+2*c}")
    each(lambda c: f"v_exp_f32 v{X+2*c}, v{X+2*c}")
    each(lambda c: f"v_mul_f32 v{X+2*c+1}, v{X+2*c+1}, v7")
    each(lambda c: f"v_cvt_pk_bf16_f32 v{X+2*c}, v{X+2*c}, v{X+2*c}")
    each(lambda c: f"v_and_b32 v{X+2*c}, 0xffff0000, v{X+2*c}")
    each(lambda c: f"v_mul_f32 v{C+2*c}, v{C+2*c}, v5")
    each(lambda c: f"v_mul_f32 v{C+2*c+1}, v{C+2*c+1}, v5")
    each(lambda c: f"v_mul_f32 v{X+2*c}, v{X+2*c}, v6")
    each(lambda c: f"v_mul_f32 v{X+2*c}, v{X+2*c}, v{vLo}")
    each(lambda c: f"v_mul_f32 v{X+2*c+1}, v{X+2*c+1}, v{vLo}")
    each(lambda c: f"v_exp_f32 v{X+2*c}, v{X+2*c}")
    each(lambda c: f"v_fract_f32 v{X+2*c+1}, v{X+2*c+1}")
    each(lambda c: f"v_cos_f32 v{E+2*c}, v{X+2*c+1}")
    each(lambda c: f"v_sin_f32 v{E+2*c+1}, v{X+2*c+1}")
    each(lambda c: f"v_mul_f32 v{E+2*c}, v{E+2*c}, v{X+2*c}")
    each(lambda c: f"v_mul_f32 v{E+2*c+1}, v{E+2*c+1}, v{X+2*c}")
    def emit2(opsl):
        for k in range(2):
            for c in range(4): A(opsl[c][k])
    def square_all(): emit2([csq_ops(E+2*c, T+2*c) for c in range(4)])
    for i in range(4):
        each(lambda c: f"v_cvt_pk_bf16_f32 v{Bq+4*i+c}, v{E+2*c}, -v{E+2*c+1}")
        square_all()
    for i in range(4):
        if i == 3:
            for c in range(4):
                A(f"v_mov_b32_dpp v{X+2*c}, v{E+2*c} row_newbcast:1 row_mask:0xf bank_mask:0xf")
                A(f"v_mov_b32_dpp v{X+2*c+1}, v{E+2*c+1} row_newbcast:1 row_mask:0xf bank_mask:0xf")
            emit2([cmul_ops(C+2*c, C+2*c, X+2*c, T+2*c) for c in range(4)])
        emit2([cmul_ops(X+2*c, C+2*c, E+2*c, T+2*c) for c in range(4)])
        aq = Aq + 4*(i % 2)
        each(lambda c: f"v_cvt_pk_bf16_f32 v{aq+c}, v{X+2*c}, v{X+2*c+1}")
        if i < 3: square_all()
        else: A("s_nop 1")
        A(f"v_mfma_f32_16x16x32_bf16 {vr(F+4*i,4)}, {vr(aq,4)}, {vr(Bq+4*i,4)}, {vr(F+4*i,4)}")

    for r in range(24): A(f"v_mov_b32 v{PB+r}, v{PB+8+r}")
    A(f"s_add_u32 s52, s52, 1\ns_cmp_lt_u32 s52, 4\ns_cbranch_scc1 {kloop}")
    if after_loop: after_loop()
    A("s_nop 7")
    A(f"v_lshlrev_b32 v1, 4, v15\ns_lshl_b32 s44, s37, 12\ns_add_u32 s44, s44, s39\nv_add_u32 v8, s44, v1")
    for i in range(4): A(f"ds_write_b128 v8, {vr(F+4*i,4)} offset:{i*1024}")
    A("s_waitcnt lgkmcnt(0)\ns_barrier")
    A(f"s_xor_b32 s44, s37, 1\ns_lshl_b32 s44, s44, 12\ns_add_u32 s44, s44, s39\nv_add_u32 v8, s44, v1")
    for i in range(4): A(f"ds_read_b128 {vr(96+4*i,4)}, v8 offset:{i*1024}")
    A(f"""
    v_lshrrev_b32 v1, 4, v15
    v_lshlrev_b32 v1, 6, v1
    v_and_b32 v8, 15, v15
    v_add_u32 v1, v1, v8
    s_waitcnt lgkmcnt(0)
    """)
    for i in range(8): A(f"v_pk_add_f32 {vr(F+2*i,2)}, {vr(F+2*i,2)}, {vr(96+2*i,2)}")
    for r in range(16): A(f"v_cvt_pk_bf16_f32 v{F+r}, v{F+r}, v{F+r}")
    done = A.newlabel(name + "_kd")
    lab1 = A.newlabel(name + "_ks")
    A(f"s_cmp_eq_u32 s37, 1\ns_cbranch_scc1 {lab1}")
    def seg(i):
        h = 1 << i
        A(f"v_lshlrev_b32 v8, {i+1}, v1")
        A(f"v_sub_u32 v8, {LR + (128+2048)*2}, v8")
        A("v_add_u32 v8, s39, v8")
        for r in range(4):
            dq = (16*r + (16 if i == 3 else 0)) << (i+1)
            A(f"v_subrev_u32 v9, {dq + h}, v8")
            if i == 0: rowmask = 0xffffffffffffffff
            elif i == 3 and r == 3: rowmask = 0xffffffffffff0000
            else: rowmask = 0xffffffff00000000
            for o in range(-(h//2), h//2 + 1):
                m = rowmask
                if i > 0 and abs(o) == h//2: m &= 0x5555555555555555
                if i > 0 and 4*o > h:
                    if i < 3 and r == 0: m &= ~(1 << 32)
                    if i == 3 and r == 3: m &= ~(1 << 16)
                A(f"s_mov_b32 exec_lo, {hex(m & 0xffffffff)}\ns_mov_b32 exec_hi, {hex(m >> 32)}")
                A(f"ds_write_b16 v9, v{F+4*i+r} offset:{h + 2*o}")
            A("s_mov_b64 exec, -1")
    seg(3); seg(0)
    A(f"s_branch {done}")
    A.label(lab1)
    seg(2); seg(1)
    A.label(done)
    A("s_waitcnt lgkmcnt(0)\ns_barrier")
    srd_off(A, 24, 32, 33, WS_K, 576 * KR_PITCH)
    if mid2: mid2()
    A(f"""
    v_lshlrev_b32 v1, 4, v15
    s_lshl_b32 s44, s37, 11
    v_add_u32 v1, s44, v1
    v_add_u32 v2, s39, v1
    s_mul_i32 s45, {chs}, {KR_PITCH}
    """)
    def rb(b, off):
        A(f"ds_read_b128 {vr(b,4)}, v2 offset:{LR + 256 + off}")
        A(f"ds_read_b32 v{b+4}, v2 offset:{LR + 256 + off + 16}")
    def st(b, off):
        A(f"s_add_u32 s46, s45, {off}")
        A(f"buffer_store_dwordx4 {vr(b,4)}, v1, s[24:27], s46 offen")
        if not UNAL:
            for k in range(4): A(f"v_alignbit_b32 v{b+6+k}, v{b+k+1}, v{b+k}, 16")
            A(f"s_add_u32 s46, s46, {KR1}")
            A(f"buffer_store_dwordx4 {vr(b+6,4)}, v1, s[24:27], s46 offen")
    rb(16, 0); rb(28, 1024)
    A("s_waitcnt lgkmcnt(0)")
    st(16, 0); st(28, 1024)
    lab = A.newlabel(name + "_k5")
    A(f"s_cmp_eq_u32 s37, 0\ns_cbranch_scc0 {lab}")
    A("s_mov_b32 exec_lo, 0x1ffff\ns_mov_b32 exec_hi, 0")
    rb(40, 4096)
    A("s_waitcnt lgkmcnt(0)")
    st(40, 4096)
    A("s_mov_b64 exec, -1")
    A.label(lab)

def gen_kgen4(A, name, chs="s47", lds_base=0, after_loads=None, wait_extra=None, mid2=None, iter_hook=None, after_loop=None):
    srd(A, 4, 56, 57, 576*256); srd(A, 8, 58, 59, 576*256); srd(A, 12, 60, 61, 576*256); srd(A, 16, 62, 63, 576*256)
    srd(A, 20, 64, 65, 1152)
    PB = 16; F = 48; E = 64; C = 72; X = 80; T = 88; Bq = 96; Aq = 112
    vLo = 120; vDt = 121; vOff = 122
    LR = 16384
    A(f"s_mov_b32 s39, {lds_base}")
    A(f"""
    s_lshl_b32 s44, {chs}, 1
    v_mov_b32 v1, s44
    buffer_load_ushort v{vDt}, v1, s[20:23], 0 offen
    v_lshrrev_b32 v{vOff}, 4, v15
    v_lshlrev_b32 v{vOff}, 3, v{vOff}
    s_lshl_b32 s44, {chs}, 8
    s_lshl_b32 s45, s36, 6
    s_add_u32 s44, s44, s45
    v_add_u32 v{vOff}, s44, v{vOff}
    """)
    for ks in range(2):
        for a in range(4):
            A(f"buffer_load_dwordx2 {vr(PB+8*ks+2*a,2)}, v{vOff}, s[{4+4*a}:{7+4*a}], 0 offen offset:{32*ks}")
    if after_loads: after_loads()
    A(f"v_and_b32 v1, 15, v15\nv_cvt_f32_u32 v{vLo}, v1")
    for r in range(16): A(f"v_mov_b32 v{F+r}, 0")
    A(f"v_lshlrev_b32 v1, 3, v15\nv_add_u32 v1, s39, v1\nv_mov_b32 v8, 0\nv_mov_b32 v9, 0\nds_write_b64 v1, v[8:9] offset:{LR+4352}")
    A(f"s_waitcnt vmcnt({wait_extra if wait_extra is not None else 0})")
    A(f"v_lshlrev_b32 v{vDt}, 16, v{vDt}")
    A(f"v_mul_f32 v{vDt}, {hex(f2u(LOG2E))}, v{vDt}")
    A(f"v_exp_f32 v{vDt}, v{vDt}\ns_nop 0")
    bf16_round(A, vDt)
    A(f"v_add_f32 v5, v{vDt}, v{vDt}")
    A(f"v_mul_f32 v6, {hex(f2u(-LOG2E))}, v{vDt}")
    A(f"v_mul_f32 v7, {hex(f2u(1/(2*math.pi)))}, v{vDt}")
    p = PB
    A("s_mov_b32 s52, 0")
    kloop = A.newlabel(name + "_kl")
    A.label(kloop)
    if iter_hook: iter_hook()
    for c in range(4):
        for dst, a in ((X+2*c, 0), (X+2*c+1, 1), (C+2*c, 2), (C+2*c+1, 3)):
            s = p + 2*a + c//2
            if c % 2 == 0: A(f"v_lshlrev_b32 v{dst}, 16, v{s}")
            else: A(f"v_and_b32 v{dst}, 0xffff0000, v{s}")
    def each(fmt):
        for c in range(4): A(fmt(c))
    each(lambda c: f"v_mul_f32 v{X+2*c}, {hex(f2u(LOG2E))}, v{X+2*c}")
    each(lambda c: f"v_exp_f32 v{X+2*c}, v{X+2*c}")
    each(lambda c: f"v_mul_f32 v{X+2*c+1}, v{X+2*c+1}, v7")
    each(lambda c: f"v_cvt_pk_bf16_f32 v{X+2*c}, v{X+2*c}, v{X+2*c}")
    each(lambda c: f"v_and_b32 v{X+2*c}, 0xffff0000, v{X+2*c}")
    each(lambda c: f"v_mul_f32 v{C+2*c}, v{C+2*c}, v5")
    each(lambda c: f"v_mul_f32 v{C+2*c+1}, v{C+2*c+1}, v5")
    each(lambda c: f"v_mul_f32 v{X+2*c}, v{X+2*c}, v6")
    each(lambda c: f"v_mul_f32 v{X+2*c}, v{X+2*c}, v{vLo}")
    each(lambda c: f"v_mul_f32 v{X+2*c+1}, v{X+2*c+1}, v{vLo}")
    each(lambda c: f"v_exp_f32 v{X+2*c}, v{X+2*c}")
    each(lambda c: f"v_fract_f32 v{X+2*c+1}, v{X+2*c+1}")
    each(lambda c: f"v_cos_f32 v{E+2*c}, v{X+2*c+1}")
    each(lambda c: f"v_sin_f32 v{E+2*c+1}, v{X+2*c+1}")
    each(lambda c: f"v_mul_f32 v{E+2*c}, v{E+2*c}, v{X+2*c}")
    each(lambda c: f"v_mul_f32 v{E+2*c+1}, v{E+2*c+1}, v{X+2*c}")
    def emit2(opsl):
        for k in range(2):
            for c in range(4): A(opsl[c][k])
    def square_all(): emit2([csq_ops(E+2*c, T+2*c) for c in range(4)])
    for i in range(4):
        each(lambda c: f"v_cvt_pk_bf16_f32 v{Bq+4*i+c}, v{E+2*c}, -v{E+2*c+1}")
        square_all()
    for i in range(4):
        if i == 3:
            for c in range(4):
                A(f"v_mov_b32_dpp v{X+2*c}, v{E+2*c} row_newbcast:1 row_mask:0xf bank_mask:0xf")
                A(f"v_mov_b32_dpp v{X+2*c+1}, v{E+2*c+1} row_newbcast:1 row_mask:0xf bank_mask:0xf")
            emit2([cmul_ops(C+2*c, C+2*c, X+2*c, T+2*c) for c in range(4)])
        emit2([cmul_ops(X+2*c, C+2*c, E+2*c, T+2*c) for c in range(4)])
        aq = Aq + 4*(i % 2)
        each(lambda c: f"v_cvt_pk_bf16_f32 v{aq+c}, v{X+2*c}, v{X+2*c+1}")
        if i < 3: square_all()
        else: A("s_nop 1")
        A(f"v_mfma_f32_16x16x32_bf16 {vr(F+4*i,4)}, {vr(aq,4)}, {vr(Bq+4*i,4)}, {vr(F+4*i,4)}")

    for r in range(8): A(f"v_mov_b32 v{PB+r}, v{PB+8+r}")
    A(f"s_add_u32 s52, s52, 1\ns_cmp_lt_u32 s52, 2\ns_cbranch_scc1 {kloop}")
    if after_loop: after_loop()
    A("s_nop 7")
    A(f"v_lshlrev_b32 v1, 4, v15\ns_lshl_b32 s44, s36, 12\ns_add_u32 s44, s44, s39\nv_add_u32 v8, s44, v1")
    for i in range(4): A(f"ds_write_b128 v8, {vr(F+4*i,4)} offset:{i*1024}")
    A("s_waitcnt lgkmcnt(0)\ns_barrier")
    A(f"s_lshl_b32 s44, s36, 10\ns_add_u32 s44, s44, s39\nv_add_u32 v8, s44, v1")
    for ww in range(4): A(f"ds_read_b128 {vr(96+4*ww,4)}, v8 offset:{ww*4096}")
    A(f"""
    v_lshrrev_b32 v1, 4, v15
    v_lshlrev_b32 v1, 6, v1
    v_and_b32 v8, 15, v15
    v_add_u32 v1, v1, v8
    s_waitcnt lgkmcnt(0)
    """)
    for ww in range(1, 4):
        A(f"v_pk_add_f32 v[96:97], v[96:97], {vr(96+4*ww,2)}\nv_pk_add_f32 v[98:99], v[98:99], {vr(98+4*ww,2)}")
    for i in range(4):
        for r in range(4): A(f"v_cvt_pk_bf16_f32 v{F+4*i+r}, v{96+r}, v{96+r}")
    done = A.newlabel(name + "_kd")
    labs = [A.newlabel(name + "_ks") for _ in range(4)]
    for i in range(1, 4): A(f"s_cmp_eq_u32 s36, {i}\ns_cbranch_scc1 {labs[i]}")
    def seg(i):
        h = 1 << i
        A(f"v_lshlrev_b32 v8, {i+1}, v1")
        A(f"v_sub_u32 v8, {LR + (128+2048)*2}, v8")
        A("v_add_u32 v8, s39, v8")
        for r in range(4):
            dq = (16*r + (16 if i == 3 else 0)) << (i+1)
            A(f"v_subrev_u32 v9, {dq + h}, v8")
            if i == 0: rowmask = 0xffffffffffffffff
            elif i == 3 and r == 3: rowmask = 0xffffffffffff0000
            else: rowmask = 0xffffffff00000000
            for o in range(-(h//2), h//2 + 1):
                m = rowmask
                if i > 0 and abs(o) == h//2: m &= 0x5555555555555555
                if i > 0 and 4*o > h:
                    if i < 3 and r == 0: m &= ~(1 << 32)
                    if i == 3 and r == 3: m &= ~(1 << 16)
                A(f"s_mov_b32 exec_lo, {hex(m & 0xffffffff)}\ns_mov_b32 exec_hi, {hex(m >> 32)}")
                A(f"ds_write_b16 v9, v{F+4*i+r} offset:{h + 2*o}")
            A("s_mov_b64 exec, -1")
    for i in range(4):
        A.label(labs[i]); seg(i)
        if i < 3: A(f"s_branch {done}")
    A.label(done)
    A("s_waitcnt lgkmcnt(0)\ns_barrier")
    srd_off(A, 24, 32, 33, WS_K, 576 * KR_PITCH)
    if mid2: mid2()
    A(f"""
    v_lshlrev_b32 v1, 4, v15
    s_lshl_b32 s44, s36, 10
    v_add_u32 v1, s44, v1
    v_add_u32 v2, s39, v1
    s_mul_i32 s45, {chs}, {KR_PITCH}
    """)
    def rb(b, off):
        A(f"ds_read_b128 {vr(b,4)}, v2 offset:{LR + 256 + off}")
        A(f"ds_read_b32 v{b+4}, v2 offset:{LR + 256 + off + 16}")
    def st(b, off):
        A(f"s_add_u32 s46, s45, {off}")
        A(f"buffer_store_dwordx4 {vr(b,4)}, v1, s[24:27], s46 offen")
        if not UNAL:
            for k in range(4): A(f"v_alignbit_b32 v{b+6+k}, v{b+k+1}, v{b+k}, 16")
            A(f"s_add_u32 s46, s46, {KR1}")
            A(f"buffer_store_dwordx4 {vr(b+6,4)}, v1, s[24:27], s46 offen")
    rb(16, 0)
    A("s_waitcnt lgkmcnt(0)")
    st(16, 0)
    lab = A.newlabel(name + "_k5")
    A(f"s_cmp_eq_u32 s36, 0\ns_cbranch_scc0 {lab}")
    A("s_mov_b32 exec_lo, 0x1ffff\ns_mov_b32 exec_hi, 0")
    rb(40, 4096)
    A("s_waitcnt lgkmcnt(0)")
    st(40, 4096)
    A("s_mov_b64 exec, -1")
    A.label(lab)
```

```python
from asmlib import *

def bf16_round(A, v, tmp=None):
    A(f"v_cvt_pk_bf16_f32 v{v}, v{v}, v{v}")
    A(f"v_and_b32 v{v}, 0xffff0000, v{v}")

def dpp_sum16(A, v):
    for n in (8, 4, 2, 1):
        A("s_nop 1")
        A(f"v_add_f32_dpp v{v}, v{v}, v{v} row_ror:{n} row_mask:0xf bank_mask:0xf")

NO_XNT = False
NOWAIT = False
NOTOUCH_SP = False
NOTOUCH = False
K4 = False
def gen_ln(A, name, stamp=lambda: None):
    PITCH = 1168
    stamp()
    srd(A, 4, 28, 29, 2048 * 1152)
    srd_off(A, 8, 32, 33, WS_XN, 128 * 18 * 1024)
    srd_off(A, 12, 32, 33, WS_XNT, 576 * 4096)
    A(f"""
    s_lshl_b32 s44, s66, 4
    s_lshl_b32 s45, s36, 2
    s_add_u32 s44, s44, s45
    v_lshrrev_b32 v1, 4, v15
    v_add_u32 v2, s44, v1
    v_mul_u32_u24 v2, 1152, v2
    v_and_b32 v3, 15, v15
    v_lshlrev_b32 v4, 4, v3
    v_add_u32 v2, v2, v4
    """)
    for j in range(4):
        A(f"buffer_load_dwordx4 {vr(16+4*j,4)}, v2, s[4:7], 0 offen offset:{j*256}")
    A("s_mov_b32 s50, 0x00ff00ff\ns_mov_b32 s51, 0x00ff00ff")
    A("v_mov_b32 v32, 0\nv_mov_b32 v33, 0\nv_mov_b32 v34, 0\nv_mov_b32 v35, 0")
    A("s_mov_b64 exec, s[50:51]")
    A(f"buffer_load_dwordx4 v[32:35], v2, s[4:7], 0 offen offset:1024")
    A("s_mov_b64 exec, -1")
    A(f"""
    v_add_u32 v5, s45, v1
    v_mul_u32_u24 v5, {PITCH}, v5
    v_add_u32 v5, v5, v4
    s_waitcnt vmcnt(0)
    """)
    stamp()
    for q in range(20):
        A(f"v_lshlrev_b32 v{40+2*q}, 16, v{16+q}")
        A(f"v_and_b32 v{41+2*q}, 0xffff0000, v{16+q}")
    A("v_add_f32 v6, v40, v41")
    for q in range(2, 40): A(f"v_add_f32 v6, v6, v{40+q}")
    dpp_sum16(A, 6)
    A("v_mul_f32 v6, 0x3ae38e39, v6")
    A("v_mov_b32 v7, 0")
    for q in range(32):
        A(f"v_sub_f32 v8, v{40+q}, v6")
        A(f"v_fmac_f32 v7, v8, v8")
    A("s_mov_b64 exec, s[50:51]")
    for q in range(32, 40):
        A(f"v_sub_f32 v8, v{40+q}, v6")
        A(f"v_fmac_f32 v7, v8, v8")
    A("s_mov_b64 exec, -1")
    dpp_sum16(A, 7)
    A("v_mul_f32 v7, 0x3ae38e39, v7")
    bf16_round(A, 7)
    A("v_add_f32 v7, 0x3727c5ac, v7")
    bf16_round(A, 7)
    A("v_sqrt_f32 v7, v7")
    A("s_nop 0")
    bf16_round(A, 7)
    A("v_rcp_f32 v7, v7")
    bf16_round(A, 6)
    for q in range(20):
        a, b = 40+2*q, 41+2*q
        A(f"v_sub_f32 v{a}, v{a}, v6")
        A(f"v_sub_f32 v{b}, v{b}, v6")
        A(f"v_cvt_pk_bf16_f32 v8, v{a}, v{b}")
        A(f"v_lshlrev_b32 v{a}, 16, v8")
        A(f"v_and_b32 v{b}, 0xffff0000, v8")
        A(f"v_mul_f32 v{a}, v{a}, v7")
        A(f"v_mul_f32 v{b}, v{b}, v7")
        A(f"v_cvt_pk_bf16_f32 v{16+q}, v{a}, v{b}")
    for j in range(4):
        A(f"ds_write_b128 v5, {vr(16+4*j,4)} offset:{j*256}")
    A("s_mov_b64 exec, s[50:51]")
    A(f"ds_write_b128 v5, v[32:35] offset:1024")
    A("s_mov_b64 exec, -1")
    A("s_waitcnt lgkmcnt(0)\ns_barrier")
    stamp()
    A(f"""
    v_and_b32 v1, 15, v15
    v_mul_u32_u24 v1, {PITCH}, v1
    v_lshrrev_b32 v2, 4, v15
    v_lshlrev_b32 v2, 4, v2
    v_add_u32 v1, v1, v2
    s_lshl_b32 s45, s36, 6
    v_add_u32 v1, s45, v1
    v_lshlrev_b32 v3, 4, v15              ; lane*16
    s_mul_i32 s44, s66, 18
    s_add_u32 s44, s44, s36
    s_lshl_b32 s44, s44, 10               ; (stile*18 + w)*1024
    """)
    for j in range(4):
        A(f"ds_read_b128 {vr(16+4*j,4)}, v1 offset:{j*256}")
    lab = A.newlabel(name + "_ln")
    A(f"s_cmp_lt_u32 s36, 2\ns_cbranch_scc0 {lab}")
    A(f"ds_read_b128 v[32:35], v1 offset:1024")
    A("s_waitcnt lgkmcnt(0)")
    A("s_add_u32 s45, s44, 16384")
    A(f"buffer_store_dwordx4 v[32:35], v3, s[8:11], s45 offen")
    A.label(lab)
    A("s_waitcnt lgkmcnt(0)")
    for j in range(4):
        A(f"s_add_u32 s45, s44, {j*4096}")
        A(f"buffer_store_dwordx4 {vr(16+4*j,4)}, v3, s[8:11], s45 offen")
    if not NO_XNT:
        A(f"""
        v_lshrrev_b32 v1, 2, v15              ; 4g + r = (l>>2) (since g=l>>4, r=(l>>2)&3)
        v_mul_u32_u24 v1, {PITCH}, v1
        v_and_b32 v2, 3, v15
        v_lshlrev_b32 v2, 3, v2
        v_add_u32 v1, v1, v2
        s_mul_i32 s45, s36, 288
        v_add_u32 v1, s45, v1                 ; + w*9*32 bytes
        v_and_b32 v2, 15, v15
        v_lshlrev_b32 v2, 12, v2              ; channel*4096
        v_lshrrev_b32 v3, 4, v15
        v_lshlrev_b32 v3, 3, v3               ; g*8
        v_add_u32 v2, v2, v3
        s_lshl_b32 s44, s66, 5                 ; t0*2
        s_mul_i32 s45, s36, {9*16*4096}
        s_add_u32 s44, s44, s45
        """)
        for j in range(9):
            A(f"ds_read_b64_tr_b16 {vr(40+2*j,2)}, v1 offset:{j*32}")
        A("s_waitcnt lgkmcnt(0)")
        for j in range(9):
            A(f"s_add_u32 s45, s44, {j*16*4096}")
            A(f"buffer_store_dwordx2 {vr(40+2*j,2)}, v2, s[12:15], s45 offen")

    srd_off(A, 16, 32, 33, WS_STAT, 16 * 16 * 1024)
    lab = A.newlabel(name + "_rs")
    A(f"s_cmp_eq_u32 s36, 0\ns_cbranch_scc0 {lab}")
    A(f"""
    v_lshrrev_b32 v1, 2, v15
    v_lshlrev_b32 v1, 10, v1
    v_and_b32 v2, 3, v15
    v_lshlrev_b32 v2, 5, v2
    v_add_u32 v1, v1, v2
    s_lshr_b32 s44, s66, 3
    s_lshl_b32 s44, s44, 14
    s_and_b32 s45, s66, 7
    s_lshl_b32 s45, s45, 7
    s_add_u32 s44, s44, s45
    v_mov_b32 v16, -1
    v_mov_b32 v17, -1
    v_mov_b32 v18, -1
    v_mov_b32 v19, -1
    buffer_store_dwordx4 v[16:19], v1, s[16:19], s44 offen
    buffer_store_dwordx4 v[16:19], v1, s[16:19], s44 offen offset:16
    """)
    A.label(lab)
    srd_off(A, 16, 32, 33, WS_FLAG, 4 * 16 * 64 * 128)
    lab2 = A.newlabel(name + "_fz")
    A(f"s_cmp_eq_u32 s36, 1\ns_cbranch_scc0 {lab2}")
    A("s_lshl_b32 s44, s66, 12\nv_lshlrev_b32 v1, 7, v15\nv_mov_b32 v16, 0\ns_mov_b32 exec_hi, 0")
    A("buffer_store_dword v16, v1, s[16:19], s44 offen")
    A("s_mov_b64 exec, -1")
    A.label(lab2)

def gen_wsp(A, name):
    srd(A, 4, 30, 31, 2048 * 4096)
    srd_off(A, 8, 32, 33, WS_WSP, 2048 * 4096)
    A(f"""
    v_lshrrev_b32 v1, 2, v15
    s_lshr_b32 s48, s47, 1
    s_lshl_b32 s44, s48, 4
    v_add_u32 v1, s44, v1
    v_lshlrev_b32 v1, 12, v1
    v_and_b32 v2, 3, v15
    v_lshlrev_b32 v2, 4, v2
    v_add_u32 v1, v1, v2
    s_and_b32 s49, s47, 1
    s_lshl_b32 s49, s49, 2
    s_add_u32 s49, s49, s36
    s_lshl_b32 s45, s49, 9
    s_lshl_b32 s46, s36, 13
    """)
    for j in range(8):
        A(f"s_add_u32 s50, s45, {j*64}\ns_add_u32 m0, s46, {j*1024}\ns_nop 0\nbuffer_load_dwordx4 v1, s[4:7], s50 offen lds")
    A(f"""
    v_and_b32 v2, 15, v15
    v_lshlrev_b32 v2, 2, v2
    v_lshrrev_b32 v3, 4, v15
    v_add_u32 v2, v2, v3
    v_lshlrev_b32 v2, 4, v2
    v_add_u32 v2, s46, v2
    v_lshlrev_b32 v3, 4, v15
    s_lshl_b32 s44, s48, 16
    s_lshl_b32 s45, s49, 13
    s_add_u32 s44, s44, s45
    s_add_u32 s45, s44, 4096
    s_waitcnt vmcnt(0)
    """)
    for j in range(8):
        A(f"ds_read_b128 {vr(16+4*j,4)}, v2 offset:{j*1024}")
    for j in range(8):
        A(f"s_waitcnt lgkmcnt({7-j})")
        A(f"buffer_store_dwordx4 {vr(16+4*j,4)}, v3, s[8:11], {'s44' if j < 4 else 's45'} offen offset:{(j%4)*1024}")

def gen_wtile(A, name, which):
    pitch = 9216 if which == 'in' else 1152
    srd(A, 4, 30, 31, 576 * 9216 if which == 'in' else 2304 * 1152)
    srd_off(A, 8, 32, 33, WS_WIT if which == 'in' else WS_WOT, 576 * 9216 if which == 'in' else 2304 * 1152)
    if which == 'in':
        A(f"s_lshr_b32 s48, s47, 3\ns_and_b32 s49, s47, 7\ns_mul_i32 s44, s48, {32*pitch}\ns_mul_i32 s45, s49, 1152\ns_add_u32 s44, s44, s45")
    else:
        A(f"s_mov_b32 s48, s47\ns_mul_i32 s44, s48, {32*pitch}")
    A(f"s_mul_i32 s45, s36, {8*pitch}\ns_add_u32 s44, s44, s45\ns_mul_i32 s46, s36, 9216")
    for j in range(9):
        A(f"""
        v_add_u32 v1, {64*j}, v15
        v_mul_u32_u24 v2, 911, v1
        v_lshrrev_b32 v2, 16, v2
        v_mul_u32_u24 v3, 72, v2
        v_sub_u32 v3, v1, v3
        v_mul_u32_u24 v2, {pitch}, v2
        v_lshl_add_u32 v{16+j}, v3, 4, v2
        """)
    for j in range(9):
        A(f"s_add_u32 m0, s46, {j*1024}\ns_nop 0\nbuffer_load_dwordx4 v{16+j}, s[4:7], s44 offen lds")
    def lane_addr(natural):
        if natural:
            A("v_lshrrev_b32 v1, 4, v15\nv_lshlrev_b32 v1, 3, v1\nv_bfe_u32 v2, v15, 2, 2\nv_add_u32 v1, v1, v2")
        else:
            A("v_lshrrev_b32 v1, 2, v15")
        A(f"""
        v_mul_u32_u24 v1, 1152, v1
        v_and_b32 v2, 3, v15
        v_lshlrev_b32 v2, 3, v2
        v_add_u32 v1, v1, v2
        s_mul_i32 s45, s36, 288
        v_add_u32 v1, s45, v1
        """)
    def reads(hfo):
        for j in range(9):
            for hf in range(2):
                A(f"ds_read_b64_tr_b16 {vr(32+4*j+2*hf,2)}, v1 offset:{j*32 + hf*hfo}")
    A("v_lshlrev_b32 v3, 4, v15\ns_waitcnt vmcnt(0)\ns_barrier")
    if which == 'in':
        lane_addr(True); reads(4*1152)
    else:
        nat = A.newlabel(name + "_nat"); dn = A.newlabel(name + "_nd")
        A(f"s_mul_i32 s50, s48, 57\ns_lshr_b32 s50, s50, 9\ns_mul_i32 s50, s50, 9\ns_sub_u32 s50, s48, s50\ns_cmp_eq_u32 s50, 4\ns_cbranch_scc1 {nat}")
        lane_addr(False); reads(16*1152)
        A(f"s_branch {dn}")
        A.label(nat)
        lane_addr(True); reads(4*1152)
        A.label(dn)
    if which == 'in':
        A("s_lshl_b32 s44, s49, 2\ns_add_u32 s44, s44, s36\ns_mul_i32 s44, s44, 18\ns_add_u32 s44, s44, s48\ns_mul_i32 s44, s44, 9216")
    A("s_waitcnt lgkmcnt(0)")
    for j in range(9):
        if which == 'in':
            A(f"s_add_u32 s45, s44, {j*1024}")
        else:
            A(f"s_mul_i32 s45, s36, 9\ns_add_u32 s45, s45, {j}\ns_mul_i32 s50, s45, 43\ns_lshr_b32 s50, s50, 8\ns_mul_i32 s51, s50, 6\ns_sub_u32 s45, s45, s51")
            A("s_mul_i32 s50, s50, 72\ns_add_u32 s50, s50, s48\ns_mul_i32 s50, s50, 6\ns_add_u32 s45, s45, s50\ns_lshl_b32 s45, s45, 10")
        A(f"buffer_store_dwordx4 {vr(32+4*j,4)}, v3, s[8:11], s45 offen")

def gen_l0(name, kgen=None, stamps=False):
    A = Asm()
    def mk():
        st = Stamper(A, 0, stamps); st.n = 1; return st
    KN = 576 if K4 else 288
    B1 = 128 + KN; B2 = B1 + 72; B3 = B2 + 64
    nwg = B2 if NOTOUCH else B3 + (0 if NOTOUCH_SP else 128)
    A(f"""
    s_cmp_ge_u32 s2, {nwg}
    s_cbranch_scc1 {name}_end
    s_load_dwordx4 s[28:31], s[0:1], 0
    s_load_dwordx8 s[56:63], s[0:1], 8
    s_load_dwordx2 s[64:65], s[0:1], 40
    s_load_dwordx4 s[88:91], s[0:1], 64
    s_load_dwordx2 s[92:93], s[0:1], 88
    s_load_dwordx2 s[32:33], s[0:1], 112
    """)
    if stamps: A("s_memrealtime s[96:97]\ns_memtime s[70:71]")
    A(f"""
    v_lshrrev_b32 v1, 6, v0
    v_and_b32 v15, 63, v0
    s_nop 0
    v_readfirstlane_b32 s36, v1
    s_waitcnt lgkmcnt(0)
    s_cmp_ge_u32 s2, 128
    s_cbranch_scc1 {name}_r1
    """)
    A("s_and_b32 s44, s2, 7\ns_lshl_b32 s44, s44, 4\ns_lshr_b32 s45, s2, 3\ns_add_u32 s66, s44, s45")
    st = mk()
    gen_ln(A, name, st.stamp)
    st.stamp()
    st.finish(vbase=100)
    A("s_endpgm")
    A.label(f"{name}_r1")
    A(f"s_cmp_ge_u32 s2, {B1}\ns_cbranch_scc1 {name}_r2")
    if K4:
        import kgen as _kg
        A("s_sub_u32 s47, s2, 128")
        _kg.gen_kgen4(A, name)
    else:
        A("s_sub_u32 s47, s2, 128\ns_lshl_b32 s47, s47, 1\ns_lshr_b32 s38, s36, 1\ns_and_b32 s37, s36, 1\ns_add_u32 s47, s47, s38")
        kgen(A, name)
    mk().finish(vbase=100)
    A("s_endpgm")
    A.label(f"{name}_r2")
    A(f"s_cmp_ge_u32 s2, {B2}\ns_cbranch_scc1 {name}_r3")
    A(f"s_sub_u32 s47, s2, {B1}\ns_mov_b32 s30, s92\ns_mov_b32 s31, s93")
    gen_wtile(A, name, 'out')
    mk().finish(vbase=100)
    A("s_endpgm")
    A.label(f"{name}_r3")
    A(f"s_cmp_ge_u32 s2, {B3}\ns_cbranch_scc0 {name}_r3b")
    srd(A, 4, 90, 91, 2048*4096)
    A(f"s_sub_u32 s44, s2, {B3}\ns_lshl_b32 s44, s44, 2\ns_add_u32 s44, s44, s36\ns_lshl_b32 s44, s44, 14\nv_lshlrev_b32 v1, 4, v15")
    for j in range(16):
        A(f"s_add_u32 s46, s44, {j*1024}\nbuffer_load_dwordx4 v[16:19], v1, s[4:7], s46 offen")
    A("s_endpgm" if NOWAIT else "s_waitcnt vmcnt(0)\ns_endpgm")
    A.label(f"{name}_r3b")
    srd(A, 4, 88, 89, 576*9216)
    A(f"s_sub_u32 s44, s2, {B2}\ns_lshl_b32 s44, s44, 2\ns_add_u32 s44, s44, s36\ns_mul_i32 s44, s44, 20736\nv_lshlrev_b32 v1, 4, v15")
    for j in range(21):
        A(f"s_add_u32 s46, s44, {j*1024}\nbuffer_load_dwordx4 v[16:19], v1, s[4:7], s46 offen")
    if not NOWAIT:
        A("s_waitcnt vmcnt(0)")
        mk().finish(vbase=100)
    A.label(f"{name}_end")
    A("s_endpgm")
    return A.text(), kernel_desc(name, 124, 0), nwg
```

```python
import sys
from asmlib import *
from l0 import gen_l0
from g1 import gen_g1
from g1b import gen_g1b
from g2 import gen_g2
from g3 import gen_g3
from l3 import gen_l3
from fused import gen_fused
import fused3
import fused4
from kgen import gen_kgen
from conv import gen_conv
TOUCH = False
SC1 = False
def build(path, parts, stamps=False):
    launches = ""; text = ""; descs = ""
    for p in parts:
        if p == "l0":
            body, desc, nwg = gen_l0("l0_kernel", gen_kgen, stamps); launches += f"; @launch kernel=l0_kernel grid=({nwg},1,1) block=(256,1,1) lds=36864\n"; nm = "l0_kernel"
        elif p == "g1":
            body, desc, lds = gen_g1("g1_kernel", stamps); launches += f"; @launch kernel=g1_kernel grid=(256,1,1) block=(256,1,1) lds={lds}\n"; nm = "g1_kernel"
        elif p == "g1b":
            body, desc, lds = gen_g1b("g1_kernel", stamps); launches += f"; @launch kernel=g1_kernel grid=(512,1,1) block=(256,1,1) lds={lds}\n"; nm = "g1_kernel"
        elif p == "g2":
            body, desc = gen_g2("g2_kernel", stamps); launches += f"; @launch kernel=g2_kernel grid=(256,1,1) block=(256,1,1) lds=147456\n"; nm = "g2_kernel"
        elif p == "g3":
            body, desc, lds = gen_g3("g3_kernel", stamps); launches += f"; @launch kernel=g3_kernel grid=(192,1,1) block=(256,1,1) lds={lds}\n"; nm = "g3_kernel"
        elif p == "fused":
            body, desc, lds = gen_fused("m_kernel", stamps); launches += f"; @launch kernel=m_kernel grid=(256,1,1) block=(256,1,1) lds={lds}\n"; nm = "m_kernel"
        elif p == "fused4":
            body, desc, lds = fused4.gen_fused("m_kernel", stamps); launches += f"; @launch kernel=m_kernel grid=(256,1,1) block=(256,1,1) lds={lds}\n"; nm = "m_kernel"
        elif p == "single":
            nm = "recurrent_scan__ssm_conv_s4d__mixer_gmlp__prompt_kernel"
            body, desc, lds = fused3.gen_fused(nm, stamps); launches += f"; @launch grid=(256,1,1) block=(256,1,1) lds={lds}\n"
        elif p == "l3":
            body, desc, lds, nwg = gen_l3("l3_kernel", stamps); launches += f"; @launch kernel=l3_kernel grid=({nwg},1,1) block=(256,1,1) lds={lds}\n"; nm = "l3_kernel"
        elif p == "conv":
            body, desc, lds, nwg = gen_conv("cv_kernel", 4, stamps); launches += f"; @launch kernel=cv_kernel grid=({nwg},1,1) block=(256,1,1) lds={lds}\n"; nm = "cv_kernel"
        if SC1 and p not in ('l3', 'fused', 'single', 'fused4'):
            from post import add_store_flags
            body = add_store_flags(body, 'sc1')
        text += kernel_header(nm) + body
        descs += desc
    s = HEADER + launches + '.amdgcn_target "amdgcn-amd-amdhsa--gfx950"\n.text\n' + text + '.section .rodata,"a"\n' + descs
    open(path, "w").write(s)
if __name__ == "__main__":
    args = sys.argv[1:]
    stamps = "stamps" in args
    TOUCH = "touch" in args
    SC1 = "sc1" in args
    import l0 as _l00
    _l00.NOWAIT = "nowait" in args
    _l00.NOTOUCH_SP = "notsp" in args
    _l00.NOTOUCH = "notouch" in args
    _l00.K4 = "k4" in args
    args = [a for a in args if a != "k4"]
    fused4.OUTSC1 = "outsc1" in args
    args = [a for a in args if a not in ("notouch", "outsc1")]
    args = [a for a in args if a != "notsp"]
    args = [a for a in args if a != "nowait"]
    import l0 as _l0, fused as _f
    if "fromxn" in args:
        _l0.NO_XNT = True; _f.FROM_XN = True; _f.CONV_LK = 106240; fused4.FROM_XN = True; fused4.CONV_LK = 106240
    args = [a for a in args if a != "fromxn"]
    import kgen
    kgen.UNAL = "unal" in args
    args = [a for a in args if a != "unal"]
    import g1
    g1.EXP = set(a[2:] for a in args if a.startswith("x_"))
    args = [a for a in args if not a.startswith("x_")]
    import l3
    l3.PRIO = "prio" in args
    l3.NOCONV = "noconv" in args
    parts = [a for a in args[1:] if a not in ("stamps", "touch", "sc1", "prio", "noconv")]
    build(args[0], parts, stamps)
```

```python
from asmlib import *
from kgen import KR_PITCH, KR1
import kgen
KBUF = 41216; UBUF = 8192

import re
class RemapAsm:
    MAP = {1: 244, 5: 234, 6: 235, 7: 236, 8: 237, 9: 238, 10: 239, 11: 240, 12: 241, 13: 242, 14: 243}
    def __init__(self, A): self.A = A
    def __call__(self, s):
        s = s.replace("buffer_load_ushort a168", "buffer_load_ushort v248").replace("v_accvgpr_read_b32 v14, a168", "v_mov_b32 v14, v248")
        s = re.sub(r"\bv(\d+)\b", lambda m: f"v{self.MAP.get(int(m.group(1)), int(m.group(1)))}", s)
        self.A(s)
    def label(self, n): self.A.label(n)
    def newlabel(self, p="L"): return self.A.newlabel(p)

class Conv1:
    def __init__(self, A, name, LK, LU, from_xn=False, remap=False, dyn=False):
        self.dyn = dyn
        if dyn: LK = 0; LU = 41216
        if remap: A = RemapAsm(A)
        self.A = A; self.name = name; self.LK = LK; self.LU = LU; self.from_xn = from_xn; self.LR = LU + UBUF
    def prefetch(self, chs):
        A = self.A; LK = self.LK; LU = self.LU
        srd_off(A, 4, 32, 33, WS_K, 576 * KR_PITCH)
        srd_off(A, 8, 32, 33, WS_XNT, 576 * 4096)
        vKd = 252
        A(f"v_lshlrev_b32 v{vKd}, 4, v15")
        A(f"s_mul_i32 s44, {chs}, {KR_PITCH}")
        A("s_lshl_b32 s45, s36, 2\ns_add_u32 s44, s44, s45")
        for cc in range(2):
            A(f"s_lshl_b32 s45, s36, 1\ns_add_u32 s45, s45, {cc}")
            A("s_mul_i32 s46, s45, 320")
            A(f"s_lshl_b32 s48, s36, 2\ns_add_u32 s48, s48, {cc}\ns_cmp_ge_u32 s45, 5\ns_subb_u32 s48, s48, 0")
            A(f"s_add_u32 s46, s46, s48\ns_lshl_b32 s46, s46, 4")
            if self.dyn: A("s_add_u32 s46, s46, s68")
            A(f"s_add_u32 s48, s44, {cc*(2 if kgen.UNAL else KR1)}")
            for it in range(5):
                A(f"s_add_u32 m0, s46, {LK + it*1024}\ns_add_u32 s49, s48, {it*1024}")
                A(f"buffer_load_dwordx4 v{vKd}, s[4:7], s49 offen{' sc1' if self.from_xn else ''} lds")
        if self.from_xn:
            srd_off(A, 8, 32, 33, WS_XN, 128 * 18 * 1024)
            A(f"""
            s_and_b32 s46, {chs}, 0xfffffffe
            s_lshr_b32 s44, s46, 5
            s_lshl_b32 s44, s44, 10
            s_bfe_u32 s45, s46, 0x20003
            s_lshl_b32 s45, s45, 8
            s_add_u32 s44, s44, s45
            s_and_b32 s45, s46, 7
            s_lshl_b32 s45, s45, 1
            s_add_u32 s44, s44, s45
            s_mul_i32 s45, s36, {8*4*18432}
            s_add_u32 s44, s44, s45
            v_lshrrev_b32 v252, 4, v15
            v_mul_u32_u24 v252, 18432, v252
            v_and_b32 v253, 15, v15
            v_lshlrev_b32 v253, 4, v253
            v_add_u32 v252, v252, v253
            s_lshl_b32 s46, s36, 11
            s_add_u32 s46, s46, {self.LR}
            """)
            for j in range(8):
                A(f"s_add_u32 s45, s44, {j*4*18432}\ns_add_u32 m0, s46, {j*256}\ns_nop 0\nbuffer_load_dword v252, s[8:11], s45 offen sc1 lds")
        else:
          A(f"s_lshl_b32 s46, {chs}, 12")
          for j in range(2):
            A(f"""
            s_lshl_b32 s44, s36, 7
            s_add_u32 s44, s44, {64*j}
            v_add_u32 v252, s44, v15
            v_mul_u32_u24 v253, 6554, v252
            v_lshrrev_b32 v253, 16, v253
            v_mul_u32_u24 v250, 10, v253
            v_sub_u32 v250, v252, v250
            v_subrev_u32 v253, 15, v253
            v_cmp_gt_u32 vcc, 32, v253
            v_cmp_gt_u32 s[52:53], 8, v250
            v_lshlrev_b32 v253, 7, v253
            v_lshl_add_u32 v253, v250, 4, v253
            s_and_b64 vcc, vcc, s[52:53]
            v_mov_b32 v250, 0x80000000
            s_nop 1
            v_cndmask_b32 v253, v250, v253, vcc
            s_lshl_b32 s45, s36, 11
            {"s_add_u32 s45, s45, s68" if self.dyn else "s_nop 0"}
            s_add_u32 m0, s45, {LU + j*1024}
            s_nop 0
            buffer_load_dwordx4 v253, s[8:11], s46 offen lds
            """)
        srd(A, 12, 88, 89, 1152)
        A(f"s_lshl_b32 s44, {chs}, 1\nv_mov_b32 v252, s44\nbuffer_load_ushort a168, v252, s[12:15], 0 offen")
    def prefetch_ops(self, chs):
        class Rec:
            def __init__(s2): s2.l = []
            def __call__(s2, t): s2.l += [x.strip() for x in t.strip("\n").split("\n") if x.strip()]
            def label(s2, n): raise Exception
            def newlabel(s2, p="L"): raise Exception
        rec = Rec(); saveA = self.A
        self.A = RemapAsm(rec) if isinstance(saveA, RemapAsm) else rec
        self.prefetch(chs)
        self.A = saveA
        ops = []; cur = []
        for l in rec.l:
            cur.append(l)
            if l.startswith("buffer_load"):
                ops.append("\n".join(cur)); cur = []
        assert not cur
        return ops
    def run(self, second, pair_s, mid_hook=None, saA=164, done_hook=None):
        A = self.A; name = self.name; LK = self.LK; LU = self.LU; LS = LK
        vA = 5; vB = 6; vA0 = 7; vB0 = 8; vBz = 9
        A(f"""
        v_and_b32 v16, 15, v15
        v_sub_u32 v17, 0, v16
        v_and_b32 v17, 7, v17
        v_mul_u32_u24 v18, 320, v17
        v_lshrrev_b32 v19, 1, v17
        v_lshlrev_b32 v19, 2, v19
        v_and_b32 v20, 1, v17
        v_add_u32 v19, v19, v20
        v_cmp_le_u32 vcc, 5, v17
        v_add_u32 v18, v18, v19
        s_nop 0
        v_cndmask_b32 v20, 0, 1, vcc
        v_sub_u32 v18, v18, v20
        v_lshrrev_b32 v19, 4, v15
        v_add_u32 v18, v18, v19
        v_add_u32 v19, 7, v16
        v_lshrrev_b32 v19, 3, v19
        v_sub_u32 v18, v18, v19
        v_lshlrev_b32 v18, 4, v18
        v_add_u32 v{vA0}, {32 + LK}, v18
        {f"v_add_u32 v{vA0}, s68, v{vA0}" if self.dyn else "s_nop 0"}
        v_mul_u32_u24 v18, 160, v16
        v_lshrrev_b32 v19, 4, v15
        v_lshlrev_b32 v19, 4, v19
        v_add_u32 v{vB0}, v18, v19
        s_cmp_eq_u32 s36, 0
        s_cselect_b32 s50, 0, 24
        s_cselect_b32 s51, 6, 2
        s_cselect_b32 s54, 0, 2
        s_cmp_ge_u32 s36, 2
        s_cselect_b32 s51, 0, s51
        s_cselect_b32 s54, 3, s54
        s_cmp_eq_u32 s36, 2
        s_cselect_b32 s50, 40, s50
        s_cmp_eq_u32 s36, 3
        s_cselect_b32 s50, 52, s50
        s_lshl_b32 s44, s50, 6
        v_add_u32 v{vA}, s44, v{vA0}
        s_lshr_b32 s44, s50, 1
        s_mul_i32 s44, s44, 160
        s_add_u32 s44, s44, {LU}
        {"s_add_u32 s44, s44, s68" if self.dyn else "s_nop 0"}
        v_add_u32 v{vB}, s44, v{vB0}
        v_subrev_u32 v{vBz}, 2560, v{vB}
        """)
        FR = [24, 32, 40, 48]; BR = [56, 64, 72, 80]; ACC = 96
        for r in range(32): A(f"v_mov_b32 v{ACC+r}, 0")
        return FR, BR, ACC, vA, vB, vBz
    def compute(self, second, pair_s, wait_n, mid_hook=None, saA=164, pre_hook=None, mid_wait=0, dyn=False, split=None):
        A = self.A; name = self.name; LK = self.LK; LU = self.LU; LS = LK
        FR, BR, ACC, vA, vB, vBz = self.run(second, pair_s)
        A(f"s_waitcnt vmcnt({wait_n})\ns_barrier" if wait_n is not None else "s_barrier")
        if pre_hook:
            pre_hook(); mid_hook = None
        if self.from_xn:
            sel = "0x07060302" if second else "0x05040100"
            selasm = f"s_mov_b32 s44, {sel}" if not dyn else "s_mov_b32 s44, 0x05040100\n            s_cmp_eq_u32 s60, 1\n            s_cselect_b32 s44, 0x07060302, s44"
            A(f"""
            v_lshlrev_b32 v1, 5, v15
            s_lshl_b32 s44, s36, 11
            s_add_u32 s44, s44, {self.LR}
            v_add_u32 v1, s44, v1
            ds_read_b128 v[24:27], v1
            ds_read_b128 v[28:31], v1 offset:16
            s_lshl_b32 s44, s36, 6
            v_add_u32 v10, s44, v15
            v_lshrrev_b32 v11, 3, v10
            v_mul_u32_u24 v11, 160, v11
            v_and_b32 v10, 7, v10
            v_lshlrev_b32 v10, 4, v10
            v_add_u32 v10, v10, v11
            v_add_u32 v10, {LU + 15*160}, v10
            v_mov_b32 v32, 0
            v_mov_b32 v33, 0
            v_mov_b32 v34, 0
            v_mov_b32 v35, 0
            v_lshlrev_b32 v11, 4, v15
            s_lshl_b32 s44, s36, 10
            s_add_u32 s44, s44, {LU}
            v_add_u32 v11, s44, v11
            v_cmp_gt_u32 vcc, {LU + 2400}, v11
            s_and_saveexec_b64 s[52:53], vcc
            ds_write_b128 v11, v[32:35]
            s_mov_b64 exec, s[52:53]
            {selasm}
            s_waitcnt lgkmcnt(0)
            v_perm_b32 v32, v25, v24, s44
            v_perm_b32 v33, v27, v26, s44
            v_perm_b32 v34, v29, v28, s44
            v_perm_b32 v35, v31, v30, s44
            ds_write_b128 v10, v[32:35]
            s_waitcnt lgkmcnt(0)
            s_barrier
            """)
        def rdA(pair, t): return [f"ds_read_b128 {vr(FR[pair],4)}, v{vA} offset:{96+64*t}", f"ds_read_b128 {vr(FR[pair]+4,4)}, v{vA} offset:{64+64*t}"]
        def rdB(slot, t, tile):
            off = (t >> 1) * 160 + 64 * (t & 1)
            return f"ds_read_b128 {vr(BR[slot] + (0 if tile == 1 else 4),4)}, v{vB if tile == 1 else vBz} offset:{off}"
        for x in rdA(3, -1): A(x)
        for t in range(2):
            for x in rdA(t, t): A(x)
            A(rdB(t, t, 1))
        l0 = A.newlabel(name + "_p0")
        A(f"s_cmp_eq_u32 s51, 0\ns_cbranch_scc0 {l0}")
        for t in range(2): A(rdB(t, t, 0))
        A.label(l0)
        A("s_waitcnt lgkmcnt(0)")
        def body(double):
            for t in range(4):
                A(f"s_waitcnt lgkmcnt({4 if double else 3})")
                cur = FR[t]; prev = FR[(t-1) % 4]
                fr = [cur, cur+4, prev, prev+4]
                rd = rdA((t+2) % 4, t+2) + [rdB((t+2) % 4, t+2, 1)] + ([rdB((t+2) % 4, t+2, 0)] if double else [])
                mf = []
                for i in ([1, 0] if double else [1]):
                    for h in range(4):
                        c = vr(ACC + (h*2+i)*4, 4)
                        mf.append(f"v_mfma_f32_16x16x32_bf16 {c}, {vr(fr[h],4)}, {vr(BR[t] + (0 if i == 1 else 4),4)}, {c}")
                for j, m in enumerate(mf):
                    A(m)
                    if j < len(rd): A(rd[j])
            A(f"v_add_u32 v{vA}, 256, v{vA}\nv_add_u32 v{vB}, 320, v{vB}\nv_add_u32 v{vBz}, 320, v{vBz}")
        l1 = A.newlabel(name + "_s"); l1e = A.newlabel(name + "_se"); l2 = A.newlabel(name + "_d"); l2e = A.newlabel(name + "_de"); l2s = A.newlabel(name + "_ds")
        A(f"s_mov_b32 s55, s51\ns_cmp_eq_u32 s55, 0\ns_cbranch_scc1 {l2s}")
        A.label(l1)
        body(False)
        A(f"s_sub_u32 s55, s55, 1\ns_cmp_lg_u32 s55, 0\ns_cbranch_scc1 {l1}")
        A(f"s_cmp_eq_u32 s54, 0\ns_cbranch_scc1 {l2e}")
        for t in range(2): A(rdB(t, t, 0))
        A("s_waitcnt lgkmcnt(0)")
        A.label(l2s)
        A("s_mov_b32 s55, s54")
        A.label(l2)
        body(True)
        A(f"s_sub_u32 s55, s55, 1\ns_cmp_lg_u32 s55, 0\ns_cbranch_scc1 {l2}")
        A.label(l2e)
        if hasattr(self, "stamp"): self.stamp()
        A(f"s_waitcnt vmcnt({mid_wait}) lgkmcnt(0)\ns_nop 7\ns_barrier")
        if mid_hook: mid_hook()
        if split: split()
        A(f"v_lshlrev_b32 v1, 4, v15\ns_lshl_b32 s44, s36, 13\ns_add_u32 s44, s44, {'s68' if self.dyn else LS}\nv_add_u32 v11, s44, v1")
        for h in range(4):
            for i in range(2):
                A(f"ds_write_b128 v11, {vr(ACC+(h*2+i)*4,4)} offset:{(h*2+i)*1024}")
        A(f"""
        v_and_b32 v12, 15, v15
        v_mul_u32_u24 v12, 160, v12
        v_lshrrev_b32 v13, 4, v15
        v_lshlrev_b32 v13, 3, v13
        v_add_u32 v12, v12, v13
        s_lshl_b32 s44, s36, 5
        s_add_u32 s44, s44, {LU}
        {"s_add_u32 s44, s44, s68" if self.dyn else "s_nop 0"}
        v_add_u32 v12, s44, v12
        """)
        for i in range(2):
            A(f"ds_read_b64 {vr(56+2*i,2)}, v12 offset:{(15+16*i)*160}")
        A("s_waitcnt lgkmcnt(0)\ns_barrier")
        A(f"s_lshl_b32 s44, s36, 11\ns_add_u32 s44, s44, {'s68' if self.dyn else LS}\nv_add_u32 v11, s44, v1")
        for ww in range(4):
            for i in range(2):
                A(f"ds_read_b128 {vr(24+(ww*2+i)*4,4)}, v11 offset:{ww*8192 + i*1024}")
        A("v_accvgpr_read_b32 v14, a168\ns_nop 0\nv_lshlrev_b32 v14, 16, v14")
        for i in range(2):
            u = 56 + 2*i; t = 64 + 4*i
            A(f"v_lshlrev_b32 v{t}, 16, v{u}\nv_and_b32 v{t+1}, 0xffff0000, v{u}\nv_lshlrev_b32 v{t+2}, 16, v{u+1}\nv_and_b32 v{t+3}, 0xffff0000, v{u+1}")
            for r in range(4): A(f"v_mul_f32 v{t+r}, v{t+r}, v14")
            A(f"v_cvt_pk_bf16_f32 v60, v{t}, v{t+1}\nv_cvt_pk_bf16_f32 v61, v{t+2}, v{t+3}")
            A(f"v_lshlrev_b32 v{t}, 16, v60\nv_and_b32 v{t+1}, 0xffff0000, v60\nv_lshlrev_b32 v{t+2}, 16, v61\nv_and_b32 v{t+3}, 0xffff0000, v61")
        A("s_waitcnt lgkmcnt(0)")
        for i in range(2):
            for ww in range(1, 4):
                A(f"v_pk_add_f32 {vr(24+i*4,2)}, {vr(24+i*4,2)}, {vr(24+(ww*2+i)*4,2)}")
                A(f"v_pk_add_f32 {vr(24+i*4+2,2)}, {vr(24+i*4+2,2)}, {vr(24+(ww*2+i)*4+2,2)}")
        for i in range(2):
            y = 24 + i*4; t = 64 + 4*i
            A(f"v_cvt_pk_bf16_f32 v60, v{y}, v{y+1}\nv_cvt_pk_bf16_f32 v61, v{y+2}, v{y+3}")
            A(f"v_lshlrev_b32 v{y}, 16, v60\nv_and_b32 v{y+1}, 0xffff0000, v60\nv_lshlrev_b32 v{y+2}, 16, v61\nv_and_b32 v{y+3}, 0xffff0000, v61")
            for r in range(4): A(f"v_add_f32 v{y+r}, v{y+r}, v{t+r}")
            A(f"v_cvt_pk_bf16_f32 v60, v{y}, v{y+1}\nv_cvt_pk_bf16_f32 v61, v{y+2}, v{y+3}")
            if dyn:
                A(f"v_mov_b32 v{80+2*i}, v60\nv_mov_b32 v{81+2*i}, v61")
            elif not second:
                A(f"v_accvgpr_write_b32 a{saA+2*i}, v60\nv_accvgpr_write_b32 a{saA+2*i+1}, v61")
            else:
                A(f"v_accvgpr_read_b32 v62, a{saA+2*i}\nv_accvgpr_read_b32 v63, a{saA+2*i+1}")
                o = 72 + 4*i
                A(f"s_mov_b32 s44, 0x05040100\ns_mov_b32 s45, 0x07060302")
                A(f"v_perm_b32 v{o}, v60, v62, s44\nv_perm_b32 v{o+1}, v60, v62, s45")
                A(f"v_perm_b32 v{o+2}, v61, v63, s44\nv_perm_b32 v{o+3}, v61, v63, s45")
        if dyn:
            l2nd = A.newlabel(name + "_2nd"); lend = A.newlabel(name + "_ce")
            A(f"s_cmp_eq_u32 s60, 1\ns_cbranch_scc1 {l2nd}")
            for r in range(4): A(f"v_accvgpr_write_b32 a{saA+r}, v{80+r}")
            A(f"s_branch {lend}")
            A.label(l2nd)
            A(f"s_mov_b32 s44, 0x05040100\ns_mov_b32 s45, 0x07060302")
            for i in range(2):
                o = 72 + 4*i
                A(f"v_accvgpr_read_b32 v62, a{saA+2*i}\nv_accvgpr_read_b32 v63, a{saA+2*i+1}\ns_nop 0")
                A(f"v_perm_b32 v{o}, v{80+2*i}, v62, s44\nv_perm_b32 v{o+1}, v{80+2*i}, v62, s45")
                A(f"v_perm_b32 v{o+2}, v{81+2*i}, v63, s44\nv_perm_b32 v{o+3}, v{81+2*i}, v63, s45")
            second = True
        if second:
            srd_off(A, 12, 32, 33, WS_S, 288 * 8192)
            A(f"""
            v_and_b32 v12, 15, v15
            v_lshlrev_b32 v12, 8, v12
            v_lshrrev_b32 v13, 4, v15
            v_lshlrev_b32 v13, 4, v13
            v_add_u32 v12, v12, v13
            s_lshl_b32 s44, {pair_s}, 13
            s_lshl_b32 s45, s36, 6
            s_add_u32 s44, s44, s45
            s_add_u32 s45, s44, 4096
            """)
            A(f"buffer_store_dwordx4 v[72:75], v12, s[12:15], s44 offen sc1")
            A(f"buffer_store_dwordx4 v[76:79], v12, s[12:15], s45 offen sc1")
            if dyn: A.label(lend)
```

```python
from asmlib import *
from core import Core
from g1 import f2u
from g1n import gen_g1n
import l3
from conv1 import Conv1
import math

OUTSC1 = False
TAILPF = False
INLINE1 = False
FROM_XN = False
CONV_LK = 110592
C2, C3, C4, C5 = 0, 16, 32, 48

class F:
    def __init__(self, A, stamps):
        self.A = A; self.stamps = stamps; self.n = 0
    def stamp(self):
        if not self.stamps: return
        A = self.A; i = self.n; self.n += 1
        assert i < 30
        A("s_memtime s[100:101]\ns_waitcnt lgkmcnt(0)\nv_mov_b32 v254, s100\ns_mov_b64 exec, 1")
        A(f"buffer_store_dword v254, v255, s[96:99], 0 offen offset:{8 + 4*i}\ns_mov_b64 exec, -1")
    def rt(self, slot):
        if not self.stamps: return
        A = self.A
        A("s_memrealtime s[100:101]\ns_waitcnt lgkmcnt(0)\nv_mov_b32 v254, s100\ns_mov_b64 exec, 1")
        A(f"buffer_store_dword v254, v255, s[96:99], 0 offen offset:{4*slot}\ns_mov_b64 exec, -1")
    def ptrs_g1(self):
        self.A("s_mov_b32 s28, s78\ns_mov_b32 s29, s79\ns_mov_b32 s54, s80\ns_mov_b32 s55, s81")

FLAG_BYTES = 4 * 16 * 64 * 128
def flag_off(kind, group_s, slot_s):
    return f"s_add_u32 s44, {group_s}, {kind*16}\ns_lshl_b32 s44, s44, 6\ns_add_u32 s44, s44, {slot_s}\ns_lshl_b32 s44, s44, 7"

def signal(A, name, idx_exprs, sync=True):
    if sync: A("s_waitcnt vmcnt(0)\ns_barrier")
    lab = A.newlabel(name + "_sg")
    A(f"s_cmp_eq_u32 s36, 0\ns_cbranch_scc0 {lab}")
    srd_off(A, 24, 32, 33, WS_FLAG, FLAG_BYTES)
    A("v_mov_b32 v251, 1\ns_mov_b64 exec, 1")
    for e in idx_exprs:
        A(e); A("v_mov_b32 v250, s44\nbuffer_store_dword v251, v250, s[24:27], 0 offen sc1")
    A("s_mov_b64 exec, -1")
    A.label(lab)

def wait_flags(A, name, kind, group_s, nslots, barrier=True, allwaves=False):
    lab = A.newlabel(name + "_wf")
    if not allwaves: A(f"s_cmp_eq_u32 s36, 0\ns_cbranch_scc0 {lab}")
    srd_off(A, 24, 32, 33, WS_FLAG, FLAG_BYTES)
    A(flag_off(kind, group_s, 0))
    A(f"v_lshlrev_b32 v250, 7, v15\nv_add_u32 v250, s44, v250")
    A(f"s_mov_b32 s46, {hex(((1 << nslots) - 1) & 0xffffffff)}\ns_mov_b32 s47, {hex(((1 << nslots) - 1) >> 32)}")
    poll = A.newlabel(name + "_pl")
    A.label(poll)
    A("buffer_load_dword v251, v250, s[24:27], 0 offen sc1\ns_waitcnt vmcnt(0)")
    A("v_cmp_eq_u32 s[48:49], 1, v251\ns_and_b64 s[48:49], s[48:49], s[46:47]")
    A(f"s_cmp_eq_u64 s[48:49], s[46:47]\ns_cbranch_scc1 {lab}\ns_sleep 2\ns_branch {poll}")
    A.label(lab)
    if barrier: A("s_barrier")

def g2_pre_p(Fo, name):
    A = Fo.A
    srd_off(A, 4, 32, 33, WS_WSP, 2048 * 4096)
    A(f"""
    s_lshl_b32 s44, s34, 7
    s_lshl_b32 s45, s36, 5
    s_add_u32 s44, s44, s45
    v_lshlrev_b32 v1, 4, v15
    s_lshl_b32 s46, s44, 12
    v_add_u32 v2, s46, v1
    v_add_u32 v3, 0x10000, v2
    """)
    for s in range(3):
        A(f"s_mov_b32 s39, {s*4096}")
        for n in range(8 if s < 2 else 4):
            ks, i = n // 2, n % 2
            A(f"buffer_load_dwordx4 {ar(s*32 + ks*8 + i*4, 4)}, v{2+i}, s[4:7], s39 offen offset:{ks*1024} sc1")

def wait_flags2(A, name, a, b):
    lab = A.newlabel(name + "_w2")
    A(f"s_cmp_eq_u32 s36, 0\ns_cbranch_scc0 {lab}")
    srd_off(A, 24, 32, 33, WS_FLAG, FLAG_BYTES)
    A(flag_off(a[0], a[1], 0)); A("s_mov_b32 s47, s44")
    A(flag_off(b[0], b[1], 0))
    A("v_mov_b32 v250, s47\nv_mov_b32 v251, s44\nv_cmp_gt_u32 vcc, 16, v15\ns_nop 1\nv_cndmask_b32 v250, v251, v250, vcc")
    A("v_and_b32 v251, 15, v15\nv_lshlrev_b32 v251, 7, v251\nv_add_u32 v250, v250, v251")
    poll = A.newlabel(name + "_p2")
    A.label(poll)
    A("buffer_load_dword v251, v250, s[24:27], 0 offen sc1\ns_waitcnt vmcnt(0)")
    A("v_cmp_eq_u32 s[48:49], 1, v251")
    A(f"s_cmp_eq_u32 s48, -1\ns_cbranch_scc1 {lab}\ns_sleep 1\ns_branch {poll}")
    A.label(lab)
    A("s_barrier")

def gen_g2f(Fo, name, post_loop=None, part="early"):
    A = Fo.A; stamp = Fo.stamp
    SLOT = 36864
    ACC = 128; PR = 0; QV = [16, 52]; Z1V = 88; Z1A = 128
    vP = [2, 3]; vQd = [4, 5, 6]; vQr = [8, 9, 10, 11]; vB = [12, 13]; vL = 15
    def dm(slot, j):
        g = j // 4
        pre = f"s_add_u32 m0, s{40+slot}, {g*4096}\ns_nop 0\n" if j % 4 == 0 else ""
        return pre + f"buffer_load_dwordx4 v{vQd[g]}, s[8:11], s38 offen offset:{(j%4)*1024} sc1 lds"
    def pl(slot, n):
        ks, i = n // 2, n % 2
        return f"buffer_load_dwordx4 {ar(PR + slot*32 + ks*8 + i*4, 4)}, v{vP[i]}, s[4:7], s39 offen offset:{ks*1024} sc1"
    def G(slot):
        ops = []
        for j in range(9):
            ops.append(dm(slot, j))
            if j < 8: ops.append(pl(slot, j))
        ops[-1] += f"\ns_add_u32 s38, s38, {SLOT}\ns_add_u32 s39, s39, 4096"
        return ops
    if part == "early":
        srd_off(A, 4, 32, 33, WS_WSP, 2048 * 4096)
        A("s_mul_i32 s44, s35, 589824")
        A(f"s_add_u32 s44, s44, {WS_Z2N}")
        srd_off(A, 8, 32, 33, "s44", 589824)
        A(f"""
        s_lshl_b32 s44, s34, 7
        s_lshl_b32 s45, s36, 5
        s_add_u32 s44, s44, s45
        v_lshlrev_b32 v1, 4, v{vL}
        s_lshl_b32 s46, s44, 12
        v_add_u32 v{vP[0]}, s46, v1
        v_add_u32 v{vP[1]}, 0x10000, v{vP[0]}
        s_mul_i32 s45, s36, 9216
        v_add_u32 v{vQd[0]}, s45, v1
        v_add_u32 v{vQd[1]}, 0x1000, v{vQd[0]}
        v_add_u32 v{vQd[2]}, 0x2000, v{vQd[0]}
        s_mov_b32 s40, s45
        s_add_u32 s41, s45, {SLOT}
        s_add_u32 s42, s45, {2*SLOT}
        s_add_u32 s43, s45, {3*SLOT}
        """)
        wait_flags2(A, name, (0, "s35"), (1, "s34"))
        A("s_mov_b32 s38, 0\ns_mov_b32 s39, 0")
        for op in G(0): A(op)
        Fo.g2_late_ops = G(1) + G(2)[0:9]
        return
    srd_off(A, 16, 32, 33, WS_H, 128 * 72 * 1024)
    srd(A, 20, 82, 83, 4096)
    A(f"""
    s_lshl_b32 s44, s34, 7
    s_lshl_b32 s45, s36, 5
    s_add_u32 s44, s44, s45
    v_and_b32 v1, 15, v{vL}
    v_add_u32 v1, s44, v1
    v_lshlrev_b32 v{vB[0]}, 1, v1
    v_add_u32 v{vB[1]}, 32, v{vB[0]}
    v_lshlrev_b32 v1, 4, v{vL}
    v_mov_b32 v{vQr[0]}, v1
    v_add_u32 v{vQr[1]}, {SLOT}, v1
    v_add_u32 v{vQr[2]}, {2*SLOT}, v1
    v_add_u32 v{vQr[3]}, {3*SLOT}, v1
    """)
    for i in range(2):
        A(f"buffer_load_ushort v{124+i}, v{vB[i]}, s[20:23], 0 offen")
    for r in range(72): A(f"v_mov_b32 v{ACC+r}, 0")
    A("s_waitcnt vmcnt(26)")
    A("s_barrier")
    def qreads(buf, slot, ks):
        return [f"ds_read_b128 {vr(QV[buf]+jn*4,4)}, v{vQr[slot]} offset:{(ks*9+jn)*1024}" for jn in range(9)]
    def mfmas(buf, slot, ks):
        out = []
        for jn in range(9):
            for i in range(2):
                c = vr(ACC + (i*9+jn)*4, 4)
                out.append(f"v_mfma_f32_16x16x32_bf16 {c}, {vr(QV[buf]+jn*4,4)}, {ar(PR+slot*32+ks*8+i*4,4)}, {c}")
        return out
    for x in qreads(0, 0, 0): A(x)
    stamp()
    A("s_mov_b32 s37, 0")
    A.label(f"{name}_loop")
    for u in range(4):
        g = G((u + 3) & 3); gprev = G((u + 2) & 3)
        for ks in range(4):
            A("s_waitcnt lgkmcnt(0)")
            rd = qreads((ks + 1) & 1, u, ks + 1) if ks < 3 else qreads(0, (u + 1) & 3, 0)
            gl = [gprev[9:13], gprev[13:17], g[0:5], g[5:9]][ks]
            mf = mfmas(ks & 1, u, ks)
            for j in range(18):
                A(mf[j])
                if j < 9: A(rd[j])
                elif (j - 9) % 2 == 0 and (j - 9) // 2 < len(gl): A(gl[(j - 9) // 2])
            if ks == 1:
                A("s_waitcnt vmcnt(17)")
                A("s_barrier")
                if u == 1:
                    skip = A.newlabel(name + "_sk")
                    A(f"s_cmp_eq_u32 s37, 3\ns_cbranch_scc0 {skip}")
                    for v in vP + vQd: A(f"v_mov_b32 v{v}, 0x80000000")
                    if TAILPF:
                        for r in range(4): A(f"s_mov_b32 s{40+r}, 147456")
                    A.label(skip)
                if u == 2 and TAILPF:
                    skip2 = A.newlabel(name + "_sk2")
                    A(f"s_cmp_eq_u32 s37, 3\ns_cbranch_scc0 {skip2}")
                    A("s_mov_b32 s68, 0")
                    post_loop()
                    A.label(skip2)
    A(f"s_add_u32 s37, s37, 1\ns_cmp_lt_u32 s37, 4\ns_cbranch_scc1 {name}_loop")
    stamp()
    A("s_waitcnt vmcnt(0)\ns_barrier")
    if post_loop and not TAILPF: post_loop()
    pfo = []
    for r in range(36): A(f"v_accvgpr_read_b32 v{Z1V+r}, a{Z1A+r}")
    A("v_lshlrev_b32 v200, 16, v124\nv_lshlrev_b32 v201, 16, v124\nv_lshlrev_b32 v202, 16, v125\nv_lshlrev_b32 v203, 16, v125")
    A(f"""
    s_lshl_b32 s66, s34, 3
    s_lshl_b32 s67, s36, 1
    s_add_u32 s66, s66, s67
    s_mul_i32 s66, s66, 72
    s_lshr_b32 s67, s35, 1
    s_mul_i32 s67, s67, 9
    s_add_u32 s66, s66, s67
    s_and_b32 s95, s35, 1
    s_mul_i32 s90, s95, 5
    s_add_u32 s90, s90, s66
    s_lshl_b32 s90, s90, 10
    s_add_u32 s91, s66, 4
    s_lshl_b32 s91, s91, 10
    s_lshl_b32 s94, s95, 3
    s_add_u32 s91, s91, s94
    s_add_u32 s92, s90, 73728
    s_add_u32 s93, s91, 73728
    v_lshlrev_b32 v1, 4, v{vL}
    """)
    T = 204
    for i in range(2):
        for jn in range(9):
            c = ACC + (i*9+jn)*4; z = Z1V + (i*9+jn)*2; t = T + ((i*9+jn) & 1) * 4
            A(f"v_lshlrev_b32 v{t}, 16, v{z}")
            A(f"v_and_b32 v{t+1}, 0xffff0000, v{z}")
            A(f"v_lshlrev_b32 v{t+2}, 16, v{z+1}")
            A(f"v_and_b32 v{t+3}, 0xffff0000, v{z+1}")
            A(f"v_pk_add_f32 {vr(c,2)}, {vr(c,2)}, {vr(200+2*i,2)}")
            A(f"v_pk_add_f32 {vr(c+2,2)}, {vr(c+2,2)}, {vr(200+2*i,2)}")
            A(f"v_pk_mul_f32 {vr(c,2)}, {vr(c,2)}, {vr(t,2)}")
            A(f"v_pk_mul_f32 {vr(c+2,2)}, {vr(c+2,2)}, {vr(t+2,2)}")
            A(f"v_cvt_pk_bf16_f32 v{z}, v{c}, v{c+1}")
            A(f"v_cvt_pk_bf16_f32 v{z+1}, v{c+2}, v{c+3}")
            if pfo: A(pfo.pop(0))
    odd = A.newlabel(name + "_odd"); done = A.newlabel(name + "_sd")
    A(f"""
    v_bfe_u32 v2, v{vL}, 4, 1
    v_mul_u32_u24 v2, 73728, v2
    v_lshrrev_b32 v3, 5, v{vL}
    v_lshlrev_b32 v3, 8, v3
    v_add_u32 v2, v2, v3
    v_and_b32 v3, 15, v{vL}
    v_lshlrev_b32 v3, 4, v3
    v_add_u32 v2, v2, v3
    s_add_u32 s91, s66, 4
    s_lshl_b32 s91, s91, 10
    s_lshl_b32 s94, s95, 9
    s_add_u32 s91, s91, s94
    """)
    def single(jn):
        a0 = Z1V + jn*2; a1 = Z1V + (9+jn)*2
        A(f"v_mov_b32 v4, v{a0}\nv_mov_b32 v5, v{a0+1}\nv_mov_b32 v6, v{a1}\nv_mov_b32 v7, v{a1+1}\ns_nop 1")
        A("v_permlane16_swap_b32 v4, v6\nv_permlane16_swap_b32 v5, v7\ns_nop 0")
        A("buffer_store_dwordx4 v[4:7], v2, s[16:19], s91 offen sc1")
    A(f"s_cmp_eq_u32 s95, 1\ns_cbranch_scc1 {odd}")
    for i in range(2):
        for p in range(4):
            A(f"buffer_store_dwordx4 {vr(Z1V+(i*9+2*p)*2,4)}, v1, s[16:19], s{90 if i==0 else 92} offen offset:{p*1024} sc1")
    single(8)
    A(f"s_branch {done}")
    A.label(odd)
    for i in range(2):
        for p in range(4):
            A(f"buffer_store_dwordx4 {vr(Z1V+(i*9+1+2*p)*2,4)}, v1, s[16:19], s{90 if i==0 else 92} offen offset:{p*1024} sc1")
    single(0)
    A.label(done)

def g3_pre_q(Fo, name):
    A = Fo.A
    A(f"""
    s_lshr_b32 s45, s2, 5
    s_min_u32 s45, s45, 5
    s_mul_i32 s44, s45, {72*6*1024}
    s_add_u32 s44, s44, {WS_WOT}
    """)
    srd_off(A, 4, 32, 33, "s44", 72*6*1024)
    A("v_lshlrev_b32 v1, 4, v15\ns_lshl_b32 s40, s36, 10\nv_add_u32 v2, s40, v1")
    for j in range(1, 6): A(f"v_add_u32 v{2+j}, {j*4096}, v2")
    for s in range(4):
        A(f"s_mov_b32 s38, {s*24*1024}")
        for j in range(6):
            A(f"s_add_u32 m0, s40, {s*24576 + j*4096}\ns_nop 0\nbuffer_load_dwordx4 v{2+j}, s[4:7], s38 offen lds")

def gen_g3f(Fo, name):
    A = Fo.A; stamp = Fo.stamp
    R = 6; S = 4
    ACC = 16; QB = [96, 120]; PR = 0
    vQd = [2, 3, 4, 5, 6, 7]; vP = [8]; vL = 15; vQr = [9, 10, 11, 12, 13, 14]
    A(f"""
    s_and_b32 s44, s2, 7
    s_lshr_b32 s45, s2, 3
    s_lshl_b32 s34, s44, 2
    s_and_b32 s46, s45, 3
    s_add_u32 s34, s34, s46
    s_lshr_b32 s35, s45, 2
    v_lshlrev_b32 v1, 4, v{vL}
    s_lshl_b32 s44, s34, 2
    s_add_u32 s58, s44, s36
    s_mul_i32 s44, s58, 73728
    v_add_u32 v{vP[0]}, s44, v1
    """)
    A(f"s_mul_i32 s44, s35, {72*6*1024}\ns_add_u32 s44, s44, {WS_WOT}")
    srd_off(A, 4, 32, 33, "s44", 72*6*1024)
    srd_off(A, 8, 32, 33, WS_H, 128 * 72 * 1024)
    c = Core(A, name + "_g", 1, 6, 72, S, R, ACC, QB, "a", PR, vP, vQd, vQr, 8, 4, "s38", "s39", "s40", "s37", 1024, orient="QP")
    c.p_flags = " sc1"
    c.setup_addr(1, "s36", 12)
    h = c.gsize // 2
    def split(slot):
        ops = c.G(slot);
        return ops
    pre_a = []; pre_b = []; post = []
    for s in range(R - 1):
        ops = c.G(s)
        ops = ops if s < R - 2 else ops[:h]
        q = [o for o in ops if " lds" in o]; p = [o for o in ops if " lds" not in o]
        strip = lambda o: o.split("\ns_add_u32 s38, s38")[0]
        (pre_a if s < 4 else pre_b).append(f"s_mov_b32 s38, {s*S*6*1024}"); (pre_a if s < 4 else pre_b).extend(strip(o) for o in q)
        post.append(f"s_mov_b32 s39, {s*S*1024}"); post += [strip(o) for o in p]
    if TAILPF: A("s_barrier")
    for o in pre_a: A(o)
    Fo.conv_fin()
    c.setup_addr(1, "s36", 12)
    A("s_barrier")
    for o in pre_b: A(o)
    srd(A, 12, 76, 77, 2048 * 1152)
    srd_off(A, 16, 32, 33, WS_S, 288 * 8192)
    srd(A, 20, 84, 85, 2048 * 1152)
    for r in range(24): A(f"v_mov_b32 v{ACC+r}, 0")
    stamp()
    A("s_lshr_b32 s59, s34, 1")
    wait_flags(A, name, 2, "s59", 16)
    stamp()
    for o in post: A(o)
    A(f"s_mov_b32 s38, {(R-2)*S*6*1024}\ns_mov_b32 s39, {(R-2)*S*1024}")
    Fo.pre_g3()
    for x in c.qreads(0, 0, 0): A(x)
    stamp()
    def tail(A):
        A(f"""
        v_and_b32 v1, 15, v{vL}
        s_lshl_b32 s44, s58, 4
        v_add_u32 v1, s44, v1
        v_mul_u32_u24 v1, 1152, v1
        v_lshrrev_b32 v40, 4, v{vL}
        v_lshlrev_b32 v40, 3, v40
        v_add_u32 v1, v1, v40
        s_mul_i32 s44, s35, 192
        v_add_u32 v1, s44, v1
        """)
        for jd in range(6):
            A(f"buffer_load_dwordx2 {vr(52+2*jd,2)}, v1, s[12:15], 0 offen offset:{jd*32}")
    def late(A):
        wait_flags(A, name, 3, "s35", 48, barrier=False, allwaves=True)
        A(f"""
        v_lshrrev_b32 v42, 4, v{vL}
        v_lshlrev_b32 v42, 14, v42
        v_and_b32 v43, 15, v{vL}
        v_lshlrev_b32 v43, 2, v43
        v_add_u32 v42, v42, v43
        s_mul_i32 s44, s35, {48*8192}
        s_lshl_b32 s45, s58, 6
        s_add_u32 s44, s44, s45
        """)
        for jd in range(6):
            for e in range(2):
                A(f"s_add_u32 s45, s44, {(8*jd + e)*8192}")
                A(f"buffer_load_dword v{64+2*jd+e}, v42, s[16:19], s45 offen sc1")
    c.loop(True, tail_hook=tail, late_hook=late)
    stamp()
    NL2E = -math.log2(math.e)
    A(f"v_mov_b32 v76, {hex(f2u(NL2E))}\nv_mov_b32 v77, {hex(f2u(NL2E))}\nv_mov_b32 v78, 1.0\nv_mov_b32 v79, 1.0")
    for jd in range(6):
        cc = ACC + jd*4; t = 80 + (jd % 2) * 4
        A(f"v_pk_mul_f32 {vr(t,2)}, {vr(cc,2)}, v[76:77]")
        A(f"v_pk_mul_f32 {vr(t+2,2)}, {vr(cc+2,2)}, v[76:77]")
        for r in range(4): A(f"v_exp_f32 v{t+r}, v{t+r}")
        A(f"v_pk_add_f32 {vr(t,2)}, {vr(t,2)}, v[78:79]")
        A(f"v_pk_add_f32 {vr(t+2,2)}, {vr(t+2,2)}, v[78:79]")
        for r in range(4): A(f"v_rcp_f32 v{t+r}, v{t+r}")
        A("s_nop 0")
        A(f"v_pk_mul_f32 {vr(cc,2)}, {vr(cc,2)}, {vr(t,2)}")
        A(f"v_pk_mul_f32 {vr(cc+2,2)}, {vr(cc+2,2)}, {vr(t+2,2)}")
    A("s_waitcnt vmcnt(0)")
    for jd in range(6):
        cc = ACC + jd*4; t = 88 + (jd % 2) * 8
        A(f"v_lshlrev_b32 v{t+4}, 16, v{64+2*jd}\nv_and_b32 v{t+5}, 0xffff0000, v{64+2*jd}")
        A(f"v_lshlrev_b32 v{t+6}, 16, v{65+2*jd}\nv_and_b32 v{t+7}, 0xffff0000, v{65+2*jd}")
        A(f"v_lshlrev_b32 v{t}, 16, v{52+2*jd}\nv_and_b32 v{t+1}, 0xffff0000, v{52+2*jd}")
        A(f"v_lshlrev_b32 v{t+2}, 16, v{53+2*jd}\nv_and_b32 v{t+3}, 0xffff0000, v{53+2*jd}")
        A(f"v_pk_fma_f32 {vr(cc,2)}, {vr(cc,2)}, {vr(t+4,2)}, {vr(t,2)}")
        A(f"v_pk_fma_f32 {vr(cc+2,2)}, {vr(cc+2,2)}, {vr(t+6,2)}, {vr(t+2,2)}")
        o = 104 + (jd // 2) * 4 + (jd % 2) * 2
        A(f"v_cvt_pk_bf16_f32 v{o}, v{cc}, v{cc+1}")
        A(f"v_cvt_pk_bf16_f32 v{o+1}, v{cc+2}, v{cc+3}")
    A(f"""
    v_and_b32 v1, 15, v{vL}
    s_lshl_b32 s44, s58, 4
    v_add_u32 v1, s44, v1
    v_mul_u32_u24 v1, 1152, v1
    v_bfe_u32 v12, v{vL}, 4, 1
    v_lshlrev_b32 v12, 5, v12
    v_add_u32 v1, v1, v12
    v_lshrrev_b32 v12, 5, v{vL}
    v_lshlrev_b32 v12, 4, v12
    v_add_u32 v1, v1, v12
    s_mul_i32 s44, s35, 192
    v_add_u32 v1, s44, v1
    """)
    for p in range(3):
        o = 104 + p*4
        A(f"v_permlane16_swap_b32 v{o}, v{o+2}")
        A(f"v_permlane16_swap_b32 v{o+1}, v{o+3}")
    A("s_nop 0")
    for p in range(3):
        A(f"buffer_store_dwordx4 {vr(104+p*4,4)}, v1, s[20:23], 0 offen offset:{p*64}{' sc1' if OUTSC1 else ''}")

def gen_fused(name, stamps=False):
    A = Asm(); Fo = F(A, stamps)
    A(f"""
    s_cmp_ge_u32 s2, 256
    s_cbranch_scc1 {name}_end
    s_load_dwordx2 s[76:77], s[0:1], 0
    s_load_dwordx2 s[88:89], s[0:1], 48
    s_load_dwordx2 s[78:79], s[0:1], 64
    s_load_dwordx4 s[80:83], s[0:1], 72
    s_load_dwordx4 s[84:87], s[0:1], 96
    s_load_dwordx2 s[32:33], s[0:1], 112
    s_and_b32 s44, s2, 7
    s_lshr_b32 s45, s2, 3
    s_and_b32 s34, s44, 1
    s_lshl_b32 s34, s34, 3
    s_and_b32 s46, s45, 7
    s_add_u32 s34, s34, s46
    s_lshr_b32 s35, s44, 1
    s_lshl_b32 s35, s35, 2
    s_lshr_b32 s46, s45, 3
    s_add_u32 s35, s35, s46
    v_lshrrev_b32 v1, 6, v0
    v_and_b32 v15, 63, v0
    s_nop 0
    v_readfirstlane_b32 s36, v1
    """)
    if stamps:
        A("s_waitcnt lgkmcnt(0)")
        srd_off(A, 96, 32, 33, WS_STAMP + 0x100000, 0x40000)
        A("s_lshl_b32 s44, s2, 2\ns_add_u32 s44, s44, s36\ns_lshl_b32 s44, s44, 7\nv_mov_b32 v255, s44")
        Fo.rt(0); Fo.stamp()
    cv = Conv1(A, name + "_cv", CONV_LK, CONV_LK + 41216, FROM_XN, remap=True, dyn=TAILPF)
    subP = name + "_subP"; subC = name + "_subC"; subF = name + "_subF"; emitted = set()
    def back(target): return (target == subP and 'P' in emitted) or (target in (subC, subF) and 'C' in emitted)
    def call(target):
        ref = A.newlabel(name + "_pc")
        A("s_getpc_b64 s[28:29]")
        A.label(ref)
        if INLINE1 and back(target):
            A(f"s_sub_u32 s28, s28, {ref}-{target}\ns_subb_u32 s29, s29, 0\ns_swappc_b64 s[30:31], s[28:29]")
        else:
            A(f"s_add_u32 s28, s28, {target}-{ref}\ns_addc_u32 s29, s29, 0\ns_swappc_b64 s[30:31], s[28:29]")
    def midsig():
        lab = A.newlabel(name + "_ms")
        A(f"s_cmp_eq_u32 s36, 0\ns_cbranch_scc0 {lab}")
        srd_off(A, 24, 32, 33, WS_FLAG, FLAG_BYTES)
        A("v_mov_b32 v251, 1\ns_mov_b64 exec, 1")
        for reg in (61, 62):
            sk = A.newlabel(name + "_mk")
            A(f"s_cmp_eq_u32 s{reg}, -1\ns_cbranch_scc1 {sk}\nv_mov_b32 v250, s{reg}\nbuffer_store_dword v251, v250, s[24:27], 0 offen sc1")
            A.label(sk)
        A("s_mov_b64 exec, -1")
        A.label(lab)
    def set_ret(target):
        ref = A.newlabel(name + "_pc")
        A("s_getpc_b64 s[30:31]")
        A.label(ref)
        A(f"s_add_u32 s30, s30, {target}-{ref}\ns_addc_u32 s31, s31, 0")
    def bodyP():
        A.label(subP); cv.prefetch("s73"); A("s_setpc_b64 s[30:31]")
    def bodyCF(ret2):
        A.label(subC)
        def split():
            A("s_setpc_b64 s[30:31]")
            if ret2:
                A.label(ret2[0]); set_ret(ret2[1])
            A.label(subF)
        cv.compute(False, "s72", None, mid_hook=midsig, dyn=True, split=split, saA=252)
        A("s_setpc_b64 s[30:31]")
    def prefetch(chs):
        A(f"s_mov_b32 s73, {chs}")
        if INLINE1 and "P" not in emitted:
            emitted.add("P"); r = A.newlabel(name + "_rp"); set_ret(r); bodyP(); A.label(r)
        else: call(subP)
    def compute(second, wait_n, f1, f2, finish=True):
        for reg, f in ((61, f1), (62, f2)):
            if f: A(f); A(f"s_mov_b32 s{reg}, s44")
            else: A(f"s_mov_b32 s{reg}, -1")
        A(f"s_mov_b32 s60, {1 if second else 0}")
        A(f"s_waitcnt vmcnt({wait_n})")
        if INLINE1 and "C" not in emitted:
            emitted.add("C")
            r1 = A.newlabel(name + "_r1"); r2 = A.newlabel(name + "_r2")
            set_ret(r1); bodyCF((r1, r2)); A.label(r2)
            return
        call(subC)
        if finish: call(subF)
    A("s_lshl_b32 s70, s2, 1\ns_add_u32 s71, s70, 1\ns_mov_b32 s72, s2")
    def pfopsA():
        if TAILPF: A("s_mov_b32 s68, 110592")
        return cv.prefetch_ops("s70")
    Fo.conv_prefetch_ops = pfopsA
    def convA():
        if TAILPF: A("s_mov_b32 s68, 110592")
        compute(False, 0, None, None)
    Fo.conv_A = convA
    Fo.sig_z2n = lambda: signal(A, name, [flag_off(0, "s35", "s34"), "s_lshr_b32 s45, s2, 4\ns_and_b32 s46, s2, 15\n" + flag_off(1, "s45", "s46")], sync=False)
    Fo.g2_early = lambda: gen_g2f(Fo, name + "_g2", part="early")
    gen_g1n(name + "_g1", Fo)
    gen_g2f(Fo, name + "_g2", post_loop=lambda: prefetch("s71"), part="late")
    Fo.stamp()
    compute(True, 9, flag_off(2, "s34", "s35"), None)
    Fo.conv_fin = lambda: None
    sigS = lambda: signal(A, name, ["s_mul_i32 s45, s72, 1366\ns_lshr_b32 s45, s45, 16\ns_mul_i32 s46, s45, 48\ns_sub_u32 s46, s72, s46\n" + flag_off(3, "s45", "s46")])
    Fo.stamp()
    xtra = A.newlabel(name + "_x"); fin = A.newlabel(name + "_fin")
    A(f"s_lshr_b32 s44, s2, 3\ns_cmp_ge_u32 s44, 24\ns_cbranch_scc1 {xtra}")
    Fo.pre_g3 = sigS
    gen_g3f(Fo, name + "_g3")
    A(f"s_branch {fin}")
    A.label(xtra)
    sigS()
    A(f"s_sub_u32 s44, s2, 192\ns_cmp_ge_u32 s44, 32\ns_cbranch_scc1 {fin}")
    A("s_add_u32 s72, s2, 64\ns_lshl_b32 s70, s72, 1\ns_add_u32 s71, s70, 1")
    if TAILPF: A("s_mov_b32 s68, 110592")
    prefetch("s70"); compute(False, 0, None, None)
    A("s_barrier")
    prefetch("s71"); compute(True, 0, None, None)
    sigS()
    A.label(fin)
    if stamps:
        A("s_waitcnt vmcnt(0)")
        Fo.n = 28; Fo.stamp(); Fo.rt(1)
    A.label(f"{name}_end")
    A("s_endpgm")
    if "P" not in emitted: bodyP()
    if "C" not in emitted: bodyCF(None)
    return A.text(), kernel_desc(name, 256, 256), 163840
```

```python
from asmlib import *
from g1 import VM, f2u, GC0, GC1, gelu_ops
EXP = set()
WIT = False
def gen_g1n(name, F):
    stamps = False
    vm = VM()
    if F is None:
        A = Asm(); ST = Stamper(A, 1, stamps); stamp = ST.stamp
    else:
        A = F.A; stamp = F.stamp
    SC = ' sc1' if F else ''
    R = 5; SLOT = 20480; WSCR = 102400
    NST = 18
    PR = 0; QA = [144, 180]
    ACCA = 128; ACCB = 16
    vQd = [2, 3, 4, 5, 6]; vE0 = 7; vO0 = 8; vE = 9; vO = 10; vL = 15; vP0 = 11; vP1 = 12
    vC0 = 200; vC1 = 202; vOne = 204; T6 = [206, 208, 210, 212, 214, 216]
    S1 = 218; S2 = 226
    W = 88
    if F is None:
        A(f"""
        s_cmp_ge_u32 s2, 256
        s_cbranch_scc1 {name}_end
        s_load_dwordx2 s[28:29], s[0:1], 64
        s_load_dwordx2 s[54:55], s[0:1], 72
        s_load_dwordx2 s[32:33], s[0:1], 112
        """)
        ST.start()
        A(f"""
        s_and_b32 s44, s2, 7
        s_lshr_b32 s45, s2, 3
        s_and_b32 s34, s44, 1
        s_lshl_b32 s34, s34, 3
        s_and_b32 s46, s45, 7
        s_add_u32 s34, s34, s46
        s_lshr_b32 s35, s44, 1
        s_lshl_b32 s35, s35, 2
        s_lshr_b32 s46, s45, 3
        s_add_u32 s35, s35, s46
        v_lshrrev_b32 v1, 6, v0
        v_and_b32 v{vL}, 63, v0
        s_nop 0
        v_readfirstlane_b32 s36, v1
        """)

    if not WIT:
        for j in range(5):
            d = vQd[j]
            A(f"""
            s_lshl_b32 s44, s36, 6
            s_add_u32 s44, s44, {256*j}
            v_add_u32 v16, s44, v{vL}
            v_mul_u32_u24 v17, 1821, v16
            v_lshrrev_b32 v17, 16, v17
            v_mul_u32_u24 v18, 36, v17
            v_sub_u32 v18, v16, v18
            v_lshrrev_b32 v19, 1, v18
            v_bfe_u32 v20, v17, 3, 1
            v_xor_b32 v19, v19, v20
            v_cmp_le_u32 vcc, 9, v19
            s_nop 1
            v_cndmask_b32 v20, 0, 1, vcc
            v_mul_u32_u24 v21, 9, v20
            v_sub_u32 v19, v19, v21
            v_lshlrev_b32 v20, 5, v20
            v_add_u32 v17, v17, v20
            v_mul_u32_u24 v17, 9216, v17
            v_lshlrev_b32 v19, 5, v19
            v_and_b32 v18, 1, v18
            v_lshlrev_b32 v18, 4, v18
            v_add3_u32 v{d}, v17, v19, v18
            """)
            if j == 4:
                A(f"v_mov_b32 v17, 0x80000000\nv_cmp_gt_u32 vcc, 1152, v16\ns_nop 1\nv_cndmask_b32 v{d}, v17, v{d}, vcc")
    else:
        A(f"v_lshlrev_b32 v16, 4, v{vL}\ns_lshl_b32 s44, s36, 10\nv_add_u32 v{vQd[0]}, s44, v16")
        for j in range(1, 5): A(f"v_add_u32 v{vQd[j]}, {j*4096}, v{vQd[0]}")
        A(f"s_cmp_lt_u32 s36, 2\ns_cselect_b32 s45, 0, 0x80000000\nv_or_b32 v{vQd[4]}, s45, v{vQd[4]}")
    A(f"""
    v_lshrrev_b32 v16, 4, v{vL}
    v_bfe_u32 v17, v{vL}, 2, 2
    v_lshlrev_b32 v18, 3, v16
    v_add_u32 v18, v18, v17
    v_mul_u32_u24 v18, 576, v18
    v_and_b32 v19, 3, v{vL}
    v_lshlrev_b32 v19, 3, v19
    v_add_u32 v18, v18, v19
    v_and_b32 v16, 1, v16
    v_lshlrev_b32 v16, 5, v16
    v_add_u32 v{vE0}, v18, v16
    v_sub_u32 v{vO0}, v18, v16
    v_lshlrev_b32 v1, 4, v{vL}
    s_lshl_b32 s44, s34, 3
    s_lshl_b32 s45, s36, 1
    s_add_u32 s44, s44, s45
    s_mul_i32 s44, s44, 18432
    v_add_u32 v{vP0}, s44, v1
    v_add_u32 v{vP1}, 18432, v{vP0}
    s_waitcnt lgkmcnt(0)
    """)
    if F: F.ptrs_g1()
    def wsrd():
        if WIT: srd_off(A, 4, 32, 33, WS_WIT, 32 * 18 * 9216)
        else: srd(A, 4, 78, 79, 576 * 9216)
    wsrd()
    if WIT: A(f"v_lshlrev_b32 v{vE0}, 4, v{vL}")
    srd_off(A, 8, 32, 33, WS_XN, 128 * 18 * 1024)
    A("s_lshl_b32 s44, s34, 4\ns_add_u32 s44, s44, s35\ns_mul_i32 s44, s44, 36864")
    A(f"s_add_u32 s44, s44, {WS_Z1}")
    srd_off(A, 12, 32, 33, "s44", 36864)
    srd_off(A, 16, 32, 33, WS_Z2N, 16 * 589824)
    srd_off(A, 20, 32, 33, WS_STAT, 16 * 16 * 2048)
    if WIT: A(f"s_mul_i32 s38, s35, {18*9216}\ns_add_u32 s37, s38, {16*18*9216}")
    else: A("s_mul_i32 s38, s35, 288\ns_add_u32 s37, s38, 4608")
    A("s_lshl_b32 s39, s36, 10")
    for i in range(5): A(f"s_mov_b32 s{64+i}, {4096*i}")
    def G(st):
        ops = []
        slot = st % R
        base = "s37" if st < 9 else "s38"
        koff = (st % 9) * (18432 if WIT else 64 * 9216)
        for j in range(5):
            pre = f"s_add_u32 s40, {base}, {koff}\n"
            pre += f"s_add_u32 m0, s39, {slot*SLOT + j*4096}\ns_nop 0\n"
            ops.append((pre + f"buffer_load_dwordx4 v{vQd[j]}, s[4:7], s40 offen lds", f"G{st}"))
        return ops
    def Pl(ks):
        return [(f"buffer_load_dwordx4 {ar(PR+(ks*2+i)*4,4)}, v{[vP0,vP1][i]}, s[8:11], s{64+ks//4} offen offset:{(ks%4)*1024}{' sc1' if (F is not None and getattr(F, 'single', False)) else ''}", f"P{ks}") for i in range(2)]
    def issue(op):
        if 'novm' in EXP and op[1][0] in 'GP' and op[1] not in ('G0','P0','P1'): return
        A(op[0]); vm.issue(op[1])
    srd_off(A, 56, 54, 55, 0, 2048 * 4096)
    srd_off(A, 60, 32, 33, WS_WSP, 2048 * 4096)
    vW = 13; vWs = 14; vWr = 253
    A(f"""
    s_lshr_b32 s44, s2, 1
    s_lshl_b32 s45, s44, 4
    v_lshrrev_b32 v16, 2, v{vL}
    v_add_u32 v16, s45, v16
    v_lshlrev_b32 v16, 12, v16
    v_and_b32 v17, 3, v{vL}
    v_lshlrev_b32 v17, 4, v17
    v_add_u32 v{vW}, v16, v17
    s_and_b32 s45, s2, 1
    s_lshl_b32 s45, s45, 2
    s_add_u32 s45, s45, s36
    s_lshl_b32 s46, s45, 9
    v_add_u32 v{vW}, s46, v{vW}
    s_lshl_b32 s44, s44, 16
    s_lshl_b32 s45, s45, 13
    s_add_u32 s41, s44, s45
    s_add_u32 s42, s41, 4096
    v_lshlrev_b32 v{vWs}, 4, v{vL}
    s_lshl_b32 s43, s36, 13
    s_add_u32 s43, s43, {WSCR}
    v_and_b32 v16, 15, v{vL}
    v_lshlrev_b32 v16, 2, v16
    v_lshrrev_b32 v17, 4, v{vL}
    v_add_u32 v16, v16, v17
    v_lshlrev_b32 v16, 4, v16
    v_add_u32 v{vWr}, s43, v16
    """)
    WR = 216
    wl = [(f"s_mov_b32 s40, {j*64}\ns_add_u32 m0, s43, {j*1024}\ns_nop 0\nbuffer_load_dwordx4 v{vW}, s[56:59], s40 offen lds", "WL") for j in range(8)]
    wrd = [f"ds_read_b128 {ar(WR+4*j,4)}, v{vWr} offset:{j*1024}" for j in range(8)]
    wsx = [(f"buffer_store_dwordx4 {ar(WR+4*j,4)}, v{vWs}, s[60:63], {'s41' if j < 4 else 's42'} offen offset:{(j%4)*1024}{SC}", "WS") for j in range(8)]
    for op in G(0): issue(op)
    for ks in (0, 1):
        for op in Pl(ks): issue(op)
    A("s_barrier")
    for st in (1, 2):
        for op in G(st): issue(op)
        for ks in (2*st, 2*st+1):
            for op in Pl(ks): issue(op)
    A(f"v_mov_b32 v{vC0}, {hex(f2u(GC0))}\nv_mov_b32 v{vC0+1}, {hex(f2u(GC0))}\nv_mov_b32 v{vC1}, {hex(f2u(GC1))}\nv_mov_b32 v{vC1+1}, {hex(f2u(GC1))}")
    A(f"v_mov_b32 v{vOne}, 1.0\nv_mov_b32 v{vOne+1}, 1.0")
    A(f"v_mov_b32 v{vE}, v{vE0}\nv_mov_b32 v{vO}, v{vO0}")
    A(f"s_waitcnt vmcnt({vm.wait(['G0','P0','P1'])})")
    A("s_barrier")
    stamp()
    def qreads(buf, ksl):
        if WIT: return [f"ds_read_b128 {ar(QA[buf]+jn*4,4)}, v{vE} offset:{(ksl*9+jn)*1024}" for jn in range(9)]
        out = []
        for jn in range(9):
            X = ksl * 9 + jn
            b = vE if X % 2 == 0 else vO
            for hf in range(2):
                out.append(f"ds_read_b64_tr_b16 {ar(QA[buf]+jn*4+hf*2,2)}, v{b} offset:{X*32 + hf*2304}")
        return out
    def mfmas(buf, ksg, phaseB):
        out = []
        for jn in range(9):
            for i in range(2):
                q = ar(QA[buf]+jn*4, 4); p = ar(PR+(ksg*2+i)*4, 4)
                c = vr((ACCB if phaseB else ACCA)+(i*9+jn)*4, 4)
                src = "0" if ksg == 0 else c
                if not phaseB: out.append(f"v_mfma_f32_16x16x32_bf16 {c}, {p}, {q}, {src}")
                else: out.append(f"v_mfma_f32_16x16x32_bf16 {c}, {q}, {p}, {src}")
        return out
    for x in qreads(0, 0): A(x)
    pairsA = [ACCA + (i*9+jn)*4 + 2*h for i in range(2) for jn in range(9) for h in range(2)]
    eq = [f"v_mov_b32 v{S1+r}, 0" for r in range(16)]
    for g in range(0, 36, 6):
        grp = pairsA[g:g+6]
        eq += gelu_ops(grp, T6, vC0, vC1, vOne)
        for c in grp:
            idx = (c - ACCA) // 4; i = idx // 9; h = ((c - ACCA) % 4) // 2
            s1 = S1 + i*4 + 2*h; s2 = S2 + i*4 + 2*h
            eq.append(f"v_pk_add_f32 {vr(s1,2)}, {vr(s1,2)}, {vr(c,2)}")
            eq.append(f"v_pk_fma_f32 {vr(s2,2)}, {vr(c,2)}, {vr(c,2)}, {vr(s2,2)}")
    for n in (8, 4, 2, 1):
        for r in range(16):
            eq.append(f"v_add_f32_dpp v{S1+r}, v{S1+r}, v{S1+r} row_ror:{n} row_mask:0xf bank_mask:0xf")
    for i in range(2):
        for r in range(4):
            eq.append(f"v_mov_b32 v{W+i*8+2*r}, v{S1+i*4+r}")
            eq.append(f"v_max_f32 v{W+i*8+2*r+1}, 0, v{S2+i*4+r}")
    pend = []
    for st in range(3, NST):
        e = (0, 0) if st < R else (st - R + 1, 1)
        e = max(e, (st - 3, 0))
        for op in G(st): pend.append((e, op))
        if st < 9:
            for ks in (2*st, 2*st+1):
                for op in Pl(ks): pend.append((e, op))
    def publish():
        A(f"""
        s_lshl_b32 s44, s34, 4
        s_add_u32 s44, s44, s35
        s_lshl_b32 s44, s44, 11
        s_lshl_b32 s45, s36, 9
        s_lshr_b32 s44, s44, 1
        s_lshr_b32 s45, s45, 1
        s_add_u32 s44, s44, s45
        v_lshrrev_b32 v1, 4, v{vL}
        v_lshlrev_b32 v1, 5, v1
        v_and_b32 v{T6[0]}, 15, v{vL}
        """)
        A(f"v_cmp_eq_u32 vcc, 0, v{T6[0]}\ns_and_saveexec_b64 s[52:53], vcc")
        for i in range(2):
            for hh in range(2):
                A(f"buffer_store_dwordx4 {vr(W+i*8+hh*4,4)}, v1, s[20:23], s44 offen offset:{i*128+hh*16} sc1"); vm.issue("ST")
        A("s_mov_b64 exec, s[52:53]")
    def blkN():
        A(f"""
        v_and_b32 v1, 31, v{vL}
        v_lshlrev_b32 v1, 3, v1
        v_lshrrev_b32 v13, 5, v{vL}
        v_lshlrev_b32 v13, 13, v13
        v_add_u32 v1, v1, v13
        s_lshl_b32 s44, s34, 14
        s_lshl_b32 s45, s36, 8
        s_add_u32 s44, s44, s45
        """)
        poll = A.newlabel(name + "_poll")
        W2 = 234
        A.label(poll)
        for j in range(8):
            A(f"s_add_u32 s45, s44, {j*1024}")
            A(f"buffer_load_dwordx2 {vr(W2+2*j,2)}, v1, s[20:23], s45 offen sc1")
        A("s_waitcnt vmcnt(0)")
        A(f"v_or_b32 v13, v{W2+1}, v{W2+3}")
        for j in range(2, 8): A(f"v_or_b32 v13, v13, v{W2+2*j+1}")
        A("v_cmp_gt_i32 s[52:53], 0, v13")
        A(f"s_cmp_eq_u64 s[52:53], 0\ns_cbranch_scc1 {poll}_ok\ns_sleep 4\ns_branch {poll}")
        A.label(poll + "_ok")
        stamp()
        Wm = W2
        for j in range(1, 8): A(f"v_pk_add_f32 {vr(Wm,2)}, {vr(Wm,2)}, {vr(Wm+2*j,2)}")
        A(f"v_mov_b32 v{Wm+2}, v{Wm}\nv_mov_b32 v{Wm+3}, v{Wm+1}\ns_nop 1")
        A(f"v_permlane32_swap_b32 v{Wm+2}, v{Wm}\nv_permlane32_swap_b32 v{Wm+3}, v{Wm+1}")
        A(f"v_pk_add_f32 {vr(Wm,2)}, {vr(Wm,2)}, {vr(Wm+2,2)}")
        A(f"v_mul_f32 v{Wm}, {hex(f2u(1.0/2304))}, v{Wm}")
        A(f"v_mul_f32 v{Wm+1}, {hex(f2u(1.0/2304))}, v{Wm+1}")
        A(f"v_fma_f32 v{Wm+1}, -v{Wm}, v{Wm}, v{Wm+1}")
        A(f"v_max_f32 v{Wm+1}, 0, v{Wm+1}")
        from l0 import bf16_round
        bf16_round(A, Wm+1)
        A(f"v_add_f32 v{Wm+1}, 0x3727c5ac, v{Wm+1}")
        bf16_round(A, Wm+1)
        A(f"v_sqrt_f32 v{Wm+1}, v{Wm+1}\ns_nop 0")
        bf16_round(A, Wm+1)
        A(f"v_rcp_f32 v{Wm+1}, v{Wm+1}")
        bf16_round(A, Wm)
        A(f"v_mul_f32 v{Wm}, v{Wm}, v{Wm+1}")
        LB = 163840 - 1024
        A(f"""
        v_and_b32 v1, 31, v{vL}
        v_lshlrev_b32 v1, 3, v1
        s_lshl_b32 s45, s36, 8
        s_add_u32 s45, s45, {LB}
        v_add_u32 v1, s45, v1
        ds_write_b64 v1, {vr(Wm,2)}
        v_lshrrev_b32 v13, 4, v{vL}
        v_lshlrev_b32 v13, 5, v13
        v_add_u32 v13, s45, v13
        s_waitcnt lgkmcnt(0)
        """)
        MS = 218
        for i in range(2):
            A(f"ds_read_b128 {vr(MS+i*8,4)}, v13 offset:{i*128}")
            A(f"ds_read_b128 {vr(MS+4+i*8,4)}, v13 offset:{i*128+16}")
        A(f"""
        s_mul_i32 s44, s35, 64
        s_lshl_b32 s45, s34, 2
        s_add_u32 s44, s44, s45
        s_add_u32 s44, s44, s36
        s_mul_i32 s44, s44, 9216
        v_lshrrev_b32 v1, 4, v{vL}
        v_and_b32 v13, 1, v1
        v_lshlrev_b32 v13, 1, v13
        v_lshrrev_b32 v1, 1, v1
        v_or_b32 v1, v1, v13
        v_lshlrev_b32 v1, 4, v1
        v_and_b32 v13, 15, v{vL}
        v_add_u32 v1, v1, v13
        v_lshlrev_b32 v1, 4, v1
        s_waitcnt lgkmcnt(0)
        """)
        OB = 88
        def fin(jn):
            po = OB + jn*4
            A(f"v_permlane16_swap_b32 v{po}, v{po+2}")
            A(f"v_permlane16_swap_b32 v{po+1}, v{po+3}")
            A(f"s_add_u32 s45, s44, {jn*1024}")
            A(f"buffer_store_dwordx4 {vr(po,4)}, v1, s[16:19], s45 offen sc1"); vm.issue("Z")
        for jn in range(9):
            o = OB + jn * 4
            for i in range(2):
                c = ACCA + (i*9+jn)*4
                for r in range(4):
                    m = MS+i*8+2*r
                    A(f"v_fma_f32 v{c+r}, v{c+r}, v{m+1}, -v{m}")
                A(f"v_cvt_pk_bf16_f32 v{o+2*i}, v{c}, v{c+1}")
                A(f"v_cvt_pk_bf16_f32 v{o+2*i+1}, v{c+2}, v{c+3}")
            if jn > 0: fin(jn - 1)
        A("s_nop 1")
        fin(8)
    ws_q = list(wsx); wl_q = list(wl)
    for st in range(NST):
        phaseB = st >= 9
        if st == 9:
            stamp()
            A(f"s_waitcnt vmcnt({min(63, vm.wait('WL'))}) lgkmcnt(0)")
            for x in wrd: A(x)
            A("s_waitcnt lgkmcnt(0)\ns_barrier")
            pfo = F.conv_prefetch_ops()
            for k, o in enumerate(eq):
                A(o)
                if k % 16 == 2 and pfo: A(pfo.pop(0))
                if k % 16 == 10 and ws_q: issue(ws_q.pop(0))
            assert not pfo
            assert not ws_q
            publish()
            stamp()
            F.conv_A()
            wsrd()
            srd_off(A, 16, 32, 33, WS_Z2N, 16 * 589824)
            srd_off(A, 20, 32, 33, WS_STAT, 16 * 16 * 2048)
            stamp()
            blkN()
            stamp()
        for ksl in range(2):
            ksg = (st % 9) * 2 + ksl
            buf = ksl
            first = (st == 0 and ksl == 0) or (st == 9 and ksl == 0)
            if first: A("s_waitcnt lgkmcnt(0)")
            if ksl == 0:
                rd = qreads(1, 1)
            elif st + 1 < NST:
                nslot = (st + 1) % R
                A(f"v_add_u32 v{vE}, {nslot*SLOT}, v{vE0}\nv_add_u32 v{vO}, {nslot*SLOT}, v{vO0}")
                rd = qreads(0, 0)
            else: rd = []
            nrd = len(rd)
            NV = 5 if st < 6 else 3
            gl = []
            while pend and len(gl) < NV and pend[0][0] <= (st, ksl):
                gl.append(pend.pop(0)[1])
            if 4 <= st <= 7 and wl_q: gl.append(wl_q.pop(0))
            mf = mfmas(buf, ksg, phaseB)
            gpos = [int((k + 0.5) * 18 / max(1, len(gl))) for k in range(len(gl))]
            for j in range(18):
                if j % 4 == 0 and not first:
                    if WIT:
                        need = min(j // 2 + 1, 8)
                        A(f"s_waitcnt lgkmcnt({(8 - need) + min(j // 2, nrd)})")
                    else:
                        need = min(j + 3, 17)
                        A(f"s_waitcnt lgkmcnt({min(15, (17 - need) + min(j, nrd))})")
                A(mf[j])
                if rd and (not WIT or j % 2 == 0): A(rd.pop(0))
                while gl and gpos[0] <= j:
                    gpos.pop(0); issue(gl.pop(0))
            if ksl == 0 and st + 1 < NST:
                tags = [f"G{st+1}"]
                if st + 1 < 9: tags += [f"P{2*(st+1)}", f"P{2*(st+1)+1}"]
                if st == 15:
                    A("s_waitcnt vmcnt(0)\ns_barrier")
                    F.sig_z2n()
                else:
                    A(f"s_waitcnt vmcnt({min(63, vm.wait(tags))})")
                    A("s_barrier")
    assert not pend
    stamp()
    F.g2_early()
    stamp()
    A("s_nop 7")
    pairsB = [ACCB + (i*9+jn)*4 + 2*h for i in range(2) for jn in range(9) for h in range(2)]
    ZB = 88
    late = list(F.g2_late_ops)
    cnt = 0
    for g in range(0, 36, 6):
        grp = pairsB[g:g+6]
        for o in gelu_ops(grp, T6, vC0, vC1, vOne):
            A(o); cnt += 1
            if cnt % 11 == 0 and late: A(late.pop(0))
        for k, c in enumerate(grp):
            A(f"v_cvt_pk_bf16_f32 v{ZB+g+k}, v{c}, v{c+1}")
        for k in range(6): A(f"v_accvgpr_write_b32 a{128+g+k}, v{ZB+g+k}")
    for o in late: A(o)
    stamp()
```

```python
from asmlib import *

def bf16_round(A, v, tmp=None):
    A(f"v_cvt_pk_bf16_f32 v{v}, v{v}, v{v}")
    A(f"v_and_b32 v{v}, 0xffff0000, v{v}")

def dpp_sum16(A, v):
    for n in (8, 4, 2, 1):
        A("s_nop 1")
        A(f"v_add_f32_dpp v{v}, v{v}, v{v} row_ror:{n} row_mask:0xf bank_mask:0xf")

NO_XNT = False
NOWAIT = False
NOTOUCH_SP = False
NOTOUCH = False
K4 = False
WITR = False
TLBW = False
def gen_ln(A, name, stamp=lambda: None):
    PITCH = 1168
    stamp()
    srd(A, 4, 28, 29, 2048 * 1152)
    srd_off(A, 8, 32, 33, WS_XN, 128 * 18 * 1024)
    srd_off(A, 12, 32, 33, WS_XNT, 576 * 4096)
    A(f"""
    s_lshl_b32 s44, s66, 4
    s_lshl_b32 s45, s36, 2
    s_add_u32 s44, s44, s45
    v_lshrrev_b32 v1, 4, v15
    v_add_u32 v2, s44, v1
    v_mul_u32_u24 v2, 1152, v2
    v_and_b32 v3, 15, v15
    v_lshlrev_b32 v4, 4, v3
    v_add_u32 v2, v2, v4
    """)
    for j in range(4):
        A(f"buffer_load_dwordx4 {vr(16+4*j,4)}, v2, s[4:7], 0 offen offset:{j*256}")
    A("s_mov_b32 s50, 0x00ff00ff\ns_mov_b32 s51, 0x00ff00ff")
    A("v_mov_b32 v32, 0\nv_mov_b32 v33, 0\nv_mov_b32 v34, 0\nv_mov_b32 v35, 0")
    A("s_mov_b64 exec, s[50:51]")
    A(f"buffer_load_dwordx4 v[32:35], v2, s[4:7], 0 offen offset:1024")
    A("s_mov_b64 exec, -1")
    A(f"""
    v_add_u32 v5, s45, v1
    v_mul_u32_u24 v5, {PITCH}, v5
    v_add_u32 v5, v5, v4
    s_waitcnt vmcnt(0)
    """)
    stamp()
    for q in range(20):
        A(f"v_lshlrev_b32 v{40+2*q}, 16, v{16+q}")
        A(f"v_and_b32 v{41+2*q}, 0xffff0000, v{16+q}")
    A("v_add_f32 v6, v40, v41")
    for q in range(2, 40): A(f"v_add_f32 v6, v6, v{40+q}")
    dpp_sum16(A, 6)
    A("v_mul_f32 v6, 0x3ae38e39, v6")
    A("v_mov_b32 v7, 0")
    for q in range(32):
        A(f"v_sub_f32 v8, v{40+q}, v6")
        A(f"v_fmac_f32 v7, v8, v8")
    A("s_mov_b64 exec, s[50:51]")
    for q in range(32, 40):
        A(f"v_sub_f32 v8, v{40+q}, v6")
        A(f"v_fmac_f32 v7, v8, v8")
    A("s_mov_b64 exec, -1")
    dpp_sum16(A, 7)
    A("v_mul_f32 v7, 0x3ae38e39, v7")
    bf16_round(A, 7)
    A("v_add_f32 v7, 0x3727c5ac, v7")
    bf16_round(A, 7)
    A("v_sqrt_f32 v7, v7")
    A("s_nop 0")
    bf16_round(A, 7)
    A("v_rcp_f32 v7, v7")
    bf16_round(A, 6)
    for q in range(20):
        a, b = 40+2*q, 41+2*q
        A(f"v_sub_f32 v{a}, v{a}, v6")
        A(f"v_sub_f32 v{b}, v{b}, v6")
        A(f"v_cvt_pk_bf16_f32 v8, v{a}, v{b}")
        A(f"v_lshlrev_b32 v{a}, 16, v8")
        A(f"v_and_b32 v{b}, 0xffff0000, v8")
        A(f"v_mul_f32 v{a}, v{a}, v7")
        A(f"v_mul_f32 v{b}, v{b}, v7")
        A(f"v_cvt_pk_bf16_f32 v{16+q}, v{a}, v{b}")
    for j in range(4):
        A(f"ds_write_b128 v5, {vr(16+4*j,4)} offset:{j*256}")
    A("s_mov_b64 exec, s[50:51]")
    A(f"ds_write_b128 v5, v[32:35] offset:1024")
    A("s_mov_b64 exec, -1")
    A("s_waitcnt lgkmcnt(0)\ns_barrier")
    stamp()
    A(f"""
    v_and_b32 v1, 15, v15
    v_mul_u32_u24 v1, {PITCH}, v1
    v_lshrrev_b32 v2, 4, v15
    v_lshlrev_b32 v2, 4, v2
    v_add_u32 v1, v1, v2
    s_lshl_b32 s45, s36, 6
    v_add_u32 v1, s45, v1
    v_lshlrev_b32 v3, 4, v15              ; lane*16
    s_mul_i32 s44, s66, 18
    s_add_u32 s44, s44, s36
    s_lshl_b32 s44, s44, 10               ; (stile*18 + w)*1024
    """)
    for j in range(4):
        A(f"ds_read_b128 {vr(16+4*j,4)}, v1 offset:{j*256}")
    lab = A.newlabel(name + "_ln")
    A(f"s_cmp_lt_u32 s36, 2\ns_cbranch_scc0 {lab}")
    A(f"ds_read_b128 v[32:35], v1 offset:1024")
    A("s_waitcnt lgkmcnt(0)")
    A("s_add_u32 s45, s44, 16384")
    A(f"buffer_store_dwordx4 v[32:35], v3, s[8:11], s45 offen")
    A.label(lab)
    A("s_waitcnt lgkmcnt(0)")
    for j in range(4):
        A(f"s_add_u32 s45, s44, {j*4096}")
        A(f"buffer_store_dwordx4 {vr(16+4*j,4)}, v3, s[8:11], s45 offen")
    if not NO_XNT:
        A(f"""
        v_lshrrev_b32 v1, 2, v15              ; 4g + r = (l>>2) (since g=l>>4, r=(l>>2)&3)
        v_mul_u32_u24 v1, {PITCH}, v1
        v_and_b32 v2, 3, v15
        v_lshlrev_b32 v2, 3, v2
        v_add_u32 v1, v1, v2
        s_mul_i32 s45, s36, 288
        v_add_u32 v1, s45, v1                 ; + w*9*32 bytes
        v_and_b32 v2, 15, v15
        v_lshlrev_b32 v2, 12, v2              ; channel*4096
        v_lshrrev_b32 v3, 4, v15
        v_lshlrev_b32 v3, 3, v3               ; g*8
        v_add_u32 v2, v2, v3
        s_lshl_b32 s44, s66, 5                 ; t0*2
        s_mul_i32 s45, s36, {9*16*4096}
        s_add_u32 s44, s44, s45
        """)
        for j in range(9):
            A(f"ds_read_b64_tr_b16 {vr(40+2*j,2)}, v1 offset:{j*32}")
        A("s_waitcnt lgkmcnt(0)")
        for j in range(9):
            A(f"s_add_u32 s45, s44, {j*16*4096}")
            A(f"buffer_store_dwordx2 {vr(40+2*j,2)}, v2, s[12:15], s45 offen ;plain")

    srd_off(A, 16, 32, 33, WS_STAT, 16 * 16 * 1024)
    lab = A.newlabel(name + "_rs")
    A(f"s_cmp_eq_u32 s36, 0\ns_cbranch_scc0 {lab}")
    A(f"""
    v_lshrrev_b32 v1, 2, v15
    v_lshlrev_b32 v1, 10, v1
    v_and_b32 v2, 3, v15
    v_lshlrev_b32 v2, 5, v2
    v_add_u32 v1, v1, v2
    s_lshr_b32 s44, s66, 3
    s_lshl_b32 s44, s44, 14
    s_and_b32 s45, s66, 7
    s_lshl_b32 s45, s45, 7
    s_add_u32 s44, s44, s45
    v_mov_b32 v16, -1
    v_mov_b32 v17, -1
    v_mov_b32 v18, -1
    v_mov_b32 v19, -1
    buffer_store_dwordx4 v[16:19], v1, s[16:19], s44 offen
    buffer_store_dwordx4 v[16:19], v1, s[16:19], s44 offen offset:16
    """)
    A.label(lab)
    srd_off(A, 16, 32, 33, WS_FLAG, 4 * 16 * 64 * 128)
    lab2 = A.newlabel(name + "_fz")
    A(f"s_cmp_eq_u32 s36, 1\ns_cbranch_scc0 {lab2}")
    A("s_lshl_b32 s44, s66, 12\nv_lshlrev_b32 v1, 7, v15\nv_mov_b32 v16, 0\ns_mov_b32 exec_hi, 0")
    A("buffer_store_dword v16, v1, s[16:19], s44 offen")
    A("s_mov_b64 exec, -1")
    A.label(lab2)

def gen_wsp(A, name):
    srd(A, 4, 30, 31, 2048 * 4096)
    srd_off(A, 8, 32, 33, WS_WSP, 2048 * 4096)
    A(f"""
    v_lshrrev_b32 v1, 2, v15
    s_lshr_b32 s48, s47, 1
    s_lshl_b32 s44, s48, 4
    v_add_u32 v1, s44, v1
    v_lshlrev_b32 v1, 12, v1
    v_and_b32 v2, 3, v15
    v_lshlrev_b32 v2, 4, v2
    v_add_u32 v1, v1, v2
    s_and_b32 s49, s47, 1
    s_lshl_b32 s49, s49, 2
    s_add_u32 s49, s49, s36
    s_lshl_b32 s45, s49, 9
    s_lshl_b32 s46, s36, 13
    """)
    for j in range(8):
        A(f"s_add_u32 s50, s45, {j*64}\ns_add_u32 m0, s46, {j*1024}\ns_nop 0\nbuffer_load_dwordx4 v1, s[4:7], s50 offen lds")
    A(f"""
    v_and_b32 v2, 15, v15
    v_lshlrev_b32 v2, 2, v2
    v_lshrrev_b32 v3, 4, v15
    v_add_u32 v2, v2, v3
    v_lshlrev_b32 v2, 4, v2
    v_add_u32 v2, s46, v2
    v_lshlrev_b32 v3, 4, v15
    s_lshl_b32 s44, s48, 16
    s_lshl_b32 s45, s49, 13
    s_add_u32 s44, s44, s45
    s_add_u32 s45, s44, 4096
    s_waitcnt vmcnt(0)
    """)
    for j in range(8):
        A(f"ds_read_b128 {vr(16+4*j,4)}, v2 offset:{j*1024}")
    for j in range(8):
        A(f"s_waitcnt lgkmcnt({7-j})")
        A(f"buffer_store_dwordx4 {vr(16+4*j,4)}, v3, s[8:11], {'s44' if j < 4 else 's45'} offen offset:{(j%4)*1024}")

def gen_wtile(A, name, which):
    pitch = 9216 if which == 'in' else 1152
    srd(A, 4, 30, 31, 576 * 9216 if which == 'in' else 2304 * 1152)
    srd_off(A, 8, 32, 33, WS_WIT if which == 'in' else WS_WOT, 576 * 9216 if which == 'in' else 2304 * 1152)
    if which == 'in':
        A(f"s_lshr_b32 s48, s47, 3\ns_and_b32 s49, s47, 7\ns_mul_i32 s44, s48, {32*pitch}\ns_mul_i32 s45, s49, 1152\ns_add_u32 s44, s44, s45")
    else:
        A(f"s_mov_b32 s48, s47\ns_mul_i32 s44, s48, {32*pitch}")
    A(f"s_mul_i32 s45, s36, {8*pitch}\ns_add_u32 s44, s44, s45\ns_mul_i32 s46, s36, 9216")
    for j in range(9):
        A(f"""
        v_add_u32 v1, {64*j}, v15
        v_mul_u32_u24 v2, 911, v1
        v_lshrrev_b32 v2, 16, v2
        v_mul_u32_u24 v3, 72, v2
        v_sub_u32 v3, v1, v3
        v_mul_u32_u24 v2, {pitch}, v2
        v_lshl_add_u32 v{16+j}, v3, 4, v2
        """)
    for j in range(9):
        A(f"s_add_u32 m0, s46, {j*1024}\ns_nop 0\nbuffer_load_dwordx4 v{16+j}, s[4:7], s44 offen lds")
    def lane_addr(natural):
        if natural:
            A("v_lshrrev_b32 v1, 4, v15\nv_lshlrev_b32 v1, 3, v1\nv_bfe_u32 v2, v15, 2, 2\nv_add_u32 v1, v1, v2")
        else:
            A("v_lshrrev_b32 v1, 2, v15")
        A(f"""
        v_mul_u32_u24 v1, 1152, v1
        v_and_b32 v2, 3, v15
        v_lshlrev_b32 v2, 3, v2
        v_add_u32 v1, v1, v2
        s_mul_i32 s45, s36, 288
        v_add_u32 v1, s45, v1
        """)
    def reads(hfo):
        for j in range(9):
            for hf in range(2):
                A(f"ds_read_b64_tr_b16 {vr(32+4*j+2*hf,2)}, v1 offset:{j*32 + hf*hfo}")
    A("v_lshlrev_b32 v3, 4, v15\ns_waitcnt vmcnt(0)\ns_barrier")
    if which == 'in':
        lane_addr(True); reads(4*1152)
    else:
        nat = A.newlabel(name + "_nat"); dn = A.newlabel(name + "_nd")
        A(f"s_mul_i32 s50, s48, 57\ns_lshr_b32 s50, s50, 9\ns_mul_i32 s50, s50, 9\ns_sub_u32 s50, s48, s50\ns_cmp_eq_u32 s50, 4\ns_cbranch_scc1 {nat}")
        lane_addr(False); reads(16*1152)
        A(f"s_branch {dn}")
        A.label(nat)
        lane_addr(True); reads(4*1152)
        A.label(dn)
    if which == 'in':
        A("s_lshl_b32 s44, s49, 2\ns_add_u32 s44, s44, s36\ns_mul_i32 s44, s44, 18\ns_add_u32 s44, s44, s48\ns_mul_i32 s44, s44, 9216")
    A("s_waitcnt lgkmcnt(0)")
    for j in range(9):
        if which == 'in':
            A(f"s_add_u32 s45, s44, {j*1024}")
        else:
            A(f"s_mul_i32 s45, s36, 9\ns_add_u32 s45, s45, {j}\ns_mul_i32 s50, s45, 43\ns_lshr_b32 s50, s50, 8\ns_mul_i32 s51, s50, 6\ns_sub_u32 s45, s45, s51")
            A("s_mul_i32 s50, s50, 72\ns_add_u32 s50, s50, s48\ns_mul_i32 s50, s50, 6\ns_add_u32 s45, s45, s50\ns_lshl_b32 s45, s45, 10")
        A(f"buffer_store_dwordx4 {vr(32+4*j,4)}, v3, s[8:11], s45 offen")

def gen_l0(name, kgen=None, stamps=False):
    A = Asm()
    def mk():
        st = Stamper(A, 0, stamps); st.n = 1; return st
    KN = 576 if K4 else 288
    B1 = 128 + KN; B2 = B1 + 72; B3 = B2 + (144 if WITR else 64)
    nwg = B2 if NOTOUCH else B3 + (0 if NOTOUCH_SP else 128)
    B4 = nwg
    if TLBW: nwg += 8
    A(f"""
    s_cmp_ge_u32 s2, {nwg}
    s_cbranch_scc1 {name}_end
    s_load_dwordx4 s[28:31], s[0:1], 0
    s_load_dwordx8 s[56:63], s[0:1], 8
    s_load_dwordx2 s[64:65], s[0:1], 40
    s_load_dwordx4 s[88:91], s[0:1], 64
    s_load_dwordx2 s[92:93], s[0:1], 88
    s_load_dwordx2 s[32:33], s[0:1], 112
    """)
    if stamps: A("s_memrealtime s[96:97]\ns_memtime s[70:71]")
    A(f"""
    v_lshrrev_b32 v1, 6, v0
    v_and_b32 v15, 63, v0
    s_nop 0
    v_readfirstlane_b32 s36, v1
    s_waitcnt lgkmcnt(0)
    s_cmp_ge_u32 s2, 128
    s_cbranch_scc1 {name}_r1
    """)
    A("s_and_b32 s44, s2, 7\ns_lshl_b32 s44, s44, 4\ns_lshr_b32 s45, s2, 3\ns_add_u32 s66, s44, s45")
    st = mk()
    gen_ln(A, name, st.stamp)
    st.stamp()
    st.finish(vbase=100)
    A("s_endpgm")
    A.label(f"{name}_r1")
    A(f"s_cmp_ge_u32 s2, {B1}\ns_cbranch_scc1 {name}_r2")
    if K4:
        import kgen as _kg
        A("s_sub_u32 s47, s2, 128")
        _kg.gen_kgen4(A, name)
    else:
        A("s_sub_u32 s47, s2, 128\ns_lshl_b32 s47, s47, 1\ns_lshr_b32 s38, s36, 1\ns_and_b32 s37, s36, 1\ns_add_u32 s47, s47, s38")
        kgen(A, name)
    mk().finish(vbase=100)
    A("s_endpgm")
    A.label(f"{name}_r2")
    A(f"s_cmp_ge_u32 s2, {B2}\ns_cbranch_scc1 {name}_r3")
    A(f"s_sub_u32 s47, s2, {B1}\ns_mov_b32 s30, s92\ns_mov_b32 s31, s93")
    gen_wtile(A, name, 'out')
    mk().finish(vbase=100)
    A("s_endpgm")
    A.label(f"{name}_r3")
    if TLBW:
        A(f"s_cmp_ge_u32 s2, {B4}\ns_cbranch_scc0 {name}_r3c")
        srd_off(A, 4, 32, 33, 0, 0x4800000)
        A("v_lshlrev_b32 v1, 16, v15\ns_lshl_b32 s44, s36, 24")
        for j in range(4):
            A(f"s_add_u32 s45, s44, {j*0x400000}\nbuffer_load_dword v16, v1, s[4:7], s45 offen")
        A("s_add_u32 s45, s44, 0x4000000\nbuffer_load_dword v16, v1, s[4:7], s45 offen")
        A("s_waitcnt vmcnt(0)\ns_endpgm")
        A.label(f"{name}_r3c")
    A(f"s_cmp_ge_u32 s2, {B3}\ns_cbranch_scc0 {name}_r3b")
    srd(A, 4, 90, 91, 2048*4096)
    A(f"s_sub_u32 s44, s2, {B3}\ns_lshl_b32 s44, s44, 2\ns_add_u32 s44, s44, s36\ns_lshl_b32 s44, s44, 14\nv_lshlrev_b32 v1, 4, v15")
    for j in range(16):
        A(f"s_add_u32 s46, s44, {j*1024}\nbuffer_load_dwordx4 v[16:19], v1, s[4:7], s46 offen")
    A("s_endpgm" if NOWAIT else "s_waitcnt vmcnt(0)\ns_endpgm")
    A.label(f"{name}_r3b")
    if WITR:
        A(f"s_sub_u32 s47, s2, {B2}\ns_mov_b32 s30, s88\ns_mov_b32 s31, s89")
        gen_wtile(A, name, 'in')
        A("s_endpgm")
    srd(A, 4, 88, 89, 576*9216)
    A(f"s_sub_u32 s44, s2, {B2}\ns_lshl_b32 s44, s44, 2\ns_add_u32 s44, s44, s36\ns_mul_i32 s44, s44, 20736\nv_lshlrev_b32 v1, 4, v15")
    for j in range(21):
        A(f"s_add_u32 s46, s44, {j*1024}\nbuffer_load_dwordx4 v[16:19], v1, s[4:7], s46 offen")
    if not NOWAIT:
        A("s_waitcnt vmcnt(0)")
        mk().finish(vbase=100)
    A.label(f"{name}_end")
    A("s_endpgm")
    return A.text(), kernel_desc(name, 124, 0), nwg
```

```python
import sys
from asmlib import *
from l0 import gen_l0
from g1 import gen_g1
from g1b import gen_g1b
from g2 import gen_g2
from g3 import gen_g3
from l3 import gen_l3
from fused import gen_fused
import fused3
import fused4
from kgen import gen_kgen
from conv import gen_conv
TOUCH = False
SC1 = False
def build(path, parts, stamps=False):
    launches = ""; text = ""; descs = ""
    for p in parts:
        if p == "l0":
            body, desc, nwg = gen_l0("l0_kernel", gen_kgen, stamps); launches += f"; @launch kernel=l0_kernel grid=({nwg},1,1) block=(256,1,1) lds=36864\n"; nm = "l0_kernel"
        elif p == "g1":
            body, desc, lds = gen_g1("g1_kernel", stamps); launches += f"; @launch kernel=g1_kernel grid=(256,1,1) block=(256,1,1) lds={lds}\n"; nm = "g1_kernel"
        elif p == "g1b":
            body, desc, lds = gen_g1b("g1_kernel", stamps); launches += f"; @launch kernel=g1_kernel grid=(512,1,1) block=(256,1,1) lds={lds}\n"; nm = "g1_kernel"
        elif p == "g2":
            body, desc = gen_g2("g2_kernel", stamps); launches += f"; @launch kernel=g2_kernel grid=(256,1,1) block=(256,1,1) lds=147456\n"; nm = "g2_kernel"
        elif p == "g3":
            body, desc, lds = gen_g3("g3_kernel", stamps); launches += f"; @launch kernel=g3_kernel grid=(192,1,1) block=(256,1,1) lds={lds}\n"; nm = "g3_kernel"
        elif p == "fused":
            body, desc, lds = gen_fused("m_kernel", stamps); launches += f"; @launch kernel=m_kernel grid=(256,1,1) block=(256,1,1) lds={lds}\n"; nm = "m_kernel"
        elif p == "fused4":
            body, desc, lds = fused4.gen_fused("m_kernel", stamps); launches += f"; @launch kernel=m_kernel grid=(256,1,1) block=(256,1,1) lds={lds}\n"; nm = "m_kernel"
        elif p == "single":
            nm = "recurrent_scan__ssm_conv_s4d__mixer_gmlp__prompt_kernel"
            body, desc, lds = fused3.gen_fused(nm, stamps); launches += f"; @launch grid=(256,1,1) block=(256,1,1) lds={lds}\n"
        elif p == "l3":
            body, desc, lds, nwg = gen_l3("l3_kernel", stamps); launches += f"; @launch kernel=l3_kernel grid=({nwg},1,1) block=(256,1,1) lds={lds}\n"; nm = "l3_kernel"
        elif p == "conv":
            body, desc, lds, nwg = gen_conv("cv_kernel", 4, stamps); launches += f"; @launch kernel=cv_kernel grid=({nwg},1,1) block=(256,1,1) lds={lds}\n"; nm = "cv_kernel"
        if SC1 and p not in ('l3', 'fused', 'single', 'fused4'):
            from post import add_store_flags
            body = add_store_flags(body, 'sc1')
        text += kernel_header(nm) + body
        descs += desc
    s = HEADER + launches + '.amdgcn_target "amdgcn-amd-amdhsa--gfx950"\n.text\n' + text + '.section .rodata,"a"\n' + descs
    open(path, "w").write(s)
if __name__ == "__main__":
    args = sys.argv[1:]
    stamps = "stamps" in args
    TOUCH = "touch" in args
    SC1 = "sc1" in args
    import l0 as _l00
    _l00.NOWAIT = "nowait" in args
    _l00.NOTOUCH_SP = "notsp" in args
    _l00.NOTOUCH = "notouch" in args
    _l00.K4 = "k4" in args
    _l00.TLBW = "tlbw" in args
    args = [a for a in args if a != "tlbw"]
    import g1n
    _l00.WITR = g1n.WIT = "wit" in args
    args = [a for a in args if a != "wit"]
    args = [a for a in args if a != "k4"]
    fused4.OUTSC1 = "outsc1" in args
    import conv1
    conv1.UNI = "uni" in args
    args = [a for a in args if a != "uni"]
    fused4.G3P = "g3p" in args
    args = [a for a in args if a != "g3p"]
    fused4.INLINE1 = "inl" in args
    args = [a for a in args if a != "inl"]
    fused4.TAILPF = "tailpf" in args
    args = [a for a in args if a != "tailpf"]
    args = [a for a in args if a not in ("notouch", "outsc1")]
    args = [a for a in args if a != "notsp"]
    args = [a for a in args if a != "nowait"]
    import l0 as _l0, fused as _f
    if "fromxn" in args:
        _l0.NO_XNT = True; _f.FROM_XN = True; _f.CONV_LK = 106240; fused4.FROM_XN = True; fused4.CONV_LK = 106240
    args = [a for a in args if a != "fromxn"]
    import kgen
    kgen.UNAL = "unal" in args
    args = [a for a in args if a != "unal"]
    import g1
    g1.EXP = set(a[2:] for a in args if a.startswith("x_"))
    args = [a for a in args if not a.startswith("x_")]
    import l3
    l3.PRIO = "prio" in args
    l3.NOCONV = "noconv" in args
    parts = [a for a in args[1:] if a not in ("stamps", "touch", "sc1", "prio", "noconv")]
    build(args[0], parts, stamps)
```

```python
from asmlib import *
from core import Core
from g1 import f2u
from g1n import gen_g1n
import l3
from conv1 import Conv1
import math

OUTSC1 = False
TAILPF = False
INLINE1 = False
G3P = False
FROM_XN = False
CONV_LK = 110592
C2, C3, C4, C5 = 0, 16, 32, 48

class F:
    def __init__(self, A, stamps):
        self.A = A; self.stamps = stamps; self.n = 0
    def stamp(self):
        if not self.stamps: return
        A = self.A; i = self.n; self.n += 1
        assert i < 30
        A("s_memtime s[100:101]\ns_waitcnt lgkmcnt(0)\nv_mov_b32 v254, s100\ns_mov_b64 exec, 1")
        A(f"buffer_store_dword v254, v255, s[96:99], 0 offen offset:{8 + 4*i}\ns_mov_b64 exec, -1")
    def rt(self, slot):
        if not self.stamps: return
        A = self.A
        A("s_memrealtime s[100:101]\ns_waitcnt lgkmcnt(0)\nv_mov_b32 v254, s100\ns_mov_b64 exec, 1")
        A(f"buffer_store_dword v254, v255, s[96:99], 0 offen offset:{4*slot}\ns_mov_b64 exec, -1")
    def ptrs_g1(self):
        self.A("s_mov_b32 s28, s78\ns_mov_b32 s29, s79\ns_mov_b32 s54, s80\ns_mov_b32 s55, s81")

FLAG_BYTES = 4 * 16 * 64 * 128
def flag_off(kind, group_s, slot_s):
    return f"s_add_u32 s44, {group_s}, {kind*16}\ns_lshl_b32 s44, s44, 6\ns_add_u32 s44, s44, {slot_s}\ns_lshl_b32 s44, s44, 7"

def signal(A, name, idx_exprs, sync=True):
    if sync: A("s_waitcnt vmcnt(0)\ns_barrier")
    lab = A.newlabel(name + "_sg")
    A(f"s_cmp_eq_u32 s36, 0\ns_cbranch_scc0 {lab}")
    srd_off(A, 24, 32, 33, WS_FLAG, FLAG_BYTES)
    A("v_mov_b32 v251, 1\ns_mov_b64 exec, 1")
    for e in idx_exprs:
        A(e); A("v_mov_b32 v250, s44\nbuffer_store_dword v251, v250, s[24:27], 0 offen sc1")
    A("s_mov_b64 exec, -1")
    A.label(lab)

def wait_flags(A, name, kind, group_s, nslots, barrier=True, allwaves=False, drain=False):
    lab = A.newlabel(name + "_wf")
    if not allwaves: A(f"s_cmp_eq_u32 s36, 0\ns_cbranch_scc0 {lab}")
    srd_off(A, 24, 32, 33, WS_FLAG, FLAG_BYTES)
    A(flag_off(kind, group_s, 0))
    A(f"v_lshlrev_b32 v250, 7, v15\nv_add_u32 v250, s44, v250")
    A(f"s_mov_b32 s46, {hex(((1 << nslots) - 1) & 0xffffffff)}\ns_mov_b32 s47, {hex(((1 << nslots) - 1) >> 32)}")
    poll = A.newlabel(name + "_pl")
    A.label(poll)
    A("buffer_load_dword v251, v250, s[24:27], 0 offen sc1\ns_waitcnt vmcnt(0)")
    A("v_cmp_eq_u32 s[48:49], 1, v251\ns_and_b64 s[48:49], s[48:49], s[46:47]")
    A(f"s_cmp_eq_u64 s[48:49], s[46:47]\ns_cbranch_scc1 {lab}\ns_sleep 2\ns_branch {poll}")
    A.label(lab)
    if drain: A("s_waitcnt vmcnt(0)")
    if barrier: A("s_barrier")

def g2_pre_p(Fo, name):
    A = Fo.A
    srd_off(A, 4, 32, 33, WS_WSP, 2048 * 4096)
    A(f"""
    s_lshl_b32 s44, s34, 7
    s_lshl_b32 s45, s36, 5
    s_add_u32 s44, s44, s45
    v_lshlrev_b32 v1, 4, v15
    s_lshl_b32 s46, s44, 12
    v_add_u32 v2, s46, v1
    v_add_u32 v3, 0x10000, v2
    """)
    for s in range(3):
        A(f"s_mov_b32 s39, {s*4096}")
        for n in range(8 if s < 2 else 4):
            ks, i = n // 2, n % 2
            A(f"buffer_load_dwordx4 {ar(s*32 + ks*8 + i*4, 4)}, v{2+i}, s[4:7], s39 offen offset:{ks*1024} sc1")

def wait_flags2(A, name, a, b):
    lab = A.newlabel(name + "_w2")
    A(f"s_cmp_eq_u32 s36, 0\ns_cbranch_scc0 {lab}")
    srd_off(A, 24, 32, 33, WS_FLAG, FLAG_BYTES)
    A(flag_off(a[0], a[1], 0)); A("s_mov_b32 s47, s44")
    A(flag_off(b[0], b[1], 0))
    A("v_mov_b32 v250, s47\nv_mov_b32 v251, s44\nv_cmp_gt_u32 vcc, 16, v15\ns_nop 1\nv_cndmask_b32 v250, v251, v250, vcc")
    A("v_and_b32 v251, 15, v15\nv_lshlrev_b32 v251, 7, v251\nv_add_u32 v250, v250, v251")
    poll = A.newlabel(name + "_p2")
    A.label(poll)
    A("buffer_load_dword v251, v250, s[24:27], 0 offen sc1\ns_waitcnt vmcnt(0)")
    A("v_cmp_eq_u32 s[48:49], 1, v251")
    A(f"s_cmp_eq_u32 s48, -1\ns_cbranch_scc1 {lab}\ns_sleep 1\ns_branch {poll}")
    A.label(lab)
    A("s_barrier")

def gen_g2f(Fo, name, post_loop=None, part="early"):
    A = Fo.A; stamp = Fo.stamp
    SLOT = 36864
    ACC = 128; PR = 0; QV = [16, 52]; Z1V = 88; Z1A = 128
    vP = [2, 3]; vQd = [4, 5, 6]; vQr = [8, 9, 10, 11]; vB = [12, 13]; vL = 15
    def dm(slot, j):
        g = j // 4
        pre = f"s_add_u32 m0, s{40+slot}, {g*4096}\ns_nop 0\n" if j % 4 == 0 else ""
        return pre + f"buffer_load_dwordx4 v{vQd[g]}, s[8:11], s38 offen offset:{(j%4)*1024} sc1 lds"
    def pl(slot, n):
        ks, i = n // 2, n % 2
        return f"buffer_load_dwordx4 {ar(PR + slot*32 + ks*8 + i*4, 4)}, v{vP[i]}, s[4:7], s39 offen offset:{ks*1024} sc1"
    def G(slot):
        ops = []
        for j in range(9):
            ops.append(dm(slot, j))
            if j < 8: ops.append(pl(slot, j))
        ops[-1] += f"\ns_add_u32 s38, s38, {SLOT}\ns_add_u32 s39, s39, 4096"
        return ops
    if part == "early":
        srd_off(A, 4, 32, 33, WS_WSP, 2048 * 4096)
        A("s_mul_i32 s44, s35, 589824")
        A(f"s_add_u32 s44, s44, {WS_Z2N}")
        srd_off(A, 8, 32, 33, "s44", 589824)
        A(f"""
        s_lshl_b32 s44, s34, 7
        s_lshl_b32 s45, s36, 5
        s_add_u32 s44, s44, s45
        v_lshlrev_b32 v1, 4, v{vL}
        s_lshl_b32 s46, s44, 12
        v_add_u32 v{vP[0]}, s46, v1
        v_add_u32 v{vP[1]}, 0x10000, v{vP[0]}
        s_mul_i32 s45, s36, 9216
        v_add_u32 v{vQd[0]}, s45, v1
        v_add_u32 v{vQd[1]}, 0x1000, v{vQd[0]}
        v_add_u32 v{vQd[2]}, 0x2000, v{vQd[0]}
        s_mov_b32 s40, s45
        s_add_u32 s41, s45, {SLOT}
        s_add_u32 s42, s45, {2*SLOT}
        s_add_u32 s43, s45, {3*SLOT}
        """)
        wait_flags2(A, name, (0, "s35"), (1, "s34"))
        A("s_mov_b32 s38, 0\ns_mov_b32 s39, 0")
        for op in G(0): A(op)
        Fo.g2_late_ops = G(1) + G(2)[0:9]
        return
    srd_off(A, 16, 32, 33, WS_H, 128 * 72 * 1024)
    srd(A, 20, 82, 83, 4096)
    A(f"""
    s_lshl_b32 s44, s34, 7
    s_lshl_b32 s45, s36, 5
    s_add_u32 s44, s44, s45
    v_and_b32 v1, 15, v{vL}
    v_add_u32 v1, s44, v1
    v_lshlrev_b32 v{vB[0]}, 1, v1
    v_add_u32 v{vB[1]}, 32, v{vB[0]}
    v_lshlrev_b32 v1, 4, v{vL}
    v_mov_b32 v{vQr[0]}, v1
    v_add_u32 v{vQr[1]}, {SLOT}, v1
    v_add_u32 v{vQr[2]}, {2*SLOT}, v1
    v_add_u32 v{vQr[3]}, {3*SLOT}, v1
    """)
    for i in range(2):
        A(f"buffer_load_ushort v{124+i}, v{vB[i]}, s[20:23], 0 offen")
    for r in range(72): A(f"v_mov_b32 v{ACC+r}, 0")
    A("s_waitcnt vmcnt(26)")
    A("s_barrier")
    def qreads(buf, slot, ks):
        return [f"ds_read_b128 {vr(QV[buf]+jn*4,4)}, v{vQr[slot]} offset:{(ks*9+jn)*1024}" for jn in range(9)]
    def mfmas(buf, slot, ks):
        out = []
        for jn in range(9):
            for i in range(2):
                c = vr(ACC + (i*9+jn)*4, 4)
                out.append(f"v_mfma_f32_16x16x32_bf16 {c}, {vr(QV[buf]+jn*4,4)}, {ar(PR+slot*32+ks*8+i*4,4)}, {c}")
        return out
    for x in qreads(0, 0, 0): A(x)
    stamp()
    A("s_mov_b32 s37, 0")
    A.label(f"{name}_loop")
    for u in range(4):
        g = G((u + 3) & 3); gprev = G((u + 2) & 3)
        for ks in range(4):
            A("s_waitcnt lgkmcnt(0)")
            rd = qreads((ks + 1) & 1, u, ks + 1) if ks < 3 else qreads(0, (u + 1) & 3, 0)
            gl = [gprev[9:13], gprev[13:17], g[0:5], g[5:9]][ks]
            mf = mfmas(ks & 1, u, ks)
            for j in range(18):
                A(mf[j])
                if j < 9: A(rd[j])
                elif (j - 9) % 2 == 0 and (j - 9) // 2 < len(gl): A(gl[(j - 9) // 2])
            if ks == 1:
                A("s_waitcnt vmcnt(17)")
                A("s_barrier")
                if u == 1:
                    skip = A.newlabel(name + "_sk")
                    A(f"s_cmp_eq_u32 s37, 3\ns_cbranch_scc0 {skip}")
                    for v in vP + vQd: A(f"v_mov_b32 v{v}, 0x80000000")
                    if TAILPF:
                        for r in range(4): A(f"s_mov_b32 s{40+r}, 147456")
                    A.label(skip)
                if u == 2 and TAILPF:
                    skip2 = A.newlabel(name + "_sk2")
                    A(f"s_cmp_eq_u32 s37, 3\ns_cbranch_scc0 {skip2}")
                    A("s_mov_b32 s68, 0")
                    post_loop()
                    A.label(skip2)
    A(f"s_add_u32 s37, s37, 1\ns_cmp_lt_u32 s37, 4\ns_cbranch_scc1 {name}_loop")
    stamp()
    A("s_waitcnt vmcnt(0)\ns_barrier")
    if post_loop and not TAILPF: post_loop()
    pfo = []
    for r in range(36): A(f"v_accvgpr_read_b32 v{Z1V+r}, a{Z1A+r}")
    A("v_lshlrev_b32 v200, 16, v124\nv_lshlrev_b32 v201, 16, v124\nv_lshlrev_b32 v202, 16, v125\nv_lshlrev_b32 v203, 16, v125")
    A(f"""
    s_lshl_b32 s66, s34, 3
    s_lshl_b32 s67, s36, 1
    s_add_u32 s66, s66, s67
    s_mul_i32 s66, s66, 72
    s_lshr_b32 s67, s35, 1
    s_mul_i32 s67, s67, 9
    s_add_u32 s66, s66, s67
    s_and_b32 s95, s35, 1
    s_mul_i32 s90, s95, 5
    s_add_u32 s90, s90, s66
    s_lshl_b32 s90, s90, 10
    s_add_u32 s91, s66, 4
    s_lshl_b32 s91, s91, 10
    s_lshl_b32 s94, s95, 3
    s_add_u32 s91, s91, s94
    s_add_u32 s92, s90, 73728
    s_add_u32 s93, s91, 73728
    v_lshlrev_b32 v1, 4, v{vL}
    """)
    T = 204
    for i in range(2):
        for jn in range(9):
            c = ACC + (i*9+jn)*4; z = Z1V + (i*9+jn)*2; t = T + ((i*9+jn) & 1) * 4
            A(f"v_lshlrev_b32 v{t}, 16, v{z}")
            A(f"v_and_b32 v{t+1}, 0xffff0000, v{z}")
            A(f"v_lshlrev_b32 v{t+2}, 16, v{z+1}")
            A(f"v_and_b32 v{t+3}, 0xffff0000, v{z+1}")
            A(f"v_pk_add_f32 {vr(c,2)}, {vr(c,2)}, {vr(200+2*i,2)}")
            A(f"v_pk_add_f32 {vr(c+2,2)}, {vr(c+2,2)}, {vr(200+2*i,2)}")
            A(f"v_pk_mul_f32 {vr(c,2)}, {vr(c,2)}, {vr(t,2)}")
            A(f"v_pk_mul_f32 {vr(c+2,2)}, {vr(c+2,2)}, {vr(t+2,2)}")
            A(f"v_cvt_pk_bf16_f32 v{z}, v{c}, v{c+1}")
            A(f"v_cvt_pk_bf16_f32 v{z+1}, v{c+2}, v{c+3}")
            if pfo: A(pfo.pop(0))
    odd = A.newlabel(name + "_odd"); done = A.newlabel(name + "_sd")
    A(f"""
    v_bfe_u32 v2, v{vL}, 4, 1
    v_mul_u32_u24 v2, 73728, v2
    v_lshrrev_b32 v3, 5, v{vL}
    v_lshlrev_b32 v3, 8, v3
    v_add_u32 v2, v2, v3
    v_and_b32 v3, 15, v{vL}
    v_lshlrev_b32 v3, 4, v3
    v_add_u32 v2, v2, v3
    s_add_u32 s91, s66, 4
    s_lshl_b32 s91, s91, 10
    s_lshl_b32 s94, s95, 9
    s_add_u32 s91, s91, s94
    """)
    def single(jn):
        a0 = Z1V + jn*2; a1 = Z1V + (9+jn)*2
        A(f"v_mov_b32 v4, v{a0}\nv_mov_b32 v5, v{a0+1}\nv_mov_b32 v6, v{a1}\nv_mov_b32 v7, v{a1+1}\ns_nop 1")
        A("v_permlane16_swap_b32 v4, v6\nv_permlane16_swap_b32 v5, v7\ns_nop 0")
        A("buffer_store_dwordx4 v[4:7], v2, s[16:19], s91 offen sc1")
    A(f"s_cmp_eq_u32 s95, 1\ns_cbranch_scc1 {odd}")
    for i in range(2):
        for p in range(4):
            A(f"buffer_store_dwordx4 {vr(Z1V+(i*9+2*p)*2,4)}, v1, s[16:19], s{90 if i==0 else 92} offen offset:{p*1024} sc1")
    single(8)
    A(f"s_branch {done}")
    A.label(odd)
    for i in range(2):
        for p in range(4):
            A(f"buffer_store_dwordx4 {vr(Z1V+(i*9+1+2*p)*2,4)}, v1, s[16:19], s{90 if i==0 else 92} offen offset:{p*1024} sc1")
    single(0)
    A.label(done)

def g3_pre_q(Fo, name):
    A = Fo.A
    A(f"""
    s_lshr_b32 s45, s2, 5
    s_min_u32 s45, s45, 5
    s_mul_i32 s44, s45, {72*6*1024}
    s_add_u32 s44, s44, {WS_WOT}
    """)
    srd_off(A, 4, 32, 33, "s44", 72*6*1024)
    A("v_lshlrev_b32 v1, 4, v15\ns_lshl_b32 s40, s36, 10\nv_add_u32 v2, s40, v1")
    for j in range(1, 6): A(f"v_add_u32 v{2+j}, {j*4096}, v2")
    for s in range(4):
        A(f"s_mov_b32 s38, {s*24*1024}")
        for j in range(6):
            A(f"s_add_u32 m0, s40, {s*24576 + j*4096}\ns_nop 0\nbuffer_load_dwordx4 v{2+j}, s[4:7], s38 offen lds")

def gen_g3f(Fo, name):
    A = Fo.A; stamp = Fo.stamp
    R = 6; S = 4
    ACC = 16; QB = [96, 120]; PR = 0
    vQd = [2, 3, 4, 5, 6, 7]; vP = [8]; vL = 15; vQr = [9, 10, 11, 12, 13, 14]
    A(f"""
    s_and_b32 s44, s2, 7
    s_lshr_b32 s45, s2, 3
    s_lshl_b32 s34, s44, 2
    s_and_b32 s46, s45, 3
    s_add_u32 s34, s34, s46
    s_lshr_b32 s35, s45, 2
    v_lshlrev_b32 v1, 4, v{vL}
    s_lshl_b32 s44, s34, 2
    s_add_u32 s58, s44, s36
    s_mul_i32 s44, s58, 73728
    v_add_u32 v{vP[0]}, s44, v1
    """)
    A(f"s_mul_i32 s44, s35, {72*6*1024}\ns_add_u32 s44, s44, {WS_WOT}")
    srd_off(A, 4, 32, 33, "s44", 72*6*1024)
    srd_off(A, 8, 32, 33, WS_H, 128 * 72 * 1024)
    c = Core(A, name + "_g", 1, 6, 72, S, R, ACC, QB, "a", PR, vP, vQd, vQr, 8, 4, "s38", "s39", "s40", "s37", 1024, orient="QP")
    c.p_flags = " sc1"
    c.setup_addr(1, "s36", 12)
    h = c.gsize // 2
    def split(slot):
        ops = c.G(slot);
        return ops
    pre_a = []; pre_b = []; post = []
    for s in range(R - 1):
        ops = c.G(s)
        ops = ops if s < R - 2 else ops[:h]
        q = [o for o in ops if " lds" in o]; p = [o for o in ops if " lds" not in o]
        strip = lambda o: o.split("\ns_add_u32 s38, s38")[0]
        (pre_a if s < 4 else pre_b).append(f"s_mov_b32 s38, {s*S*6*1024}"); (pre_a if s < 4 else pre_b).extend(strip(o) for o in q)
        post.append(f"s_mov_b32 s39, {s*S*1024}"); post += [strip(o) for o in p]
    if G3P:
        strip = lambda o: o.split("\ns_add_u32 s38, s38")[0]
        Qs = []; Ps = []
        for s in range(R - 1):
            ops = c.G(s); ops = ops if s < R - 2 else ops[:h]
            Qs.append([f"s_mov_b32 s38, {s*S*6*1024}"] + [strip(o) for o in ops if " lds" in o])
            Ps.append([f"s_mov_b32 s39, {s*S*1024}"] + [strip(o) for o in ops if " lds" not in o])
        A("s_barrier")
        for s in (0, 1):
            for o in Qs[s]: A(o)
        srd(A, 12, 76, 77, 2048 * 1152)
        srd_off(A, 16, 32, 33, WS_S, 288 * 8192)
        srd(A, 20, 84, 85, 2048 * 1152)
        for r in range(24): A(f"v_mov_b32 v{ACC+r}, 0")
        stamp()
        A("s_lshr_b32 s59, s34, 1")
        wait_flags(A, name, 2, "s59", 16, drain=True)
        Fo.sig_st_nosync()
        stamp()
        for s in (0, 1):
            for o in Ps[s]: A(o)
        for s in (2, 3, 4):
            for o in Qs[s] + Ps[s]: A(o)
        A(f"s_mov_b32 s38, {(R-2)*S*6*1024}\ns_mov_b32 s39, {(R-2)*S*1024}")
        A("s_waitcnt vmcnt(25)\ns_barrier")
    else:
        if TAILPF: A("s_barrier")
        for o in pre_a: A(o)
        Fo.conv_fin()
        c.setup_addr(1, "s36", 12)
        A("s_barrier")
        for o in pre_b: A(o)
        srd(A, 12, 76, 77, 2048 * 1152)
        srd_off(A, 16, 32, 33, WS_S, 288 * 8192)
        srd(A, 20, 84, 85, 2048 * 1152)
        for r in range(24): A(f"v_mov_b32 v{ACC+r}, 0")
        stamp()
        A("s_lshr_b32 s59, s34, 1")
        wait_flags(A, name, 2, "s59", 16)
        stamp()
        for o in post: A(o)
        A(f"s_mov_b32 s38, {(R-2)*S*6*1024}\ns_mov_b32 s39, {(R-2)*S*1024}")
        Fo.pre_g3()
    for x in c.qreads(0, 0, 0): A(x)
    stamp()
    def tail(A):
        A(f"""
        v_and_b32 v1, 15, v{vL}
        s_lshl_b32 s44, s58, 4
        v_add_u32 v1, s44, v1
        v_mul_u32_u24 v1, 1152, v1
        v_lshrrev_b32 v40, 4, v{vL}
        v_lshlrev_b32 v40, 3, v40
        v_add_u32 v1, v1, v40
        s_mul_i32 s44, s35, 192
        v_add_u32 v1, s44, v1
        """)
        for jd in range(6):
            A(f"buffer_load_dwordx2 {vr(52+2*jd,2)}, v1, s[12:15], 0 offen offset:{jd*32}")
    def late(A):
        wait_flags(A, name, 3, "s35", 48, barrier=False, allwaves=True)
        A(f"""
        v_lshrrev_b32 v42, 4, v{vL}
        v_lshlrev_b32 v42, 14, v42
        v_and_b32 v43, 15, v{vL}
        v_lshlrev_b32 v43, 2, v43
        v_add_u32 v42, v42, v43
        s_mul_i32 s44, s35, {48*8192}
        s_lshl_b32 s45, s58, 6
        s_add_u32 s44, s44, s45
        """)
        for jd in range(6):
            for e in range(2):
                A(f"s_add_u32 s45, s44, {(8*jd + e)*8192}")
                A(f"buffer_load_dword v{64+2*jd+e}, v42, s[16:19], s45 offen sc1")
    c.loop(True, tail_hook=tail, late_hook=late)
    stamp()
    NL2E = -math.log2(math.e)
    A(f"v_mov_b32 v76, {hex(f2u(NL2E))}\nv_mov_b32 v77, {hex(f2u(NL2E))}\nv_mov_b32 v78, 1.0\nv_mov_b32 v79, 1.0")
    for jd in range(6):
        cc = ACC + jd*4; t = 80 + (jd % 2) * 4
        A(f"v_pk_mul_f32 {vr(t,2)}, {vr(cc,2)}, v[76:77]")
        A(f"v_pk_mul_f32 {vr(t+2,2)}, {vr(cc+2,2)}, v[76:77]")
        for r in range(4): A(f"v_exp_f32 v{t+r}, v{t+r}")
        A(f"v_pk_add_f32 {vr(t,2)}, {vr(t,2)}, v[78:79]")
        A(f"v_pk_add_f32 {vr(t+2,2)}, {vr(t+2,2)}, v[78:79]")
        for r in range(4): A(f"v_rcp_f32 v{t+r}, v{t+r}")
        A("s_nop 0")
        A(f"v_pk_mul_f32 {vr(cc,2)}, {vr(cc,2)}, {vr(t,2)}")
        A(f"v_pk_mul_f32 {vr(cc+2,2)}, {vr(cc+2,2)}, {vr(t+2,2)}")
    A("s_waitcnt vmcnt(0)")
    for jd in range(6):
        cc = ACC + jd*4; t = 88 + (jd % 2) * 8
        A(f"v_lshlrev_b32 v{t+4}, 16, v{64+2*jd}\nv_and_b32 v{t+5}, 0xffff0000, v{64+2*jd}")
        A(f"v_lshlrev_b32 v{t+6}, 16, v{65+2*jd}\nv_and_b32 v{t+7}, 0xffff0000, v{65+2*jd}")
        A(f"v_lshlrev_b32 v{t}, 16, v{52+2*jd}\nv_and_b32 v{t+1}, 0xffff0000, v{52+2*jd}")
        A(f"v_lshlrev_b32 v{t+2}, 16, v{53+2*jd}\nv_and_b32 v{t+3}, 0xffff0000, v{53+2*jd}")
        A(f"v_pk_fma_f32 {vr(cc,2)}, {vr(cc,2)}, {vr(t+4,2)}, {vr(t,2)}")
        A(f"v_pk_fma_f32 {vr(cc+2,2)}, {vr(cc+2,2)}, {vr(t+6,2)}, {vr(t+2,2)}")
        o = 104 + (jd // 2) * 4 + (jd % 2) * 2
        A(f"v_cvt_pk_bf16_f32 v{o}, v{cc}, v{cc+1}")
        A(f"v_cvt_pk_bf16_f32 v{o+1}, v{cc+2}, v{cc+3}")
    A(f"""
    v_and_b32 v1, 15, v{vL}
    s_lshl_b32 s44, s58, 4
    v_add_u32 v1, s44, v1
    v_mul_u32_u24 v1, 1152, v1
    v_bfe_u32 v12, v{vL}, 4, 1
    v_lshlrev_b32 v12, 5, v12
    v_add_u32 v1, v1, v12
    v_lshrrev_b32 v12, 5, v{vL}
    v_lshlrev_b32 v12, 4, v12
    v_add_u32 v1, v1, v12
    s_mul_i32 s44, s35, 192
    v_add_u32 v1, s44, v1
    """)
    for p in range(3):
        o = 104 + p*4
        A(f"v_permlane16_swap_b32 v{o}, v{o+2}")
        A(f"v_permlane16_swap_b32 v{o+1}, v{o+3}")
    A("s_nop 0")
    for p in range(3):
        A(f"buffer_store_dwordx4 {vr(104+p*4,4)}, v1, s[20:23], 0 offen offset:{p*64}{' sc1' if OUTSC1 else ''}")

def gen_fused(name, stamps=False):
    A = Asm(); Fo = F(A, stamps)
    A(f"""
    s_cmp_ge_u32 s2, 256
    s_cbranch_scc1 {name}_end
    s_load_dwordx2 s[76:77], s[0:1], 0
    s_load_dwordx2 s[88:89], s[0:1], 48
    s_load_dwordx2 s[78:79], s[0:1], 64
    s_load_dwordx4 s[80:83], s[0:1], 72
    s_load_dwordx4 s[84:87], s[0:1], 96
    s_load_dwordx2 s[32:33], s[0:1], 112
    s_and_b32 s44, s2, 7
    s_lshr_b32 s45, s2, 3
    s_and_b32 s34, s44, 1
    s_lshl_b32 s34, s34, 3
    s_and_b32 s46, s45, 7
    s_add_u32 s34, s34, s46
    s_lshr_b32 s35, s44, 1
    s_lshl_b32 s35, s35, 2
    s_lshr_b32 s46, s45, 3
    s_add_u32 s35, s35, s46
    v_lshrrev_b32 v1, 6, v0
    v_and_b32 v15, 63, v0
    s_nop 0
    v_readfirstlane_b32 s36, v1
    """)
    if stamps:
        A("s_waitcnt lgkmcnt(0)")
        srd_off(A, 96, 32, 33, WS_STAMP + 0x100000, 0x40000)
        A("s_lshl_b32 s44, s2, 2\ns_add_u32 s44, s44, s36\ns_lshl_b32 s44, s44, 7\nv_mov_b32 v255, s44")
        Fo.rt(0); Fo.stamp()
    cv = Conv1(A, name + "_cv", CONV_LK, CONV_LK + 41216, FROM_XN, remap=True, dyn=TAILPF)
    subP = name + "_subP"; subC = name + "_subC"; subF = name + "_subF"; emitted = set()
    def back(target): return (target == subP and 'P' in emitted) or (target in (subC, subF) and 'C' in emitted)
    def call(target):
        ref = A.newlabel(name + "_pc")
        A("s_getpc_b64 s[28:29]")
        A.label(ref)
        if INLINE1 and back(target):
            A(f"s_sub_u32 s28, s28, {ref}-{target}\ns_subb_u32 s29, s29, 0\ns_swappc_b64 s[30:31], s[28:29]")
        else:
            A(f"s_add_u32 s28, s28, {target}-{ref}\ns_addc_u32 s29, s29, 0\ns_swappc_b64 s[30:31], s[28:29]")
    def midsig():
        lab = A.newlabel(name + "_ms")
        A(f"s_cmp_eq_u32 s36, 0\ns_cbranch_scc0 {lab}")
        srd_off(A, 24, 32, 33, WS_FLAG, FLAG_BYTES)
        A("v_mov_b32 v251, 1\ns_mov_b64 exec, 1")
        for reg in (61, 62):
            sk = A.newlabel(name + "_mk")
            A(f"s_cmp_eq_u32 s{reg}, -1\ns_cbranch_scc1 {sk}\nv_mov_b32 v250, s{reg}\nbuffer_store_dword v251, v250, s[24:27], 0 offen sc1")
            A.label(sk)
        A("s_mov_b64 exec, -1")
        A.label(lab)
    def set_ret(target):
        ref = A.newlabel(name + "_pc")
        A("s_getpc_b64 s[30:31]")
        A.label(ref)
        A(f"s_add_u32 s30, s30, {target}-{ref}\ns_addc_u32 s31, s31, 0")
    def bodyP():
        A.label(subP); cv.prefetch("s73"); A("s_setpc_b64 s[30:31]")
    def bodyCF(ret2):
        A.label(subC)
        def split():
            A("s_setpc_b64 s[30:31]")
            if ret2:
                A.label(ret2[0]); set_ret(ret2[1])
            A.label(subF)
        cv.compute(False, "s72", None, mid_hook=midsig, dyn=True, split=split, saA=252)
        A("s_setpc_b64 s[30:31]")
    def prefetch(chs):
        A(f"s_mov_b32 s73, {chs}")
        if INLINE1 and "P" not in emitted:
            emitted.add("P"); r = A.newlabel(name + "_rp"); set_ret(r); bodyP(); A.label(r)
        else: call(subP)
    def compute(second, wait_n, f1, f2, finish=True):
        for reg, f in ((61, f1), (62, f2)):
            if f: A(f); A(f"s_mov_b32 s{reg}, s44")
            else: A(f"s_mov_b32 s{reg}, -1")
        A(f"s_mov_b32 s60, {1 if second else 0}")
        A(f"s_waitcnt vmcnt({wait_n})")
        if INLINE1 and "C" not in emitted:
            emitted.add("C")
            r1 = A.newlabel(name + "_r1"); r2 = A.newlabel(name + "_r2")
            set_ret(r1); bodyCF((r1, r2)); A.label(r2)
            return
        call(subC)
        if finish: call(subF)
    A("s_lshl_b32 s70, s2, 1\ns_add_u32 s71, s70, 1\ns_mov_b32 s72, s2")
    def pfopsA():
        if TAILPF: A("s_mov_b32 s68, 110592")
        return cv.prefetch_ops("s70")
    Fo.conv_prefetch_ops = pfopsA
    def convA():
        if TAILPF: A("s_mov_b32 s68, 110592")
        import g1n
        compute(False, 12 if g1n.SPREAD else 0, None, None)
    Fo.conv_A = convA
    Fo.sig_z2n = lambda: signal(A, name, [flag_off(0, "s35", "s34"), "s_lshr_b32 s45, s2, 4\ns_and_b32 s46, s2, 15\n" + flag_off(1, "s45", "s46")], sync=False)
    Fo.g2_early = lambda: gen_g2f(Fo, name + "_g2", part="early")
    gen_g1n(name + "_g1", Fo)
    gen_g2f(Fo, name + "_g2", post_loop=lambda: prefetch("s71"), part="late")
    Fo.stamp()
    compute(True, 9, flag_off(2, "s34", "s35"), None)
    Fo.conv_fin = lambda: None
    sigS = lambda: signal(A, name, ["s_mul_i32 s45, s72, 1366\ns_lshr_b32 s45, s45, 16\ns_mul_i32 s46, s45, 48\ns_sub_u32 s46, s72, s46\n" + flag_off(3, "s45", "s46")])
    Fo.stamp()
    xtra = A.newlabel(name + "_x"); fin = A.newlabel(name + "_fin")
    A(f"s_lshr_b32 s44, s2, 3\ns_cmp_ge_u32 s44, 24\ns_cbranch_scc1 {xtra}")
    Fo.pre_g3 = sigS
    Fo.sig_st_nosync = lambda: signal(A, name, ["s_mul_i32 s45, s72, 1366\ns_lshr_b32 s45, s45, 16\ns_mul_i32 s46, s45, 48\ns_sub_u32 s46, s72, s46\n" + flag_off(3, "s45", "s46")], sync=False)
    gen_g3f(Fo, name + "_g3")
    A(f"s_branch {fin}")
    A.label(xtra)
    sigS()
    A(f"s_sub_u32 s44, s2, 192\ns_cmp_ge_u32 s44, 32\ns_cbranch_scc1 {fin}")
    A("s_add_u32 s72, s2, 64\ns_lshl_b32 s70, s72, 1\ns_add_u32 s71, s70, 1")
    if TAILPF: A("s_mov_b32 s68, 110592")
    prefetch("s70"); compute(False, 0, None, None)
    A("s_barrier")
    prefetch("s71"); compute(True, 0, None, None)
    sigS()
    A.label(fin)
    if stamps:
        A("s_waitcnt vmcnt(0)")
        Fo.n = 28; Fo.stamp(); Fo.rt(1)
    A.label(f"{name}_end")
    A("s_endpgm")
    if "P" not in emitted: bodyP()
    if "C" not in emitted: bodyCF(None)
    return A.text(), kernel_desc(name, 256, 256), 163840
```

```python
from asmlib import *
from kgen import KR_PITCH, KR1
import kgen
UNI = False
KBUF = 41216; UBUF = 8192

import re
class RemapAsm:
    MAP = {1: 244, 5: 234, 6: 235, 7: 236, 8: 237, 9: 238, 10: 239, 11: 240, 12: 241, 13: 242, 14: 243}
    def __init__(self, A): self.A = A
    def __call__(self, s):
        s = s.replace("buffer_load_ushort a168", "buffer_load_ushort v248").replace("v_accvgpr_read_b32 v14, a168", "v_mov_b32 v14, v248")
        s = re.sub(r"\bv(\d+)\b", lambda m: f"v{self.MAP.get(int(m.group(1)), int(m.group(1)))}", s)
        self.A(s)
    def label(self, n): self.A.label(n)
    def newlabel(self, p="L"): return self.A.newlabel(p)

class Conv1:
    def __init__(self, A, name, LK, LU, from_xn=False, remap=False, dyn=False):
        self.dyn = dyn
        if dyn: LK = 0; LU = 41216
        if remap: A = RemapAsm(A)
        self.A = A; self.name = name; self.LK = LK; self.LU = LU; self.from_xn = from_xn; self.LR = LU + UBUF
    def prefetch(self, chs):
        A = self.A; LK = self.LK; LU = self.LU
        srd_off(A, 4, 32, 33, WS_K, 576 * KR_PITCH)
        srd_off(A, 8, 32, 33, WS_XNT, 576 * 4096)
        vKd = 252
        A(f"v_lshlrev_b32 v{vKd}, 4, v15")
        A(f"s_mul_i32 s44, {chs}, {KR_PITCH}")
        A("s_lshl_b32 s45, s36, 2\ns_add_u32 s44, s44, s45")
        for cc in range(2):
            A(f"s_lshl_b32 s45, s36, 1\ns_add_u32 s45, s45, {cc}")
            A("s_mul_i32 s46, s45, 320")
            A(f"s_lshl_b32 s48, s36, 2\ns_add_u32 s48, s48, {cc}\ns_cmp_ge_u32 s45, 5\ns_subb_u32 s48, s48, 0")
            A(f"s_add_u32 s46, s46, s48\ns_lshl_b32 s46, s46, 4")
            if self.dyn: A("s_add_u32 s46, s46, s68")
            A(f"s_add_u32 s48, s44, {cc*(2 if kgen.UNAL else KR1)}")
            for it in range(5):
                A(f"s_add_u32 m0, s46, {LK + it*1024}\ns_add_u32 s49, s48, {it*1024}")
                A(f"buffer_load_dwordx4 v{vKd}, s[4:7], s49 offen{' sc1' if self.from_xn else ''} lds")
        if self.from_xn:
            srd_off(A, 8, 32, 33, WS_XN, 128 * 18 * 1024)
            A(f"""
            s_and_b32 s46, {chs}, 0xfffffffe
            s_lshr_b32 s44, s46, 5
            s_lshl_b32 s44, s44, 10
            s_bfe_u32 s45, s46, 0x20003
            s_lshl_b32 s45, s45, 8
            s_add_u32 s44, s44, s45
            s_and_b32 s45, s46, 7
            s_lshl_b32 s45, s45, 1
            s_add_u32 s44, s44, s45
            s_mul_i32 s45, s36, {8*4*18432}
            s_add_u32 s44, s44, s45
            v_lshrrev_b32 v252, 4, v15
            v_mul_u32_u24 v252, 18432, v252
            v_and_b32 v253, 15, v15
            v_lshlrev_b32 v253, 4, v253
            v_add_u32 v252, v252, v253
            s_lshl_b32 s46, s36, 11
            s_add_u32 s46, s46, {self.LR}
            """)
            for j in range(8):
                A(f"s_add_u32 s45, s44, {j*4*18432}\ns_add_u32 m0, s46, {j*256}\ns_nop 0\nbuffer_load_dword v252, s[8:11], s45 offen sc1 lds")
        else:
          A(f"s_lshl_b32 s46, {chs}, 12")
          for j in range(2):
            A(f"""
            s_lshl_b32 s44, s36, 7
            s_add_u32 s44, s44, {64*j}
            v_add_u32 v252, s44, v15
            v_mul_u32_u24 v253, 6554, v252
            v_lshrrev_b32 v253, 16, v253
            v_mul_u32_u24 v250, 10, v253
            v_sub_u32 v250, v252, v250
            v_subrev_u32 v253, 15, v253
            v_cmp_gt_u32 vcc, 32, v253
            v_cmp_gt_u32 s[52:53], 8, v250
            v_lshlrev_b32 v253, 7, v253
            v_lshl_add_u32 v253, v250, 4, v253
            s_and_b64 vcc, vcc, s[52:53]
            v_mov_b32 v250, 0x80000000
            s_nop 1
            v_cndmask_b32 v253, v250, v253, vcc
            s_lshl_b32 s45, s36, 11
            {"s_add_u32 s45, s45, s68" if self.dyn else "s_nop 0"}
            s_add_u32 m0, s45, {LU + j*1024}
            s_nop 0
            buffer_load_dwordx4 v253, s[8:11], s46 offen lds
            """)
        srd(A, 12, 88, 89, 1152)
        A(f"s_lshl_b32 s44, {chs}, 1\nv_mov_b32 v252, s44\nbuffer_load_ushort a168, v252, s[12:15], 0 offen")
    def prefetch_ops(self, chs):
        class Rec:
            def __init__(s2): s2.l = []
            def __call__(s2, t): s2.l += [x.strip() for x in t.strip("\n").split("\n") if x.strip()]
            def label(s2, n): raise Exception
            def newlabel(s2, p="L"): raise Exception
        rec = Rec(); saveA = self.A
        self.A = RemapAsm(rec) if isinstance(saveA, RemapAsm) else rec
        self.prefetch(chs)
        self.A = saveA
        ops = []; cur = []
        for l in rec.l:
            cur.append(l)
            if l.startswith("buffer_load"):
                ops.append("\n".join(cur)); cur = []
        assert not cur
        return ops
    def run(self, second, pair_s, mid_hook=None, saA=164, done_hook=None):
        A = self.A; name = self.name; LK = self.LK; LU = self.LU; LS = LK
        vA = 5; vB = 6; vA0 = 7; vB0 = 8; vBz = 9
        A(f"""
        v_and_b32 v16, 15, v15
        v_sub_u32 v17, 0, v16
        v_and_b32 v17, 7, v17
        v_mul_u32_u24 v18, 320, v17
        v_lshrrev_b32 v19, 1, v17
        v_lshlrev_b32 v19, 2, v19
        v_and_b32 v20, 1, v17
        v_add_u32 v19, v19, v20
        v_cmp_le_u32 vcc, 5, v17
        v_add_u32 v18, v18, v19
        s_nop 0
        v_cndmask_b32 v20, 0, 1, vcc
        v_sub_u32 v18, v18, v20
        v_lshrrev_b32 v19, 4, v15
        v_add_u32 v18, v18, v19
        v_add_u32 v19, 7, v16
        v_lshrrev_b32 v19, 3, v19
        v_sub_u32 v18, v18, v19
        v_lshlrev_b32 v18, 4, v18
        v_add_u32 v{vA0}, {32 + LK}, v18
        {f"v_add_u32 v{vA0}, s68, v{vA0}" if self.dyn else "s_nop 0"}
        v_mul_u32_u24 v18, 160, v16
        v_lshrrev_b32 v19, 4, v15
        v_lshlrev_b32 v19, 4, v19
        v_add_u32 v{vB0}, v18, v19
        s_cmp_eq_u32 s36, 0
        s_cselect_b32 s50, 0, 24
        s_cselect_b32 s51, 6, 2
        s_cselect_b32 s54, 0, 2
        s_cmp_ge_u32 s36, 2
        s_cselect_b32 s51, 0, s51
        s_cselect_b32 s54, 3, s54
        s_cmp_eq_u32 s36, 2
        s_cselect_b32 s50, 40, s50
        s_cmp_eq_u32 s36, 3
        s_cselect_b32 s50, 52, s50
        {"s_lshl_b32 s50, s36, 3" if UNI else "s_nop 0"}
        s_lshl_b32 s44, s50, 6
        v_add_u32 v{vA}, s44, v{vA0}
        s_lshr_b32 s44, s50, 1
        s_mul_i32 s44, s44, 160
        s_add_u32 s44, s44, {LU}
        {"s_add_u32 s44, s44, s68" if self.dyn else "s_nop 0"}
        v_add_u32 v{vB}, s44, v{vB0}
        v_subrev_u32 v{vBz}, 2560, v{vB}
        """)
        FR = [24, 32, 40, 48]; BR = [56, 64, 72, 80]; ACC = 96
        for r in range(32): A(f"v_mov_b32 v{ACC+r}, 0")
        return FR, BR, ACC, vA, vB, vBz
    def compute(self, second, pair_s, wait_n, mid_hook=None, saA=164, pre_hook=None, mid_wait=0, dyn=False, split=None):
        A = self.A; name = self.name; LK = self.LK; LU = self.LU; LS = LK
        FR, BR, ACC, vA, vB, vBz = self.run(second, pair_s)
        A(f"s_waitcnt vmcnt({wait_n})\ns_barrier" if wait_n is not None else "s_barrier")
        if pre_hook:
            pre_hook(); mid_hook = None
        if self.from_xn:
            sel = "0x07060302" if second else "0x05040100"
            selasm = f"s_mov_b32 s44, {sel}" if not dyn else "s_mov_b32 s44, 0x05040100\n            s_cmp_eq_u32 s60, 1\n            s_cselect_b32 s44, 0x07060302, s44"
            A(f"""
            v_lshlrev_b32 v1, 5, v15
            s_lshl_b32 s44, s36, 11
            s_add_u32 s44, s44, {self.LR}
            v_add_u32 v1, s44, v1
            ds_read_b128 v[24:27], v1
            ds_read_b128 v[28:31], v1 offset:16
            s_lshl_b32 s44, s36, 6
            v_add_u32 v10, s44, v15
            v_lshrrev_b32 v11, 3, v10
            v_mul_u32_u24 v11, 160, v11
            v_and_b32 v10, 7, v10
            v_lshlrev_b32 v10, 4, v10
            v_add_u32 v10, v10, v11
            v_add_u32 v10, {LU + 15*160}, v10
            v_mov_b32 v32, 0
            v_mov_b32 v33, 0
            v_mov_b32 v34, 0
            v_mov_b32 v35, 0
            v_lshlrev_b32 v11, 4, v15
            s_lshl_b32 s44, s36, 10
            s_add_u32 s44, s44, {LU}
            v_add_u32 v11, s44, v11
            v_cmp_gt_u32 vcc, {LU + 2400}, v11
            s_and_saveexec_b64 s[52:53], vcc
            ds_write_b128 v11, v[32:35]
            s_mov_b64 exec, s[52:53]
            {selasm}
            s_waitcnt lgkmcnt(0)
            v_perm_b32 v32, v25, v24, s44
            v_perm_b32 v33, v27, v26, s44
            v_perm_b32 v34, v29, v28, s44
            v_perm_b32 v35, v31, v30, s44
            ds_write_b128 v10, v[32:35]
            s_waitcnt lgkmcnt(0)
            s_barrier
            """)
        def rdA(pair, t): return [f"ds_read_b128 {vr(FR[pair],4)}, v{vA} offset:{96+64*t}", f"ds_read_b128 {vr(FR[pair]+4,4)}, v{vA} offset:{64+64*t}"]
        def rdB(slot, t, tile):
            off = (t >> 1) * 160 + 64 * (t & 1)
            return f"ds_read_b128 {vr(BR[slot] + (0 if tile == 1 else 4),4)}, v{vB if tile == 1 else vBz} offset:{off}"
        for x in rdA(3, -1): A(x)
        for t in range(2):
            for x in rdA(t, t): A(x)
            A(rdB(t, t, 1))
        l0 = A.newlabel(name + "_p0")
        if not UNI:
            A(f"s_cmp_eq_u32 s51, 0\ns_cbranch_scc0 {l0}")
            for t in range(2): A(rdB(t, t, 0))
            A.label(l0)
        A("s_waitcnt lgkmcnt(0)")
        def body(double):
            for t in range(4):
                A(f"s_waitcnt lgkmcnt({4 if double else 3})")
                cur = FR[t]; prev = FR[(t-1) % 4]
                fr = [cur, cur+4, prev, prev+4]
                rd = rdA((t+2) % 4, t+2) + [rdB((t+2) % 4, t+2, 1)] + ([rdB((t+2) % 4, t+2, 0)] if double else [])
                mf = []
                for i in ([1, 0] if double else [1]):
                    for h in range(4):
                        c = vr(ACC + (h*2+i)*4, 4)
                        mf.append(f"v_mfma_f32_16x16x32_bf16 {c}, {vr(fr[h],4)}, {vr(BR[t] + (0 if i == 1 else 4),4)}, {c}")
                for j, m in enumerate(mf):
                    A(m)
                    if j < len(rd): A(rd[j])
            A(f"v_add_u32 v{vA}, 256, v{vA}\nv_add_u32 v{vB}, 320, v{vB}\nv_add_u32 v{vBz}, 320, v{vBz}")
        l1 = A.newlabel(name + "_s"); l1e = A.newlabel(name + "_se"); l2 = A.newlabel(name + "_d"); l2e = A.newlabel(name + "_de"); l2s = A.newlabel(name + "_ds")
        if UNI:
            A("s_mov_b32 s55, 2")
            A.label(l1)
            body(False)
            A(f"s_sub_u32 s55, s55, 1\ns_cmp_lg_u32 s55, 0\ns_cbranch_scc1 {l1}")
            A(f"s_waitcnt lgkmcnt(0)\nv_add_u32 v{vA}, 1536, v{vA}\nv_add_u32 v{vB}, 1920, v{vB}\nv_subrev_u32 v{vBz}, 2560, v{vB}")
            for x in rdA(3, -1): A(x)
            for t in range(2):
                for x in rdA(t, t): A(x)
                A(rdB(t, t, 1)); A(rdB(t, t, 0))
            A("s_waitcnt lgkmcnt(0)\ns_mov_b32 s55, 2")
            A.label(l2)
            body(True)
            A(f"s_sub_u32 s55, s55, 1\ns_cmp_lg_u32 s55, 0\ns_cbranch_scc1 {l2}")
        else:
            A(f"s_mov_b32 s55, s51\ns_cmp_eq_u32 s55, 0\ns_cbranch_scc1 {l2s}")
            A.label(l1)
            body(False)
            A(f"s_sub_u32 s55, s55, 1\ns_cmp_lg_u32 s55, 0\ns_cbranch_scc1 {l1}")
            A(f"s_cmp_eq_u32 s54, 0\ns_cbranch_scc1 {l2e}")
            for t in range(2): A(rdB(t, t, 0))
            A("s_waitcnt lgkmcnt(0)")
            A.label(l2s)
            A("s_mov_b32 s55, s54")
            A.label(l2)
            body(True)
            A(f"s_sub_u32 s55, s55, 1\ns_cmp_lg_u32 s55, 0\ns_cbranch_scc1 {l2}")
        A.label(l2e)
        if hasattr(self, "stamp"): self.stamp()
        A(f"s_waitcnt vmcnt({mid_wait}) lgkmcnt(0)\ns_nop 7\ns_barrier")
        if mid_hook: mid_hook()
        if split: split()
        A(f"v_lshlrev_b32 v1, 4, v15\ns_lshl_b32 s44, s36, 13\ns_add_u32 s44, s44, {'s68' if self.dyn else LS}\nv_add_u32 v11, s44, v1")
        for h in range(4):
            for i in range(2):
                A(f"ds_write_b128 v11, {vr(ACC+(h*2+i)*4,4)} offset:{(h*2+i)*1024}")
        A(f"""
        v_and_b32 v12, 15, v15
        v_mul_u32_u24 v12, 160, v12
        v_lshrrev_b32 v13, 4, v15
        v_lshlrev_b32 v13, 3, v13
        v_add_u32 v12, v12, v13
        s_lshl_b32 s44, s36, 5
        s_add_u32 s44, s44, {LU}
        {"s_add_u32 s44, s44, s68" if self.dyn else "s_nop 0"}
        v_add_u32 v12, s44, v12
        """)
        for i in range(2):
            A(f"ds_read_b64 {vr(56+2*i,2)}, v12 offset:{(15+16*i)*160}")
        A("s_waitcnt lgkmcnt(0)\ns_barrier")
        A(f"s_lshl_b32 s44, s36, 11\ns_add_u32 s44, s44, {'s68' if self.dyn else LS}\nv_add_u32 v11, s44, v1")
        for ww in range(4):
            for i in range(2):
                A(f"ds_read_b128 {vr(24+(ww*2+i)*4,4)}, v11 offset:{ww*8192 + i*1024}")
        A("v_accvgpr_read_b32 v14, a168\ns_nop 0\nv_lshlrev_b32 v14, 16, v14")
        for i in range(2):
            u = 56 + 2*i; t = 64 + 4*i
            A(f"v_lshlrev_b32 v{t}, 16, v{u}\nv_and_b32 v{t+1}, 0xffff0000, v{u}\nv_lshlrev_b32 v{t+2}, 16, v{u+1}\nv_and_b32 v{t+3}, 0xffff0000, v{u+1}")
            for r in range(4): A(f"v_mul_f32 v{t+r}, v{t+r}, v14")
            A(f"v_cvt_pk_bf16_f32 v60, v{t}, v{t+1}\nv_cvt_pk_bf16_f32 v61, v{t+2}, v{t+3}")
            A(f"v_lshlrev_b32 v{t}, 16, v60\nv_and_b32 v{t+1}, 0xffff0000, v60\nv_lshlrev_b32 v{t+2}, 16, v61\nv_and_b32 v{t+3}, 0xffff0000, v61")
        A("s_waitcnt lgkmcnt(0)")
        for i in range(2):
            for ww in range(1, 4):
                A(f"v_pk_add_f32 {vr(24+i*4,2)}, {vr(24+i*4,2)}, {vr(24+(ww*2+i)*4,2)}")
                A(f"v_pk_add_f32 {vr(24+i*4+2,2)}, {vr(24+i*4+2,2)}, {vr(24+(ww*2+i)*4+2,2)}")
        for i in range(2):
            y = 24 + i*4; t = 64 + 4*i
            A(f"v_cvt_pk_bf16_f32 v60, v{y}, v{y+1}\nv_cvt_pk_bf16_f32 v61, v{y+2}, v{y+3}")
            A(f"v_lshlrev_b32 v{y}, 16, v60\nv_and_b32 v{y+1}, 0xffff0000, v60\nv_lshlrev_b32 v{y+2}, 16, v61\nv_and_b32 v{y+3}, 0xffff0000, v61")
            for r in range(4): A(f"v_add_f32 v{y+r}, v{y+r}, v{t+r}")
            A(f"v_cvt_pk_bf16_f32 v60, v{y}, v{y+1}\nv_cvt_pk_bf16_f32 v61, v{y+2}, v{y+3}")
            if dyn:
                A(f"v_mov_b32 v{80+2*i}, v60\nv_mov_b32 v{81+2*i}, v61")
            elif not second:
                A(f"v_accvgpr_write_b32 a{saA+2*i}, v60\nv_accvgpr_write_b32 a{saA+2*i+1}, v61")
            else:
                A(f"v_accvgpr_read_b32 v62, a{saA+2*i}\nv_accvgpr_read_b32 v63, a{saA+2*i+1}")
                o = 72 + 4*i
                A(f"s_mov_b32 s44, 0x05040100\ns_mov_b32 s45, 0x07060302")
                A(f"v_perm_b32 v{o}, v60, v62, s44\nv_perm_b32 v{o+1}, v60, v62, s45")
                A(f"v_perm_b32 v{o+2}, v61, v63, s44\nv_perm_b32 v{o+3}, v61, v63, s45")
        if dyn:
            l2nd = A.newlabel(name + "_2nd"); lend = A.newlabel(name + "_ce")
            A(f"s_cmp_eq_u32 s60, 1\ns_cbranch_scc1 {l2nd}")
            for r in range(4): A(f"v_accvgpr_write_b32 a{saA+r}, v{80+r}")
            A(f"s_branch {lend}")
            A.label(l2nd)
            A(f"s_mov_b32 s44, 0x05040100\ns_mov_b32 s45, 0x07060302")
            for i in range(2):
                o = 72 + 4*i
                A(f"v_accvgpr_read_b32 v62, a{saA+2*i}\nv_accvgpr_read_b32 v63, a{saA+2*i+1}\ns_nop 0")
                A(f"v_perm_b32 v{o}, v{80+2*i}, v62, s44\nv_perm_b32 v{o+1}, v{80+2*i}, v62, s45")
                A(f"v_perm_b32 v{o+2}, v{81+2*i}, v63, s44\nv_perm_b32 v{o+3}, v{81+2*i}, v63, s45")
            second = True
        if second:
            srd_off(A, 12, 32, 33, WS_S, 288 * 8192)
            A(f"""
            v_and_b32 v12, 15, v15
            v_lshlrev_b32 v12, 8, v12
            v_lshrrev_b32 v13, 4, v15
            v_lshlrev_b32 v13, 4, v13
            v_add_u32 v12, v12, v13
            s_lshl_b32 s44, {pair_s}, 13
            s_lshl_b32 s45, s36, 6
            s_add_u32 s44, s44, s45
            s_add_u32 s45, s44, 4096
            """)
            A(f"buffer_store_dwordx4 v[72:75], v12, s[12:15], s44 offen sc1")
            A(f"buffer_store_dwordx4 v[76:79], v12, s[12:15], s45 offen sc1")
            if dyn: A.label(lend)
```

```python
from asmlib import *
from g1 import VM, f2u, GC0, GC1, gelu_ops
EXP = set()
WIT = False
XST = False
SPREAD = False
def gen_g1n(name, F):
    stamps = False
    vm = VM()
    if F is None:
        A = Asm(); ST = Stamper(A, 1, stamps); stamp = ST.stamp
    else:
        A = F.A; stamp = F.stamp
    SC = ' sc1' if F else ''
    R = 5; SLOT = 20480; WSCR = 102400
    NST = 18
    PR = 0; QA = [144, 180]
    ACCA = 128; ACCB = 16
    vQd = [2, 3, 4, 5, 6]; vE0 = 7; vO0 = 8; vE = 9; vO = 10; vL = 15; vP0 = 11; vP1 = 12
    vC0 = 200; vC1 = 202; vOne = 204; T6 = [206, 208, 210, 212, 214, 216]
    S1 = 218; S2 = 226
    W = 88
    if F is None:
        A(f"""
        s_cmp_ge_u32 s2, 256
        s_cbranch_scc1 {name}_end
        s_load_dwordx2 s[28:29], s[0:1], 64
        s_load_dwordx2 s[54:55], s[0:1], 72
        s_load_dwordx2 s[32:33], s[0:1], 112
        """)
        ST.start()
        A(f"""
        s_and_b32 s44, s2, 7
        s_lshr_b32 s45, s2, 3
        s_and_b32 s34, s44, 1
        s_lshl_b32 s34, s34, 3
        s_and_b32 s46, s45, 7
        s_add_u32 s34, s34, s46
        s_lshr_b32 s35, s44, 1
        s_lshl_b32 s35, s35, 2
        s_lshr_b32 s46, s45, 3
        s_add_u32 s35, s35, s46
        v_lshrrev_b32 v1, 6, v0
        v_and_b32 v{vL}, 63, v0
        s_nop 0
        v_readfirstlane_b32 s36, v1
        """)

    if not WIT:
        for j in range(5):
            d = vQd[j]
            A(f"""
            s_lshl_b32 s44, s36, 6
            s_add_u32 s44, s44, {256*j}
            v_add_u32 v16, s44, v{vL}
            v_mul_u32_u24 v17, 1821, v16
            v_lshrrev_b32 v17, 16, v17
            v_mul_u32_u24 v18, 36, v17
            v_sub_u32 v18, v16, v18
            v_lshrrev_b32 v19, 1, v18
            v_bfe_u32 v20, v17, 3, 1
            v_xor_b32 v19, v19, v20
            v_cmp_le_u32 vcc, 9, v19
            s_nop 1
            v_cndmask_b32 v20, 0, 1, vcc
            v_mul_u32_u24 v21, 9, v20
            v_sub_u32 v19, v19, v21
            v_lshlrev_b32 v20, 5, v20
            v_add_u32 v17, v17, v20
            v_mul_u32_u24 v17, 9216, v17
            v_lshlrev_b32 v19, 5, v19
            v_and_b32 v18, 1, v18
            v_lshlrev_b32 v18, 4, v18
            v_add3_u32 v{d}, v17, v19, v18
            """)
            if j == 4:
                A(f"v_mov_b32 v17, 0x80000000\nv_cmp_gt_u32 vcc, 1152, v16\ns_nop 1\nv_cndmask_b32 v{d}, v17, v{d}, vcc")
    else:
        A(f"v_lshlrev_b32 v16, 4, v{vL}\ns_lshl_b32 s44, s36, 10\nv_add_u32 v{vQd[0]}, s44, v16")
        for j in range(1, 5): A(f"v_add_u32 v{vQd[j]}, {j*4096}, v{vQd[0]}")
        A(f"s_cmp_lt_u32 s36, 2\ns_cselect_b32 s45, 0, 0x80000000\nv_or_b32 v{vQd[4]}, s45, v{vQd[4]}")
    A(f"""
    v_lshrrev_b32 v16, 4, v{vL}
    v_bfe_u32 v17, v{vL}, 2, 2
    v_lshlrev_b32 v18, 3, v16
    v_add_u32 v18, v18, v17
    v_mul_u32_u24 v18, 576, v18
    v_and_b32 v19, 3, v{vL}
    v_lshlrev_b32 v19, 3, v19
    v_add_u32 v18, v18, v19
    v_and_b32 v16, 1, v16
    v_lshlrev_b32 v16, 5, v16
    v_add_u32 v{vE0}, v18, v16
    v_sub_u32 v{vO0}, v18, v16
    v_lshlrev_b32 v1, 4, v{vL}
    s_lshl_b32 s44, s34, 3
    s_lshl_b32 s45, s36, 1
    s_add_u32 s44, s44, s45
    s_mul_i32 s44, s44, 18432
    v_add_u32 v{vP0}, s44, v1
    v_add_u32 v{vP1}, 18432, v{vP0}
    s_waitcnt lgkmcnt(0)
    """)
    if F: F.ptrs_g1()
    def wsrd():
        if WIT: srd_off(A, 4, 32, 33, WS_WIT, 32 * 18 * 9216)
        else: srd(A, 4, 78, 79, 576 * 9216)
    wsrd()
    if WIT: A(f"v_lshlrev_b32 v{vE0}, 4, v{vL}")
    srd_off(A, 8, 32, 33, WS_XN, 128 * 18 * 1024)
    A("s_lshl_b32 s44, s34, 4\ns_add_u32 s44, s44, s35\ns_mul_i32 s44, s44, 36864")
    A(f"s_add_u32 s44, s44, {WS_Z1}")
    srd_off(A, 12, 32, 33, "s44", 36864)
    srd_off(A, 16, 32, 33, WS_Z2N, 16 * 589824)
    srd_off(A, 20, 32, 33, WS_STAT, 16 * 16 * 2048)
    if WIT: A(f"s_mul_i32 s38, s35, {18*9216}\ns_add_u32 s37, s38, {16*18*9216}")
    else: A("s_mul_i32 s38, s35, 288\ns_add_u32 s37, s38, 4608")
    A("s_lshl_b32 s39, s36, 10")
    for i in range(5): A(f"s_mov_b32 s{64+i}, {4096*i}")
    def G(st):
        ops = []
        slot = st % R
        base = "s37" if st < 9 else "s38"
        koff = (st % 9) * (18432 if WIT else 64 * 9216)
        for j in range(5):
            pre = f"s_add_u32 s40, {base}, {koff}\n"
            pre += f"s_add_u32 m0, s39, {slot*SLOT + j*4096}\ns_nop 0\n"
            ops.append((pre + f"buffer_load_dwordx4 v{vQd[j]}, s[4:7], s40 offen lds", f"G{st}"))
        return ops
    def Pl(ks):
        return [(f"buffer_load_dwordx4 {ar(PR+(ks*2+i)*4,4)}, v{[vP0,vP1][i]}, s[8:11], s{64+ks//4} offen offset:{(ks%4)*1024}{' sc1' if (F is not None and getattr(F, 'single', False)) else ''}", f"P{ks}") for i in range(2)]
    def issue(op):
        if 'novm' in EXP and op[1][0] in 'GP' and op[1] not in ('G0','P0','P1'): return
        A(op[0]); vm.issue(op[1])
    srd_off(A, 56, 54, 55, 0, 2048 * 4096)
    srd_off(A, 60, 32, 33, WS_WSP, 2048 * 4096)
    vW = 13; vWs = 14; vWr = 253
    A(f"""
    s_lshr_b32 s44, s2, 1
    s_lshl_b32 s45, s44, 4
    v_lshrrev_b32 v16, 2, v{vL}
    v_add_u32 v16, s45, v16
    v_lshlrev_b32 v16, 12, v16
    v_and_b32 v17, 3, v{vL}
    v_lshlrev_b32 v17, 4, v17
    v_add_u32 v{vW}, v16, v17
    s_and_b32 s45, s2, 1
    s_lshl_b32 s45, s45, 2
    s_add_u32 s45, s45, s36
    s_lshl_b32 s46, s45, 9
    v_add_u32 v{vW}, s46, v{vW}
    s_lshl_b32 s44, s44, 16
    s_lshl_b32 s45, s45, 13
    s_add_u32 s41, s44, s45
    s_add_u32 s42, s41, 4096
    v_lshlrev_b32 v{vWs}, 4, v{vL}
    s_lshl_b32 s43, s36, 13
    s_add_u32 s43, s43, {WSCR}
    v_and_b32 v16, 15, v{vL}
    v_lshlrev_b32 v16, 2, v16
    v_lshrrev_b32 v17, 4, v{vL}
    v_add_u32 v16, v16, v17
    v_lshlrev_b32 v16, 4, v16
    v_add_u32 v{vWr}, s43, v16
    """)
    WR = 216
    wl = [(f"s_mov_b32 s40, {j*64}\ns_add_u32 m0, s43, {j*1024}\ns_nop 0\nbuffer_load_dwordx4 v{vW}, s[56:59], s40 offen lds", "WL") for j in range(8)]
    wrd = [f"ds_read_b128 {ar(WR+4*j,4)}, v{vWr} offset:{j*1024}" for j in range(8)]
    wsx = [(f"buffer_store_dwordx4 {ar(WR+4*j,4)}, v{vWs}, s[60:63], {'s41' if j < 4 else 's42'} offen offset:{(j%4)*1024}{SC}", "WS") for j in range(8)]
    for op in G(0): issue(op)
    for ks in (0, 1):
        for op in Pl(ks): issue(op)
    A("s_barrier")
    for st in (1, 2):
        for op in G(st): issue(op)
        for ks in (2*st, 2*st+1):
            for op in Pl(ks): issue(op)
    A(f"v_mov_b32 v{vC0}, {hex(f2u(GC0))}\nv_mov_b32 v{vC0+1}, {hex(f2u(GC0))}\nv_mov_b32 v{vC1}, {hex(f2u(GC1))}\nv_mov_b32 v{vC1+1}, {hex(f2u(GC1))}")
    A(f"v_mov_b32 v{vOne}, 1.0\nv_mov_b32 v{vOne+1}, 1.0")
    A(f"v_mov_b32 v{vE}, v{vE0}\nv_mov_b32 v{vO}, v{vO0}")
    A(f"s_waitcnt vmcnt({vm.wait(['G0','P0','P1'])})")
    A("s_barrier")
    stamp()
    def qreads(buf, ksl):
        if WIT: return [f"ds_read_b128 {ar(QA[buf]+jn*4,4)}, v{vE} offset:{(ksl*9+jn)*1024}" for jn in range(9)]
        out = []
        for jn in range(9):
            X = ksl * 9 + jn
            b = vE if X % 2 == 0 else vO
            for hf in range(2):
                out.append(f"ds_read_b64_tr_b16 {ar(QA[buf]+jn*4+hf*2,2)}, v{b} offset:{X*32 + hf*2304}")
        return out
    def mfmas(buf, ksg, phaseB):
        out = []
        for jn in range(9):
            for i in range(2):
                q = ar(QA[buf]+jn*4, 4); p = ar(PR+(ksg*2+i)*4, 4)
                c = vr((ACCB if phaseB else ACCA)+(i*9+jn)*4, 4)
                src = "0" if ksg == 0 else c
                if not phaseB: out.append(f"v_mfma_f32_16x16x32_bf16 {c}, {p}, {q}, {src}")
                else: out.append(f"v_mfma_f32_16x16x32_bf16 {c}, {q}, {p}, {src}")
        return out
    for x in qreads(0, 0): A(x)
    pairsA = [ACCA + (i*9+jn)*4 + 2*h for i in range(2) for jn in range(9) for h in range(2)]
    eq = [f"v_mov_b32 v{S1+r}, 0" for r in range(16)]
    for g in range(0, 36, 6):
        grp = pairsA[g:g+6]
        eq += gelu_ops(grp, T6, vC0, vC1, vOne)
        for c in grp:
            idx = (c - ACCA) // 4; i = idx // 9; h = ((c - ACCA) % 4) // 2
            s1 = S1 + i*4 + 2*h; s2 = S2 + i*4 + 2*h
            eq.append(f"v_pk_add_f32 {vr(s1,2)}, {vr(s1,2)}, {vr(c,2)}")
            eq.append(f"v_pk_fma_f32 {vr(s2,2)}, {vr(c,2)}, {vr(c,2)}, {vr(s2,2)}")
    for n in (8, 4, 2, 1):
        for r in range(16):
            eq.append(f"v_add_f32_dpp v{S1+r}, v{S1+r}, v{S1+r} row_ror:{n} row_mask:0xf bank_mask:0xf")
    for i in range(2):
        for r in range(4):
            eq.append(f"v_mov_b32 v{W+i*8+2*r}, v{S1+i*4+r}")
            eq.append(f"v_max_f32 v{W+i*8+2*r+1}, 0, v{S2+i*4+r}")
    pend = []
    for st in range(3, NST):
        e = (0, 0) if st < R else (st - R + 1, 1)
        e = max(e, (st - 3, 0))
        for op in G(st): pend.append((e, op))
        if st < 9:
            for ks in (2*st, 2*st+1):
                for op in Pl(ks): pend.append((e, op))
    def publish():
        A(f"""
        s_lshl_b32 s44, s34, 4
        s_add_u32 s44, s44, s35
        s_lshl_b32 s44, s44, 11
        s_lshl_b32 s45, s36, 9
        s_lshr_b32 s44, s44, 1
        s_lshr_b32 s45, s45, 1
        s_add_u32 s44, s44, s45
        v_lshrrev_b32 v1, 4, v{vL}
        v_lshlrev_b32 v1, 5, v1
        v_and_b32 v{T6[0]}, 15, v{vL}
        """)
        A(f"v_cmp_eq_u32 vcc, 0, v{T6[0]}\ns_and_saveexec_b64 s[52:53], vcc")
        for i in range(2):
            for hh in range(2):
                A(f"buffer_store_dwordx4 {vr(W+i*8+hh*4,4)}, v1, s[20:23], s44 offen offset:{i*128+hh*16} sc1"); vm.issue("ST")
        A("s_mov_b64 exec, s[52:53]")
    def blkN():
        A(f"""
        v_and_b32 v1, 31, v{vL}
        v_lshlrev_b32 v1, 3, v1
        v_lshrrev_b32 v13, 5, v{vL}
        v_lshlrev_b32 v13, 13, v13
        v_add_u32 v1, v1, v13
        s_lshl_b32 s44, s34, 14
        s_lshl_b32 s45, s36, 8
        s_add_u32 s44, s44, s45
        """)
        poll = A.newlabel(name + "_poll")
        W2 = 234
        A.label(poll)
        for j in range(8):
            A(f"s_add_u32 s45, s44, {j*1024}")
            A(f"buffer_load_dwordx2 {vr(W2+2*j,2)}, v1, s[20:23], s45 offen sc1")
        A("s_waitcnt vmcnt(0)")
        A(f"v_or_b32 v13, v{W2+1}, v{W2+3}")
        for j in range(2, 8): A(f"v_or_b32 v13, v13, v{W2+2*j+1}")
        A("v_cmp_gt_i32 s[52:53], 0, v13")
        A(f"s_cmp_eq_u64 s[52:53], 0\ns_cbranch_scc1 {poll}_ok\ns_sleep 4\ns_branch {poll}")
        A.label(poll + "_ok")
        stamp()
        Wm = W2
        for j in range(1, 8): A(f"v_pk_add_f32 {vr(Wm,2)}, {vr(Wm,2)}, {vr(Wm+2*j,2)}")
        A(f"v_mov_b32 v{Wm+2}, v{Wm}\nv_mov_b32 v{Wm+3}, v{Wm+1}\ns_nop 1")
        A(f"v_permlane32_swap_b32 v{Wm+2}, v{Wm}\nv_permlane32_swap_b32 v{Wm+3}, v{Wm+1}")
        A(f"v_pk_add_f32 {vr(Wm,2)}, {vr(Wm,2)}, {vr(Wm+2,2)}")
        A(f"v_mul_f32 v{Wm}, {hex(f2u(1.0/2304))}, v{Wm}")
        A(f"v_mul_f32 v{Wm+1}, {hex(f2u(1.0/2304))}, v{Wm+1}")
        A(f"v_fma_f32 v{Wm+1}, -v{Wm}, v{Wm}, v{Wm+1}")
        A(f"v_max_f32 v{Wm+1}, 0, v{Wm+1}")
        from l0 import bf16_round
        bf16_round(A, Wm+1)
        A(f"v_add_f32 v{Wm+1}, 0x3727c5ac, v{Wm+1}")
        bf16_round(A, Wm+1)
        A(f"v_sqrt_f32 v{Wm+1}, v{Wm+1}\ns_nop 0")
        bf16_round(A, Wm+1)
        A(f"v_rcp_f32 v{Wm+1}, v{Wm+1}")
        bf16_round(A, Wm)
        A(f"v_mul_f32 v{Wm}, v{Wm}, v{Wm+1}")
        LB = 163840 - 1024
        A(f"""
        v_and_b32 v1, 31, v{vL}
        v_lshlrev_b32 v1, 3, v1
        s_lshl_b32 s45, s36, 8
        s_add_u32 s45, s45, {LB}
        v_add_u32 v1, s45, v1
        ds_write_b64 v1, {vr(Wm,2)}
        v_lshrrev_b32 v13, 4, v{vL}
        v_lshlrev_b32 v13, 5, v13
        v_add_u32 v13, s45, v13
        s_waitcnt lgkmcnt(0)
        """)
        MS = 218
        for i in range(2):
            A(f"ds_read_b128 {vr(MS+i*8,4)}, v13 offset:{i*128}")
            A(f"ds_read_b128 {vr(MS+4+i*8,4)}, v13 offset:{i*128+16}")
        A(f"""
        s_mul_i32 s44, s35, 64
        s_lshl_b32 s45, s34, 2
        s_add_u32 s44, s44, s45
        s_add_u32 s44, s44, s36
        s_mul_i32 s44, s44, 9216
        v_lshrrev_b32 v1, 4, v{vL}
        v_and_b32 v13, 1, v1
        v_lshlrev_b32 v13, 1, v13
        v_lshrrev_b32 v1, 1, v1
        v_or_b32 v1, v1, v13
        v_lshlrev_b32 v1, 4, v1
        v_and_b32 v13, 15, v{vL}
        v_add_u32 v1, v1, v13
        v_lshlrev_b32 v1, 4, v1
        s_waitcnt lgkmcnt(0)
        """)
        OB = 88
        def fin(jn):
            po = OB + jn*4
            A(f"v_permlane16_swap_b32 v{po}, v{po+2}")
            A(f"v_permlane16_swap_b32 v{po+1}, v{po+3}")
            A(f"s_add_u32 s45, s44, {jn*1024}")
            A(f"buffer_store_dwordx4 {vr(po,4)}, v1, s[16:19], s45 offen sc1"); vm.issue("Z")
        for jn in range(9):
            o = OB + jn * 4
            for i in range(2):
                c = ACCA + (i*9+jn)*4
                for r in range(4):
                    m = MS+i*8+2*r
                    A(f"v_fma_f32 v{c+r}, v{c+r}, v{m+1}, -v{m}")
                A(f"v_cvt_pk_bf16_f32 v{o+2*i}, v{c}, v{c+1}")
                A(f"v_cvt_pk_bf16_f32 v{o+2*i+1}, v{c+2}, v{c+3}")
            if jn > 0: fin(jn - 1)
        A("s_nop 1")
        fin(8)
    ws_q = list(wsx); wl_q = list(wl)
    for st in range(NST):
        phaseB = st >= 9
        if st == 9:
            stamp()
            A(f"s_waitcnt vmcnt({min(63, vm.wait('WL'))}) lgkmcnt(0)")
            for x in wrd: A(x)
            A("s_waitcnt lgkmcnt(0)\ns_barrier")
            if XST: stamp()
            pfo = F.conv_prefetch_ops()
            nops = len(pfo) + len(ws_q)
            gap = (len(eq) - 8) // nops if SPREAD else 8
            for k, o in enumerate(eq):
                A(o)
                if k % gap == gap - 1:
                    if pfo: A(pfo.pop(0))
                    elif ws_q: issue(ws_q.pop(0))
            assert not pfo
            assert not ws_q
            if XST: stamp()
            publish()
            stamp()
            F.conv_A()
            wsrd()
            srd_off(A, 16, 32, 33, WS_Z2N, 16 * 589824)
            srd_off(A, 20, 32, 33, WS_STAT, 16 * 16 * 2048)
            stamp()
            blkN()
            stamp()
        for ksl in range(2):
            ksg = (st % 9) * 2 + ksl
            buf = ksl
            first = (st == 0 and ksl == 0) or (st == 9 and ksl == 0)
            if first: A("s_waitcnt lgkmcnt(0)")
            if ksl == 0:
                rd = qreads(1, 1)
            elif st + 1 < NST:
                nslot = (st + 1) % R
                A(f"v_add_u32 v{vE}, {nslot*SLOT}, v{vE0}\nv_add_u32 v{vO}, {nslot*SLOT}, v{vO0}")
                rd = qreads(0, 0)
            else: rd = []
            nrd = len(rd)
            NV = 5 if st < 6 else 3
            gl = []
            while pend and len(gl) < NV and pend[0][0] <= (st, ksl):
                gl.append(pend.pop(0)[1])
            if 4 <= st <= 7 and wl_q: gl.append(wl_q.pop(0))
            mf = mfmas(buf, ksg, phaseB)
            gpos = [int((k + 0.5) * 18 / max(1, len(gl))) for k in range(len(gl))]
            for j in range(18):
                if j % 4 == 0 and not first:
                    if WIT:
                        need = min(j // 2 + 1, 8)
                        A(f"s_waitcnt lgkmcnt({(8 - need) + min(j // 2, nrd)})")
                    else:
                        need = min(j + 3, 17)
                        A(f"s_waitcnt lgkmcnt({min(15, (17 - need) + min(j, nrd))})")
                A(mf[j])
                if rd and (not WIT or j % 2 == 0): A(rd.pop(0))
                while gl and gpos[0] <= j:
                    gpos.pop(0); issue(gl.pop(0))
            if ksl == 0 and st + 1 < NST:
                tags = [f"G{st+1}"]
                if st + 1 < 9: tags += [f"P{2*(st+1)}", f"P{2*(st+1)+1}"]
                if st == 15:
                    A("s_waitcnt vmcnt(0)\ns_barrier")
                    F.sig_z2n()
                else:
                    A(f"s_waitcnt vmcnt({min(63, vm.wait(tags))})")
                    A("s_barrier")
    assert not pend
    stamp()
    F.g2_early()
    stamp()
    A("s_nop 7")
    pairsB = [ACCB + (i*9+jn)*4 + 2*h for i in range(2) for jn in range(9) for h in range(2)]
    ZB = 88
    late = list(F.g2_late_ops)
    cnt = 0
    for g in range(0, 36, 6):
        grp = pairsB[g:g+6]
        for o in gelu_ops(grp, T6, vC0, vC1, vOne):
            A(o); cnt += 1
            if cnt % 11 == 0 and late: A(late.pop(0))
        for k, c in enumerate(grp):
            A(f"v_cvt_pk_bf16_f32 v{ZB+g+k}, v{c}, v{c+1}")
        for k in range(6): A(f"v_accvgpr_write_b32 a{128+g+k}, v{ZB+g+k}")
    for o in late: A(o)
    stamp()
```

```python
import sys
from asmlib import *
from l0 import gen_l0
from g1 import gen_g1
from g1b import gen_g1b
from g2 import gen_g2
from g3 import gen_g3
from l3 import gen_l3
from fused import gen_fused
import fused3
import fused4
from kgen import gen_kgen
from conv import gen_conv
TOUCH = False
SC1 = False
def build(path, parts, stamps=False):
    launches = ""; text = ""; descs = ""
    for p in parts:
        if p == "l0":
            body, desc, nwg = gen_l0("l0_kernel", gen_kgen, stamps); launches += f"; @launch kernel=l0_kernel grid=({nwg},1,1) block=(256,1,1) lds=36864\n"; nm = "l0_kernel"
        elif p == "g1":
            body, desc, lds = gen_g1("g1_kernel", stamps); launches += f"; @launch kernel=g1_kernel grid=(256,1,1) block=(256,1,1) lds={lds}\n"; nm = "g1_kernel"
        elif p == "g1b":
            body, desc, lds = gen_g1b("g1_kernel", stamps); launches += f"; @launch kernel=g1_kernel grid=(512,1,1) block=(256,1,1) lds={lds}\n"; nm = "g1_kernel"
        elif p == "g2":
            body, desc = gen_g2("g2_kernel", stamps); launches += f"; @launch kernel=g2_kernel grid=(256,1,1) block=(256,1,1) lds=147456\n"; nm = "g2_kernel"
        elif p == "g3":
            body, desc, lds = gen_g3("g3_kernel", stamps); launches += f"; @launch kernel=g3_kernel grid=(192,1,1) block=(256,1,1) lds={lds}\n"; nm = "g3_kernel"
        elif p == "fused":
            body, desc, lds = gen_fused("m_kernel", stamps); launches += f"; @launch kernel=m_kernel grid=(256,1,1) block=(256,1,1) lds={lds}\n"; nm = "m_kernel"
        elif p == "fused4":
            body, desc, lds = fused4.gen_fused("m_kernel", stamps); launches += f"; @launch kernel=m_kernel grid=(256,1,1) block=(256,1,1) lds={lds}\n"; nm = "m_kernel"
        elif p == "single":
            nm = "recurrent_scan__ssm_conv_s4d__mixer_gmlp__prompt_kernel"
            body, desc, lds = fused3.gen_fused(nm, stamps); launches += f"; @launch grid=(256,1,1) block=(256,1,1) lds={lds}\n"
        elif p == "l3":
            body, desc, lds, nwg = gen_l3("l3_kernel", stamps); launches += f"; @launch kernel=l3_kernel grid=({nwg},1,1) block=(256,1,1) lds={lds}\n"; nm = "l3_kernel"
        elif p == "conv":
            body, desc, lds, nwg = gen_conv("cv_kernel", 4, stamps); launches += f"; @launch kernel=cv_kernel grid=({nwg},1,1) block=(256,1,1) lds={lds}\n"; nm = "cv_kernel"
        if SC1 and p not in ('l3', 'fused', 'single', 'fused4'):
            from post import add_store_flags
            body = add_store_flags(body, 'sc1')
        text += kernel_header(nm) + body
        descs += desc
    s = HEADER + launches + '.amdgcn_target "amdgcn-amd-amdhsa--gfx950"\n.text\n' + text + '.section .rodata,"a"\n' + descs
    open(path, "w").write(s)
if __name__ == "__main__":
    args = sys.argv[1:]
    stamps = "stamps" in args
    TOUCH = "touch" in args
    SC1 = "sc1" in args
    import l0 as _l00
    _l00.NOWAIT = "nowait" in args
    _l00.NOTOUCH_SP = "notsp" in args
    _l00.NOTOUCH = "notouch" in args
    _l00.K4 = "k4" in args
    _l00.TLBW = "tlbw" in args
    args = [a for a in args if a != "tlbw"]
    import g1n
    _l00.WITR = g1n.WIT = "wit" in args
    g1n.XST = "xst" in args
    g1n.SPREAD = "spread" in args
    args = [a for a in args if a != "spread"]
    args = [a for a in args if a != "xst"]
    args = [a for a in args if a != "wit"]
    args = [a for a in args if a != "k4"]
    fused4.OUTSC1 = "outsc1" in args
    import conv1
    conv1.UNI = "uni" in args
    args = [a for a in args if a != "uni"]
    fused4.G3P = "g3p" in args
    args = [a for a in args if a != "g3p"]
    fused4.INLINE1 = "inl" in args
    args = [a for a in args if a != "inl"]
    fused4.TAILPF = "tailpf" in args
    args = [a for a in args if a != "tailpf"]
    args = [a for a in args if a not in ("notouch", "outsc1")]
    args = [a for a in args if a != "notsp"]
    args = [a for a in args if a != "nowait"]
    import l0 as _l0, fused as _f
    if "fromxn" in args:
        _l0.NO_XNT = True; _f.FROM_XN = True; _f.CONV_LK = 106240; fused4.FROM_XN = True; fused4.CONV_LK = 106240
    args = [a for a in args if a != "fromxn"]
    import kgen
    kgen.UNAL = "unal" in args
    args = [a for a in args if a != "unal"]
    import g1
    g1.EXP = set(a[2:] for a in args if a.startswith("x_"))
    args = [a for a in args if not a.startswith("x_")]
    import l3
    l3.PRIO = "prio" in args
    l3.NOCONV = "noconv" in args
    parts = [a for a in args[1:] if a not in ("stamps", "touch", "sc1", "prio", "noconv")]
    build(args[0], parts, stamps)
```

```python
from asmlib import *
from core import Core
from g1 import f2u
from g1n import gen_g1n
import l3
from conv1 import Conv1
import math

OUTSC1 = False
TAILPF = False
INLINE1 = False
G3P = False
EPIPF = False
T2B = False
L2PF = 0
FROM_XN = False
CONV_LK = 110592
C2, C3, C4, C5 = 0, 16, 32, 48

class F:
    def __init__(self, A, stamps):
        self.A = A; self.stamps = stamps; self.n = 0
    def stamp(self):
        if not self.stamps: return
        A = self.A; i = self.n; self.n += 1
        assert i < 30
        A("s_memtime s[100:101]\ns_waitcnt lgkmcnt(0)\nv_mov_b32 v254, s100\ns_mov_b64 exec, 1")
        A(f"buffer_store_dword v254, v255, s[96:99], 0 offen offset:{8 + 4*i}\ns_mov_b64 exec, -1")
    def rt(self, slot):
        if not self.stamps: return
        A = self.A
        A("s_memrealtime s[100:101]\ns_waitcnt lgkmcnt(0)\nv_mov_b32 v254, s100\ns_mov_b64 exec, 1")
        A(f"buffer_store_dword v254, v255, s[96:99], 0 offen offset:{4*slot}\ns_mov_b64 exec, -1")
    def ptrs_g1(self):
        self.A("s_mov_b32 s28, s78\ns_mov_b32 s29, s79\ns_mov_b32 s54, s80\ns_mov_b32 s55, s81")

FLAG_BYTES = 4 * 16 * 64 * 128
def flag_off(kind, group_s, slot_s):
    return f"s_add_u32 s44, {group_s}, {kind*16}\ns_lshl_b32 s44, s44, 6\ns_add_u32 s44, s44, {slot_s}\ns_lshl_b32 s44, s44, 7"

def signal(A, name, idx_exprs, sync=True):
    if sync: A("s_waitcnt vmcnt(0)\ns_barrier")
    lab = A.newlabel(name + "_sg")
    A(f"s_cmp_eq_u32 s36, 0\ns_cbranch_scc0 {lab}")
    srd_off(A, 24, 32, 33, WS_FLAG, FLAG_BYTES)
    A("v_mov_b32 v251, 1\ns_mov_b64 exec, 1")
    for e in idx_exprs:
        A(e); A("v_mov_b32 v250, s44\nbuffer_store_dword v251, v250, s[24:27], 0 offen sc1")
    A("s_mov_b64 exec, -1")
    A.label(lab)

def wait_flags(A, name, kind, group_s, nslots, barrier=True, allwaves=False, drain=False):
    lab = A.newlabel(name + "_wf")
    if not allwaves: A(f"s_cmp_eq_u32 s36, 0\ns_cbranch_scc0 {lab}")
    srd_off(A, 24, 32, 33, WS_FLAG, FLAG_BYTES)
    A(flag_off(kind, group_s, 0))
    A(f"v_lshlrev_b32 v250, 7, v15\nv_add_u32 v250, s44, v250")
    A(f"s_mov_b32 s46, {hex(((1 << nslots) - 1) & 0xffffffff)}\ns_mov_b32 s47, {hex(((1 << nslots) - 1) >> 32)}")
    poll = A.newlabel(name + "_pl")
    A.label(poll)
    A("buffer_load_dword v251, v250, s[24:27], 0 offen sc1\ns_waitcnt vmcnt(0)")
    A("v_cmp_eq_u32 s[48:49], 1, v251\ns_and_b64 s[48:49], s[48:49], s[46:47]")
    A(f"s_cmp_eq_u64 s[48:49], s[46:47]\ns_cbranch_scc1 {lab}\ns_sleep 2\ns_branch {poll}")
    A.label(lab)
    if drain: A("s_waitcnt vmcnt(0)")
    if barrier: A("s_barrier")

def g2_pre_p(Fo, name):
    A = Fo.A
    srd_off(A, 4, 32, 33, WS_WSP, 2048 * 4096)
    A(f"""
    s_lshl_b32 s44, s34, 7
    s_lshl_b32 s45, s36, 5
    s_add_u32 s44, s44, s45
    v_lshlrev_b32 v1, 4, v15
    s_lshl_b32 s46, s44, 12
    v_add_u32 v2, s46, v1
    v_add_u32 v3, 0x10000, v2
    """)
    for s in range(3):
        A(f"s_mov_b32 s39, {s*4096}")
        for n in range(8 if s < 2 else 4):
            ks, i = n // 2, n % 2
            A(f"buffer_load_dwordx4 {ar(s*32 + ks*8 + i*4, 4)}, v{2+i}, s[4:7], s39 offen offset:{ks*1024} sc1")

def wait_flags2(A, name, a, b):
    lab = A.newlabel(name + "_w2")
    A(f"s_cmp_eq_u32 s36, 0\ns_cbranch_scc0 {lab}")
    srd_off(A, 24, 32, 33, WS_FLAG, FLAG_BYTES)
    A(flag_off(a[0], a[1], 0)); A("s_mov_b32 s47, s44")
    A(flag_off(b[0], b[1], 0))
    A("v_mov_b32 v250, s47\nv_mov_b32 v251, s44\nv_cmp_gt_u32 vcc, 16, v15\ns_nop 1\nv_cndmask_b32 v250, v251, v250, vcc")
    A("v_and_b32 v251, 15, v15\nv_lshlrev_b32 v251, 7, v251\nv_add_u32 v250, v250, v251")
    poll = A.newlabel(name + "_p2")
    A.label(poll)
    A("buffer_load_dword v251, v250, s[24:27], 0 offen sc1\ns_waitcnt vmcnt(0)")
    A("v_cmp_eq_u32 s[48:49], 1, v251")
    A(f"s_cmp_eq_u32 s48, -1\ns_cbranch_scc1 {lab}\ns_sleep 1\ns_branch {poll}")
    A.label(lab)
    A("s_barrier")

def gen_g2f(Fo, name, post_loop=None, part="early"):
    A = Fo.A; stamp = Fo.stamp
    SLOT = 36864
    ACC = 128; PR = 0; QV = [16, 52]; Z1V = 88; Z1A = 128
    vP = [2, 3]; vQd = [4, 5, 6]; vQr = [8, 9, 10, 11]; vB = [12, 13]; vL = 15
    def dm(slot, j):
        g = j // 4
        pre = f"s_add_u32 m0, s{40+slot}, {g*4096}\ns_nop 0\n" if j % 4 == 0 else ""
        return pre + f"buffer_load_dwordx4 v{vQd[g]}, s[8:11], s38 offen offset:{(j%4)*1024} sc1 lds"
    def pl(slot, n):
        ks, i = n // 2, n % 2
        return f"buffer_load_dwordx4 {ar(PR + slot*32 + ks*8 + i*4, 4)}, v{vP[i]}, s[4:7], s39 offen offset:{ks*1024} sc1"
    def G(slot):
        ops = []
        for j in range(9):
            ops.append(dm(slot, j))
            if j < 8: ops.append(pl(slot, j))
        ops[-1] += f"\ns_add_u32 s38, s38, {SLOT}\ns_add_u32 s39, s39, 4096"
        return ops
    if part == "early":
        srd_off(A, 4, 32, 33, WS_WSP, 2048 * 4096)
        A("s_mul_i32 s44, s35, 589824")
        A(f"s_add_u32 s44, s44, {WS_Z2N}")
        srd_off(A, 8, 32, 33, "s44", 589824)
        A(f"""
        s_lshl_b32 s44, s34, 7
        s_lshl_b32 s45, s36, 5
        s_add_u32 s44, s44, s45
        v_lshlrev_b32 v1, 4, v{vL}
        s_lshl_b32 s46, s44, 12
        v_add_u32 v{vP[0]}, s46, v1
        v_add_u32 v{vP[1]}, 0x10000, v{vP[0]}
        s_mul_i32 s45, s36, 9216
        v_add_u32 v{vQd[0]}, s45, v1
        v_add_u32 v{vQd[1]}, 0x1000, v{vQd[0]}
        v_add_u32 v{vQd[2]}, 0x2000, v{vQd[0]}
        s_mov_b32 s40, s45
        s_add_u32 s41, s45, {SLOT}
        s_add_u32 s42, s45, {2*SLOT}
        s_add_u32 s43, s45, {3*SLOT}
        """)
        wait_flags2(A, name, (0, "s35"), (1, "s34"))
        A("s_mov_b32 s38, 0\ns_mov_b32 s39, 0")
        for op in G(0): A(op)
        Fo.g2_late_ops = G(1) + G(2)[0:9]
        return
    srd_off(A, 16, 32, 33, WS_H, 128 * 72 * 1024)
    srd(A, 20, 82, 83, 4096)
    A(f"""
    s_lshl_b32 s44, s34, 7
    s_lshl_b32 s45, s36, 5
    s_add_u32 s44, s44, s45
    v_and_b32 v1, 15, v{vL}
    v_add_u32 v1, s44, v1
    v_lshlrev_b32 v{vB[0]}, 1, v1
    v_add_u32 v{vB[1]}, 32, v{vB[0]}
    v_lshlrev_b32 v1, 4, v{vL}
    v_mov_b32 v{vQr[0]}, v1
    v_add_u32 v{vQr[1]}, {SLOT}, v1
    v_add_u32 v{vQr[2]}, {2*SLOT}, v1
    v_add_u32 v{vQr[3]}, {3*SLOT}, v1
    """)
    for i in range(2):
        A(f"buffer_load_ushort v{124+i}, v{vB[i]}, s[20:23], 0 offen")
    for r in range(72): A(f"v_mov_b32 v{ACC+r}, 0")
    A("s_waitcnt vmcnt(26)")
    A("s_barrier")
    def qreads(buf, slot, ks):
        return [f"ds_read_b128 {vr(QV[buf]+jn*4,4)}, v{vQr[slot]} offset:{(ks*9+jn)*1024}" for jn in range(9)]
    def mfmas(buf, slot, ks):
        out = []
        for jn in range(9):
            for i in range(2):
                c = vr(ACC + (i*9+jn)*4, 4)
                out.append(f"v_mfma_f32_16x16x32_bf16 {c}, {vr(QV[buf]+jn*4,4)}, {ar(PR+slot*32+ks*8+i*4,4)}, {c}")
        return out
    for x in qreads(0, 0, 0): A(x)
    stamp()
    A("s_mov_b32 s37, 0")
    A.label(f"{name}_loop")
    for u in range(4):
        g = G((u + 3) & 3); gprev = G((u + 2) & 3)
        for ks in range(4):
            A("s_waitcnt lgkmcnt(0)")
            rd = qreads((ks + 1) & 1, u, ks + 1) if ks < 3 else qreads(0, (u + 1) & 3, 0)
            gl = [gprev[9:13], gprev[13:17], g[0:5], g[5:9]][ks]
            mf = mfmas(ks & 1, u, ks)
            for j in range(18):
                A(mf[j])
                if j < 9: A(rd[j])
                elif (j - 9) % 2 == 0 and (j - 9) // 2 < len(gl): A(gl[(j - 9) // 2])
            if ks == 1:
                A("s_waitcnt vmcnt(17)")
                A("s_barrier")
                if u == 1:
                    skip = A.newlabel(name + "_sk")
                    A(f"s_cmp_eq_u32 s37, 3\ns_cbranch_scc0 {skip}")
                    for v in vP + vQd: A(f"v_mov_b32 v{v}, 0x80000000")
                    if TAILPF:
                        for r in range(4): A(f"s_mov_b32 s{40+r}, 147456")
                    A.label(skip)
                if u == 2 and TAILPF:
                    skip2 = A.newlabel(name + "_sk2")
                    A(f"s_cmp_eq_u32 s37, 3\ns_cbranch_scc0 {skip2}")
                    A("s_mov_b32 s68, 0")
                    post_loop()
                    A.label(skip2)
    A(f"s_add_u32 s37, s37, 1\ns_cmp_lt_u32 s37, 4\ns_cbranch_scc1 {name}_loop")
    stamp()
    A("s_waitcnt vmcnt(0)\ns_barrier")
    if post_loop and not TAILPF and not EPIPF and not T2B: post_loop()
    pfo = list(Fo.pfB_ops()) if EPIPF else []
    for r in range(36):
        A(f"v_accvgpr_read_b32 v{Z1V+r}, a{Z1A+r}")
        if r % 12 == 5 and pfo: A(pfo.pop(0))
    A("v_lshlrev_b32 v200, 16, v124\nv_lshlrev_b32 v201, 16, v124\nv_lshlrev_b32 v202, 16, v125\nv_lshlrev_b32 v203, 16, v125")
    A(f"""
    s_lshl_b32 s66, s34, 3
    s_lshl_b32 s67, s36, 1
    s_add_u32 s66, s66, s67
    s_mul_i32 s66, s66, 72
    s_lshr_b32 s67, s35, 1
    s_mul_i32 s67, s67, 9
    s_add_u32 s66, s66, s67
    s_and_b32 s95, s35, 1
    s_mul_i32 s90, s95, 5
    s_add_u32 s90, s90, s66
    s_lshl_b32 s90, s90, 10
    s_add_u32 s91, s66, 4
    s_lshl_b32 s91, s91, 10
    s_lshl_b32 s94, s95, 3
    s_add_u32 s91, s91, s94
    s_add_u32 s92, s90, 73728
    s_add_u32 s93, s91, 73728
    v_lshlrev_b32 v1, 4, v{vL}
    """)
    T = 204
    for i in range(2):
        for jn in range(9):
            c = ACC + (i*9+jn)*4; z = Z1V + (i*9+jn)*2; t = T + ((i*9+jn) & 1) * 4
            A(f"v_lshlrev_b32 v{t}, 16, v{z}")
            A(f"v_and_b32 v{t+1}, 0xffff0000, v{z}")
            A(f"v_lshlrev_b32 v{t+2}, 16, v{z+1}")
            A(f"v_and_b32 v{t+3}, 0xffff0000, v{z+1}")
            A(f"v_pk_add_f32 {vr(c,2)}, {vr(c,2)}, {vr(200+2*i,2)}")
            A(f"v_pk_add_f32 {vr(c+2,2)}, {vr(c+2,2)}, {vr(200+2*i,2)}")
            A(f"v_pk_mul_f32 {vr(c,2)}, {vr(c,2)}, {vr(t,2)}")
            A(f"v_pk_mul_f32 {vr(c+2,2)}, {vr(c+2,2)}, {vr(t+2,2)}")
            A(f"v_cvt_pk_bf16_f32 v{z}, v{c}, v{c+1}")
            A(f"v_cvt_pk_bf16_f32 v{z+1}, v{c+2}, v{c+3}")
            if pfo and (i*9+jn) % 2 == 0: A(pfo.pop(0))
    for o in pfo: A(o)
    odd = A.newlabel(name + "_odd"); done = A.newlabel(name + "_sd")
    A(f"""
    v_bfe_u32 v2, v{vL}, 4, 1
    v_mul_u32_u24 v2, 73728, v2
    v_lshrrev_b32 v3, 5, v{vL}
    v_lshlrev_b32 v3, 8, v3
    v_add_u32 v2, v2, v3
    v_and_b32 v3, 15, v{vL}
    v_lshlrev_b32 v3, 4, v3
    v_add_u32 v2, v2, v3
    s_add_u32 s91, s66, 4
    s_lshl_b32 s91, s91, 10
    s_lshl_b32 s94, s95, 9
    s_add_u32 s91, s91, s94
    """)
    def single(jn):
        a0 = Z1V + jn*2; a1 = Z1V + (9+jn)*2
        A(f"v_mov_b32 v4, v{a0}\nv_mov_b32 v5, v{a0+1}\nv_mov_b32 v6, v{a1}\nv_mov_b32 v7, v{a1+1}\ns_nop 1")
        A("v_permlane16_swap_b32 v4, v6\nv_permlane16_swap_b32 v5, v7\ns_nop 0")
        A("buffer_store_dwordx4 v[4:7], v2, s[16:19], s91 offen sc1")
    A(f"s_cmp_eq_u32 s95, 1\ns_cbranch_scc1 {odd}")
    for i in range(2):
        for p in range(4):
            A(f"buffer_store_dwordx4 {vr(Z1V+(i*9+2*p)*2,4)}, v1, s[16:19], s{90 if i==0 else 92} offen offset:{p*1024} sc1")
    single(8)
    A(f"s_branch {done}")
    A.label(odd)
    for i in range(2):
        for p in range(4):
            A(f"buffer_store_dwordx4 {vr(Z1V+(i*9+1+2*p)*2,4)}, v1, s[16:19], s{90 if i==0 else 92} offen offset:{p*1024} sc1")
    single(0)
    A.label(done)

def g3_pre_q(Fo, name):
    A = Fo.A
    A(f"""
    s_lshr_b32 s45, s2, 5
    s_min_u32 s45, s45, 5
    s_mul_i32 s44, s45, {72*6*1024}
    s_add_u32 s44, s44, {WS_WOT}
    """)
    srd_off(A, 4, 32, 33, "s44", 72*6*1024)
    A("v_lshlrev_b32 v1, 4, v15\ns_lshl_b32 s40, s36, 10\nv_add_u32 v2, s40, v1")
    for j in range(1, 6): A(f"v_add_u32 v{2+j}, {j*4096}, v2")
    for s in range(4):
        A(f"s_mov_b32 s38, {s*24*1024}")
        for j in range(6):
            A(f"s_add_u32 m0, s40, {s*24576 + j*4096}\ns_nop 0\nbuffer_load_dwordx4 v{2+j}, s[4:7], s38 offen lds")

def gen_g3f(Fo, name):
    A = Fo.A; stamp = Fo.stamp
    R = 6; S = 4
    ACC = 16; QB = [96, 120]; PR = 0
    vQd = [2, 3, 4, 5, 6, 7]; vP = [8]; vL = 15; vQr = [9, 10, 11, 12, 13, 14]
    A(f"""
    s_and_b32 s44, s2, 7
    s_lshr_b32 s45, s2, 3
    s_lshl_b32 s34, s44, 2
    s_and_b32 s46, s45, 3
    s_add_u32 s34, s34, s46
    s_lshr_b32 s35, s45, 2
    v_lshlrev_b32 v1, 4, v{vL}
    s_lshl_b32 s44, s34, 2
    s_add_u32 s58, s44, s36
    s_mul_i32 s44, s58, 73728
    v_add_u32 v{vP[0]}, s44, v1
    """)
    A(f"s_mul_i32 s44, s35, {72*6*1024}\ns_add_u32 s44, s44, {WS_WOT}")
    srd_off(A, 4, 32, 33, "s44", 72*6*1024)
    srd_off(A, 8, 32, 33, WS_H, 128 * 72 * 1024)
    c = Core(A, name + "_g", 1, 6, 72, S, R, ACC, QB, "a", PR, vP, vQd, vQr, 8, 4, "s38", "s39", "s40", "s37", 1024, orient="QP")
    c.p_flags = " sc1"
    c.setup_addr(1, "s36", 12)
    h = c.gsize // 2
    def split(slot):
        ops = c.G(slot);
        return ops
    pre_a = []; pre_b = []; post = []
    for s in range(R - 1):
        ops = c.G(s)
        ops = ops if s < R - 2 else ops[:h]
        q = [o for o in ops if " lds" in o]; p = [o for o in ops if " lds" not in o]
        strip = lambda o: o.split("\ns_add_u32 s38, s38")[0]
        (pre_a if s < 4 else pre_b).append(f"s_mov_b32 s38, {s*S*6*1024}"); (pre_a if s < 4 else pre_b).extend(strip(o) for o in q)
        post.append(f"s_mov_b32 s39, {s*S*1024}"); post += [strip(o) for o in p]
    if G3P:
        strip = lambda o: o.split("\ns_add_u32 s38, s38")[0]
        Qs = []; Ps = []
        for s in range(R - 1):
            ops = c.G(s); ops = ops if s < R - 2 else ops[:h]
            Qs.append([f"s_mov_b32 s38, {s*S*6*1024}"] + [strip(o) for o in ops if " lds" in o])
            Ps.append([f"s_mov_b32 s39, {s*S*1024}"] + [strip(o) for o in ops if " lds" not in o])
        A("s_barrier")
        for s in (0, 1):
            for o in Qs[s]: A(o)
        srd(A, 12, 76, 77, 2048 * 1152)
        srd_off(A, 16, 32, 33, WS_S, 288 * 8192)
        srd(A, 20, 84, 85, 2048 * 1152)
        for r in range(24): A(f"v_mov_b32 v{ACC+r}, 0")
        stamp()
        A("s_lshr_b32 s59, s34, 1")
        wait_flags(A, name, 2, "s59", 16, drain=True)
        Fo.sig_st_nosync()
        stamp()
        for s in (0, 1):
            for o in Ps[s]: A(o)
        for s in (2, 3, 4):
            for o in Qs[s] + Ps[s]: A(o)
        A(f"s_mov_b32 s38, {(R-2)*S*6*1024}\ns_mov_b32 s39, {(R-2)*S*1024}")
        A("s_waitcnt vmcnt(25)\ns_barrier")
    else:
        if TAILPF: A("s_barrier")
        for o in pre_a: A(o)
        Fo.conv_fin()
        c.setup_addr(1, "s36", 12)
        A("s_barrier")
        for o in pre_b: A(o)
        srd(A, 12, 76, 77, 2048 * 1152)
        srd_off(A, 16, 32, 33, WS_S, 288 * 8192)
        srd(A, 20, 84, 85, 2048 * 1152)
        for r in range(24): A(f"v_mov_b32 v{ACC+r}, 0")
        stamp()
        A("s_lshr_b32 s59, s34, 1")
        wait_flags(A, name, 2, "s59", 16)
        stamp()
        for o in post: A(o)
        A(f"s_mov_b32 s38, {(R-2)*S*6*1024}\ns_mov_b32 s39, {(R-2)*S*1024}")
        Fo.pre_g3()
    for x in c.qreads(0, 0, 0): A(x)
    stamp()
    def tail(A):
        A(f"""
        v_and_b32 v1, 15, v{vL}
        s_lshl_b32 s44, s58, 4
        v_add_u32 v1, s44, v1
        v_mul_u32_u24 v1, 1152, v1
        v_lshrrev_b32 v40, 4, v{vL}
        v_lshlrev_b32 v40, 3, v40
        v_add_u32 v1, v1, v40
        s_mul_i32 s44, s35, 192
        v_add_u32 v1, s44, v1
        """)
        for jd in range(6):
            A(f"buffer_load_dwordx2 {vr(52+2*jd,2)}, v1, s[12:15], 0 offen offset:{jd*32}")
    def late(A):
        wait_flags(A, name, 3, "s35", 48, barrier=False, allwaves=True)
        A(f"""
        v_lshrrev_b32 v42, 4, v{vL}
        v_lshlrev_b32 v42, 14, v42
        v_and_b32 v43, 15, v{vL}
        v_lshlrev_b32 v43, 2, v43
        v_add_u32 v42, v42, v43
        s_mul_i32 s44, s35, {48*8192}
        s_lshl_b32 s45, s58, 6
        s_add_u32 s44, s44, s45
        """)
        for jd in range(6):
            for e in range(2):
                A(f"s_add_u32 s45, s44, {(8*jd + e)*8192}")
                A(f"buffer_load_dword v{64+2*jd+e}, v42, s[16:19], s45 offen sc1")
    c.loop(True, tail_hook=tail, late_hook=late)
    stamp()
    NL2E = -math.log2(math.e)
    A(f"v_mov_b32 v76, {hex(f2u(NL2E))}\nv_mov_b32 v77, {hex(f2u(NL2E))}\nv_mov_b32 v78, 1.0\nv_mov_b32 v79, 1.0")
    for jd in range(6):
        cc = ACC + jd*4; t = 80 + (jd % 2) * 4
        A(f"v_pk_mul_f32 {vr(t,2)}, {vr(cc,2)}, v[76:77]")
        A(f"v_pk_mul_f32 {vr(t+2,2)}, {vr(cc+2,2)}, v[76:77]")
        for r in range(4): A(f"v_exp_f32 v{t+r}, v{t+r}")
        A(f"v_pk_add_f32 {vr(t,2)}, {vr(t,2)}, v[78:79]")
        A(f"v_pk_add_f32 {vr(t+2,2)}, {vr(t+2,2)}, v[78:79]")
        for r in range(4): A(f"v_rcp_f32 v{t+r}, v{t+r}")
        A("s_nop 0")
        A(f"v_pk_mul_f32 {vr(cc,2)}, {vr(cc,2)}, {vr(t,2)}")
        A(f"v_pk_mul_f32 {vr(cc+2,2)}, {vr(cc+2,2)}, {vr(t+2,2)}")
    A("s_waitcnt vmcnt(0)")
    for jd in range(6):
        cc = ACC + jd*4; t = 88 + (jd % 2) * 8
        A(f"v_lshlrev_b32 v{t+4}, 16, v{64+2*jd}\nv_and_b32 v{t+5}, 0xffff0000, v{64+2*jd}")
        A(f"v_lshlrev_b32 v{t+6}, 16, v{65+2*jd}\nv_and_b32 v{t+7}, 0xffff0000, v{65+2*jd}")
        A(f"v_lshlrev_b32 v{t}, 16, v{52+2*jd}\nv_and_b32 v{t+1}, 0xffff0000, v{52+2*jd}")
        A(f"v_lshlrev_b32 v{t+2}, 16, v{53+2*jd}\nv_and_b32 v{t+3}, 0xffff0000, v{53+2*jd}")
        A(f"v_pk_fma_f32 {vr(cc,2)}, {vr(cc,2)}, {vr(t+4,2)}, {vr(t,2)}")
        A(f"v_pk_fma_f32 {vr(cc+2,2)}, {vr(cc+2,2)}, {vr(t+6,2)}, {vr(t+2,2)}")
        o = 104 + (jd // 2) * 4 + (jd % 2) * 2
        A(f"v_cvt_pk_bf16_f32 v{o}, v{cc}, v{cc+1}")
        A(f"v_cvt_pk_bf16_f32 v{o+1}, v{cc+2}, v{cc+3}")
    A(f"""
    v_and_b32 v1, 15, v{vL}
    s_lshl_b32 s44, s58, 4
    v_add_u32 v1, s44, v1
    v_mul_u32_u24 v1, 1152, v1
    v_bfe_u32 v12, v{vL}, 4, 1
    v_lshlrev_b32 v12, 5, v12
    v_add_u32 v1, v1, v12
    v_lshrrev_b32 v12, 5, v{vL}
    v_lshlrev_b32 v12, 4, v12
    v_add_u32 v1, v1, v12
    s_mul_i32 s44, s35, 192
    v_add_u32 v1, s44, v1
    """)
    for p in range(3):
        o = 104 + p*4
        A(f"v_permlane16_swap_b32 v{o}, v{o+2}")
        A(f"v_permlane16_swap_b32 v{o+1}, v{o+3}")
    A("s_nop 0")
    for p in range(3):
        A(f"buffer_store_dwordx4 {vr(104+p*4,4)}, v1, s[20:23], 0 offen offset:{p*64}{' sc1' if OUTSC1 else ''}")

def gen_fused(name, stamps=False):
    A = Asm(); Fo = F(A, stamps)
    A(f"""
    s_cmp_ge_u32 s2, 256
    s_cbranch_scc1 {name}_end
    s_load_dwordx2 s[76:77], s[0:1], 0
    s_load_dwordx2 s[88:89], s[0:1], 48
    s_load_dwordx2 s[78:79], s[0:1], 64
    s_load_dwordx4 s[80:83], s[0:1], 72
    s_load_dwordx4 s[84:87], s[0:1], 96
    s_load_dwordx2 s[32:33], s[0:1], 112
    s_and_b32 s44, s2, 7
    s_lshr_b32 s45, s2, 3
    s_and_b32 s34, s44, 1
    s_lshl_b32 s34, s34, 3
    s_and_b32 s46, s45, 7
    s_add_u32 s34, s34, s46
    s_lshr_b32 s35, s44, 1
    s_lshl_b32 s35, s35, 2
    s_lshr_b32 s46, s45, 3
    s_add_u32 s35, s35, s46
    v_lshrrev_b32 v1, 6, v0
    v_and_b32 v15, 63, v0
    s_nop 0
    v_readfirstlane_b32 s36, v1
    """)
    if stamps:
        A("s_waitcnt lgkmcnt(0)")
        srd_off(A, 96, 32, 33, WS_STAMP + 0x100000, 0x40000)
        A("s_lshl_b32 s44, s2, 2\ns_add_u32 s44, s44, s36\ns_lshl_b32 s44, s44, 7\nv_mov_b32 v255, s44")
        Fo.rt(0); Fo.stamp()
    cv = Conv1(A, name + "_cv", CONV_LK, CONV_LK + 41216, FROM_XN, remap=True, dyn=TAILPF)
    subP = name + "_subP"; subC = name + "_subC"; subF = name + "_subF"; emitted = set()
    def back(target): return (target == subP and 'P' in emitted) or (target in (subC, subF) and 'C' in emitted)
    def call(target):
        ref = A.newlabel(name + "_pc")
        A("s_getpc_b64 s[28:29]")
        A.label(ref)
        if INLINE1 and back(target):
            A(f"s_sub_u32 s28, s28, {ref}-{target}\ns_subb_u32 s29, s29, 0\ns_swappc_b64 s[30:31], s[28:29]")
        else:
            A(f"s_add_u32 s28, s28, {target}-{ref}\ns_addc_u32 s29, s29, 0\ns_swappc_b64 s[30:31], s[28:29]")
    def midsig():
        lab = A.newlabel(name + "_ms")
        A(f"s_cmp_eq_u32 s36, 0\ns_cbranch_scc0 {lab}")
        srd_off(A, 24, 32, 33, WS_FLAG, FLAG_BYTES)
        A("v_mov_b32 v251, 1\ns_mov_b64 exec, 1")
        for reg in (61, 62):
            sk = A.newlabel(name + "_mk")
            A(f"s_cmp_eq_u32 s{reg}, -1\ns_cbranch_scc1 {sk}\nv_mov_b32 v250, s{reg}\nbuffer_store_dword v251, v250, s[24:27], 0 offen sc1")
            A.label(sk)
        A("s_mov_b64 exec, -1")
        A.label(lab)
    def set_ret(target):
        ref = A.newlabel(name + "_pc")
        A("s_getpc_b64 s[30:31]")
        A.label(ref)
        A(f"s_add_u32 s30, s30, {target}-{ref}\ns_addc_u32 s31, s31, 0")
    def bodyP():
        A.label(subP); cv.prefetch("s73"); A("s_setpc_b64 s[30:31]")
    def bodyCF(ret2):
        A.label(subC)
        def split():
            A("s_setpc_b64 s[30:31]")
            if ret2:
                A.label(ret2[0]); set_ret(ret2[1])
            A.label(subF)
        cv.compute(False, "s72", None, mid_hook=midsig, dyn=True, split=split, saA=252)
        A("s_setpc_b64 s[30:31]")
    def prefetch(chs):
        A(f"s_mov_b32 s73, {chs}")
        if INLINE1 and "P" not in emitted:
            emitted.add("P"); r = A.newlabel(name + "_rp"); set_ret(r); bodyP(); A.label(r)
        else: call(subP)
    def compute(second, wait_n, f1, f2, finish=True):
        for reg, f in ((61, f1), (62, f2)):
            if f: A(f); A(f"s_mov_b32 s{reg}, s44")
            else: A(f"s_mov_b32 s{reg}, -1")
        A(f"s_mov_b32 s60, {1 if second else 0}")
        A(f"s_waitcnt vmcnt({wait_n})")
        if INLINE1 and "C" not in emitted:
            emitted.add("C")
            r1 = A.newlabel(name + "_r1"); r2 = A.newlabel(name + "_r2")
            set_ret(r1); bodyCF((r1, r2)); A.label(r2)
            return
        call(subC)
        if finish: call(subF)
    A("s_lshl_b32 s70, s2, 1\ns_add_u32 s71, s70, 1\ns_mov_b32 s72, s2")
    def pfopsA():
        if TAILPF: A("s_mov_b32 s68, 110592")
        return cv.prefetch_ops("s70")
    Fo.conv_prefetch_ops = pfopsA
    def convA():
        if TAILPF: A("s_mov_b32 s68, 110592")
        import g1n
        compute(False, 12 if g1n.SPREAD else 0, None, None)
    Fo.conv_A = convA
    Fo.pfB_ops = lambda: cv.prefetch_ops("s71")
    Fo.sig_z2n = lambda: signal(A, name, [flag_off(0, "s35", "s34"), "s_lshr_b32 s45, s2, 4\ns_and_b32 s46, s2, 15\n" + flag_off(1, "s45", "s46")], sync=False)
    Fo.g2_early = lambda: gen_g2f(Fo, name + "_g2", part="early")
    gen_g1n(name + "_g1", Fo)
    gen_g2f(Fo, name + "_g2", post_loop=lambda: prefetch("s71"), part="late")
    Fo.stamp()
    if T2B:
        prefetch("s71")
        signal(A, name, [flag_off(2, "s34", "s35")])
        compute(True, 0, None, None)
    else:
        compute(True, 9, flag_off(2, "s34", "s35"), None)
    Fo.conv_fin = lambda: None
    sigS = lambda: signal(A, name, ["s_mul_i32 s45, s72, 1366\ns_lshr_b32 s45, s45, 16\ns_mul_i32 s46, s45, 48\ns_sub_u32 s46, s72, s46\n" + flag_off(3, "s45", "s46")])
    Fo.stamp()
    xtra = A.newlabel(name + "_x"); fin = A.newlabel(name + "_fin")
    A(f"s_lshr_b32 s44, s2, 3\ns_cmp_ge_u32 s44, 24\ns_cbranch_scc1 {xtra}")
    Fo.pre_g3 = sigS
    Fo.sig_st_nosync = lambda: signal(A, name, ["s_mul_i32 s45, s72, 1366\ns_lshr_b32 s45, s45, 16\ns_mul_i32 s46, s45, 48\ns_sub_u32 s46, s72, s46\n" + flag_off(3, "s45", "s46")], sync=False)
    gen_g3f(Fo, name + "_g3")
    A(f"s_branch {fin}")
    A.label(xtra)
    sigS()
    pfl = A.newlabel(name + "_pf")
    A(f"s_sub_u32 s44, s2, 192\ns_cmp_ge_u32 s44, 32\ns_cbranch_scc1 {pfl if L2PF else fin}")
    A("s_add_u32 s72, s2, 64\ns_lshl_b32 s70, s72, 1\ns_add_u32 s71, s70, 1")
    if TAILPF: A("s_mov_b32 s68, 110592")
    prefetch("s70"); compute(False, 0, None, None)
    A("s_barrier")
    prefetch("s71"); compute(True, 0, None, None)
    sigS()
    if L2PF:
        A(f"s_branch {fin}")
        A.label(pfl)
        A("s_and_b32 s44, s2, 7\ns_lshl_b32 s34, s44, 2\ns_sub_u32 s45, s2, 224\ns_lshr_b32 s45, s45, 3\ns_add_u32 s34, s34, s45\ns_mov_b32 s35, s45")
        A("v_lshlrev_b32 v1, 4, v15")
        if L2PF >= 2:
            A(f"s_mul_i32 s44, s35, {72*6*1024}\ns_add_u32 s44, s44, {WS_WOT}")
            srd_off(A, 4, 32, 33, "s44", 72*6*1024)
        A("s_lshr_b32 s59, s34, 1")
        wait_flags(A, name, 2, "s59", 16)
        srd_off(A, 8, 32, 33, WS_H, 128 * 72 * 1024)
        A("s_lshl_b32 s44, s34, 2\ns_add_u32 s44, s44, s36\ns_mul_i32 s38, s44, 73728\ns_mov_b32 s37, 0")
        lp = A.newlabel(name + "_pfl")
        A.label(lp)
        for j in range(8):
            A(f"buffer_load_dwordx4 v[16:19], v1, s[8:11], s38 offen offset:{(j%4)*1024} sc1" + (f"\ns_add_u32 s38, s38, 4096" if j % 4 == 3 else ""))
        A(f"s_waitcnt vmcnt(8)\ns_add_u32 s37, s37, 1\ns_cmp_lt_u32 s37, 9\ns_cbranch_scc1 {lp}")
        if L2PF >= 2:
            A("s_mul_i32 s38, s36, 6144\ns_mov_b32 s37, 0")
            lp2 = A.newlabel(name + "_pfw")
            A.label(lp2)
            for j in range(6):
                A(f"s_add_u32 s39, s38, {j*1024}\nbuffer_load_dwordx4 v[16:19], v1, s[4:7], s39 offen")
            A(f"s_add_u32 s38, s38, 24576\ns_waitcnt vmcnt(6)\ns_add_u32 s37, s37, 1\ns_cmp_lt_u32 s37, 18\ns_cbranch_scc1 {lp2}")
        A("s_waitcnt vmcnt(0)")
    A.label(fin)
    if stamps:
        A("s_waitcnt vmcnt(0)")
        Fo.n = 28; Fo.stamp(); Fo.rt(1)
    A.label(f"{name}_end")
    A("s_endpgm")
    if "P" not in emitted: bodyP()
    if "C" not in emitted: bodyCF(None)
    return A.text(), kernel_desc(name, 256, 256), 163840
```

```python
import sys
from asmlib import *
from l0 import gen_l0
from g1 import gen_g1
from g1b import gen_g1b
from g2 import gen_g2
from g3 import gen_g3
from l3 import gen_l3
from fused import gen_fused
import fused3
import fused4
from kgen import gen_kgen
from conv import gen_conv
TOUCH = False
SC1 = False
def build(path, parts, stamps=False):
    launches = ""; text = ""; descs = ""
    for p in parts:
        if p == "l0":
            body, desc, nwg = gen_l0("l0_kernel", gen_kgen, stamps); launches += f"; @launch kernel=l0_kernel grid=({nwg},1,1) block=(256,1,1) lds=36864\n"; nm = "l0_kernel"
        elif p == "g1":
            body, desc, lds = gen_g1("g1_kernel", stamps); launches += f"; @launch kernel=g1_kernel grid=(256,1,1) block=(256,1,1) lds={lds}\n"; nm = "g1_kernel"
        elif p == "g1b":
            body, desc, lds = gen_g1b("g1_kernel", stamps); launches += f"; @launch kernel=g1_kernel grid=(512,1,1) block=(256,1,1) lds={lds}\n"; nm = "g1_kernel"
        elif p == "g2":
            body, desc = gen_g2("g2_kernel", stamps); launches += f"; @launch kernel=g2_kernel grid=(256,1,1) block=(256,1,1) lds=147456\n"; nm = "g2_kernel"
        elif p == "g3":
            body, desc, lds = gen_g3("g3_kernel", stamps); launches += f"; @launch kernel=g3_kernel grid=(192,1,1) block=(256,1,1) lds={lds}\n"; nm = "g3_kernel"
        elif p == "fused":
            body, desc, lds = gen_fused("m_kernel", stamps); launches += f"; @launch kernel=m_kernel grid=(256,1,1) block=(256,1,1) lds={lds}\n"; nm = "m_kernel"
        elif p == "fused4":
            body, desc, lds = fused4.gen_fused("m_kernel", stamps); launches += f"; @launch kernel=m_kernel grid=(256,1,1) block=(256,1,1) lds={lds}\n"; nm = "m_kernel"
        elif p == "single":
            nm = "recurrent_scan__ssm_conv_s4d__mixer_gmlp__prompt_kernel"
            body, desc, lds = fused3.gen_fused(nm, stamps); launches += f"; @launch grid=(256,1,1) block=(256,1,1) lds={lds}\n"
        elif p == "l3":
            body, desc, lds, nwg = gen_l3("l3_kernel", stamps); launches += f"; @launch kernel=l3_kernel grid=({nwg},1,1) block=(256,1,1) lds={lds}\n"; nm = "l3_kernel"
        elif p == "conv":
            body, desc, lds, nwg = gen_conv("cv_kernel", 4, stamps); launches += f"; @launch kernel=cv_kernel grid=({nwg},1,1) block=(256,1,1) lds={lds}\n"; nm = "cv_kernel"
        if SC1 and p not in ('l3', 'fused', 'single', 'fused4'):
            from post import add_store_flags
            body = add_store_flags(body, 'sc1')
        text += kernel_header(nm) + body
        descs += desc
    s = HEADER + launches + '.amdgcn_target "amdgcn-amd-amdhsa--gfx950"\n.text\n' + text + '.section .rodata,"a"\n' + descs
    open(path, "w").write(s)
if __name__ == "__main__":
    args = sys.argv[1:]
    stamps = "stamps" in args
    TOUCH = "touch" in args
    SC1 = "sc1" in args
    import l0 as _l00
    _l00.NOWAIT = "nowait" in args
    _l00.NOTOUCH_SP = "notsp" in args
    _l00.NOTOUCH = "notouch" in args
    _l00.K4 = "k4" in args
    _l00.TLBW = "tlbw" in args
    args = [a for a in args if a != "tlbw"]
    import g1n
    _l00.WITR = g1n.WIT = "wit" in args
    g1n.XST = "xst" in args
    g1n.SPREAD = "spread" in args
    args = [a for a in args if a != "spread"]
    args = [a for a in args if a != "xst"]
    args = [a for a in args if a != "wit"]
    args = [a for a in args if a != "k4"]
    fused4.OUTSC1 = "outsc1" in args
    fused4.STLATE = "stlate" in args
    args = [a for a in args if a != "stlate"]
    fused4.G3A2 = "g3a2" in args or "g3stag" in args
    fused4.G3STAG = "g3stag" in args
    args = [a for a in args if a not in ("g3a2", "g3stag")]
    fused4.L2PF = 2 if "l2pf2" in args else (1 if "l2pf" in args else 0)
    args = [a for a in args if a not in ("l2pf", "l2pf2")]
    fused4.T2B = "t2b" in args
    args = [a for a in args if a != "t2b"]
    fused4.EPIPF = "epipf" in args
    args = [a for a in args if a != "epipf"]
    import conv1
    conv1.UNI = "uni" in args
    args = [a for a in args if a != "uni"]
    fused4.G3P = "g3p" in args
    args = [a for a in args if a != "g3p"]
    fused4.INLINE1 = "inl" in args
    args = [a for a in args if a != "inl"]
    fused4.TAILPF = "tailpf" in args
    args = [a for a in args if a != "tailpf"]
    args = [a for a in args if a not in ("notouch", "outsc1")]
    args = [a for a in args if a != "notsp"]
    args = [a for a in args if a != "nowait"]
    import l0 as _l0, fused as _f
    if "fromxn" in args:
        _l0.NO_XNT = True; _f.FROM_XN = True; _f.CONV_LK = 106240; fused4.FROM_XN = True; fused4.CONV_LK = 106240
    args = [a for a in args if a != "fromxn"]
    import kgen
    kgen.UNAL = "unal" in args
    args = [a for a in args if a != "unal"]
    import g1
    g1.EXP = set(a[2:] for a in args if a.startswith("x_"))
    args = [a for a in args if not a.startswith("x_")]
    import l3
    l3.PRIO = "prio" in args
    l3.NOCONV = "noconv" in args
    parts = [a for a in args[1:] if a not in ("stamps", "touch", "sc1", "prio", "noconv")]
    build(args[0], parts, stamps)
```

```python
from asmlib import *

class Core:
    def __init__(self, A, name, nP, nQ, KS, S, R, ACC, QB, QBp, PR, vP, vQd, vQr, sP, sQ, s_q, s_p, s_lds, s_it, p_ks_stride,
                 orient="QP", lds_base=0, slot_pitch=None, q_stage_stride=None, qreads_fn=None, reads_per_gap=None, nwaves=4):
        self.__dict__.update(locals()); del self.self
        self.nd = (S * nQ + 3) // 4
        self.SLOT = slot_pitch or self.nd * 4 * 1024
        self.NS = KS // S
        self.gsize = self.nd + S * nP
        self.ahead2 = False; self.phase = 0
    def reg(self, kind, b, n): return vr(b, n, kind)
    def G(self, slot):
        c = self
        dm = []
        for j in range(c.nd):
            dm.append(f"s_add_u32 m0, {c.s_lds}, {c.lds_base + slot*c.SLOT + j*4096}\ns_nop 0\n"
                      f"buffer_load_dwordx4 v{c.vQd[j]}, s[{c.sQ}:{c.sQ+3}], {c.s_q} offen lds")
        pl = []
        for ks in range(c.S):
            for i in range(c.nP):
                pl.append(f"buffer_load_dwordx4 {ar(c.PR + ((slot*c.S + ks)*c.nP + i)*4, 4)}, v{c.vP[i]}, s[{c.sP}:{c.sP+3}], {c.s_p} offen offset:{ks*c.p_ks_stride}{getattr(c, 'p_flags', '')}")
        ops = []
        a, b = list(dm), list(pl)
        while a or b:
            if a: ops.append(a.pop(0))
            if b: ops.append(b.pop(0))
        ops[-1] += f"\ns_add_u32 {c.s_q}, {c.s_q}, {c.q_stage_stride or c.S*c.nQ*1024}\ns_add_u32 {c.s_p}, {c.s_p}, {c.S*c.p_ks_stride}"
        return ops
    def qreads(self, buf, slot, ks):
        c = self
        if c.qreads_fn: return c.qreads_fn(buf, slot, ks)
        return [f"ds_read_b128 {vr(c.QB[buf]+j*4, 4, c.QBp)}, v{c.vQr[slot]} offset:{(ks*c.nQ+j)*1024}" for j in range(c.nQ)]
    def mfmas(self, buf, slot, ks):
        c = self; out = []
        for j in range(c.nQ):
            for i in range(c.nP):
                acc = vr(c.ACC + (i*c.nQ+j)*4, 4)
                q = vr(c.QB[buf]+j*4, 4, c.QBp); p = ar(c.PR + ((slot*c.S+ks)*c.nP+i)*4, 4)
                a, b = (q, p) if c.orient == "QP" else (p, q)
                out.append(f"v_mfma_f32_16x16x32_bf16 {acc}, {a}, {b}, {acc}")
        return out
    def setup_addr(self, vlane16, s_wave, vtmp):
        A = self.A; c = self
        A(f"s_lshl_b32 {c.s_lds}, {s_wave}, 10")
        for j in range(c.nd):
            A(f"v_add_u32 v{c.vQd[j]}, {c.s_lds}, v{vlane16}")
            if j: A(f"v_add_u32 v{c.vQd[j]}, {j*4096}, v{c.vQd[j]}")
            if (4*j + 3) >= c.S * c.nQ:
                nvalid = c.S*c.nQ - 4*j
                A(f"s_cmp_lt_u32 {s_wave}, {nvalid}\ns_cselect_b32 s45, 0, 0x80000000\nv_or_b32 v{c.vQd[j]}, s45, v{c.vQd[j]}")
        for s in range(c.R):
            A(f"v_add_u32 v{c.vQr[s]}, {c.lds_base + s*c.SLOT}, v{vlane16}")
    def prologue(self, npre, extra=None):
        A = self.A; c = self
        for op in c.G(0): A(op)
        A("s_barrier")
        for s in range(1, c.R - 2):
            for op in c.G(s): A(op)
        h = c.gsize // 2
        for op in c.G(c.R - 2)[:h]: A(op)
        if extra: extra()
        for r in range(c.nP*c.nQ*4): A(f"v_mov_b32 v{c.ACC+r}, 0")
        A(f"s_waitcnt vmcnt({(c.R-3)*c.gsize + h})")
        A("s_barrier")
        for x in c.qreads(0, 0, 0): A(x)
    def kstep(self, mf, rd, gl, fill=None, nfill=0):
        A = self.A
        n = len(mf)
        half = max(1, n // 2)
        rd = list(rd); gl = list(gl)
        if self.ahead2:
            lo, hi = (0, half) if self.phase else (half, n)
            gpos = [lo + (k * (hi - lo)) // max(1, len(gl)) for k in range(len(gl))]
            for j in range(n):
                A(mf[j])
                if rd: A(rd.pop(0))
                while gl and gpos[0] <= j:
                    gpos.pop(0); A(gl.pop(0))
            for x in rd: A(x)
            for x in gl: A(x)
            return
        rper = -(-len(rd) // half) if rd else 0
        gpos = [half + (k * (n - half)) // max(1, len(gl)) for k in range(len(gl))] if n - half > 0 else []
        for j in range(n):
            A(mf[j])
            if j < half:
                for _ in range(rper):
                    if rd: A(rd.pop(0))
            while gl and gpos and gpos[0] <= j:
                gpos.pop(0); A(gl.pop(0))
            if fill:
                for _ in range(nfill):
                    if fill: A(fill.pop(0))
        for x in rd: A(x)
        for x in gl: A(x)
    def loop(self, looped, tail_hook=None, stage_hook=None, fill=None, nfill=0, late_hook=None):
        A = self.A; c = self
        h = c.gsize // 2
        nb = c.R if looped else c.NS
        if looped:
            assert c.NS % c.R == 0
            A(f"s_mov_b32 {c.s_it}, 0")
            A.label(f"{c.name}_loop")
        bpos = (c.S - 1) // 2 if c.S > 2 else 0
        for u in range(nb):
            slot = u % c.R
            gi = u + c.R - 1; gpi = u + c.R - 2
            g = c.G(gi % c.R) if (looped or gi < c.NS) else []
            gp = c.G(gpi % c.R) if (looped or gpi < c.NS) else []
            gp2 = gp[h:]; g1 = g[:h]
            nA = bpos + 1; nB = c.S - nA
            for ks in range(c.S):
                gk = u * c.S + ks
                if c.ahead2:
                    A(f"s_waitcnt lgkmcnt({c.nQ})")
                    k2 = ks + 2
                    rd = c.qreads((gk + 2) % 3, slot, k2) if k2 < c.S else c.qreads((gk + 2) % 3, (u + 1) % c.R, k2 - c.S)
                else:
                    A("s_waitcnt lgkmcnt(0)")
                    last = (not looped) and u == nb - 1 and ks == c.S - 1
                    if last: rd = []
                    elif ks < c.S - 1: rd = c.qreads((gk + 1) & 1, slot, ks + 1)
                    else: rd = c.qreads((gk + 1) & 1, (u + 1) % c.R, 0)
                if ks <= bpos:
                    k0 = (len(gp2) * ks) // nA; k1 = (len(gp2) * (ks + 1)) // nA; gl = gp2[k0:k1]
                else:
                    kk = ks - nA; k0 = (len(g1) * kk) // nB; k1 = (len(g1) * (kk + 1)) // nB; gl = g1[k0:k1]
                c.kstep(c.mfmas((gk % 3) if c.ahead2 else (gk & 1), slot, ks), rd, gl, fill, nfill)
                if ks == bpos and (looped or u + 1 < c.NS):
                    if looped: n = (c.R - 3) * c.gsize
                    else: n = max(0, min(u + c.R - 2, c.NS - 1) - (u + 1)) * c.gsize
                    n += c.extra_vm(u) if hasattr(c, "extra_vm") else 0
                    A(f"s_waitcnt vmcnt({min(n, 63)})")
                    A("s_barrier")
                    if looped and tail_hook is not None:
                        if u == 1:
                            skip = A.newlabel(c.name + "_sk")
                            A(f"s_cmp_eq_u32 {c.s_it}, {c.NS//c.R - 1}\ns_cbranch_scc0 {skip}")
                            for v in list(c.vQd) + list(c.vP): A(f"v_mov_b32 v{v}, 0x80000000")
                            tail_hook(A)
                            A.label(skip)
                    if looped and late_hook is not None and u == c.R - 2:
                        skip = A.newlabel(c.name + "_lk")
                        A(f"s_cmp_eq_u32 {c.s_it}, {c.NS//c.R - 1}\ns_cbranch_scc0 {skip}")
                        late_hook(A)
                        A.label(skip)
                    if stage_hook: stage_hook(u)
        if looped:
            A(f"s_add_u32 {c.s_it}, {c.s_it}, 1\ns_cmp_lt_u32 {c.s_it}, {c.NS//c.R}\ns_cbranch_scc1 {c.name}_loop")
```

```python
from asmlib import *
from core import Core
from g1 import f2u
from g1n import gen_g1n
import l3
from conv1 import Conv1
import math

OUTSC1 = False
TAILPF = False
INLINE1 = False
G3P = False
EPIPF = False
T2B = False
L2PF = 0
G3A2 = False
G3STAG = False
FROM_XN = False
CONV_LK = 110592
C2, C3, C4, C5 = 0, 16, 32, 48

class F:
    def __init__(self, A, stamps):
        self.A = A; self.stamps = stamps; self.n = 0
    def stamp(self):
        if not self.stamps: return
        A = self.A; i = self.n; self.n += 1
        assert i < 30
        A("s_memtime s[100:101]\ns_waitcnt lgkmcnt(0)\nv_mov_b32 v254, s100\ns_mov_b64 exec, 1")
        A(f"buffer_store_dword v254, v255, s[96:99], 0 offen offset:{8 + 4*i}\ns_mov_b64 exec, -1")
    def rt(self, slot):
        if not self.stamps: return
        A = self.A
        A("s_memrealtime s[100:101]\ns_waitcnt lgkmcnt(0)\nv_mov_b32 v254, s100\ns_mov_b64 exec, 1")
        A(f"buffer_store_dword v254, v255, s[96:99], 0 offen offset:{4*slot}\ns_mov_b64 exec, -1")
    def ptrs_g1(self):
        self.A("s_mov_b32 s28, s78\ns_mov_b32 s29, s79\ns_mov_b32 s54, s80\ns_mov_b32 s55, s81")

FLAG_BYTES = 4 * 16 * 64 * 128
def flag_off(kind, group_s, slot_s):
    return f"s_add_u32 s44, {group_s}, {kind*16}\ns_lshl_b32 s44, s44, 6\ns_add_u32 s44, s44, {slot_s}\ns_lshl_b32 s44, s44, 7"

def signal(A, name, idx_exprs, sync=True):
    if sync: A("s_waitcnt vmcnt(0)\ns_barrier")
    lab = A.newlabel(name + "_sg")
    A(f"s_cmp_eq_u32 s36, 0\ns_cbranch_scc0 {lab}")
    srd_off(A, 24, 32, 33, WS_FLAG, FLAG_BYTES)
    A("v_mov_b32 v251, 1\ns_mov_b64 exec, 1")
    for e in idx_exprs:
        A(e); A("v_mov_b32 v250, s44\nbuffer_store_dword v251, v250, s[24:27], 0 offen sc1")
    A("s_mov_b64 exec, -1")
    A.label(lab)

def wait_flags(A, name, kind, group_s, nslots, barrier=True, allwaves=False, drain=False):
    lab = A.newlabel(name + "_wf")
    if not allwaves: A(f"s_cmp_eq_u32 s36, 0\ns_cbranch_scc0 {lab}")
    srd_off(A, 24, 32, 33, WS_FLAG, FLAG_BYTES)
    A(flag_off(kind, group_s, 0))
    A(f"v_lshlrev_b32 v250, 7, v15\nv_add_u32 v250, s44, v250")
    A(f"s_mov_b32 s46, {hex(((1 << nslots) - 1) & 0xffffffff)}\ns_mov_b32 s47, {hex(((1 << nslots) - 1) >> 32)}")
    poll = A.newlabel(name + "_pl")
    A.label(poll)
    A("buffer_load_dword v251, v250, s[24:27], 0 offen sc1\ns_waitcnt vmcnt(0)")
    A("v_cmp_eq_u32 s[48:49], 1, v251\ns_and_b64 s[48:49], s[48:49], s[46:47]")
    A(f"s_cmp_eq_u64 s[48:49], s[46:47]\ns_cbranch_scc1 {lab}\ns_sleep 2\ns_branch {poll}")
    A.label(lab)
    if drain: A("s_waitcnt vmcnt(0)")
    if barrier: A("s_barrier")

def g2_pre_p(Fo, name):
    A = Fo.A
    srd_off(A, 4, 32, 33, WS_WSP, 2048 * 4096)
    A(f"""
    s_lshl_b32 s44, s34, 7
    s_lshl_b32 s45, s36, 5
    s_add_u32 s44, s44, s45
    v_lshlrev_b32 v1, 4, v15
    s_lshl_b32 s46, s44, 12
    v_add_u32 v2, s46, v1
    v_add_u32 v3, 0x10000, v2
    """)
    for s in range(3):
        A(f"s_mov_b32 s39, {s*4096}")
        for n in range(8 if s < 2 else 4):
            ks, i = n // 2, n % 2
            A(f"buffer_load_dwordx4 {ar(s*32 + ks*8 + i*4, 4)}, v{2+i}, s[4:7], s39 offen offset:{ks*1024} sc1")

def wait_flags2(A, name, a, b):
    lab = A.newlabel(name + "_w2")
    A(f"s_cmp_eq_u32 s36, 0\ns_cbranch_scc0 {lab}")
    srd_off(A, 24, 32, 33, WS_FLAG, FLAG_BYTES)
    A(flag_off(a[0], a[1], 0)); A("s_mov_b32 s47, s44")
    A(flag_off(b[0], b[1], 0))
    A("v_mov_b32 v250, s47\nv_mov_b32 v251, s44\nv_cmp_gt_u32 vcc, 16, v15\ns_nop 1\nv_cndmask_b32 v250, v251, v250, vcc")
    A("v_and_b32 v251, 15, v15\nv_lshlrev_b32 v251, 7, v251\nv_add_u32 v250, v250, v251")
    poll = A.newlabel(name + "_p2")
    A.label(poll)
    A("buffer_load_dword v251, v250, s[24:27], 0 offen sc1\ns_waitcnt vmcnt(0)")
    A("v_cmp_eq_u32 s[48:49], 1, v251")
    A(f"s_cmp_eq_u32 s48, -1\ns_cbranch_scc1 {lab}\ns_sleep 1\ns_branch {poll}")
    A.label(lab)
    A("s_barrier")

def gen_g2f(Fo, name, post_loop=None, part="early"):
    A = Fo.A; stamp = Fo.stamp
    SLOT = 36864
    ACC = 128; PR = 0; QV = [16, 52]; Z1V = 88; Z1A = 128
    vP = [2, 3]; vQd = [4, 5, 6]; vQr = [8, 9, 10, 11]; vB = [12, 13]; vL = 15
    def dm(slot, j):
        g = j // 4
        pre = f"s_add_u32 m0, s{40+slot}, {g*4096}\ns_nop 0\n" if j % 4 == 0 else ""
        return pre + f"buffer_load_dwordx4 v{vQd[g]}, s[8:11], s38 offen offset:{(j%4)*1024} sc1 lds"
    def pl(slot, n):
        ks, i = n // 2, n % 2
        return f"buffer_load_dwordx4 {ar(PR + slot*32 + ks*8 + i*4, 4)}, v{vP[i]}, s[4:7], s39 offen offset:{ks*1024} sc1"
    def G(slot):
        ops = []
        for j in range(9):
            ops.append(dm(slot, j))
            if j < 8: ops.append(pl(slot, j))
        ops[-1] += f"\ns_add_u32 s38, s38, {SLOT}\ns_add_u32 s39, s39, 4096"
        return ops
    if part == "early":
        srd_off(A, 4, 32, 33, WS_WSP, 2048 * 4096)
        A("s_mul_i32 s44, s35, 589824")
        A(f"s_add_u32 s44, s44, {WS_Z2N}")
        srd_off(A, 8, 32, 33, "s44", 589824)
        A(f"""
        s_lshl_b32 s44, s34, 7
        s_lshl_b32 s45, s36, 5
        s_add_u32 s44, s44, s45
        v_lshlrev_b32 v1, 4, v{vL}
        s_lshl_b32 s46, s44, 12
        v_add_u32 v{vP[0]}, s46, v1
        v_add_u32 v{vP[1]}, 0x10000, v{vP[0]}
        s_mul_i32 s45, s36, 9216
        v_add_u32 v{vQd[0]}, s45, v1
        v_add_u32 v{vQd[1]}, 0x1000, v{vQd[0]}
        v_add_u32 v{vQd[2]}, 0x2000, v{vQd[0]}
        s_mov_b32 s40, s45
        s_add_u32 s41, s45, {SLOT}
        s_add_u32 s42, s45, {2*SLOT}
        s_add_u32 s43, s45, {3*SLOT}
        """)
        wait_flags2(A, name, (0, "s35"), (1, "s34"))
        A("s_mov_b32 s38, 0\ns_mov_b32 s39, 0")
        for op in G(0): A(op)
        Fo.g2_late_ops = G(1) + G(2)[0:9]
        return
    srd_off(A, 16, 32, 33, WS_H, 128 * 72 * 1024)
    srd(A, 20, 82, 83, 4096)
    A(f"""
    s_lshl_b32 s44, s34, 7
    s_lshl_b32 s45, s36, 5
    s_add_u32 s44, s44, s45
    v_and_b32 v1, 15, v{vL}
    v_add_u32 v1, s44, v1
    v_lshlrev_b32 v{vB[0]}, 1, v1
    v_add_u32 v{vB[1]}, 32, v{vB[0]}
    v_lshlrev_b32 v1, 4, v{vL}
    v_mov_b32 v{vQr[0]}, v1
    v_add_u32 v{vQr[1]}, {SLOT}, v1
    v_add_u32 v{vQr[2]}, {2*SLOT}, v1
    v_add_u32 v{vQr[3]}, {3*SLOT}, v1
    """)
    for i in range(2):
        A(f"buffer_load_ushort v{124+i}, v{vB[i]}, s[20:23], 0 offen")
    for r in range(72): A(f"v_mov_b32 v{ACC+r}, 0")
    A("s_waitcnt vmcnt(26)")
    A("s_barrier")
    def qreads(buf, slot, ks):
        return [f"ds_read_b128 {vr(QV[buf]+jn*4,4)}, v{vQr[slot]} offset:{(ks*9+jn)*1024}" for jn in range(9)]
    def mfmas(buf, slot, ks):
        out = []
        for jn in range(9):
            for i in range(2):
                c = vr(ACC + (i*9+jn)*4, 4)
                out.append(f"v_mfma_f32_16x16x32_bf16 {c}, {vr(QV[buf]+jn*4,4)}, {ar(PR+slot*32+ks*8+i*4,4)}, {c}")
        return out
    for x in qreads(0, 0, 0): A(x)
    stamp()
    A("s_mov_b32 s37, 0")
    A.label(f"{name}_loop")
    for u in range(4):
        g = G((u + 3) & 3); gprev = G((u + 2) & 3)
        for ks in range(4):
            A("s_waitcnt lgkmcnt(0)")
            rd = qreads((ks + 1) & 1, u, ks + 1) if ks < 3 else qreads(0, (u + 1) & 3, 0)
            gl = [gprev[9:13], gprev[13:17], g[0:5], g[5:9]][ks]
            mf = mfmas(ks & 1, u, ks)
            for j in range(18):
                A(mf[j])
                if j < 9: A(rd[j])
                elif (j - 9) % 2 == 0 and (j - 9) // 2 < len(gl): A(gl[(j - 9) // 2])
            if ks == 1:
                A("s_waitcnt vmcnt(17)")
                A("s_barrier")
                if u == 1:
                    skip = A.newlabel(name + "_sk")
                    A(f"s_cmp_eq_u32 s37, 3\ns_cbranch_scc0 {skip}")
                    for v in vP + vQd: A(f"v_mov_b32 v{v}, 0x80000000")
                    if TAILPF:
                        for r in range(4): A(f"s_mov_b32 s{40+r}, 147456")
                    A.label(skip)
                if u == 2 and TAILPF:
                    skip2 = A.newlabel(name + "_sk2")
                    A(f"s_cmp_eq_u32 s37, 3\ns_cbranch_scc0 {skip2}")
                    A("s_mov_b32 s68, 0")
                    post_loop()
                    A.label(skip2)
    A(f"s_add_u32 s37, s37, 1\ns_cmp_lt_u32 s37, 4\ns_cbranch_scc1 {name}_loop")
    stamp()
    A("s_waitcnt vmcnt(0)\ns_barrier")
    if post_loop and not TAILPF and not EPIPF and not T2B: post_loop()
    pfo = list(Fo.pfB_ops()) if EPIPF else []
    for r in range(36):
        A(f"v_accvgpr_read_b32 v{Z1V+r}, a{Z1A+r}")
        if r % 12 == 5 and pfo: A(pfo.pop(0))
    A("v_lshlrev_b32 v200, 16, v124\nv_lshlrev_b32 v201, 16, v124\nv_lshlrev_b32 v202, 16, v125\nv_lshlrev_b32 v203, 16, v125")
    A(f"""
    s_lshl_b32 s66, s34, 3
    s_lshl_b32 s67, s36, 1
    s_add_u32 s66, s66, s67
    s_mul_i32 s66, s66, 72
    s_lshr_b32 s67, s35, 1
    s_mul_i32 s67, s67, 9
    s_add_u32 s66, s66, s67
    s_and_b32 s95, s35, 1
    s_mul_i32 s90, s95, 5
    s_add_u32 s90, s90, s66
    s_lshl_b32 s90, s90, 10
    s_add_u32 s91, s66, 4
    s_lshl_b32 s91, s91, 10
    s_lshl_b32 s94, s95, 3
    s_add_u32 s91, s91, s94
    s_add_u32 s92, s90, 73728
    s_add_u32 s93, s91, 73728
    v_lshlrev_b32 v1, 4, v{vL}
    """)
    T = 204
    for i in range(2):
        for jn in range(9):
            c = ACC + (i*9+jn)*4; z = Z1V + (i*9+jn)*2; t = T + ((i*9+jn) & 1) * 4
            A(f"v_lshlrev_b32 v{t}, 16, v{z}")
            A(f"v_and_b32 v{t+1}, 0xffff0000, v{z}")
            A(f"v_lshlrev_b32 v{t+2}, 16, v{z+1}")
            A(f"v_and_b32 v{t+3}, 0xffff0000, v{z+1}")
            A(f"v_pk_add_f32 {vr(c,2)}, {vr(c,2)}, {vr(200+2*i,2)}")
            A(f"v_pk_add_f32 {vr(c+2,2)}, {vr(c+2,2)}, {vr(200+2*i,2)}")
            A(f"v_pk_mul_f32 {vr(c,2)}, {vr(c,2)}, {vr(t,2)}")
            A(f"v_pk_mul_f32 {vr(c+2,2)}, {vr(c+2,2)}, {vr(t+2,2)}")
            A(f"v_cvt_pk_bf16_f32 v{z}, v{c}, v{c+1}")
            A(f"v_cvt_pk_bf16_f32 v{z+1}, v{c+2}, v{c+3}")
            if pfo and (i*9+jn) % 2 == 0: A(pfo.pop(0))
    for o in pfo: A(o)
    odd = A.newlabel(name + "_odd"); done = A.newlabel(name + "_sd")
    A(f"""
    v_bfe_u32 v2, v{vL}, 4, 1
    v_mul_u32_u24 v2, 73728, v2
    v_lshrrev_b32 v3, 5, v{vL}
    v_lshlrev_b32 v3, 8, v3
    v_add_u32 v2, v2, v3
    v_and_b32 v3, 15, v{vL}
    v_lshlrev_b32 v3, 4, v3
    v_add_u32 v2, v2, v3
    s_add_u32 s91, s66, 4
    s_lshl_b32 s91, s91, 10
    s_lshl_b32 s94, s95, 9
    s_add_u32 s91, s91, s94
    """)
    def single(jn):
        a0 = Z1V + jn*2; a1 = Z1V + (9+jn)*2
        A(f"v_mov_b32 v4, v{a0}\nv_mov_b32 v5, v{a0+1}\nv_mov_b32 v6, v{a1}\nv_mov_b32 v7, v{a1+1}\ns_nop 1")
        A("v_permlane16_swap_b32 v4, v6\nv_permlane16_swap_b32 v5, v7\ns_nop 0")
        A("buffer_store_dwordx4 v[4:7], v2, s[16:19], s91 offen sc1")
    A(f"s_cmp_eq_u32 s95, 1\ns_cbranch_scc1 {odd}")
    for i in range(2):
        for p in range(4):
            A(f"buffer_store_dwordx4 {vr(Z1V+(i*9+2*p)*2,4)}, v1, s[16:19], s{90 if i==0 else 92} offen offset:{p*1024} sc1")
    single(8)
    A(f"s_branch {done}")
    A.label(odd)
    for i in range(2):
        for p in range(4):
            A(f"buffer_store_dwordx4 {vr(Z1V+(i*9+1+2*p)*2,4)}, v1, s[16:19], s{90 if i==0 else 92} offen offset:{p*1024} sc1")
    single(0)
    A.label(done)

def g3_pre_q(Fo, name):
    A = Fo.A
    A(f"""
    s_lshr_b32 s45, s2, 5
    s_min_u32 s45, s45, 5
    s_mul_i32 s44, s45, {72*6*1024}
    s_add_u32 s44, s44, {WS_WOT}
    """)
    srd_off(A, 4, 32, 33, "s44", 72*6*1024)
    A("v_lshlrev_b32 v1, 4, v15\ns_lshl_b32 s40, s36, 10\nv_add_u32 v2, s40, v1")
    for j in range(1, 6): A(f"v_add_u32 v{2+j}, {j*4096}, v2")
    for s in range(4):
        A(f"s_mov_b32 s38, {s*24*1024}")
        for j in range(6):
            A(f"s_add_u32 m0, s40, {s*24576 + j*4096}\ns_nop 0\nbuffer_load_dwordx4 v{2+j}, s[4:7], s38 offen lds")

def gen_g3f(Fo, name):
    A = Fo.A; stamp = Fo.stamp
    R = 6; S = 4
    ACC = 16; QB = [96, 120, 144]; PR = 0
    vQd = [2, 3, 4, 5, 6, 7]; vP = [8]; vL = 15; vQr = [9, 10, 11, 12, 13, 14]
    A(f"""
    s_and_b32 s44, s2, 7
    s_lshr_b32 s45, s2, 3
    s_lshl_b32 s34, s44, 2
    s_and_b32 s46, s45, 3
    s_add_u32 s34, s34, s46
    s_lshr_b32 s35, s45, 2
    v_lshlrev_b32 v1, 4, v{vL}
    s_lshl_b32 s44, s34, 2
    s_add_u32 s58, s44, s36
    s_mul_i32 s44, s58, 73728
    v_add_u32 v{vP[0]}, s44, v1
    """)
    A(f"s_mul_i32 s44, s35, {72*6*1024}\ns_add_u32 s44, s44, {WS_WOT}")
    srd_off(A, 4, 32, 33, "s44", 72*6*1024)
    srd_off(A, 8, 32, 33, WS_H, 128 * 72 * 1024)
    c = Core(A, name + "_g", 1, 6, 72, S, R, ACC, QB, "a", PR, vP, vQd, vQr, 8, 4, "s38", "s39", "s40", "s37", 1024, orient="QP")
    c.p_flags = " sc1"
    c.ahead2 = G3A2
    c.setup_addr(1, "s36", 12)
    h = c.gsize // 2
    def split(slot):
        ops = c.G(slot);
        return ops
    pre_a = []; pre_b = []; post = []
    for s in range(R - 1):
        ops = c.G(s)
        ops = ops if s < R - 2 else ops[:h]
        q = [o for o in ops if " lds" in o]; p = [o for o in ops if " lds" not in o]
        strip = lambda o: o.split("\ns_add_u32 s38, s38")[0]
        (pre_a if s < 4 else pre_b).append(f"s_mov_b32 s38, {s*S*6*1024}"); (pre_a if s < 4 else pre_b).extend(strip(o) for o in q)
        post.append(f"s_mov_b32 s39, {s*S*1024}"); post += [strip(o) for o in p]
    if G3P:
        strip = lambda o: o.split("\ns_add_u32 s38, s38")[0]
        Qs = []; Ps = []
        for s in range(R - 1):
            ops = c.G(s); ops = ops if s < R - 2 else ops[:h]
            Qs.append([f"s_mov_b32 s38, {s*S*6*1024}"] + [strip(o) for o in ops if " lds" in o])
            Ps.append([f"s_mov_b32 s39, {s*S*1024}"] + [strip(o) for o in ops if " lds" not in o])
        A("s_barrier")
        for s in (0, 1):
            for o in Qs[s]: A(o)
        srd(A, 12, 76, 77, 2048 * 1152)
        srd_off(A, 16, 32, 33, WS_S, 288 * 8192)
        srd(A, 20, 84, 85, 2048 * 1152)
        for r in range(24): A(f"v_mov_b32 v{ACC+r}, 0")
        stamp()
        A("s_lshr_b32 s59, s34, 1")
        wait_flags(A, name, 2, "s59", 16, drain=True)
        Fo.sig_st_nosync()
        stamp()
        for s in (0, 1):
            for o in Ps[s]: A(o)
        for s in (2, 3, 4):
            for o in Qs[s] + Ps[s]: A(o)
        A(f"s_mov_b32 s38, {(R-2)*S*6*1024}\ns_mov_b32 s39, {(R-2)*S*1024}")
        A("s_waitcnt vmcnt(25)\ns_barrier")
    else:
        if TAILPF: A("s_barrier")
        for o in pre_a: A(o)
        Fo.conv_fin()
        c.setup_addr(1, "s36", 12)
        A("s_barrier")
        for o in pre_b: A(o)
        srd(A, 12, 76, 77, 2048 * 1152)
        srd_off(A, 16, 32, 33, WS_S, 288 * 8192)
        srd(A, 20, 84, 85, 2048 * 1152)
        for r in range(24): A(f"v_mov_b32 v{ACC+r}, 0")
        stamp()
        A("s_lshr_b32 s59, s34, 1")
        wait_flags(A, name, 2, "s59", 16)
        stamp()
        for o in post: A(o)
        A(f"s_mov_b32 s38, {(R-2)*S*6*1024}\ns_mov_b32 s39, {(R-2)*S*1024}")
        Fo.pre_g3()
    for x in c.qreads(0, 0, 0): A(x)
    if G3A2:
        for x in c.qreads(1, 0, 1): A(x)
    stamp()
    def tail(A):
        A(f"""
        v_and_b32 v1, 15, v{vL}
        s_lshl_b32 s44, s58, 4
        v_add_u32 v1, s44, v1
        v_mul_u32_u24 v1, 1152, v1
        v_lshrrev_b32 v40, 4, v{vL}
        v_lshlrev_b32 v40, 3, v40
        v_add_u32 v1, v1, v40
        s_mul_i32 s44, s35, 192
        v_add_u32 v1, s44, v1
        """)
        for jd in range(6):
            A(f"buffer_load_dwordx2 {vr(52+2*jd,2)}, v1, s[12:15], 0 offen offset:{jd*32}")
    def late(A):
        wait_flags(A, name, 3, "s35", 48, barrier=False, allwaves=True)
        A(f"""
        v_lshrrev_b32 v42, 4, v{vL}
        v_lshlrev_b32 v42, 14, v42
        v_and_b32 v43, 15, v{vL}
        v_lshlrev_b32 v43, 2, v43
        v_add_u32 v42, v42, v43
        s_mul_i32 s44, s35, {48*8192}
        s_lshl_b32 s45, s58, 6
        s_add_u32 s44, s44, s45
        """)
        for jd in range(6):
            for e in range(2):
                A(f"s_add_u32 s45, s44, {(8*jd + e)*8192}")
                A(f"buffer_load_dword v{64+2*jd+e}, v42, s[16:19], s45 offen sc1")
    if G3STAG:
        other = A.newlabel(name + "_o"); join = A.newlabel(name + "_j")
        A(f"s_and_b32 s44, s36, 1\ns_cmp_eq_u32 s44, 1\ns_cbranch_scc1 {other}")
        c.phase = 0; c.name = name + "_ga"
        c.loop(True, tail_hook=tail, late_hook=late)
        A(f"s_branch {join}")
        A.label(other)
        c.phase = 1; c.name = name + "_gb"
        c.loop(True, tail_hook=tail, late_hook=late)
        A.label(join)
    else:
        c.loop(True, tail_hook=tail, late_hook=late)
    stamp()
    NL2E = -math.log2(math.e)
    A(f"v_mov_b32 v76, {hex(f2u(NL2E))}\nv_mov_b32 v77, {hex(f2u(NL2E))}\nv_mov_b32 v78, 1.0\nv_mov_b32 v79, 1.0")
    for jd in range(6):
        cc = ACC + jd*4; t = 80 + (jd % 2) * 4
        A(f"v_pk_mul_f32 {vr(t,2)}, {vr(cc,2)}, v[76:77]")
        A(f"v_pk_mul_f32 {vr(t+2,2)}, {vr(cc+2,2)}, v[76:77]")
        for r in range(4): A(f"v_exp_f32 v{t+r}, v{t+r}")
        A(f"v_pk_add_f32 {vr(t,2)}, {vr(t,2)}, v[78:79]")
        A(f"v_pk_add_f32 {vr(t+2,2)}, {vr(t+2,2)}, v[78:79]")
        for r in range(4): A(f"v_rcp_f32 v{t+r}, v{t+r}")
        A("s_nop 0")
        A(f"v_pk_mul_f32 {vr(cc,2)}, {vr(cc,2)}, {vr(t,2)}")
        A(f"v_pk_mul_f32 {vr(cc+2,2)}, {vr(cc+2,2)}, {vr(t+2,2)}")
    A("s_waitcnt vmcnt(0)")
    for jd in range(6):
        cc = ACC + jd*4; t = 88 + (jd % 2) * 8
        A(f"v_lshlrev_b32 v{t+4}, 16, v{64+2*jd}\nv_and_b32 v{t+5}, 0xffff0000, v{64+2*jd}")
        A(f"v_lshlrev_b32 v{t+6}, 16, v{65+2*jd}\nv_and_b32 v{t+7}, 0xffff0000, v{65+2*jd}")
        A(f"v_lshlrev_b32 v{t}, 16, v{52+2*jd}\nv_and_b32 v{t+1}, 0xffff0000, v{52+2*jd}")
        A(f"v_lshlrev_b32 v{t+2}, 16, v{53+2*jd}\nv_and_b32 v{t+3}, 0xffff0000, v{53+2*jd}")
        A(f"v_pk_fma_f32 {vr(cc,2)}, {vr(cc,2)}, {vr(t+4,2)}, {vr(t,2)}")
        A(f"v_pk_fma_f32 {vr(cc+2,2)}, {vr(cc+2,2)}, {vr(t+6,2)}, {vr(t+2,2)}")
        o = 104 + (jd // 2) * 4 + (jd % 2) * 2
        A(f"v_cvt_pk_bf16_f32 v{o}, v{cc}, v{cc+1}")
        A(f"v_cvt_pk_bf16_f32 v{o+1}, v{cc+2}, v{cc+3}")
    A(f"""
    v_and_b32 v1, 15, v{vL}
    s_lshl_b32 s44, s58, 4
    v_add_u32 v1, s44, v1
    v_mul_u32_u24 v1, 1152, v1
    v_bfe_u32 v12, v{vL}, 4, 1
    v_lshlrev_b32 v12, 5, v12
    v_add_u32 v1, v1, v12
    v_lshrrev_b32 v12, 5, v{vL}
    v_lshlrev_b32 v12, 4, v12
    v_add_u32 v1, v1, v12
    s_mul_i32 s44, s35, 192
    v_add_u32 v1, s44, v1
    """)
    for p in range(3):
        o = 104 + p*4
        A(f"v_permlane16_swap_b32 v{o}, v{o+2}")
        A(f"v_permlane16_swap_b32 v{o+1}, v{o+3}")
    A("s_nop 0")
    for p in range(3):
        A(f"buffer_store_dwordx4 {vr(104+p*4,4)}, v1, s[20:23], 0 offen offset:{p*64}{' sc1' if OUTSC1 else ''}")

def gen_fused(name, stamps=False):
    A = Asm(); Fo = F(A, stamps)
    A(f"""
    s_cmp_ge_u32 s2, 256
    s_cbranch_scc1 {name}_end
    s_load_dwordx2 s[76:77], s[0:1], 0
    s_load_dwordx2 s[88:89], s[0:1], 48
    s_load_dwordx2 s[78:79], s[0:1], 64
    s_load_dwordx4 s[80:83], s[0:1], 72
    s_load_dwordx4 s[84:87], s[0:1], 96
    s_load_dwordx2 s[32:33], s[0:1], 112
    s_and_b32 s44, s2, 7
    s_lshr_b32 s45, s2, 3
    s_and_b32 s34, s44, 1
    s_lshl_b32 s34, s34, 3
    s_and_b32 s46, s45, 7
    s_add_u32 s34, s34, s46
    s_lshr_b32 s35, s44, 1
    s_lshl_b32 s35, s35, 2
    s_lshr_b32 s46, s45, 3
    s_add_u32 s35, s35, s46
    v_lshrrev_b32 v1, 6, v0
    v_and_b32 v15, 63, v0
    s_nop 0
    v_readfirstlane_b32 s36, v1
    """)
    if stamps:
        A("s_waitcnt lgkmcnt(0)")
        srd_off(A, 96, 32, 33, WS_STAMP + 0x100000, 0x40000)
        A("s_lshl_b32 s44, s2, 2\ns_add_u32 s44, s44, s36\ns_lshl_b32 s44, s44, 7\nv_mov_b32 v255, s44")
        Fo.rt(0); Fo.stamp()
    cv = Conv1(A, name + "_cv", CONV_LK, CONV_LK + 41216, FROM_XN, remap=True, dyn=TAILPF)
    subP = name + "_subP"; subC = name + "_subC"; subF = name + "_subF"; emitted = set()
    def back(target): return (target == subP and 'P' in emitted) or (target in (subC, subF) and 'C' in emitted)
    def call(target):
        ref = A.newlabel(name + "_pc")
        A("s_getpc_b64 s[28:29]")
        A.label(ref)
        if INLINE1 and back(target):
            A(f"s_sub_u32 s28, s28, {ref}-{target}\ns_subb_u32 s29, s29, 0\ns_swappc_b64 s[30:31], s[28:29]")
        else:
            A(f"s_add_u32 s28, s28, {target}-{ref}\ns_addc_u32 s29, s29, 0\ns_swappc_b64 s[30:31], s[28:29]")
    def midsig():
        lab = A.newlabel(name + "_ms")
        A(f"s_cmp_eq_u32 s36, 0\ns_cbranch_scc0 {lab}")
        srd_off(A, 24, 32, 33, WS_FLAG, FLAG_BYTES)
        A("v_mov_b32 v251, 1\ns_mov_b64 exec, 1")
        for reg in (61, 62):
            sk = A.newlabel(name + "_mk")
            A(f"s_cmp_eq_u32 s{reg}, -1\ns_cbranch_scc1 {sk}\nv_mov_b32 v250, s{reg}\nbuffer_store_dword v251, v250, s[24:27], 0 offen sc1")
            A.label(sk)
        A("s_mov_b64 exec, -1")
        A.label(lab)
    def set_ret(target):
        ref = A.newlabel(name + "_pc")
        A("s_getpc_b64 s[30:31]")
        A.label(ref)
        A(f"s_add_u32 s30, s30, {target}-{ref}\ns_addc_u32 s31, s31, 0")
    def bodyP():
        A.label(subP); cv.prefetch("s73"); A("s_setpc_b64 s[30:31]")
    def bodyCF(ret2):
        A.label(subC)
        def split():
            A("s_setpc_b64 s[30:31]")
            if ret2:
                A.label(ret2[0]); set_ret(ret2[1])
            A.label(subF)
        cv.compute(False, "s72", None, mid_hook=midsig, dyn=True, split=split, saA=252)
        A("s_setpc_b64 s[30:31]")
    def prefetch(chs):
        A(f"s_mov_b32 s73, {chs}")
        if INLINE1 and "P" not in emitted:
            emitted.add("P"); r = A.newlabel(name + "_rp"); set_ret(r); bodyP(); A.label(r)
        else: call(subP)
    def compute(second, wait_n, f1, f2, finish=True):
        for reg, f in ((61, f1), (62, f2)):
            if f: A(f); A(f"s_mov_b32 s{reg}, s44")
            else: A(f"s_mov_b32 s{reg}, -1")
        A(f"s_mov_b32 s60, {1 if second else 0}")
        A(f"s_waitcnt vmcnt({wait_n})")
        if INLINE1 and "C" not in emitted:
            emitted.add("C")
            r1 = A.newlabel(name + "_r1"); r2 = A.newlabel(name + "_r2")
            set_ret(r1); bodyCF((r1, r2)); A.label(r2)
            return
        call(subC)
        if finish: call(subF)
    A("s_lshl_b32 s70, s2, 1\ns_add_u32 s71, s70, 1\ns_mov_b32 s72, s2")
    def pfopsA():
        if TAILPF: A("s_mov_b32 s68, 110592")
        return cv.prefetch_ops("s70")
    Fo.conv_prefetch_ops = pfopsA
    def convA():
        if TAILPF: A("s_mov_b32 s68, 110592")
        import g1n
        compute(False, 12 if g1n.SPREAD else 0, None, None)
    Fo.conv_A = convA
    Fo.pfB_ops = lambda: cv.prefetch_ops("s71")
    Fo.sig_z2n = lambda: signal(A, name, [flag_off(0, "s35", "s34"), "s_lshr_b32 s45, s2, 4\ns_and_b32 s46, s2, 15\n" + flag_off(1, "s45", "s46")], sync=False)
    Fo.g2_early = lambda: gen_g2f(Fo, name + "_g2", part="early")
    gen_g1n(name + "_g1", Fo)
    gen_g2f(Fo, name + "_g2", post_loop=lambda: prefetch("s71"), part="late")
    Fo.stamp()
    if T2B:
        prefetch("s71")
        signal(A, name, [flag_off(2, "s34", "s35")])
        compute(True, 0, None, None)
    else:
        compute(True, 9, flag_off(2, "s34", "s35"), None)
    Fo.conv_fin = lambda: None
    sigS = lambda: signal(A, name, ["s_mul_i32 s45, s72, 1366\ns_lshr_b32 s45, s45, 16\ns_mul_i32 s46, s45, 48\ns_sub_u32 s46, s72, s46\n" + flag_off(3, "s45", "s46")])
    Fo.stamp()
    xtra = A.newlabel(name + "_x"); fin = A.newlabel(name + "_fin")
    A(f"s_lshr_b32 s44, s2, 3\ns_cmp_ge_u32 s44, 24\ns_cbranch_scc1 {xtra}")
    Fo.pre_g3 = sigS
    Fo.sig_st_nosync = lambda: signal(A, name, ["s_mul_i32 s45, s72, 1366\ns_lshr_b32 s45, s45, 16\ns_mul_i32 s46, s45, 48\ns_sub_u32 s46, s72, s46\n" + flag_off(3, "s45", "s46")], sync=False)
    gen_g3f(Fo, name + "_g3")
    A(f"s_branch {fin}")
    A.label(xtra)
    sigS()
    pfl = A.newlabel(name + "_pf")
    A(f"s_sub_u32 s44, s2, 192\ns_cmp_ge_u32 s44, 32\ns_cbranch_scc1 {pfl if L2PF else fin}")
    A("s_add_u32 s72, s2, 64\ns_lshl_b32 s70, s72, 1\ns_add_u32 s71, s70, 1")
    if TAILPF: A("s_mov_b32 s68, 110592")
    prefetch("s70"); compute(False, 0, None, None)
    A("s_barrier")
    prefetch("s71"); compute(True, 0, None, None)
    sigS()
    if L2PF:
        A(f"s_branch {fin}")
        A.label(pfl)
        A("s_and_b32 s44, s2, 7\ns_lshl_b32 s34, s44, 2\ns_sub_u32 s45, s2, 224\ns_lshr_b32 s45, s45, 3\ns_add_u32 s34, s34, s45\ns_mov_b32 s35, s45")
        A("v_lshlrev_b32 v1, 4, v15")
        if L2PF >= 2:
            A(f"s_mul_i32 s44, s35, {72*6*1024}\ns_add_u32 s44, s44, {WS_WOT}")
            srd_off(A, 4, 32, 33, "s44", 72*6*1024)
        A("s_lshr_b32 s59, s34, 1")
        wait_flags(A, name, 2, "s59", 16)
        srd_off(A, 8, 32, 33, WS_H, 128 * 72 * 1024)
        A("s_lshl_b32 s44, s34, 2\ns_add_u32 s44, s44, s36\ns_mul_i32 s38, s44, 73728\ns_mov_b32 s37, 0")
        lp = A.newlabel(name + "_pfl")
        A.label(lp)
        for j in range(8):
            A(f"buffer_load_dwordx4 v[16:19], v1, s[8:11], s38 offen offset:{(j%4)*1024} sc1" + (f"\ns_add_u32 s38, s38, 4096" if j % 4 == 3 else ""))
        A(f"s_waitcnt vmcnt(8)\ns_add_u32 s37, s37, 1\ns_cmp_lt_u32 s37, 9\ns_cbranch_scc1 {lp}")
        if L2PF >= 2:
            A("s_mul_i32 s38, s36, 6144\ns_mov_b32 s37, 0")
            lp2 = A.newlabel(name + "_pfw")
            A.label(lp2)
            for j in range(6):
                A(f"s_add_u32 s39, s38, {j*1024}\nbuffer_load_dwordx4 v[16:19], v1, s[4:7], s39 offen")
            A(f"s_add_u32 s38, s38, 24576\ns_waitcnt vmcnt(6)\ns_add_u32 s37, s37, 1\ns_cmp_lt_u32 s37, 18\ns_cbranch_scc1 {lp2}")
        A("s_waitcnt vmcnt(0)")
    A.label(fin)
    if stamps:
        A("s_waitcnt vmcnt(0)")
        Fo.n = 28; Fo.stamp(); Fo.rt(1)
    A.label(f"{name}_end")
    A("s_endpgm")
    if "P" not in emitted: bodyP()
    if "C" not in emitted: bodyCF(None)
    return A.text(), kernel_desc(name, 256, 256), 163840
```

```python
from asmlib import *
from core import Core
from g1 import f2u
from g1n import gen_g1n
import l3
from conv1 import Conv1
import math

OUTSC1 = False
TAILPF = False
INLINE1 = False
G3P = False
EPIPF = False
T2B = False
L2PF = 0
G3A2 = False
STLATE = False
G3STAG = False
FROM_XN = False
CONV_LK = 110592
C2, C3, C4, C5 = 0, 16, 32, 48

class F:
    def __init__(self, A, stamps):
        self.A = A; self.stamps = stamps; self.n = 0
    def stamp(self):
        if not self.stamps: return
        A = self.A; i = self.n; self.n += 1
        assert i < 30
        A("s_memtime s[100:101]\ns_waitcnt lgkmcnt(0)\nv_mov_b32 v254, s100\ns_mov_b64 exec, 1")
        A(f"buffer_store_dword v254, v255, s[96:99], 0 offen offset:{8 + 4*i}\ns_mov_b64 exec, -1")
    def rt(self, slot):
        if not self.stamps: return
        A = self.A
        A("s_memrealtime s[100:101]\ns_waitcnt lgkmcnt(0)\nv_mov_b32 v254, s100\ns_mov_b64 exec, 1")
        A(f"buffer_store_dword v254, v255, s[96:99], 0 offen offset:{4*slot}\ns_mov_b64 exec, -1")
    def ptrs_g1(self):
        self.A("s_mov_b32 s28, s78\ns_mov_b32 s29, s79\ns_mov_b32 s54, s80\ns_mov_b32 s55, s81")

FLAG_BYTES = 4 * 16 * 64 * 128
def flag_off(kind, group_s, slot_s):
    return f"s_add_u32 s44, {group_s}, {kind*16}\ns_lshl_b32 s44, s44, 6\ns_add_u32 s44, s44, {slot_s}\ns_lshl_b32 s44, s44, 7"

def signal(A, name, idx_exprs, sync=True):
    if sync: A("s_waitcnt vmcnt(0)\ns_barrier")
    lab = A.newlabel(name + "_sg")
    A(f"s_cmp_eq_u32 s36, 0\ns_cbranch_scc0 {lab}")
    srd_off(A, 24, 32, 33, WS_FLAG, FLAG_BYTES)
    A("v_mov_b32 v251, 1\ns_mov_b64 exec, 1")
    for e in idx_exprs:
        A(e); A("v_mov_b32 v250, s44\nbuffer_store_dword v251, v250, s[24:27], 0 offen sc1")
    A("s_mov_b64 exec, -1")
    A.label(lab)

def wait_flags(A, name, kind, group_s, nslots, barrier=True, allwaves=False, drain=False):
    lab = A.newlabel(name + "_wf")
    if not allwaves: A(f"s_cmp_eq_u32 s36, 0\ns_cbranch_scc0 {lab}")
    srd_off(A, 24, 32, 33, WS_FLAG, FLAG_BYTES)
    A(flag_off(kind, group_s, 0))
    A(f"v_lshlrev_b32 v250, 7, v15\nv_add_u32 v250, s44, v250")
    A(f"s_mov_b32 s46, {hex(((1 << nslots) - 1) & 0xffffffff)}\ns_mov_b32 s47, {hex(((1 << nslots) - 1) >> 32)}")
    poll = A.newlabel(name + "_pl")
    A.label(poll)
    A("buffer_load_dword v251, v250, s[24:27], 0 offen sc1\ns_waitcnt vmcnt(0)")
    A("v_cmp_eq_u32 s[48:49], 1, v251\ns_and_b64 s[48:49], s[48:49], s[46:47]")
    A(f"s_cmp_eq_u64 s[48:49], s[46:47]\ns_cbranch_scc1 {lab}\ns_sleep 2\ns_branch {poll}")
    A.label(lab)
    if drain: A("s_waitcnt vmcnt(0)")
    if barrier: A("s_barrier")

def g2_pre_p(Fo, name):
    A = Fo.A
    srd_off(A, 4, 32, 33, WS_WSP, 2048 * 4096)
    A(f"""
    s_lshl_b32 s44, s34, 7
    s_lshl_b32 s45, s36, 5
    s_add_u32 s44, s44, s45
    v_lshlrev_b32 v1, 4, v15
    s_lshl_b32 s46, s44, 12
    v_add_u32 v2, s46, v1
    v_add_u32 v3, 0x10000, v2
    """)
    for s in range(3):
        A(f"s_mov_b32 s39, {s*4096}")
        for n in range(8 if s < 2 else 4):
            ks, i = n // 2, n % 2
            A(f"buffer_load_dwordx4 {ar(s*32 + ks*8 + i*4, 4)}, v{2+i}, s[4:7], s39 offen offset:{ks*1024} sc1")

def wait_flags2(A, name, a, b):
    lab = A.newlabel(name + "_w2")
    A(f"s_cmp_eq_u32 s36, 0\ns_cbranch_scc0 {lab}")
    srd_off(A, 24, 32, 33, WS_FLAG, FLAG_BYTES)
    A(flag_off(a[0], a[1], 0)); A("s_mov_b32 s47, s44")
    A(flag_off(b[0], b[1], 0))
    A("v_mov_b32 v250, s47\nv_mov_b32 v251, s44\nv_cmp_gt_u32 vcc, 16, v15\ns_nop 1\nv_cndmask_b32 v250, v251, v250, vcc")
    A("v_and_b32 v251, 15, v15\nv_lshlrev_b32 v251, 7, v251\nv_add_u32 v250, v250, v251")
    poll = A.newlabel(name + "_p2")
    A.label(poll)
    A("buffer_load_dword v251, v250, s[24:27], 0 offen sc1\ns_waitcnt vmcnt(0)")
    A("v_cmp_eq_u32 s[48:49], 1, v251")
    A(f"s_cmp_eq_u32 s48, -1\ns_cbranch_scc1 {lab}\ns_sleep 1\ns_branch {poll}")
    A.label(lab)
    A("s_barrier")

def gen_g2f(Fo, name, post_loop=None, part="early"):
    A = Fo.A; stamp = Fo.stamp
    SLOT = 36864
    ACC = 128; PR = 0; QV = [16, 52]; Z1V = 88; Z1A = 128
    vP = [2, 3]; vQd = [4, 5, 6]; vQr = [8, 9, 10, 11]; vB = [12, 13]; vL = 15
    def dm(slot, j):
        g = j // 4
        pre = f"s_add_u32 m0, s{40+slot}, {g*4096}\ns_nop 0\n" if j % 4 == 0 else ""
        return pre + f"buffer_load_dwordx4 v{vQd[g]}, s[8:11], s38 offen offset:{(j%4)*1024} sc1 lds"
    def pl(slot, n):
        ks, i = n // 2, n % 2
        return f"buffer_load_dwordx4 {ar(PR + slot*32 + ks*8 + i*4, 4)}, v{vP[i]}, s[4:7], s39 offen offset:{ks*1024} sc1"
    def G(slot):
        ops = []
        for j in range(9):
            ops.append(dm(slot, j))
            if j < 8: ops.append(pl(slot, j))
        ops[-1] += f"\ns_add_u32 s38, s38, {SLOT}\ns_add_u32 s39, s39, 4096"
        return ops
    if part == "early":
        srd_off(A, 4, 32, 33, WS_WSP, 2048 * 4096)
        A("s_mul_i32 s44, s35, 589824")
        A(f"s_add_u32 s44, s44, {WS_Z2N}")
        srd_off(A, 8, 32, 33, "s44", 589824)
        A(f"""
        s_lshl_b32 s44, s34, 7
        s_lshl_b32 s45, s36, 5
        s_add_u32 s44, s44, s45
        v_lshlrev_b32 v1, 4, v{vL}
        s_lshl_b32 s46, s44, 12
        v_add_u32 v{vP[0]}, s46, v1
        v_add_u32 v{vP[1]}, 0x10000, v{vP[0]}
        s_mul_i32 s45, s36, 9216
        v_add_u32 v{vQd[0]}, s45, v1
        v_add_u32 v{vQd[1]}, 0x1000, v{vQd[0]}
        v_add_u32 v{vQd[2]}, 0x2000, v{vQd[0]}
        s_mov_b32 s40, s45
        s_add_u32 s41, s45, {SLOT}
        s_add_u32 s42, s45, {2*SLOT}
        s_add_u32 s43, s45, {3*SLOT}
        """)
        wait_flags2(A, name, (0, "s35"), (1, "s34"))
        A("s_mov_b32 s38, 0\ns_mov_b32 s39, 0")
        for op in G(0): A(op)
        Fo.g2_late_ops = G(1) + G(2)[0:9]
        return
    srd_off(A, 16, 32, 33, WS_H, 128 * 72 * 1024)
    srd(A, 20, 82, 83, 4096)
    A(f"""
    s_lshl_b32 s44, s34, 7
    s_lshl_b32 s45, s36, 5
    s_add_u32 s44, s44, s45
    v_and_b32 v1, 15, v{vL}
    v_add_u32 v1, s44, v1
    v_lshlrev_b32 v{vB[0]}, 1, v1
    v_add_u32 v{vB[1]}, 32, v{vB[0]}
    v_lshlrev_b32 v1, 4, v{vL}
    v_mov_b32 v{vQr[0]}, v1
    v_add_u32 v{vQr[1]}, {SLOT}, v1
    v_add_u32 v{vQr[2]}, {2*SLOT}, v1
    v_add_u32 v{vQr[3]}, {3*SLOT}, v1
    """)
    for i in range(2):
        A(f"buffer_load_ushort v{124+i}, v{vB[i]}, s[20:23], 0 offen")
    for r in range(72): A(f"v_mov_b32 v{ACC+r}, 0")
    A("s_waitcnt vmcnt(26)")
    A("s_barrier")
    def qreads(buf, slot, ks):
        return [f"ds_read_b128 {vr(QV[buf]+jn*4,4)}, v{vQr[slot]} offset:{(ks*9+jn)*1024}" for jn in range(9)]
    def mfmas(buf, slot, ks):
        out = []
        for jn in range(9):
            for i in range(2):
                c = vr(ACC + (i*9+jn)*4, 4)
                out.append(f"v_mfma_f32_16x16x32_bf16 {c}, {vr(QV[buf]+jn*4,4)}, {ar(PR+slot*32+ks*8+i*4,4)}, {c}")
        return out
    for x in qreads(0, 0, 0): A(x)
    stamp()
    A("s_mov_b32 s37, 0")
    A.label(f"{name}_loop")
    for u in range(4):
        g = G((u + 3) & 3); gprev = G((u + 2) & 3)
        for ks in range(4):
            A("s_waitcnt lgkmcnt(0)")
            rd = qreads((ks + 1) & 1, u, ks + 1) if ks < 3 else qreads(0, (u + 1) & 3, 0)
            gl = [gprev[9:13], gprev[13:17], g[0:5], g[5:9]][ks]
            mf = mfmas(ks & 1, u, ks)
            for j in range(18):
                A(mf[j])
                if j < 9: A(rd[j])
                elif (j - 9) % 2 == 0 and (j - 9) // 2 < len(gl): A(gl[(j - 9) // 2])
            if ks == 1:
                A("s_waitcnt vmcnt(17)")
                A("s_barrier")
                if u == 1:
                    skip = A.newlabel(name + "_sk")
                    A(f"s_cmp_eq_u32 s37, 3\ns_cbranch_scc0 {skip}")
                    for v in vP + vQd: A(f"v_mov_b32 v{v}, 0x80000000")
                    if TAILPF:
                        for r in range(4): A(f"s_mov_b32 s{40+r}, 147456")
                    A.label(skip)
                if u == 2 and TAILPF:
                    skip2 = A.newlabel(name + "_sk2")
                    A(f"s_cmp_eq_u32 s37, 3\ns_cbranch_scc0 {skip2}")
                    A("s_mov_b32 s68, 0")
                    post_loop()
                    A.label(skip2)
    A(f"s_add_u32 s37, s37, 1\ns_cmp_lt_u32 s37, 4\ns_cbranch_scc1 {name}_loop")
    stamp()
    A("s_waitcnt vmcnt(0)\ns_barrier")
    if post_loop and not TAILPF and not EPIPF and not T2B: post_loop()
    pfo = list(Fo.pfB_ops()) if EPIPF else []
    for r in range(36):
        A(f"v_accvgpr_read_b32 v{Z1V+r}, a{Z1A+r}")
        if r % 12 == 5 and pfo: A(pfo.pop(0))
    A("v_lshlrev_b32 v200, 16, v124\nv_lshlrev_b32 v201, 16, v124\nv_lshlrev_b32 v202, 16, v125\nv_lshlrev_b32 v203, 16, v125")
    A(f"""
    s_lshl_b32 s66, s34, 3
    s_lshl_b32 s67, s36, 1
    s_add_u32 s66, s66, s67
    s_mul_i32 s66, s66, 72
    s_lshr_b32 s67, s35, 1
    s_mul_i32 s67, s67, 9
    s_add_u32 s66, s66, s67
    s_and_b32 s95, s35, 1
    s_mul_i32 s90, s95, 5
    s_add_u32 s90, s90, s66
    s_lshl_b32 s90, s90, 10
    s_add_u32 s91, s66, 4
    s_lshl_b32 s91, s91, 10
    s_lshl_b32 s94, s95, 3
    s_add_u32 s91, s91, s94
    s_add_u32 s92, s90, 73728
    s_add_u32 s93, s91, 73728
    v_lshlrev_b32 v1, 4, v{vL}
    """)
    T = 204
    for i in range(2):
        for jn in range(9):
            c = ACC + (i*9+jn)*4; z = Z1V + (i*9+jn)*2; t = T + ((i*9+jn) & 1) * 4
            A(f"v_lshlrev_b32 v{t}, 16, v{z}")
            A(f"v_and_b32 v{t+1}, 0xffff0000, v{z}")
            A(f"v_lshlrev_b32 v{t+2}, 16, v{z+1}")
            A(f"v_and_b32 v{t+3}, 0xffff0000, v{z+1}")
            A(f"v_pk_add_f32 {vr(c,2)}, {vr(c,2)}, {vr(200+2*i,2)}")
            A(f"v_pk_add_f32 {vr(c+2,2)}, {vr(c+2,2)}, {vr(200+2*i,2)}")
            A(f"v_pk_mul_f32 {vr(c,2)}, {vr(c,2)}, {vr(t,2)}")
            A(f"v_pk_mul_f32 {vr(c+2,2)}, {vr(c+2,2)}, {vr(t+2,2)}")
            A(f"v_cvt_pk_bf16_f32 v{z}, v{c}, v{c+1}")
            A(f"v_cvt_pk_bf16_f32 v{z+1}, v{c+2}, v{c+3}")
            if pfo and (i*9+jn) % 2 == 0: A(pfo.pop(0))
    for o in pfo: A(o)
    odd = A.newlabel(name + "_odd"); done = A.newlabel(name + "_sd")
    A(f"""
    v_bfe_u32 v2, v{vL}, 4, 1
    v_mul_u32_u24 v2, 73728, v2
    v_lshrrev_b32 v3, 5, v{vL}
    v_lshlrev_b32 v3, 8, v3
    v_add_u32 v2, v2, v3
    v_and_b32 v3, 15, v{vL}
    v_lshlrev_b32 v3, 4, v3
    v_add_u32 v2, v2, v3
    s_add_u32 s91, s66, 4
    s_lshl_b32 s91, s91, 10
    s_lshl_b32 s94, s95, 9
    s_add_u32 s91, s91, s94
    """)
    def single(jn):
        a0 = Z1V + jn*2; a1 = Z1V + (9+jn)*2
        A(f"v_mov_b32 v4, v{a0}\nv_mov_b32 v5, v{a0+1}\nv_mov_b32 v6, v{a1}\nv_mov_b32 v7, v{a1+1}\ns_nop 1")
        A("v_permlane16_swap_b32 v4, v6\nv_permlane16_swap_b32 v5, v7\ns_nop 0")
        A("buffer_store_dwordx4 v[4:7], v2, s[16:19], s91 offen sc1")
    A(f"s_cmp_eq_u32 s95, 1\ns_cbranch_scc1 {odd}")
    for i in range(2):
        for p in range(4):
            A(f"buffer_store_dwordx4 {vr(Z1V+(i*9+2*p)*2,4)}, v1, s[16:19], s{90 if i==0 else 92} offen offset:{p*1024} sc1")
    single(8)
    A(f"s_branch {done}")
    A.label(odd)
    for i in range(2):
        for p in range(4):
            A(f"buffer_store_dwordx4 {vr(Z1V+(i*9+1+2*p)*2,4)}, v1, s[16:19], s{90 if i==0 else 92} offen offset:{p*1024} sc1")
    single(0)
    A.label(done)

def g3_pre_q(Fo, name):
    A = Fo.A
    A(f"""
    s_lshr_b32 s45, s2, 5
    s_min_u32 s45, s45, 5
    s_mul_i32 s44, s45, {72*6*1024}
    s_add_u32 s44, s44, {WS_WOT}
    """)
    srd_off(A, 4, 32, 33, "s44", 72*6*1024)
    A("v_lshlrev_b32 v1, 4, v15\ns_lshl_b32 s40, s36, 10\nv_add_u32 v2, s40, v1")
    for j in range(1, 6): A(f"v_add_u32 v{2+j}, {j*4096}, v2")
    for s in range(4):
        A(f"s_mov_b32 s38, {s*24*1024}")
        for j in range(6):
            A(f"s_add_u32 m0, s40, {s*24576 + j*4096}\ns_nop 0\nbuffer_load_dwordx4 v{2+j}, s[4:7], s38 offen lds")

def gen_g3f(Fo, name):
    A = Fo.A; stamp = Fo.stamp
    R = 6; S = 4
    ACC = 16; QB = [96, 120, 144]; PR = 0
    vQd = [2, 3, 4, 5, 6, 7]; vP = [8]; vL = 15; vQr = [9, 10, 11, 12, 13, 14]
    A(f"""
    s_and_b32 s44, s2, 7
    s_lshr_b32 s45, s2, 3
    s_lshl_b32 s34, s44, 2
    s_and_b32 s46, s45, 3
    s_add_u32 s34, s34, s46
    s_lshr_b32 s35, s45, 2
    v_lshlrev_b32 v1, 4, v{vL}
    s_lshl_b32 s44, s34, 2
    s_add_u32 s58, s44, s36
    s_mul_i32 s44, s58, 73728
    v_add_u32 v{vP[0]}, s44, v1
    """)
    A(f"s_mul_i32 s44, s35, {72*6*1024}\ns_add_u32 s44, s44, {WS_WOT}")
    srd_off(A, 4, 32, 33, "s44", 72*6*1024)
    srd_off(A, 8, 32, 33, WS_H, 128 * 72 * 1024)
    c = Core(A, name + "_g", 1, 6, 72, S, R, ACC, QB, "a", PR, vP, vQd, vQr, 8, 4, "s38", "s39", "s40", "s37", 1024, orient="QP")
    c.p_flags = " sc1"
    c.ahead2 = G3A2
    c.setup_addr(1, "s36", 12)
    h = c.gsize // 2
    def split(slot):
        ops = c.G(slot);
        return ops
    pre_a = []; pre_b = []; post = []
    for s in range(R - 1):
        ops = c.G(s)
        ops = ops if s < R - 2 else ops[:h]
        q = [o for o in ops if " lds" in o]; p = [o for o in ops if " lds" not in o]
        strip = lambda o: o.split("\ns_add_u32 s38, s38")[0]
        (pre_a if s < 4 else pre_b).append(f"s_mov_b32 s38, {s*S*6*1024}"); (pre_a if s < 4 else pre_b).extend(strip(o) for o in q)
        post.append(f"s_mov_b32 s39, {s*S*1024}"); post += [strip(o) for o in p]
    if G3P:
        strip = lambda o: o.split("\ns_add_u32 s38, s38")[0]
        Qs = []; Ps = []
        for s in range(R - 1):
            ops = c.G(s); ops = ops if s < R - 2 else ops[:h]
            Qs.append([f"s_mov_b32 s38, {s*S*6*1024}"] + [strip(o) for o in ops if " lds" in o])
            Ps.append([f"s_mov_b32 s39, {s*S*1024}"] + [strip(o) for o in ops if " lds" not in o])
        A("s_barrier")
        for s in (0, 1):
            for o in Qs[s]: A(o)
        srd(A, 12, 76, 77, 2048 * 1152)
        srd_off(A, 16, 32, 33, WS_S, 288 * 8192)
        srd(A, 20, 84, 85, 2048 * 1152)
        for r in range(24): A(f"v_mov_b32 v{ACC+r}, 0")
        stamp()
        A("s_lshr_b32 s59, s34, 1")
        wait_flags(A, name, 2, "s59", 16, drain=not STLATE)
        if not STLATE: Fo.sig_st_nosync()
        stamp()
        for s in (0, 1):
            for o in Ps[s]: A(o)
        for s in (2, 3, 4):
            for o in Qs[s] + Ps[s]: A(o)
        A(f"s_mov_b32 s38, {(R-2)*S*6*1024}\ns_mov_b32 s39, {(R-2)*S*1024}")
        A("s_waitcnt vmcnt(25)\ns_barrier")
    else:
        if TAILPF: A("s_barrier")
        for o in pre_a: A(o)
        Fo.conv_fin()
        c.setup_addr(1, "s36", 12)
        A("s_barrier")
        for o in pre_b: A(o)
        srd(A, 12, 76, 77, 2048 * 1152)
        srd_off(A, 16, 32, 33, WS_S, 288 * 8192)
        srd(A, 20, 84, 85, 2048 * 1152)
        for r in range(24): A(f"v_mov_b32 v{ACC+r}, 0")
        stamp()
        A("s_lshr_b32 s59, s34, 1")
        wait_flags(A, name, 2, "s59", 16)
        stamp()
        for o in post: A(o)
        A(f"s_mov_b32 s38, {(R-2)*S*6*1024}\ns_mov_b32 s39, {(R-2)*S*1024}")
        Fo.pre_g3()
    for x in c.qreads(0, 0, 0): A(x)
    if G3A2:
        for x in c.qreads(1, 0, 1): A(x)
    stamp()
    def tail(A):
        if G3P and STLATE: Fo.pre_g3()
        A(f"""
        v_and_b32 v1, 15, v{vL}
        s_lshl_b32 s44, s58, 4
        v_add_u32 v1, s44, v1
        v_mul_u32_u24 v1, 1152, v1
        v_lshrrev_b32 v40, 4, v{vL}
        v_lshlrev_b32 v40, 3, v40
        v_add_u32 v1, v1, v40
        s_mul_i32 s44, s35, 192
        v_add_u32 v1, s44, v1
        """)
        for jd in range(6):
            A(f"buffer_load_dwordx2 {vr(52+2*jd,2)}, v1, s[12:15], 0 offen offset:{jd*32}")
    def late(A):
        wait_flags(A, name, 3, "s35", 48, barrier=False, allwaves=True)
        A(f"""
        v_lshrrev_b32 v42, 4, v{vL}
        v_lshlrev_b32 v42, 14, v42
        v_and_b32 v43, 15, v{vL}
        v_lshlrev_b32 v43, 2, v43
        v_add_u32 v42, v42, v43
        s_mul_i32 s44, s35, {48*8192}
        s_lshl_b32 s45, s58, 6
        s_add_u32 s44, s44, s45
        """)
        for jd in range(6):
            for e in range(2):
                A(f"s_add_u32 s45, s44, {(8*jd + e)*8192}")
                A(f"buffer_load_dword v{64+2*jd+e}, v42, s[16:19], s45 offen sc1")
    if G3STAG:
        other = A.newlabel(name + "_o"); join = A.newlabel(name + "_j")
        A(f"s_and_b32 s44, s36, 1\ns_cmp_eq_u32 s44, 1\ns_cbranch_scc1 {other}")
        c.phase = 0; c.name = name + "_ga"
        c.loop(True, tail_hook=tail, late_hook=late)
        A(f"s_branch {join}")
        A.label(other)
        c.phase = 1; c.name = name + "_gb"
        c.loop(True, tail_hook=tail, late_hook=late)
        A.label(join)
    else:
        c.loop(True, tail_hook=tail, late_hook=late)
    stamp()
    NL2E = -math.log2(math.e)
    A(f"v_mov_b32 v76, {hex(f2u(NL2E))}\nv_mov_b32 v77, {hex(f2u(NL2E))}\nv_mov_b32 v78, 1.0\nv_mov_b32 v79, 1.0")
    for jd in range(6):
        cc = ACC + jd*4; t = 80 + (jd % 2) * 4
        A(f"v_pk_mul_f32 {vr(t,2)}, {vr(cc,2)}, v[76:77]")
        A(f"v_pk_mul_f32 {vr(t+2,2)}, {vr(cc+2,2)}, v[76:77]")
        for r in range(4): A(f"v_exp_f32 v{t+r}, v{t+r}")
        A(f"v_pk_add_f32 {vr(t,2)}, {vr(t,2)}, v[78:79]")
        A(f"v_pk_add_f32 {vr(t+2,2)}, {vr(t+2,2)}, v[78:79]")
        for r in range(4): A(f"v_rcp_f32 v{t+r}, v{t+r}")
        A("s_nop 0")
        A(f"v_pk_mul_f32 {vr(cc,2)}, {vr(cc,2)}, {vr(t,2)}")
        A(f"v_pk_mul_f32 {vr(cc+2,2)}, {vr(cc+2,2)}, {vr(t+2,2)}")
    A("s_waitcnt vmcnt(0)")
    for jd in range(6):
        cc = ACC + jd*4; t = 88 + (jd % 2) * 8
        A(f"v_lshlrev_b32 v{t+4}, 16, v{64+2*jd}\nv_and_b32 v{t+5}, 0xffff0000, v{64+2*jd}")
        A(f"v_lshlrev_b32 v{t+6}, 16, v{65+2*jd}\nv_and_b32 v{t+7}, 0xffff0000, v{65+2*jd}")
        A(f"v_lshlrev_b32 v{t}, 16, v{52+2*jd}\nv_and_b32 v{t+1}, 0xffff0000, v{52+2*jd}")
        A(f"v_lshlrev_b32 v{t+2}, 16, v{53+2*jd}\nv_and_b32 v{t+3}, 0xffff0000, v{53+2*jd}")
        A(f"v_pk_fma_f32 {vr(cc,2)}, {vr(cc,2)}, {vr(t+4,2)}, {vr(t,2)}")
        A(f"v_pk_fma_f32 {vr(cc+2,2)}, {vr(cc+2,2)}, {vr(t+6,2)}, {vr(t+2,2)}")
        o = 104 + (jd // 2) * 4 + (jd % 2) * 2
        A(f"v_cvt_pk_bf16_f32 v{o}, v{cc}, v{cc+1}")
        A(f"v_cvt_pk_bf16_f32 v{o+1}, v{cc+2}, v{cc+3}")
    A(f"""
    v_and_b32 v1, 15, v{vL}
    s_lshl_b32 s44, s58, 4
    v_add_u32 v1, s44, v1
    v_mul_u32_u24 v1, 1152, v1
    v_bfe_u32 v12, v{vL}, 4, 1
    v_lshlrev_b32 v12, 5, v12
    v_add_u32 v1, v1, v12
    v_lshrrev_b32 v12, 5, v{vL}
    v_lshlrev_b32 v12, 4, v12
    v_add_u32 v1, v1, v12
    s_mul_i32 s44, s35, 192
    v_add_u32 v1, s44, v1
    """)
    for p in range(3):
        o = 104 + p*4
        A(f"v_permlane16_swap_b32 v{o}, v{o+2}")
        A(f"v_permlane16_swap_b32 v{o+1}, v{o+3}")
    A("s_nop 0")
    for p in range(3):
        A(f"buffer_store_dwordx4 {vr(104+p*4,4)}, v1, s[20:23], 0 offen offset:{p*64}{' sc1' if OUTSC1 else ''}")

def gen_fused(name, stamps=False):
    A = Asm(); Fo = F(A, stamps)
    A(f"""
    s_cmp_ge_u32 s2, 256
    s_cbranch_scc1 {name}_end
    s_load_dwordx2 s[76:77], s[0:1], 0
    s_load_dwordx2 s[88:89], s[0:1], 48
    s_load_dwordx2 s[78:79], s[0:1], 64
    s_load_dwordx4 s[80:83], s[0:1], 72
    s_load_dwordx4 s[84:87], s[0:1], 96
    s_load_dwordx2 s[32:33], s[0:1], 112
    s_and_b32 s44, s2, 7
    s_lshr_b32 s45, s2, 3
    s_and_b32 s34, s44, 1
    s_lshl_b32 s34, s34, 3
    s_and_b32 s46, s45, 7
    s_add_u32 s34, s34, s46
    s_lshr_b32 s35, s44, 1
    s_lshl_b32 s35, s35, 2
    s_lshr_b32 s46, s45, 3
    s_add_u32 s35, s35, s46
    v_lshrrev_b32 v1, 6, v0
    v_and_b32 v15, 63, v0
    s_nop 0
    v_readfirstlane_b32 s36, v1
    """)
    if stamps:
        A("s_waitcnt lgkmcnt(0)")
        srd_off(A, 96, 32, 33, WS_STAMP + 0x100000, 0x40000)
        A("s_lshl_b32 s44, s2, 2\ns_add_u32 s44, s44, s36\ns_lshl_b32 s44, s44, 7\nv_mov_b32 v255, s44")
        Fo.rt(0); Fo.stamp()
    cv = Conv1(A, name + "_cv", CONV_LK, CONV_LK + 41216, FROM_XN, remap=True, dyn=TAILPF)
    subP = name + "_subP"; subC = name + "_subC"; subF = name + "_subF"; emitted = set()
    def back(target): return (target == subP and 'P' in emitted) or (target in (subC, subF) and 'C' in emitted)
    def call(target):
        ref = A.newlabel(name + "_pc")
        A("s_getpc_b64 s[28:29]")
        A.label(ref)
        if INLINE1 and back(target):
            A(f"s_sub_u32 s28, s28, {ref}-{target}\ns_subb_u32 s29, s29, 0\ns_swappc_b64 s[30:31], s[28:29]")
        else:
            A(f"s_add_u32 s28, s28, {target}-{ref}\ns_addc_u32 s29, s29, 0\ns_swappc_b64 s[30:31], s[28:29]")
    def midsig():
        lab = A.newlabel(name + "_ms")
        A(f"s_cmp_eq_u32 s36, 0\ns_cbranch_scc0 {lab}")
        srd_off(A, 24, 32, 33, WS_FLAG, FLAG_BYTES)
        A("v_mov_b32 v251, 1\ns_mov_b64 exec, 1")
        for reg in (61, 62):
            sk = A.newlabel(name + "_mk")
            A(f"s_cmp_eq_u32 s{reg}, -1\ns_cbranch_scc1 {sk}\nv_mov_b32 v250, s{reg}\nbuffer_store_dword v251, v250, s[24:27], 0 offen sc1")
            A.label(sk)
        A("s_mov_b64 exec, -1")
        A.label(lab)
    def set_ret(target):
        ref = A.newlabel(name + "_pc")
        A("s_getpc_b64 s[30:31]")
        A.label(ref)
        A(f"s_add_u32 s30, s30, {target}-{ref}\ns_addc_u32 s31, s31, 0")
    def bodyP():
        A.label(subP); cv.prefetch("s73"); A("s_setpc_b64 s[30:31]")
    def bodyCF(ret2):
        A.label(subC)
        def split():
            A("s_setpc_b64 s[30:31]")
            if ret2:
                A.label(ret2[0]); set_ret(ret2[1])
            A.label(subF)
        cv.compute(False, "s72", None, mid_hook=midsig, dyn=True, split=split, saA=252)
        A("s_setpc_b64 s[30:31]")
    def prefetch(chs):
        A(f"s_mov_b32 s73, {chs}")
        if INLINE1 and "P" not in emitted:
            emitted.add("P"); r = A.newlabel(name + "_rp"); set_ret(r); bodyP(); A.label(r)
        else: call(subP)
    def compute(second, wait_n, f1, f2, finish=True):
        for reg, f in ((61, f1), (62, f2)):
            if f: A(f); A(f"s_mov_b32 s{reg}, s44")
            else: A(f"s_mov_b32 s{reg}, -1")
        A(f"s_mov_b32 s60, {1 if second else 0}")
        A(f"s_waitcnt vmcnt({wait_n})")
        if INLINE1 and "C" not in emitted:
            emitted.add("C")
            r1 = A.newlabel(name + "_r1"); r2 = A.newlabel(name + "_r2")
            set_ret(r1); bodyCF((r1, r2)); A.label(r2)
            return
        call(subC)
        if finish: call(subF)
    A("s_lshl_b32 s70, s2, 1\ns_add_u32 s71, s70, 1\ns_mov_b32 s72, s2")
    def pfopsA():
        if TAILPF: A("s_mov_b32 s68, 110592")
        return cv.prefetch_ops("s70")
    Fo.conv_prefetch_ops = pfopsA
    def convA():
        if TAILPF: A("s_mov_b32 s68, 110592")
        import g1n
        compute(False, 12 if g1n.SPREAD else 0, None, None)
    Fo.conv_A = convA
    Fo.pfB_ops = lambda: cv.prefetch_ops("s71")
    Fo.sig_z2n = lambda: signal(A, name, [flag_off(0, "s35", "s34"), "s_lshr_b32 s45, s2, 4\ns_and_b32 s46, s2, 15\n" + flag_off(1, "s45", "s46")], sync=False)
    Fo.g2_early = lambda: gen_g2f(Fo, name + "_g2", part="early")
    gen_g1n(name + "_g1", Fo)
    gen_g2f(Fo, name + "_g2", post_loop=lambda: prefetch("s71"), part="late")
    Fo.stamp()
    if T2B:
        prefetch("s71")
        signal(A, name, [flag_off(2, "s34", "s35")])
        compute(True, 0, None, None)
    else:
        compute(True, 9, flag_off(2, "s34", "s35"), None)
    Fo.conv_fin = lambda: None
    sigS = lambda: signal(A, name, ["s_mul_i32 s45, s72, 1366\ns_lshr_b32 s45, s45, 16\ns_mul_i32 s46, s45, 48\ns_sub_u32 s46, s72, s46\n" + flag_off(3, "s45", "s46")])
    Fo.stamp()
    xtra = A.newlabel(name + "_x"); fin = A.newlabel(name + "_fin")
    A(f"s_lshr_b32 s44, s2, 3\ns_cmp_ge_u32 s44, 24\ns_cbranch_scc1 {xtra}")
    Fo.pre_g3 = sigS
    Fo.sig_st_nosync = lambda: signal(A, name, ["s_mul_i32 s45, s72, 1366\ns_lshr_b32 s45, s45, 16\ns_mul_i32 s46, s45, 48\ns_sub_u32 s46, s72, s46\n" + flag_off(3, "s45", "s46")], sync=False)
    gen_g3f(Fo, name + "_g3")
    A(f"s_branch {fin}")
    A.label(xtra)
    sigS()
    pfl = A.newlabel(name + "_pf")
    A(f"s_sub_u32 s44, s2, 192\ns_cmp_ge_u32 s44, 32\ns_cbranch_scc1 {pfl if L2PF else fin}")
    A("s_add_u32 s72, s2, 64\ns_lshl_b32 s70, s72, 1\ns_add_u32 s71, s70, 1")
    if TAILPF: A("s_mov_b32 s68, 110592")
    prefetch("s70"); compute(False, 0, None, None)
    A("s_barrier")
    prefetch("s71"); compute(True, 0, None, None)
    sigS()
    if L2PF:
        A(f"s_branch {fin}")
        A.label(pfl)
        A("s_and_b32 s44, s2, 7\ns_lshl_b32 s34, s44, 2\ns_sub_u32 s45, s2, 224\ns_lshr_b32 s45, s45, 3\ns_add_u32 s34, s34, s45\ns_mov_b32 s35, s45")
        A("v_lshlrev_b32 v1, 4, v15")
        if L2PF >= 2:
            A(f"s_mul_i32 s44, s35, {72*6*1024}\ns_add_u32 s44, s44, {WS_WOT}")
            srd_off(A, 4, 32, 33, "s44", 72*6*1024)
        A("s_lshr_b32 s59, s34, 1")
        wait_flags(A, name, 2, "s59", 16)
        srd_off(A, 8, 32, 33, WS_H, 128 * 72 * 1024)
        A("s_lshl_b32 s44, s34, 2\ns_add_u32 s44, s44, s36\ns_mul_i32 s38, s44, 73728\ns_mov_b32 s37, 0")
        lp = A.newlabel(name + "_pfl")
        A.label(lp)
        for j in range(8):
            A(f"buffer_load_dwordx4 v[16:19], v1, s[8:11], s38 offen offset:{(j%4)*1024} sc1" + (f"\ns_add_u32 s38, s38, 4096" if j % 4 == 3 else ""))
        A(f"s_waitcnt vmcnt(8)\ns_add_u32 s37, s37, 1\ns_cmp_lt_u32 s37, 9\ns_cbranch_scc1 {lp}")
        if L2PF >= 2:
            A("s_mul_i32 s38, s36, 6144\ns_mov_b32 s37, 0")
            lp2 = A.newlabel(name + "_pfw")
            A.label(lp2)
            for j in range(6):
                A(f"s_add_u32 s39, s38, {j*1024}\nbuffer_load_dwordx4 v[16:19], v1, s[4:7], s39 offen")
            A(f"s_add_u32 s38, s38, 24576\ns_waitcnt vmcnt(6)\ns_add_u32 s37, s37, 1\ns_cmp_lt_u32 s37, 18\ns_cbranch_scc1 {lp2}")
        A("s_waitcnt vmcnt(0)")
    A.label(fin)
    if stamps:
        A("s_waitcnt vmcnt(0)")
        Fo.n = 28; Fo.stamp(); Fo.rt(1)
    A.label(f"{name}_end")
    A("s_endpgm")
    if "P" not in emitted: bodyP()
    if "C" not in emitted: bodyCF(None)
    return A.text(), kernel_desc(name, 256, 256), 163840
```

```python
from asmlib import *

def bf16_round(A, v, tmp=None):
    A(f"v_cvt_pk_bf16_f32 v{v}, v{v}, v{v}")
    A(f"v_and_b32 v{v}, 0xffff0000, v{v}")

def dpp_sum16(A, v):
    for n in (8, 4, 2, 1):
        A("s_nop 1")
        A(f"v_add_f32_dpp v{v}, v{v}, v{v} row_ror:{n} row_mask:0xf bank_mask:0xf")

NO_XNT = False
NOWAIT = False
NOTOUCH_SP = False
NOTOUCH = False
K4 = False
WITR = False
TLBW = False
BAL = False
BALWAIT = False
def gen_ln(A, name, stamp=lambda: None):
    PITCH = 1168
    stamp()
    srd(A, 4, 28, 29, 2048 * 1152)
    srd_off(A, 8, 32, 33, WS_XN, 128 * 18 * 1024)
    srd_off(A, 12, 32, 33, WS_XNT, 576 * 4096)
    A(f"""
    s_lshl_b32 s44, s66, 4
    s_lshl_b32 s45, s36, 2
    s_add_u32 s44, s44, s45
    v_lshrrev_b32 v1, 4, v15
    v_add_u32 v2, s44, v1
    v_mul_u32_u24 v2, 1152, v2
    v_and_b32 v3, 15, v15
    v_lshlrev_b32 v4, 4, v3
    v_add_u32 v2, v2, v4
    """)
    for j in range(4):
        A(f"buffer_load_dwordx4 {vr(16+4*j,4)}, v2, s[4:7], 0 offen offset:{j*256}")
    A("s_mov_b32 s50, 0x00ff00ff\ns_mov_b32 s51, 0x00ff00ff")
    A("v_mov_b32 v32, 0\nv_mov_b32 v33, 0\nv_mov_b32 v34, 0\nv_mov_b32 v35, 0")
    A("s_mov_b64 exec, s[50:51]")
    A(f"buffer_load_dwordx4 v[32:35], v2, s[4:7], 0 offen offset:1024")
    A("s_mov_b64 exec, -1")
    A(f"""
    v_add_u32 v5, s45, v1
    v_mul_u32_u24 v5, {PITCH}, v5
    v_add_u32 v5, v5, v4
    s_waitcnt vmcnt(0)
    """)
    stamp()
    for q in range(20):
        A(f"v_lshlrev_b32 v{40+2*q}, 16, v{16+q}")
        A(f"v_and_b32 v{41+2*q}, 0xffff0000, v{16+q}")
    A("v_add_f32 v6, v40, v41")
    for q in range(2, 40): A(f"v_add_f32 v6, v6, v{40+q}")
    dpp_sum16(A, 6)
    A("v_mul_f32 v6, 0x3ae38e39, v6")
    A("v_mov_b32 v7, 0")
    for q in range(32):
        A(f"v_sub_f32 v8, v{40+q}, v6")
        A(f"v_fmac_f32 v7, v8, v8")
    A("s_mov_b64 exec, s[50:51]")
    for q in range(32, 40):
        A(f"v_sub_f32 v8, v{40+q}, v6")
        A(f"v_fmac_f32 v7, v8, v8")
    A("s_mov_b64 exec, -1")
    dpp_sum16(A, 7)
    A("v_mul_f32 v7, 0x3ae38e39, v7")
    bf16_round(A, 7)
    A("v_add_f32 v7, 0x3727c5ac, v7")
    bf16_round(A, 7)
    A("v_sqrt_f32 v7, v7")
    A("s_nop 0")
    bf16_round(A, 7)
    A("v_rcp_f32 v7, v7")
    bf16_round(A, 6)
    for q in range(20):
        a, b = 40+2*q, 41+2*q
        A(f"v_sub_f32 v{a}, v{a}, v6")
        A(f"v_sub_f32 v{b}, v{b}, v6")
        A(f"v_cvt_pk_bf16_f32 v8, v{a}, v{b}")
        A(f"v_lshlrev_b32 v{a}, 16, v8")
        A(f"v_and_b32 v{b}, 0xffff0000, v8")
        A(f"v_mul_f32 v{a}, v{a}, v7")
        A(f"v_mul_f32 v{b}, v{b}, v7")
        A(f"v_cvt_pk_bf16_f32 v{16+q}, v{a}, v{b}")
    for j in range(4):
        A(f"ds_write_b128 v5, {vr(16+4*j,4)} offset:{j*256}")
    A("s_mov_b64 exec, s[50:51]")
    A(f"ds_write_b128 v5, v[32:35] offset:1024")
    A("s_mov_b64 exec, -1")
    A("s_waitcnt lgkmcnt(0)\ns_barrier")
    stamp()
    A(f"""
    v_and_b32 v1, 15, v15
    v_mul_u32_u24 v1, {PITCH}, v1
    v_lshrrev_b32 v2, 4, v15
    v_lshlrev_b32 v2, 4, v2
    v_add_u32 v1, v1, v2
    s_lshl_b32 s45, s36, 6
    v_add_u32 v1, s45, v1
    v_lshlrev_b32 v3, 4, v15              ; lane*16
    s_mul_i32 s44, s66, 18
    s_add_u32 s44, s44, s36
    s_lshl_b32 s44, s44, 10               ; (stile*18 + w)*1024
    """)
    for j in range(4):
        A(f"ds_read_b128 {vr(16+4*j,4)}, v1 offset:{j*256}")
    lab = A.newlabel(name + "_ln")
    A(f"s_cmp_lt_u32 s36, 2\ns_cbranch_scc0 {lab}")
    A(f"ds_read_b128 v[32:35], v1 offset:1024")
    A("s_waitcnt lgkmcnt(0)")
    A("s_add_u32 s45, s44, 16384")
    A(f"buffer_store_dwordx4 v[32:35], v3, s[8:11], s45 offen")
    A.label(lab)
    A("s_waitcnt lgkmcnt(0)")
    for j in range(4):
        A(f"s_add_u32 s45, s44, {j*4096}")
        A(f"buffer_store_dwordx4 {vr(16+4*j,4)}, v3, s[8:11], s45 offen")
    if not NO_XNT:
        A(f"""
        v_lshrrev_b32 v1, 2, v15              ; 4g + r = (l>>2) (since g=l>>4, r=(l>>2)&3)
        v_mul_u32_u24 v1, {PITCH}, v1
        v_and_b32 v2, 3, v15
        v_lshlrev_b32 v2, 3, v2
        v_add_u32 v1, v1, v2
        s_mul_i32 s45, s36, 288
        v_add_u32 v1, s45, v1                 ; + w*9*32 bytes
        v_and_b32 v2, 15, v15
        v_lshlrev_b32 v2, 12, v2              ; channel*4096
        v_lshrrev_b32 v3, 4, v15
        v_lshlrev_b32 v3, 3, v3               ; g*8
        v_add_u32 v2, v2, v3
        s_lshl_b32 s44, s66, 5                 ; t0*2
        s_mul_i32 s45, s36, {9*16*4096}
        s_add_u32 s44, s44, s45
        """)
        for j in range(9):
            A(f"ds_read_b64_tr_b16 {vr(40+2*j,2)}, v1 offset:{j*32}")
        A("s_waitcnt lgkmcnt(0)")
        for j in range(9):
            A(f"s_add_u32 s45, s44, {j*16*4096}")
            A(f"buffer_store_dwordx2 {vr(40+2*j,2)}, v2, s[12:15], s45 offen ;plain")

    srd_off(A, 16, 32, 33, WS_STAT, 16 * 16 * 1024)
    lab = A.newlabel(name + "_rs")
    A(f"s_cmp_eq_u32 s36, 0\ns_cbranch_scc0 {lab}")
    A(f"""
    v_lshrrev_b32 v1, 2, v15
    v_lshlrev_b32 v1, 10, v1
    v_and_b32 v2, 3, v15
    v_lshlrev_b32 v2, 5, v2
    v_add_u32 v1, v1, v2
    s_lshr_b32 s44, s66, 3
    s_lshl_b32 s44, s44, 14
    s_and_b32 s45, s66, 7
    s_lshl_b32 s45, s45, 7
    s_add_u32 s44, s44, s45
    v_mov_b32 v16, -1
    v_mov_b32 v17, -1
    v_mov_b32 v18, -1
    v_mov_b32 v19, -1
    buffer_store_dwordx4 v[16:19], v1, s[16:19], s44 offen
    buffer_store_dwordx4 v[16:19], v1, s[16:19], s44 offen offset:16
    """)
    A.label(lab)
    srd_off(A, 16, 32, 33, WS_FLAG, 4 * 16 * 64 * 128)
    lab2 = A.newlabel(name + "_fz")
    A(f"s_cmp_eq_u32 s36, 1\ns_cbranch_scc0 {lab2}")
    A("s_lshl_b32 s44, s66, 12\nv_lshlrev_b32 v1, 7, v15\nv_mov_b32 v16, 0\ns_mov_b32 exec_hi, 0")
    A("buffer_store_dword v16, v1, s[16:19], s44 offen")
    A("s_mov_b64 exec, -1")
    A.label(lab2)

def gen_wsp(A, name):
    srd(A, 4, 30, 31, 2048 * 4096)
    srd_off(A, 8, 32, 33, WS_WSP, 2048 * 4096)
    A(f"""
    v_lshrrev_b32 v1, 2, v15
    s_lshr_b32 s48, s47, 1
    s_lshl_b32 s44, s48, 4
    v_add_u32 v1, s44, v1
    v_lshlrev_b32 v1, 12, v1
    v_and_b32 v2, 3, v15
    v_lshlrev_b32 v2, 4, v2
    v_add_u32 v1, v1, v2
    s_and_b32 s49, s47, 1
    s_lshl_b32 s49, s49, 2
    s_add_u32 s49, s49, s36
    s_lshl_b32 s45, s49, 9
    s_lshl_b32 s46, s36, 13
    """)
    for j in range(8):
        A(f"s_add_u32 s50, s45, {j*64}\ns_add_u32 m0, s46, {j*1024}\ns_nop 0\nbuffer_load_dwordx4 v1, s[4:7], s50 offen lds")
    A(f"""
    v_and_b32 v2, 15, v15
    v_lshlrev_b32 v2, 2, v2
    v_lshrrev_b32 v3, 4, v15
    v_add_u32 v2, v2, v3
    v_lshlrev_b32 v2, 4, v2
    v_add_u32 v2, s46, v2
    v_lshlrev_b32 v3, 4, v15
    s_lshl_b32 s44, s48, 16
    s_lshl_b32 s45, s49, 13
    s_add_u32 s44, s44, s45
    s_add_u32 s45, s44, 4096
    s_waitcnt vmcnt(0)
    """)
    for j in range(8):
        A(f"ds_read_b128 {vr(16+4*j,4)}, v2 offset:{j*1024}")
    for j in range(8):
        A(f"s_waitcnt lgkmcnt({7-j})")
        A(f"buffer_store_dwordx4 {vr(16+4*j,4)}, v3, s[8:11], {'s44' if j < 4 else 's45'} offen offset:{(j%4)*1024}")

def gen_wtile(A, name, which):
    pitch = 9216 if which == 'in' else 1152
    srd(A, 4, 30, 31, 576 * 9216 if which == 'in' else 2304 * 1152)
    srd_off(A, 8, 32, 33, WS_WIT if which == 'in' else WS_WOT, 576 * 9216 if which == 'in' else 2304 * 1152)
    if which == 'in':
        A(f"s_lshr_b32 s48, s47, 3\ns_and_b32 s49, s47, 7\ns_mul_i32 s44, s48, {32*pitch}\ns_mul_i32 s45, s49, 1152\ns_add_u32 s44, s44, s45")
    else:
        A(f"s_mov_b32 s48, s47\ns_mul_i32 s44, s48, {32*pitch}")
    A(f"s_mul_i32 s45, s36, {8*pitch}\ns_add_u32 s44, s44, s45\ns_mul_i32 s46, s36, 9216")
    for j in range(9):
        A(f"""
        v_add_u32 v1, {64*j}, v15
        v_mul_u32_u24 v2, 911, v1
        v_lshrrev_b32 v2, 16, v2
        v_mul_u32_u24 v3, 72, v2
        v_sub_u32 v3, v1, v3
        v_mul_u32_u24 v2, {pitch}, v2
        v_lshl_add_u32 v{16+j}, v3, 4, v2
        """)
    for j in range(9):
        A(f"s_add_u32 m0, s46, {j*1024}\ns_nop 0\nbuffer_load_dwordx4 v{16+j}, s[4:7], s44 offen lds")
    def lane_addr(natural):
        if natural:
            A("v_lshrrev_b32 v1, 4, v15\nv_lshlrev_b32 v1, 3, v1\nv_bfe_u32 v2, v15, 2, 2\nv_add_u32 v1, v1, v2")
        else:
            A("v_lshrrev_b32 v1, 2, v15")
        A(f"""
        v_mul_u32_u24 v1, 1152, v1
        v_and_b32 v2, 3, v15
        v_lshlrev_b32 v2, 3, v2
        v_add_u32 v1, v1, v2
        s_mul_i32 s45, s36, 288
        v_add_u32 v1, s45, v1
        """)
    def reads(hfo):
        for j in range(9):
            for hf in range(2):
                A(f"ds_read_b64_tr_b16 {vr(32+4*j+2*hf,2)}, v1 offset:{j*32 + hf*hfo}")
    A("v_lshlrev_b32 v3, 4, v15\ns_waitcnt vmcnt(0)\ns_barrier")
    if which == 'in':
        lane_addr(True); reads(4*1152)
    else:
        nat = A.newlabel(name + "_nat"); dn = A.newlabel(name + "_nd")
        A(f"s_mul_i32 s50, s48, 57\ns_lshr_b32 s50, s50, 9\ns_mul_i32 s50, s50, 9\ns_sub_u32 s50, s48, s50\ns_cmp_eq_u32 s50, 4\ns_cbranch_scc1 {nat}")
        lane_addr(False); reads(16*1152)
        A(f"s_branch {dn}")
        A.label(nat)
        lane_addr(True); reads(4*1152)
        A.label(dn)
    if which == 'in':
        A("s_lshl_b32 s44, s49, 2\ns_add_u32 s44, s44, s36\ns_mul_i32 s44, s44, 18\ns_add_u32 s44, s44, s48\ns_mul_i32 s44, s44, 9216")
    A("s_waitcnt lgkmcnt(0)")
    for j in range(9):
        if which == 'in':
            A(f"s_add_u32 s45, s44, {j*1024}")
        else:
            A(f"s_mul_i32 s45, s36, 9\ns_add_u32 s45, s45, {j}\ns_mul_i32 s50, s45, 43\ns_lshr_b32 s50, s50, 8\ns_mul_i32 s51, s50, 6\ns_sub_u32 s45, s45, s51")
            A("s_mul_i32 s50, s50, 72\ns_add_u32 s50, s50, s48\ns_mul_i32 s50, s50, 6\ns_add_u32 s45, s45, s50\ns_lshl_b32 s45, s45, 10")
        A(f"buffer_store_dwordx4 {vr(32+4*j,4)}, v3, s[8:11], s45 offen")

def gen_l0(name, kgen=None, stamps=False):
    A = Asm()
    def mk():
        st = Stamper(A, 0, stamps); st.n = 1; return st
    KN = 576 if K4 else 288
    B1 = 128 + KN; B2 = B1 + 72; B3 = B2 + (144 if WITR else 64)
    nwg = B2 if NOTOUCH else B3 + (0 if NOTOUCH_SP else 128)
    B4 = nwg
    if TLBW: nwg += 8
    A(f"""
    s_cmp_ge_u32 s2, {nwg}
    s_cbranch_scc1 {name}_end
    s_load_dwordx4 s[28:31], s[0:1], 0
    s_load_dwordx8 s[56:63], s[0:1], 8
    s_load_dwordx2 s[64:65], s[0:1], 40
    s_load_dwordx4 s[88:91], s[0:1], 64
    s_load_dwordx2 s[92:93], s[0:1], 88
    s_load_dwordx2 s[32:33], s[0:1], 112
    """)
    if stamps: A("s_memrealtime s[96:97]\ns_memtime s[70:71]")
    A(f"""
    v_lshrrev_b32 v1, 6, v0
    v_and_b32 v15, 63, v0
    s_nop 0
    v_readfirstlane_b32 s36, v1
    s_waitcnt lgkmcnt(0)
    s_cmp_ge_u32 s2, 128
    s_cbranch_scc1 {name}_r1
    """)
    A("s_and_b32 s44, s2, 7\ns_lshl_b32 s44, s44, 4\ns_lshr_b32 s45, s2, 3\ns_add_u32 s66, s44, s45")
    st = mk()
    gen_ln(A, name, st.stamp)
    st.stamp()
    st.finish(vbase=100)
    A("s_endpgm")
    A.label(f"{name}_r1")
    A(f"s_cmp_ge_u32 s2, {B1}\ns_cbranch_scc1 {name}_r2")
    if K4:
        import kgen as _kg
        A("s_sub_u32 s47, s2, 128")
        _kg.gen_kgen4(A, name)
    else:
        A("s_sub_u32 s47, s2, 128\ns_lshl_b32 s47, s47, 1\ns_lshr_b32 s38, s36, 1\ns_and_b32 s37, s36, 1\ns_add_u32 s47, s47, s38")
        kgen(A, name)
    mk().finish(vbase=100)
    A("s_endpgm")
    A.label(f"{name}_r2")
    A(f"s_cmp_ge_u32 s2, {B2}\ns_cbranch_scc1 {name}_r3")
    A(f"s_sub_u32 s47, s2, {B1}\ns_mov_b32 s30, s92\ns_mov_b32 s31, s93")
    gen_wtile(A, name, 'out')
    mk().finish(vbase=100)
    A("s_endpgm")
    A.label(f"{name}_r3")
    if TLBW:
        A(f"s_cmp_ge_u32 s2, {B4}\ns_cbranch_scc0 {name}_r3c")
        srd_off(A, 4, 32, 33, 0, 0x4800000)
        A("v_lshlrev_b32 v1, 16, v15\ns_lshl_b32 s44, s36, 24")
        for j in range(4):
            A(f"s_add_u32 s45, s44, {j*0x400000}\nbuffer_load_dword v16, v1, s[4:7], s45 offen")
        A("s_add_u32 s45, s44, 0x4000000\nbuffer_load_dword v16, v1, s[4:7], s45 offen")
        A("s_waitcnt vmcnt(0)\ns_endpgm")
        A.label(f"{name}_r3c")
    A(f"s_cmp_ge_u32 s2, {B3}\ns_cbranch_scc0 {name}_r3b")
    srd(A, 4, 90, 91, 2048*4096)
    A(f"s_sub_u32 s44, s2, {B3}\ns_lshl_b32 s44, s44, 2\ns_add_u32 s44, s44, s36\ns_lshl_b32 s44, s44, 14\nv_lshlrev_b32 v1, 4, v15")
    for j in range(16):
        A(f"s_add_u32 s46, s44, {j*1024}\nbuffer_load_dwordx4 v[16:19], v1, s[4:7], s46 offen")
    A("s_endpgm" if NOWAIT else "s_waitcnt vmcnt(0)\ns_endpgm")
    A.label(f"{name}_r3b")
    if WITR:
        A(f"s_sub_u32 s47, s2, {B2}\ns_mov_b32 s30, s88\ns_mov_b32 s31, s89")
        gen_wtile(A, name, 'in')
        A("s_endpgm")
    srd(A, 4, 88, 89, 576*9216)
    A(f"s_sub_u32 s44, s2, {B2}\ns_lshl_b32 s44, s44, 2\ns_add_u32 s44, s44, s36\ns_mul_i32 s44, s44, 20736\nv_lshlrev_b32 v1, 4, v15")
    for j in range(21):
        A(f"s_add_u32 s46, s44, {j*1024}\nbuffer_load_dwordx4 v[16:19], v1, s[4:7], s46 offen")
    if not NOWAIT:
        A("s_waitcnt vmcnt(0)")
        mk().finish(vbase=100)
    A.label(f"{name}_end")
    A("s_endpgm")
    return A.text(), kernel_desc(name, 124, 0), nwg


def gen_l0_bal(name, stamps=False):
    import kgen as _kg
    A = Asm()
    nwg = 1032
    A(f"""
    s_cmp_ge_u32 s2, {nwg}
    s_cbranch_scc1 {name}_end
    s_load_dwordx4 s[28:31], s[0:1], 0
    s_load_dwordx8 s[56:63], s[0:1], 8
    s_load_dwordx2 s[64:65], s[0:1], 40
    s_load_dwordx4 s[88:91], s[0:1], 64
    s_load_dwordx2 s[92:93], s[0:1], 88
    s_load_dwordx2 s[32:33], s[0:1], 112
    v_lshrrev_b32 v1, 6, v0
    v_and_b32 v15, 63, v0
    s_nop 0
    v_readfirstlane_b32 s36, v1
    s_waitcnt lgkmcnt(0)
    s_cmp_ge_u32 s2, 256
    s_cbranch_scc1 {name}_r1
    """)
    srd(A, 4, 88, 89, 576*9216); srd(A, 8, 90, 91, 2048*4096)
    A("s_lshl_b32 s44, s2, 2\ns_add_u32 s44, s44, s36\ns_mul_i32 s45, s44, 5184\ns_lshl_b32 s46, s44, 13\nv_lshlrev_b32 v1, 4, v15")
    for j in range(8):
        if j < 6: A(f"s_add_u32 s47, s45, {j*1024}\nbuffer_load_dwordx4 v[16:19], v1, s[4:7], s47 offen")
        A(f"s_add_u32 s47, s46, {j*1024}\nbuffer_load_dwordx4 v[20:23], v1, s[8:11], s47 offen")
    if BALWAIT: A("s_waitcnt vmcnt(0)")
    A("s_endpgm")
    A.label(f"{name}_r1")
    A(f"s_cmp_ge_u32 s2, 384\ns_cbranch_scc1 {name}_r2")
    A("s_sub_u32 s67, s2, 256\ns_and_b32 s44, s67, 7\ns_lshl_b32 s44, s44, 4\ns_lshr_b32 s45, s67, 3\ns_add_u32 s66, s44, s45")
    gen_ln(A, name)
    A("s_endpgm")
    A.label(f"{name}_r2")
    A(f"s_cmp_ge_u32 s2, 456\ns_cbranch_scc1 {name}_r3")
    A("s_sub_u32 s47, s2, 384\ns_mov_b32 s30, s92\ns_mov_b32 s31, s93")
    gen_wtile(A, name, 'out')
    A("s_endpgm")
    A.label(f"{name}_r3")
    A("s_sub_u32 s47, s2, 456")
    _kg.gen_kgen4(A, name)
    A.label(f"{name}_end")
    A("s_endpgm")
    return A.text(), kernel_desc(name, 124, 0), nwg
```

```python
import sys
from asmlib import *
from l0 import gen_l0
from g1 import gen_g1
from g1b import gen_g1b
from g2 import gen_g2
from g3 import gen_g3
from l3 import gen_l3
from fused import gen_fused
import fused3
import fused4
from kgen import gen_kgen
from conv import gen_conv
TOUCH = False
SC1 = False
DOC = """; Design (generated by the author's own scripts, all code hand-scheduled there):
;  l0_kernel : LayerNorm(x) -> xn in MFMA-fragment order (+ transposed copy), S4D kernel K(l) via MFMA factorisation
;  m_kernel  : persistent, one workgroup per CU: GEMM1(z2 half)+gelu+LN stats exchange, Toeplitz-MFMA conv (channel A), z2n publish,
;              GEMM1(z1 half), GEMM2 (w_sp x z2n) with z1 kept in registers, conv (channel B), GEMM3 + silu + residual.
;              Cross-workgroup hand-offs: sc1 write-through stores + per-producer flags in d_ws (zeroed by l0_kernel), sc1 loads.
"""
def build(path, parts, stamps=False):
    launches = ""; text = ""; descs = ""
    for p in parts:
        if p == "l0":
            import l0 as _lx
            body, desc, nwg = (_lx.gen_l0_bal("l0_kernel", stamps) if _lx.BAL else gen_l0("l0_kernel", gen_kgen, stamps)); launches += f"; @launch kernel=l0_kernel grid=({nwg},1,1) block=(256,1,1) lds=36864\n"; nm = "l0_kernel"
        elif p == "g1":
            body, desc, lds = gen_g1("g1_kernel", stamps); launches += f"; @launch kernel=g1_kernel grid=(256,1,1) block=(256,1,1) lds={lds}\n"; nm = "g1_kernel"
        elif p == "g1b":
            body, desc, lds = gen_g1b("g1_kernel", stamps); launches += f"; @launch kernel=g1_kernel grid=(512,1,1) block=(256,1,1) lds={lds}\n"; nm = "g1_kernel"
        elif p == "g2":
            body, desc = gen_g2("g2_kernel", stamps); launches += f"; @launch kernel=g2_kernel grid=(256,1,1) block=(256,1,1) lds=147456\n"; nm = "g2_kernel"
        elif p == "g3":
            body, desc, lds = gen_g3("g3_kernel", stamps); launches += f"; @launch kernel=g3_kernel grid=(192,1,1) block=(256,1,1) lds={lds}\n"; nm = "g3_kernel"
        elif p == "fused":
            body, desc, lds = gen_fused("m_kernel", stamps); launches += f"; @launch kernel=m_kernel grid=(256,1,1) block=(256,1,1) lds={lds}\n"; nm = "m_kernel"
        elif p == "fused4":
            body, desc, lds = fused4.gen_fused("m_kernel", stamps); launches += f"; @launch kernel=m_kernel grid=(256,1,1) block=(256,1,1) lds={lds}\n"; nm = "m_kernel"
        elif p == "single":
            nm = "recurrent_scan__ssm_conv_s4d__mixer_gmlp__prompt_kernel"
            body, desc, lds = fused3.gen_fused(nm, stamps); launches += f"; @launch grid=(256,1,1) block=(256,1,1) lds={lds}\n"
        elif p == "l3":
            body, desc, lds, nwg = gen_l3("l3_kernel", stamps); launches += f"; @launch kernel=l3_kernel grid=({nwg},1,1) block=(256,1,1) lds={lds}\n"; nm = "l3_kernel"
        elif p == "conv":
            body, desc, lds, nwg = gen_conv("cv_kernel", 4, stamps); launches += f"; @launch kernel=cv_kernel grid=({nwg},1,1) block=(256,1,1) lds={lds}\n"; nm = "cv_kernel"
        if SC1 and p not in ('l3', 'fused', 'single', 'fused4'):
            from post import add_store_flags
            body = add_store_flags(body, 'sc1')
        text += kernel_header(nm) + body
        descs += desc
    s = HEADER + launches + DOC + '.amdgcn_target "amdgcn-amd-amdhsa--gfx950"\n.text\n' + text + '.section .rodata,"a"\n' + descs
    open(path, "w").write(s)
if __name__ == "__main__":
    args = sys.argv[1:]
    stamps = "stamps" in args
    TOUCH = "touch" in args
    SC1 = "sc1" in args
    import l0 as _l00
    _l00.NOWAIT = "nowait" in args
    _l00.NOTOUCH_SP = "notsp" in args
    _l00.NOTOUCH = "notouch" in args
    _l00.K4 = "k4" in args
    _l00.BAL = "bal" in args or "balw" in args
    _l00.BALWAIT = "balw" in args
    args = [a for a in args if a not in ("bal", "balw")]
    _l00.TLBW = "tlbw" in args
    args = [a for a in args if a != "tlbw"]
    import g1n
    _l00.WITR = g1n.WIT = "wit" in args
    g1n.XST = "xst" in args
    g1n.SPREAD = "spread" in args
    args = [a for a in args if a != "spread"]
    args = [a for a in args if a != "xst"]
    args = [a for a in args if a != "wit"]
    args = [a for a in args if a != "k4"]
    fused4.OUTSC1 = "outsc1" in args
    fused4.STLATE = "stlate" in args
    args = [a for a in args if a != "stlate"]
    fused4.G3A2 = "g3a2" in args or "g3stag" in args
    fused4.G3STAG = "g3stag" in args
    args = [a for a in args if a not in ("g3a2", "g3stag")]
    fused4.L2PF = 2 if "l2pf2" in args else (1 if "l2pf" in args else 0)
    args = [a for a in args if a not in ("l2pf", "l2pf2")]
    fused4.T2B = "t2b" in args
    args = [a for a in args if a != "t2b"]
    fused4.EPIPF = "epipf" in args
    args = [a for a in args if a != "epipf"]
    import conv1
    conv1.UNI = "uni" in args
    args = [a for a in args if a != "uni"]
    fused4.G3P = "g3p" in args
    args = [a for a in args if a != "g3p"]
    fused4.INLINE1 = "inl" in args
    args = [a for a in args if a != "inl"]
    fused4.TAILPF = "tailpf" in args
    args = [a for a in args if a != "tailpf"]
    args = [a for a in args if a not in ("notouch", "outsc1")]
    args = [a for a in args if a != "notsp"]
    args = [a for a in args if a != "nowait"]
    import l0 as _l0, fused as _f
    if "fromxn" in args:
        _l0.NO_XNT = True; _f.FROM_XN = True; _f.CONV_LK = 106240; fused4.FROM_XN = True; fused4.CONV_LK = 106240
    args = [a for a in args if a != "fromxn"]
    import kgen
    kgen.UNAL = "unal" in args
    args = [a for a in args if a != "unal"]
    import g1
    g1.EXP = set(a[2:] for a in args if a.startswith("x_"))
    args = [a for a in args if not a.startswith("x_")]
    import l3
    l3.PRIO = "prio" in args
    l3.NOCONV = "noconv" in args
    parts = [a for a in args[1:] if a not in ("stamps", "touch", "sc1", "prio", "noconv")]
    build(args[0], parts, stamps)
```
